```python
import torch

def _softmax(x, axis=-1):
    return torch.softmax(x, dim=axis)
def _gelu(x):
    return torch.nn.functional.gelu(x, approximate="tanh")
def _silu(x):
    return torch.nn.functional.silu(x)
def _sigmoid(x):
    return torch.sigmoid(x)
def _layernorm(x, axis=-1, eps=1e-5):
    m = x.mean(dim=axis, keepdim=True)
    v = x.var(dim=axis, keepdim=True, unbiased=False)
    return (x - m) / torch.sqrt(v + eps)
def _scatter_add(tgt, idx, src, axis=0):
    return tgt.clone().index_add_(axis, idx, src)
def _segment_sum(src, seg, n):
    out = torch.zeros((n,) + src.shape[1:], dtype=src.dtype)
    return out.index_add_(0, seg, src)
def _pad(x, pw):
    flat = tuple(v for pair in reversed(pw) for v in pair)
    return torch.nn.functional.pad(x, flat)

kernel_name = 'recurrent_scan__sliding_block_cached__swiglu_ffn__decode'

def setup_inputs():

    _w = (lambda a: (lambda t: t.to(torch.bfloat16) if t.is_floating_point() else t)(torch.as_tensor(a)))
    def _A_setup():
        B, Sq, D = 8, 1, 512
        Hq, Hkv, Sk, Dh = 32, 8, 4096, 128
        assert Hq % Hkv == 0, (Hq, Hkv)
        return {
            "x": _w((lambda *s: torch.randn(*s, dtype=torch.bfloat16) * 0.05)(B, Sq, D)),
            "k_cache": _w((lambda *s: torch.randn(*s, dtype=torch.bfloat16) * 0.8)(B, Hkv, Sk, Dh)),
            "v_cache": _w((lambda *s: torch.randn(*s, dtype=torch.bfloat16) * 0.2)(B, Hkv, Sk, Dh)),
            "wq": _w((lambda *s: torch.randn(*s, dtype=torch.bfloat16) * 0.8)(D, Hq * Dh) * (D ** -0.5)),
            "wo": _w((lambda *s: torch.randn(*s, dtype=torch.bfloat16) * 0.2)(Hq * Dh, D) * ((Hq * Dh) ** -0.5)),
        }
    _A_in = _A_setup()

    def _B_setup():
        B, S, D, F = 8, 1, 512, 1792
        return {
            "x": _w((lambda *s: torch.randn(*s, dtype=torch.bfloat16) * 0.05)(B, S, D)),
            "w_gate": _w((lambda *s: torch.randn(*s, dtype=torch.bfloat16) * 0.1)(D, F)),
            "w_up": _w((lambda *s: torch.randn(*s, dtype=torch.bfloat16) * 0.1)(D, F)),
            "w_down": _w((lambda *s: torch.randn(*s, dtype=torch.bfloat16) * 0.1)(F, D)),
        }
    _B_in = _B_setup()

    return {
        "A_x": _A_in["x"],
        "A_k_cache": _A_in["k_cache"],
        "A_v_cache": _A_in["v_cache"],
        "A_wq": _A_in["wq"],
        "A_wo": _A_in["wo"],
        "B_x": _B_in["x"],
        "B_w_gate": _B_in["w_gate"],
        "B_w_up": _B_in["w_up"],
        "B_w_down": _B_in["w_down"],
    }

def reference(A_x, A_k_cache, A_v_cache, A_wq, A_wo, B_x, B_w_gate, B_w_up, B_w_down):
    def _A_ref(x, k_cache, v_cache, wq, wo):
        B, Sq, D = x.shape
        Hq, Dh = 32, 128
        Hkv, Sk = k_cache.shape[1], k_cache.shape[2]
        W = min(4096, max(256, Sk // 4))
        rep = Hq // Hkv
        q = (lambda x, *d: x.permute(*d))((x @ wq).reshape(B, Sq, Hq, Dh), 0, 2, 1, 3)
        k = (lambda x, n, axis: torch.repeat_interleave(x, n, dim=axis))(k_cache[:, :, Sk - W:, :], rep, axis=1)
        v = (lambda x, n, axis: torch.repeat_interleave(x, n, dim=axis))(v_cache[:, :, Sk - W:, :], rep, axis=1)
        scores = torch.einsum("bhqd,bhkd->bhqk", q, k) * (Dh ** -0.5)
        p = _softmax(scores, axis=-1)
        o = torch.einsum("bhqk,bhkd->bhqd", p, v)
        return (lambda x, *d: x.permute(*d))(o, 0, 2, 1, 3).reshape(B, Sq, Hq * Dh) @ wo

    def _B_ref(x, w_gate, w_up, w_down):
        g = _silu(x @ w_gate)
        u = x @ w_up
        return (g * u) @ w_down

    x = A_x
    xn = _layernorm(x, axis=-1)
    s = _A_ref(xn, A_k_cache, A_v_cache, A_wq, A_wo)
    g = _silu(_B_ref(xn, B_w_gate, B_w_up, B_w_down))
    return x + s * g
```

```python
import sys, struct
KN = "recurrent_scan__sliding_block_cached__swiglu_ffn__decode_kernel"

Q_OFF = 0x0
H_OFF = 0x10000
O_OFF = 0x20000
ML_OFF = 0x60000
SP_OFF = 0x80000
FP_OFF = 0x100000
STAMP_OFF = 0x1000000
F_XN, F_D1, F_Q, F_WO, F_G, F_CLR, F_GO, F_OC, F_RED = 0, 4, 8, 12, 16, 20, 24, 28, 32
XN = 256; XNP = 1040
QL = 8704
D1 = 9728
OC = 11776
OML = 19968
GL = 20224
WOT = 20480
WDT = 36864
W1T = 45056
RED = W1T
LDS_BYTES = 77824

def f32bits(x):
    return struct.unpack("<I", struct.pack("<f", x))[0]

class G:
    def __init__(self, stamps=False, ntkv="nt", ntw="nt"):
        self.L = []
        self.stamps = stamps
        self.nlab = 0
        self.ntkv = ntkv
        self.ntw = ntw
    def A(self, s):
        self.L.append("  " + s)
    def lab(self, name):
        self.L.append(name + ":")
    def newlab(self, p="L"):
        self.nlab += 1
        return f"{p}_{self.nlab}"
    def nop(self, n):
        while n > 0:
            k = min(n, 16)
            self.A(f"s_nop {k-1}")
            n -= k
    def stamp(self, i):
        if self.stamps:
            self.A(f"s_memrealtime s[{80+2*i}:{81+2*i}]")
    def stamp_flush(self, n=10):
        if not self.stamps:
            return
        A = self.A
        A("s_waitcnt lgkmcnt(0) vmcnt(0)")
        A("s_mov_b64 exec, 1")
        A("s_lshl_b32 s68, s2, 3"); A("s_add_u32 s68, s68, s3"); A(f"s_mul_i32 s68, s68, {8*n}")
        A(f"s_add_u32 s68, s68, {STAMP_OFF}")
        A("v_mov_b32 v2, 0")
        for i in range(n):
            A(f"v_mov_b32 v4, s{80+2*i}"); A(f"v_mov_b32 v5, s{81+2*i}")
            A(f"buffer_store_dwordx2 v[4:5], v2, s[52:55], s68 offen offset:{8*i}")
            A("s_nop 1")
    def flag_add(self, off, vz, vone):
        A = self.A
        A("s_waitcnt lgkmcnt(0)")
        A("s_mov_b64 exec, 1")
        A(f"ds_add_u32 v{vz}, v{vone} offset:{off}")
        A("s_mov_b64 exec, -1")
    def flag_wait(self, off, target, vz, vt, st=14, sc=15, sleep=True):
        A = self.A
        l = self.newlab("FW"); d = self.newlab("FD")
        A(f"s_mov_b32 s{sc}, 0x400000")
        self.lab(l)
        A(f"ds_read_b32 v{vt}, v{vz} offset:{off}")
        A("s_waitcnt lgkmcnt(0)")
        A(f"v_readfirstlane_b32 s{st}, v{vt}")
        A(f"s_cmp_ge_u32 s{st}, {target}")
        A(f"s_cbranch_scc1 {d}")
        if sleep:
            A("s_sleep 1")
        A(f"s_sub_u32 s{sc}, s{sc}, 1")
        A(f"s_cmp_lg_u32 s{sc}, 0")
        A(f"s_cbranch_scc1 {l}")
        self.lab(d)
    def poll(self, loads, regs, vt, sc=15):
        A = self.A
        l = self.newlab("PL"); d = self.newlab("PD")
        A(f"s_mov_b32 s{sc}, 0x40000")
        self.lab(l)
        for s in loads:
            A(s)
        A("s_waitcnt vmcnt(0)")
        rs = list(regs)
        A(f"v_max3_u32 v{vt}, v{rs[0]}, v{rs[1]}, v{rs[2] if len(rs) > 2 else rs[1]}")
        rs = rs[3:]
        while rs:
            if len(rs) >= 2:
                A(f"v_max3_u32 v{vt}, v{vt}, v{rs[0]}, v{rs[1]}"); rs = rs[2:]
            else:
                A(f"v_max_u32 v{vt}, v{vt}, v{rs[0]}"); rs = rs[1:]
        A(f"v_cmp_eq_u32 vcc, -1, v{vt}")
        A("s_cmp_eq_u64 vcc, 0")
        A(f"s_cbranch_scc1 {d}")
        A(f"s_sub_u32 s{sc}, s{sc}, 1")
        A(f"s_cmp_lg_u32 s{sc}, 0")
        A(f"s_cbranch_scc1 {l}")
        self.lab(d)
    def allreduce64(self, op, regs, tmps):
        A = self.A
        n = len(regs)
        pad = max(0, 2 - (n - 1))
        for mod in ("quad_perm:[1,0,3,2]", "quad_perm:[2,3,0,1]", "row_half_mirror", "row_mirror"):
            self.nop(pad if n < 3 else 0)
            for r in regs:
                A(f"{op}_dpp v{r}, v{r}, v{r} {mod} row_mask:0xf bank_mask:0xf")
        self.xrow(op, regs, tmps)
    def xrow(self, op, regs, tmps):
        A = self.A
        for sw in ("v_permlane16_swap_b32", "v_permlane32_swap_b32"):
            for r, t in zip(regs, tmps):
                A(f"v_mov_b32 v{t}, v{r}")
            self.nop(2)
            for r, t in zip(regs, tmps):
                A(f"{sw} v{r}, v{t}")
            self.nop(1)
            for r, t in zip(regs, tmps):
                A(f"{op} v{r}, v{r}, v{t}")

def build(stamps=False, ntkv="nt", ntw="nt"):
    g = G(stamps, ntkv, ntw)
    A = g.A; lab = g.lab; nop = g.nop
    hdr = []
    hdr.append(f"; @launch grid=(256,1,1) block=(512,1,1) lds={LDS_BYTES}")
    hdr.append('.amdgcn_target "amdgcn-amd-amdhsa--gfx950"')
    hdr.append(".text"); hdr.append(f".globl {KN}"); hdr.append(".p2align 8"); hdr.append(f".type {KN},@function")
    hdr.append(f"{KN}:")
    A("s_cmp_ge_u32 s2, 256"); A("s_cbranch_scc1 L_end")
    A("s_load_dwordx16 s[4:19], s[0:1], 0")
    A("s_load_dwordx8 s[20:27], s[0:1], 64")
    g.stamp(0)
    A("v_lshrrev_b32 v1, 6, v0")
    A("v_and_b32 v1, 63, v0") if False else None
    A("v_and_b32 v2, 63, v0")
    A("v_readfirstlane_b32 s3, v1")
    A("v_mov_b32 v3, 0")
    A("v_mov_b32 v4, 1")
    for d, n in ((28, 67108864), (32, 67108864), (44, 4194304), (48, 1835008), (52, 268435456), (56, 8192), (60, 8192), (64, 256)):
        A(f"s_mov_b32 s{d+2}, {n}"); A(f"s_mov_b32 s{d+3}, 0x00020000")
    A("s_mov_b32 s39, 0x00020000"); A("s_mov_b32 s43, 0x00020000")
    A("s_and_b32 s70, s2, 7")
    A("s_lshr_b32 s71, s2, 3")
    A("s_lshr_b32 s72, s71, 2")
    A("s_and_b32 s73, s71, 3")
    A("s_lshl_b32 s74, s70, 2"); A("s_lshr_b32 s68, s71, 3"); A("s_add_u32 s74, s74, s68")
    A("s_and_b32 s75, s71, 7")
    A("s_cmp_lg_u32 s3, 7"); A("s_cbranch_scc1 L_noinit")
    A("v_lshlrev_b32 v5, 2, v2")
    A("ds_write_b32 v5, v3")
    lab("L_noinit")
    A("s_waitcnt lgkmcnt(0)")
    for d, b in ((28, 6), (32, 8), (44, 12), (48, 20), (52, 26), (56, 4), (60, 22), (64, 24)):
        A(f"s_mov_b32 s{d}, s{b}"); A(f"s_mov_b32 s{d+1}, s{b+1}")
    A("s_barrier")
    A("s_cmp_ge_u32 s3, 4"); A("s_cbranch_scc1 L_G")

    KR = 16; VR = 80; QF = 144; SR = 160; PP = 176; ACC = 184
    PM = 16
    PB = 48
    A("s_lshl_b32 s76, s72, 3"); A("s_add_u32 s76, s76, s70"); A("s_lshl_b32 s76, s76, 20")
    A("s_lshl_b32 s68, s73, 16"); A("s_add_u32 s76, s76, s68")
    A("s_lshl_b32 s68, s3, 14"); A("s_add_u32 s76, s76, s68")
    A(f"s_add_u32 s76, s76, {3072*256}")
    A("v_and_b32 v5, 15, v2")
    A("v_lshrrev_b32 v6, 4, v2")
    A("v_lshlrev_b32 v7, 8, v5"); A("v_lshl_add_u32 v7, v6, 4, v7")
    A("v_lshlrev_b32 v8, 10, v6"); A("v_lshl_add_u32 v8, v5, 4, v8")
    for T in range(4):
        if T: A("s_add_u32 s76, s76, 4096")
        for t in range(4):
            r = KR + (T*4 + t)*4
            A(f"buffer_load_dwordx4 v[{r}:{r+3}], v7, s[28:31], s76 offen offset:{t*64} {g.ntkv}")
    A("s_sub_u32 s76, s76, 12288")
    for q4 in range(4):
        if q4: A("s_add_u32 s76, s76, 4096")
        for jl in range(4):
            r = VR + (q4*4 + jl)*4
            A(f"buffer_load_dwordx4 v[{r}:{r+3}], v8, s[32:35], s76 offen offset:{jl*256} {g.ntkv}")
    A("v_lshrrev_b32 v9, 3, v2"); A("v_lshlrev_b32 v9, 10, v9")
    A("v_and_b32 v10, 7, v2"); A("v_lshl_add_u32 v9, v10, 4, v9")
    A("s_lshl_b32 s76, s74, 17")
    A("s_lshl_b32 s68, s3, 15"); A("s_add_u32 s76, s76, s68")
    A("s_lshl_b32 s68, s75, 7"); A("s_add_u32 s76, s76, s68")
    A("s_lshl_b32 s77, s3, 12"); A(f"s_add_u32 s77, s77, {WOT}")
    for i in range(4):
        A("s_mov_b32 m0, s77")
        A("s_add_u32 s77, s77, 1024")
        A(f"buffer_load_dwordx4 v9, s[44:47], s76 offen {g.ntw} lds")
        A("s_add_u32 s76, s76, 8192")
    g.stamp(1)
    A("s_mov_b32 s76, 0x05040100"); A("s_mov_b32 s77, 0x07060302")
    c = 1.4426950408889634 * (128 ** -0.5)
    A(f"s_mov_b32 s78, 0x{f32bits(c):08x}")
    A("v_and_b32 v9, 3, v2"); A("v_lshlrev_b32 v9, 8, v9"); A("v_lshl_add_u32 v9, v6, 4, v9")
    g.flag_wait(F_Q, 1, 3, 10)
    g.stamp(2)
    for t in range(4):
        A(f"ds_read_b128 v[{QF+4*t}:{QF+4*t+3}], v9 offset:{QL + t*64}")
    A("s_waitcnt lgkmcnt(0)")
    for T in range(4):
        A(f"s_waitcnt vmcnt({36 - 4*(T+1)})")
        for t in range(4):
            r = KR + (T*4 + t)*4
            cc = "0" if t == 0 else f"v[{SR+4*T}:{SR+4*T+3}]"
            A(f"v_mfma_f32_16x16x32_bf16 v[{SR+4*T}:{SR+4*T+3}], v[{r}:{r+3}], v[{QF+4*t}:{QF+4*t+3}], {cc}")
    nop(8)
    A(f"v_max3_f32 v10, v{SR}, v{SR+1}, v{SR+2}")
    for i in range(3, 15, 2):
        A(f"v_max3_f32 v10, v10, v{SR+i}, v{SR+i+1}")
    A(f"v_max_f32 v10, v10, v{SR+15}")
    g.xrow("v_max_f32", [10], [11])
    A("v_mul_f32 v10, s78, v10")
    for i in range(16):
        A(f"v_fma_f32 v{SR+i}, v{SR+i}, s78, -v10")
    for i in range(16):
        A(f"v_exp_f32 v{SR+i}, v{SR+i}")
    nop(1)
    for i in range(8):
        A(f"v_cvt_pk_bf16_f32 v{PP+i}, v{SR+2*i}, v{SR+2*i+1}")
    A(f"v_add_f32 v11, v{SR}, v{SR+1}")
    for i in range(2, 16):
        A(f"v_add_f32 v11, v11, v{SR+i}")
    g.xrow("v_add_f32", [11], [12])
    for rho in range(4):
        m = 0x000F000F << (4*rho)
        A(f"s_mov_b32 s68, 0x{m:08x}"); A(f"s_mov_b32 s69, 0x{m:08x}")
        for i in range(8):
            A(f"v_cndmask_b32 v{PM+rho*8+i}, 0, v{PP+i}, s[68:69]")
    A("v_lshlrev_b32 v12, 5, v2"); A("s_lshl_b32 s68, s3, 3"); A("v_add_u32 v12, s68, v12")
    A("s_mov_b64 exec, 15")
    A(f"ds_write_b64 v12, v[10:11] offset:{OML}")
    A("s_mov_b64 exec, -1")
    g.stamp(3)
    for G_ in range(2):
        for jj in range(4):
            q = G_*8 + 2*jj
            A(f"s_waitcnt vmcnt({36 - 16 - (q+2)})")
            r0 = VR + q*4; r1 = VR + (q+1)*4
            for e in range(4):
                A(f"v_perm_b32 v{PB + (2*e)*4 + jj}, v{r1+e}, v{r0+e}, s76")
                A(f"v_perm_b32 v{PB + (2*e+1)*4 + jj}, v{r1+e}, v{r0+e}, s77")
        nop(2)
        for i in range(8):
            acc = ACC + (i >> 2)*4
            cc = "0" if (G_ == 0 and (i & 3) == 0) else f"v[{acc}:{acc+3}]"
            pa = PM + (i & 3)*8 + G_*4
            A(f"v_mfma_f32_16x16x32_bf16 v[{acc}:{acc+3}], v[{pa}:{pa+3}], v[{PB+i*4}:{PB+i*4+3}], {cc}")
    g.stamp(4)
    A("v_lshlrev_b32 v12, 2, v2"); A("s_lshl_b32 s68, s3, 11"); A("v_add_u32 v13, s68, v12")
    A(f"v_add_u32 v13, {OC}, v13")
    nop(6)
    for r in range(4):
        A(f"ds_write2st64_b32 v13, v{ACC+r}, v{ACC+4+r} offset0:{2*r} offset1:{2*r+1}")
    g.flag_add(F_OC, 3, 4)
    A("s_lshl_b32 s68, s3, 9"); A("v_add_u32 v13, s68, v12"); A(f"v_add_u32 v13, {OC}, v13")
    A("s_lshl_b32 s68, s3, 5"); A("v_mov_b32 v14, s68")
    g.flag_wait(F_OC, 4, 3, 10, sleep=False)
    A(f"ds_read_b128 v[16:19], v14 offset:{OML}")
    A(f"ds_read_b128 v[20:23], v14 offset:{OML+16}")
    for w in range(4):
        A(f"ds_read2st64_b32 v[{24+2*w}:{25+2*w}], v13 offset0:{8*w} offset1:{8*w+1}")
    A("s_waitcnt lgkmcnt(0)")
    A("v_max3_f32 v32, v16, v18, v20"); A("v_max_f32 v32, v32, v22")
    for w in range(4):
        A(f"v_sub_f32 v{16+2*w}, v{16+2*w}, v32")
    for w in range(4):
        A(f"v_exp_f32 v{16+2*w}, v{16+2*w}")
    nop(1)
    A("v_mul_f32 v34, v16, v24"); A("v_mul_f32 v35, v16, v25"); A("v_mul_f32 v33, v16, v17")
    for w in range(1, 4):
        A(f"v_fmac_f32 v34, v{16+2*w}, v{24+2*w}"); A(f"v_fmac_f32 v35, v{16+2*w}, v{25+2*w}")
        A(f"v_fmac_f32 v33, v{16+2*w}, v{17+2*w}")
    A("v_cvt_pk_bf16_f32 v34, v34, v35")
    A("v_min_u32 v34, -2, v34"); A("v_min_u32 v32, -2, v32"); A("v_min_u32 v33, -2, v33")
    A("s_lshl_b32 s68, s70, 2"); A("s_add_u32 s68, s68, s3")
    A("s_lshl_b32 s69, s68, 2"); A("s_add_u32 s69, s69, s73"); A("s_lshl_b32 s69, s69, 3"); A("s_add_u32 s69, s69, s72")
    A("s_lshl_b32 s69, s69, 8"); A(f"s_add_u32 s69, s69, {O_OFF}")
    A("buffer_store_dword v34, v12, s[52:55], s69 offen sc1")
    A("s_lshl_b32 s69, s68, 3"); A("s_add_u32 s69, s69, s72"); A("s_lshl_b32 s69, s69, 2"); A("s_add_u32 s69, s69, s73")
    A("s_lshl_b32 s69, s69, 3"); A(f"s_add_u32 s69, s69, {ML_OFF}")
    A("s_mov_b64 exec, 1")
    A("buffer_store_dwordx2 v[32:33], v3, s[52:55], s69 offen sc1")
    A("s_mov_b64 exec, -1")
    g.stamp(5)
    A("s_waitcnt vmcnt(0)")
    g.flag_add(F_WO, 3, 4)
    A("v_lshrrev_b32 v16, 2, v5"); A("v_lshlrev_b32 v16, 9, v16")
    A("v_lshl_add_u32 v16, v6, 12, v16")
    A("v_and_b32 v17, 3, v2"); A("v_lshl_add_u32 v16, v17, 3, v16")
    A("s_and_b32 s68, s3, 1"); A("s_lshl_b32 s68, s68, 8"); A("v_add_u32 v16, s68, v16")
    A("v_lshlrev_b32 v17, 8, v5"); A("v_lshl_add_u32 v17, v6, 4, v17")
    A("s_lshl_b32 s76, s74, 13"); A("s_lshr_b32 s69, s3, 1"); A("s_lshl_b32 s69, s69, 12"); A("s_add_u32 s76, s76, s69")
    A("s_lshr_b32 s68, s68, 1"); A("s_add_u32 s76, s76, s68"); A(f"s_add_u32 s76, s76, {O_OFF}")
    A("v_and_b32 v18, 31, v2"); A("v_lshlrev_b32 v18, 3, v18")
    A("s_lshl_b32 s77, s74, 8"); A(f"s_add_u32 s77, s77, {ML_OFF}")
    A("v_and_b32 v19, 1, v6"); A("v_lshlrev_b32 v19, 4, v19"); A("v_lshrrev_b32 v20, 1, v6"); A("v_add_u32 v19, v19, v20")
    A("s_lshr_b32 s69, s3, 1"); A("s_lshl_b32 s69, s69, 1"); A("v_add_u32 v19, s69, v19"); A("v_lshlrev_b32 v19, 2, v19")
    g.flag_wait(F_WO, 4, 3, 10, sleep=False)
    BF = 32
    for nt in range(4):
        for t in range(2):
            r = BF + (nt*2 + t)*4
            off = WOT + t*128 + nt*32
            A(f"ds_read_b64_tr_b16 v[{r}:{r+1}], v16 offset:{off}")
            A(f"ds_read_b64_tr_b16 v[{r+2}:{r+3}], v16 offset:{off + 2048}")
    g.flag_wait(F_GO, 1, 3, 10, sleep=False)
    AF = 64
    g.poll([f"buffer_load_dwordx4 v[{AF}:{AF+3}], v17, s[52:55], s76 offen sc1",
            f"buffer_load_dwordx4 v[{AF+4}:{AF+7}], v17, s[52:55], s76 offen offset:64 sc1",
            f"buffer_load_dwordx2 v[72:73], v18, s[52:55], s77 offen sc1"],
           list(range(AF, AF+10)), 10)
    g.stamp(6)
    DW = 80
    for nt in range(4):
        for t in range(2):
            r = BF + (nt*2 + t)*4
            cc = "0" if t == 0 else f"v[{DW+4*nt}:{DW+4*nt+3}]"
            A(f"v_mfma_f32_16x16x32_bf16 v[{DW+4*nt}:{DW+4*nt+3}], v[{AF+4*t}:{AF+4*t+3}], v[{r}:{r+3}], {cc}")
    A("v_max_f32_dpp v74, v72, v72 quad_perm:[1,0,3,2] row_mask:0xf bank_mask:0xf")
    nop(2)
    A("v_max_f32_dpp v74, v74, v74 quad_perm:[2,3,0,1] row_mask:0xf bank_mask:0xf")
    A("v_sub_f32 v75, v72, v74")
    A("v_exp_f32 v75, v75")
    nop(1)
    A("v_mul_f32 v76, v75, v73")
    nop(2)
    A("v_add_f32_dpp v76, v76, v76 quad_perm:[1,0,3,2] row_mask:0xf bank_mask:0xf")
    nop(2)
    A("v_add_f32_dpp v76, v76, v76 quad_perm:[2,3,0,1] row_mask:0xf bank_mask:0xf")
    A("v_rcp_f32 v76, v76")
    nop(1)
    A("v_mul_f32 v75, v75, v76")
    for r in range(4):
        A(f"ds_bpermute_b32 v{96+r}, v19, v75 offset:{16*r}")
    A("v_lshrrev_b32 v20, 1, v6"); A("s_lshl_b32 s68, s3, 1"); A("v_add_u32 v20, s68, v20"); A("v_lshlrev_b32 v20, 11, v20")
    A("v_lshl_add_u32 v20, v5, 5, v20"); A("v_and_b32 v21, 1, v6"); A("v_lshl_add_u32 v20, v21, 4, v20")
    A("s_waitcnt lgkmcnt(0)")
    for nt in range(4):
        for r in range(4):
            A(f"v_mul_f32 v{DW+4*nt+r}, v{DW+4*nt+r}, v{96+r}")
    for nt in range(4):
        A(f"ds_write_b128 v20, v[{DW+4*nt}:{DW+4*nt+3}] offset:{RED + nt*512}")
    g.flag_add(F_RED, 3, 4)
    A("v_and_b32 v20, 31, v2"); A("v_lshlrev_b32 v20, 4, v20"); A("s_lshl_b32 s68, s3, 9"); A("v_add_u32 v21, s68, v20")
    A("v_lshrrev_b32 v22, 5, v2"); A("v_lshl_add_u32 v21, v22, 13, v21")
    g.flag_wait(F_RED, 4, 3, 10, sleep=False)
    for p in range(4):
        A(f"ds_read_b128 v[{32+4*p}:{35+4*p}], v21 offset:{RED + p*2048}")
    A("s_waitcnt lgkmcnt(0)")
    for r in range(4):
        A(f"v_add_f32 v{32+r}, v{32+r}, v{36+r}"); A(f"v_add_f32 v{40+r}, v{40+r}, v{44+r}")
    for r in range(4):
        A(f"v_add_f32 v{32+r}, v{32+r}, v{40+r}")
    for r in range(4):
        A(f"v_mov_b32 v{36+r}, v{32+r}")
    nop(2)
    for r in range(4):
        A(f"v_permlane32_swap_b32 v{32+r}, v{36+r}")
    nop(1)
    for r in range(4):
        A(f"v_add_f32 v{32+r}, v{32+r}, v{36+r}")
    for r in range(4):
        A(f"v_min_u32 v{32+r}, -2, v{32+r}")
    A("s_lshl_b32 s69, s74, 14"); A("s_lshl_b32 s76, s75, 11"); A("s_add_u32 s69, s69, s76"); A("s_add_u32 s69, s69, s68")
    A(f"s_add_u32 s69, s69, {SP_OFF}")
    A("s_mov_b32 exec_hi, 0")
    A("buffer_store_dwordx4 v[32:35], v20, s[52:55], s69 offen sc1")
    A("s_mov_b64 exec, -1")
    g.stamp(7)
    A("s_cmp_lg_u32 s3, 0"); A("s_cbranch_scc1 L_fin")
    A("v_and_b32 v16, 1, v2"); A("v_lshlrev_b32 v16, 12, v16")
    A("v_bfe_u32 v17, v2, 1, 1"); A("v_lshl_add_u32 v16, v17, 1, v16")
    A("s_lshl_b32 s76, s2, 2")
    for r in range(4):
        A(f"buffer_load_ushort v{100+r}, v16, s[56:59], s76 offen offset:{r*1024}")
    A("v_lshrrev_b32 v17, 2, v2"); A("v_lshlrev_b32 v17, 14, v17"); A("v_and_b32 v18, 3, v2"); A("v_lshl_add_u32 v17, v18, 4, v17")
    A("s_lshl_b32 s77, s2, 6"); A(f"s_add_u32 s77, s77, {SP_OFF}"); A(f"s_add_u32 s78, s77, {16*16384}")
    g.poll(["buffer_load_dwordx4 v[32:35], v17, s[52:55], s77 offen sc1",
            "buffer_load_dwordx4 v[36:39], v17, s[52:55], s78 offen sc1"], list(range(32, 40)), 10)
    g.stamp(8)
    def reduce_p(base):
        for r in range(4):
            A(f"v_add_f32 v{base+r}, v{base+r}, v{base+4+r}")
        for mod in ("row_ror:4", "row_ror:8"):
            nop(1)
            for r in range(4):
                A(f"v_add_f32_dpp v{base+r}, v{base+r}, v{base+r} {mod} row_mask:0xf bank_mask:0xf")
        g.xrow("v_add_f32", [base+r for r in range(4)], [base+4+r for r in range(4)])
    reduce_p(32)
    g.flag_wait(F_G, 1, 3, 10, sleep=False)
    A("v_lshlrev_b32 v18, 4, v18")
    A(f"ds_read_b128 v[40:43], v18 offset:{GL}")
    A("v_cvt_pk_bf16_f32 v36, v32, v33"); A("v_cvt_pk_bf16_f32 v37, v34, v35")
    A("v_lshlrev_b32 v32, 16, v36"); A("v_and_b32 v33, 0xffff0000, v36")
    A("v_lshlrev_b32 v34, 16, v37"); A("v_and_b32 v35, 0xffff0000, v37")
    A("s_waitcnt lgkmcnt(0)")
    for r in range(4):
        A(f"v_mul_f32 v{32+r}, v{32+r}, v{40+r}")
    A("v_cvt_pk_bf16_f32 v36, v32, v33"); A("v_cvt_pk_bf16_f32 v37, v34, v35")
    A("v_lshlrev_b32 v32, 16, v36"); A("v_and_b32 v33, 0xffff0000, v36")
    A("v_lshlrev_b32 v34, 16, v37"); A("v_and_b32 v35, 0xffff0000, v37")
    for r in range(4):
        A(f"v_lshlrev_b32 v{100+r}, 16, v{100+r}")
    for r in range(4):
        A(f"v_add_f32 v{32+r}, v{32+r}, v{100+r}")
    A("v_cvt_pk_bf16_f32 v36, v32, v33"); A("v_cvt_pk_bf16_f32 v37, v34, v35")
    A("s_mov_b64 exec, 15")
    A("buffer_store_short v36, v16, s[60:63], s76 offen")
    A("buffer_store_short_d16_hi v36, v16, s[60:63], s76 offen offset:1024")
    A("buffer_store_short v37, v16, s[60:63], s76 offen offset:2048")
    A("buffer_store_short_d16_hi v37, v16, s[60:63], s76 offen offset:3072")
    A("s_mov_b64 exec, -1")
    g.stamp(9)
    A("s_branch L_fin")

    lab("L_G")
    A("v_and_b32 v5, 15, v2")
    A("v_lshrrev_b32 v6, 4, v2")
    A("v_lshlrev_b32 v7, 4, v2")
    A("s_cmp_ge_u32 s3, 6"); A("s_cbranch_scc1 L_SX")
    A("s_cmp_ge_u32 s71, 30"); A("s_cbranch_scc1 L_down")
    A("s_sub_u32 s77, s3, 4")
    A("s_lshl_b32 s68, s77, 12")
    XR = 16
    for r in range(4):
        A(f"buffer_load_dwordx4 v[{XR+4*r}:{XR+4*r+3}], v7, s[56:59], s68 offen offset:{r*1024}")
    A("s_cmp_ge_u32 s71, 16"); A("s_cbranch_scc1 L_roleB")
    A("s_mov_b32 s36, s10"); A("s_mov_b32 s37, s11"); A("s_mov_b32 s38, 4194304")
    A("s_mov_b32 s40, s10"); A("s_mov_b32 s41, s11"); A("s_mov_b32 s42, 4194304")
    A("s_lshl_b32 s76, s70, 10"); A("s_lshl_b32 s68, s71, 6"); A("s_add_u32 s76, s76, s68")
    A("s_add_u32 s78, s76, 32")
    A("s_movk_i32 s69, 8192")
    A("s_branch L_roleJ")
    lab("L_roleB")
    A("s_mov_b32 s36, s16"); A("s_mov_b32 s37, s17"); A("s_mov_b32 s38, 1835008")
    A("s_mov_b32 s40, s18"); A("s_mov_b32 s41, s19"); A("s_mov_b32 s42, 1835008")
    A("s_mul_i32 s76, s70, 14"); A("s_add_u32 s76, s76, s71"); A("s_sub_u32 s76, s76, 16"); A("s_lshl_b32 s76, s76, 5")
    A("s_mov_b32 s78, s76")
    A("s_movk_i32 s69, 3584")
    lab("L_roleJ")
    A("v_lshrrev_b32 v8, 1, v2"); A("v_mul_lo_u32 v8, v8, s69"); A("v_and_b32 v9, 1, v2"); A("v_lshl_add_u32 v8, v9, 4, v8")
    A("s_lshl_b32 s68, s77, 8"); A("s_mul_i32 s68, s68, s69")
    A("s_add_u32 s100, s76, s68"); A("s_add_u32 s101, s78, s68")
    A("s_lshl_b32 s69, s69, 5")
    A("s_lshl_b32 s68, s77, 14"); A(f"s_add_u32 s68, s68, {W1T}")
    for i in range(8):
        A("s_mov_b32 m0, s68")
        A("s_add_u32 s68, s68, 8192")
        A(f"buffer_load_dwordx4 v8, s[36:39], s100 offen {g.ntw} lds")
        A("s_mov_b32 m0, s68")
        A("s_sub_u32 s68, s68, 7168")
        A(f"buffer_load_dwordx4 v8, s[40:43], s101 offen {g.ntw} lds")
        A("s_add_u32 s100, s100, s69"); A("s_add_u32 s101, s101, s69")
    g.stamp(1)
    A("s_waitcnt vmcnt(16)")
    XF = 32
    for r in range(4):
        for e in range(4):
            A(f"v_lshlrev_b32 v{XF+8*r+2*e}, 16, v{XR+4*r+e}")
            A(f"v_and_b32 v{XF+8*r+2*e+1}, 0xffff0000, v{XR+4*r+e}")
    SM = 64
    for r in range(4):
        A(f"v_add_f32 v{SM+r}, v{XF+8*r}, v{XF+8*r+1}")
    for e in range(2, 8):
        for r in range(4):
            A(f"v_add_f32 v{SM+r}, v{SM+r}, v{XF+8*r+e}")
    g.allreduce64("v_add_f32", [SM+r for r in range(4)], [SM+4+r for r in range(4)])
    A(f"s_mov_b32 s68, 0x{f32bits(1.0/512):08x}")
    for r in range(4):
        A(f"v_mul_f32 v{SM+r}, s68, v{SM+r}")
    VS = 72
    for e in range(8):
        for r in range(4):
            A(f"v_sub_f32 v{80+r}, v{XF+8*r+e}, v{SM+r}")
        for r in range(4):
            if e == 0:
                A(f"v_mul_f32 v{VS+r}, v{80+r}, v{80+r}")
            else:
                A(f"v_fmac_f32 v{VS+r}, v{80+r}, v{80+r}")
    g.allreduce64("v_add_f32", [VS+r for r in range(4)], [VS+4+r for r in range(4)])
    for r in range(4):
        A(f"v_mul_f32 v{VS+r}, s68, v{VS+r}")
    def rbf(regs):
        for r in regs:
            A(f"v_cvt_pk_bf16_f32 v{r}, v{r}, v{r}")
        for r in regs:
            A(f"v_and_b32 v{r}, 0xffff0000, v{r}")
    rbf([SM+r for r in range(4)] + [VS+r for r in range(4)])
    for r in range(4):
        A(f"v_add_f32 v{VS+r}, 0x{f32bits(1e-5):08x}, v{VS+r}")
    rbf([VS+r for r in range(4)])
    for r in range(4):
        A(f"v_sqrt_f32 v{VS+r}, v{VS+r}")
    nop(1)
    rbf([VS+r for r in range(4)])
    for r in range(4):
        A(f"v_rcp_f32 v{VS+r}, v{VS+r}")
    for r in range(4):
        for e in range(8):
            A(f"v_sub_f32 v{XF+8*r+e}, v{XF+8*r+e}, v{SM+r}")
    for r in range(4):
        for e in range(4):
            A(f"v_cvt_pk_bf16_f32 v{XR+4*r+e}, v{XF+8*r+2*e}, v{XF+8*r+2*e+1}")
    for r in range(4):
        for e in range(4):
            A(f"v_lshlrev_b32 v{XF+8*r+2*e}, 16, v{XR+4*r+e}")
            A(f"v_and_b32 v{XF+8*r+2*e+1}, 0xffff0000, v{XR+4*r+e}")
    for r in range(4):
        for e in range(8):
            A(f"v_mul_f32 v{XF+8*r+e}, v{XF+8*r+e}, v{VS+r}")
    for r in range(4):
        for e in range(4):
            A(f"v_cvt_pk_bf16_f32 v{XR+4*r+e}, v{XF+8*r+2*e}, v{XF+8*r+2*e+1}")
    A(f"s_mul_i32 s68, s77, {4*XNP}"); A("v_add_u32 v9, s68, v7")
    for r in range(4):
        A(f"ds_write_b128 v9, v[{XR+4*r}:{XR+4*r+3}] offset:{XN + r*XNP}")
    g.flag_add(F_XN, 3, 4)
    g.stamp(2)
    A("v_and_b32 v9, 7, v2"); A(f"v_mul_u32_u24 v9, {XNP}, v9"); A("v_lshl_add_u32 v9, v6, 4, v9")
    A("s_lshl_b32 s68, s77, 9"); A("v_add_u32 v9, s68, v9")
    A("v_lshlrev_b32 v10, 8, v6"); A("v_lshl_add_u32 v10, v5, 3, v10")
    A("s_lshl_b32 s68, s77, 14"); A("v_add_u32 v10, s68, v10")
    g.flag_wait(F_XN, 2, 3, 11)
    XA = 32
    for t in range(8):
        A(f"ds_read_b128 v[{XA+4*t}:{XA+4*t+3}], v9 offset:{XN + t*64}")
    A("s_waitcnt vmcnt(0)")
    g.stamp(3)
    WB = 64
    for sub in range(2):
        for t in range(8):
            r = WB + (sub*8 + t)*4
            off = W1T + sub*8192 + t*1024
            A(f"ds_read_b64_tr_b16 v[{r}:{r+1}], v10 offset:{off}")
            A(f"ds_read_b64_tr_b16 v[{r+2}:{r+3}], v10 offset:{off+128}")
        A("s_waitcnt lgkmcnt(0)")
    for t in range(8):
        for sub in range(2):
            r = WB + (sub*8 + t)*4
            d = 128 + sub*4
            cc = "0" if t == 0 else f"v[{d}:{d+3}]"
            A(f"v_mfma_f32_16x16x32_bf16 v[{d}:{d+3}], v[{XA+4*t}:{XA+4*t+3}], v[{r}:{r+3}], {cc}")
    A("v_lshlrev_b32 v11, 9, v6"); A("v_lshl_add_u32 v11, v5, 2, v11"); A("s_lshl_b32 s68, s77, 10"); A("v_add_u32 v11, s68, v11")
    nop(6)
    A("s_mov_b32 exec_hi, 0")
    for sub in range(2):
        for r in range(4):
            A(f"ds_write_b32 v11, v{128+sub*4+r} offset:{D1 + r*128 + sub*64}")
    A("s_mov_b64 exec, -1")
    g.flag_add(F_D1, 3, 4)
    A("s_cmp_lg_u32 s3, 4"); A("s_cbranch_scc1 L_down")
    g.flag_wait(F_D1, 2, 3, 11)
    g.flag_wait(F_CLR, 1, 3, 11)
    A("s_cmp_ge_u32 s71, 16"); A("s_cbranch_scc1 L_finB")
    A("v_and_b32 v11, 31, v2"); A("v_lshlrev_b32 v12, 5, v11")
    for gw in range(2):
        A(f"ds_read_b128 v[{32+8*gw}:{35+8*gw}], v12 offset:{D1 + gw*1024}")
        A(f"ds_read_b128 v[{36+8*gw}:{39+8*gw}], v12 offset:{D1 + gw*1024 + 16}")
    A("s_waitcnt lgkmcnt(0)")
    for e in range(8):
        A(f"v_add_f32 v{32+e}, v{32+e}, v{40+e}")
    for e in range(4):
        A(f"v_cvt_pk_bf16_f32 v{48+e}, v{32+2*e}, v{33+2*e}")
    for e in range(4):
        A(f"v_min_u32 v{48+e}, -2, v{48+e}")
    A("v_lshrrev_b32 v12, 2, v11"); A("v_lshlrev_b32 v12, 13, v12"); A("v_and_b32 v13, 3, v2"); A("v_lshl_add_u32 v12, v13, 4, v12")
    A("s_mov_b32 exec_hi, 0")
    A(f"buffer_store_dwordx4 v[48:51], v12, s[52:55], s76 offen offset:{Q_OFF} sc1")
    A("s_mov_b64 exec, -1")
    g.stamp(4)
    A("s_branch L_down")
    lab("L_finB")
    A("v_lshrrev_b32 v11, 1, v5"); A("v_lshlrev_b32 v12, 7, v11"); A("v_and_b32 v13, 1, v2"); A("v_lshl_add_u32 v12, v13, 5, v12")
    for gw in range(2):
        for sub in range(2):
            r = 32 + gw*16 + sub*8
            A(f"ds_read_b128 v[{r}:{r+3}], v12 offset:{D1 + gw*1024 + sub*64}")
            A(f"ds_read_b128 v[{r+4}:{r+7}], v12 offset:{D1 + gw*1024 + sub*64 + 16}")
    A("s_waitcnt lgkmcnt(0)")
    for e in range(16):
        A(f"v_add_f32 v{32+e}, v{32+e}, v{48+e}")
    rbf(list(range(32, 48)))
    A(f"s_mov_b32 s68, 0x{f32bits(-1.4426950408889634):08x}")
    for e in range(8):
        A(f"v_mul_f32 v{48+e}, s68, v{32+e}")
    for e in range(8):
        A(f"v_exp_f32 v{48+e}, v{48+e}")
    nop(1)
    for e in range(8):
        A(f"v_add_f32 v{48+e}, 1.0, v{48+e}")
    for e in range(8):
        A(f"v_rcp_f32 v{48+e}, v{48+e}")
    nop(1)
    for e in range(8):
        A(f"v_mul_f32 v{32+e}, v{32+e}, v{48+e}")
    rbf(list(range(32, 40)))
    for e in range(8):
        A(f"v_mul_f32 v{32+e}, v{32+e}, v{40+e}")
    for e in range(4):
        A(f"v_cvt_pk_bf16_f32 v{48+e}, v{32+2*e}, v{33+2*e}")
    for e in range(4):
        A(f"v_min_u32 v{48+e}, -2, v{48+e}")
    A("v_mul_u32_u24 v12, 3584, v11"); A("v_lshl_add_u32 v12, v13, 4, v12")
    A(f"s_add_u32 s68, s76, {H_OFF}")
    A("s_mov_b64 exec, 0xffff")
    A("buffer_store_dwordx4 v[48:51], v12, s[52:55], s68 offen sc1")
    A("s_mov_b64 exec, -1")
    g.stamp(4)
    A("s_branch L_down")

    lab("L_SX")
    A("s_cmp_eq_u32 s3, 7"); A("s_cbranch_scc1 L_down")
    for r in range(4):
        A(f"v_mov_b32 v{16+r}, -1")
    A("v_lshlrev_b32 v8, 13, v6"); A("v_lshl_add_u32 v8, v5, 4, v8")
    A("s_lshl_b32 s68, s70, 15"); A("s_lshl_b32 s69, s73, 11"); A("s_add_u32 s68, s68, s69")
    A("s_lshl_b32 s69, s72, 8"); A("s_add_u32 s68, s68, s69"); A(f"s_add_u32 s68, s68, {O_OFF}")
    A("buffer_store_dwordx4 v[16:19], v8, s[52:55], s68 offen sc1")
    A("s_lshl_b32 s68, s74, 14"); A("s_lshl_b32 s69, s75, 11"); A("s_add_u32 s68, s68, s69")
    A(f"s_add_u32 s69, s68, {SP_OFF}")
    A("buffer_store_dwordx4 v[16:19], v7, s[52:55], s69 offen sc1")
    A("buffer_store_dwordx4 v[16:19], v7, s[52:55], s69 offen offset:1024 sc1")
    A("s_cmp_ge_u32 s74, 28"); A("s_cbranch_scc1 L_nofpclr")
    A(f"s_add_u32 s69, s68, {FP_OFF}")
    A("buffer_store_dwordx4 v[16:19], v7, s[52:55], s69 offen sc1")
    A("buffer_store_dwordx4 v[16:19], v7, s[52:55], s69 offen offset:1024 sc1")
    lab("L_nofpclr")
    A("v_lshlrev_b32 v8, 8, v2")
    A("s_lshl_b32 s68, s70, 10"); A("s_lshl_b32 s69, s72, 5"); A("s_add_u32 s68, s68, s69")
    A("s_lshl_b32 s69, s73, 3"); A("s_add_u32 s68, s68, s69"); A(f"s_add_u32 s68, s68, {ML_OFF}")
    A("s_mov_b64 exec, 15")
    A("buffer_store_dwordx2 v[16:17], v8, s[52:55], s68 offen sc1")
    A("s_mov_b64 exec, -1")
    A("s_cmp_ge_u32 s71, 30"); A("s_cbranch_scc1 L_clrdone")
    A("s_cmp_ge_u32 s71, 16"); A("s_cbranch_scc1 L_clrB")
    A("v_lshrrev_b32 v8, 2, v2"); A("v_lshlrev_b32 v8, 13, v8"); A("v_and_b32 v9, 3, v2"); A("v_lshl_add_u32 v8, v9, 4, v8")
    A("s_lshl_b32 s68, s70, 10"); A("s_lshl_b32 s69, s71, 6"); A("s_add_u32 s68, s68, s69")
    A("s_mov_b32 exec_hi, 0")
    A(f"buffer_store_dwordx4 v[16:19], v8, s[52:55], s68 offen offset:{Q_OFF} sc1")
    A("s_mov_b64 exec, -1")
    A("s_branch L_clrdone")
    lab("L_clrB")
    A("v_lshrrev_b32 v8, 1, v2"); A("v_mul_u32_u24 v8, 3584, v8"); A("v_and_b32 v9, 1, v2"); A("v_lshl_add_u32 v8, v9, 4, v8")
    A("s_mul_i32 s68, s70, 14"); A("s_add_u32 s68, s68, s71"); A("s_sub_u32 s68, s68, 16"); A("s_lshl_b32 s68, s68, 5")
    A(f"s_add_u32 s68, s68, {H_OFF}")
    A("s_mov_b64 exec, 0xffff")
    A("buffer_store_dwordx4 v[16:19], v8, s[52:55], s68 offen sc1")
    A("s_mov_b64 exec, -1")
    lab("L_clrdone")
    A("s_waitcnt vmcnt(0)")
    g.stamp(1)
    A("s_mov_b64 exec, 1")
    A("buffer_store_byte v4, v3, s[64:67], s2 offen sc1")
    A("s_mov_b64 exec, -1")
    g.flag_add(F_CLR, 3, 4)
    A("v_lshlrev_b32 v8, 2, v2")
    A("s_mov_b32 s79, 0x40000")
    A("s_mov_b32 s68, 0x01010101")
    lab("L_dbgpoll")
    A("buffer_load_dword v9, v8, s[64:67], 0 offen sc1")
    A("s_waitcnt vmcnt(0)")
    A("v_cmp_ne_u32 vcc, s68, v9")
    A("s_cmp_eq_u64 vcc, 0")
    A("s_cbranch_scc1 L_dbgdone")
    A("s_sub_u32 s79, s79, 1"); A("s_cmp_lg_u32 s79, 0"); A("s_cbranch_scc1 L_dbgpoll")
    lab("L_dbgdone")
    g.stamp(2)
    g.flag_add(F_GO, 3, 4)
    A("s_lshl_b32 s68, s72, 13"); A("s_lshl_b32 s69, s70, 10"); A("s_add_u32 s68, s68, s69")
    g.poll([f"buffer_load_dwordx4 v[16:19], v7, s[52:55], s68 offen offset:{Q_OFF} sc1"], [16, 17, 18, 19], 10)
    A(f"ds_write_b128 v7, v[16:19] offset:{QL}")
    g.flag_add(F_Q, 3, 4)
    g.stamp(3)

    lab("L_down")
    A("s_cmp_ge_u32 s74, 28"); A("s_cbranch_scc1 L_fgather")
    A("s_sub_u32 s77, s3, 4")
    A("v_lshrrev_b32 v8, 1, v2"); A("v_lshlrev_b32 v8, 10, v8"); A("v_and_b32 v9, 1, v2"); A("v_lshl_add_u32 v8, v9, 4, v8")
    A("s_lshl_b32 s68, s74, 16"); A("s_lshl_b32 s69, s75, 7"); A("s_add_u32 s68, s68, s69")
    A("s_lshl_b32 s69, s77, 5"); A("s_add_u32 s68, s68, s69")
    A("s_lshl_b32 s69, s77, 11"); A(f"s_add_u32 s69, s69, {WDT}")
    g.flag_wait(F_GO, 1, 3, 11)
    A("s_mov_b32 m0, s69")
    A("s_add_u32 s69, s69, 1024")
    A(f"buffer_load_dwordx4 v8, s[48:51], s68 offen {g.ntw} lds")
    A("s_mov_b32 m0, s69")
    A("s_add_u32 s68, s68, 32768")
    A(f"buffer_load_dwordx4 v8, s[48:51], s68 offen {g.ntw} lds")
    A("v_and_b32 v9, 7, v2"); A("v_mul_u32_u24 v9, 3584, v9"); A("v_lshl_add_u32 v9, v6, 4, v9")
    A("s_lshl_b32 s68, s74, 7"); A(f"s_add_u32 s68, s68, {H_OFF}")
    g.poll(["buffer_load_dwordx4 v[16:19], v9, s[52:55], s68 offen sc1",
            "buffer_load_dwordx4 v[20:23], v9, s[52:55], s68 offen offset:64 sc1"], list(range(16, 24)), 10)
    g.stamp(5)
    A("v_lshlrev_b32 v10, 8, v6"); A("v_lshl_add_u32 v10, v5, 3, v10"); A("s_lshl_b32 s69, s77, 11"); A("v_add_u32 v10, s69, v10")
    for t in range(2):
        A(f"ds_read_b64_tr_b16 v[{24+4*t}:{25+4*t}], v10 offset:{WDT + t*1024}")
        A(f"ds_read_b64_tr_b16 v[{26+4*t}:{27+4*t}], v10 offset:{WDT + t*1024 + 128}")
    A("s_waitcnt lgkmcnt(0)")
    A("v_mfma_f32_16x16x32_bf16 v[32:35], v[16:19], v[24:27], 0")
    A("v_mfma_f32_16x16x32_bf16 v[32:35], v[20:23], v[28:31], v[32:35]")
    A("v_lshlrev_b32 v11, 5, v5"); A("v_lshl_add_u32 v11, v6, 4, v11")
    A("s_lshl_b32 s68, s74, 14"); A("s_lshl_b32 s69, s75, 11"); A("s_add_u32 s68, s68, s69")
    A("s_lshl_b32 s69, s77, 9"); A("s_add_u32 s68, s68, s69"); A(f"s_add_u32 s68, s68, {FP_OFF}")
    nop(2)
    for r in range(4):
        A(f"v_min_u32 v{32+r}, -2, v{32+r}")
    A("s_mov_b32 exec_hi, 0")
    A("buffer_store_dwordx4 v[32:35], v11, s[52:55], s68 offen sc1")
    A("s_mov_b64 exec, -1")
    g.stamp(6)
    lab("L_fgather")
    A("s_cmp_lg_u32 s3, 7"); A("s_cbranch_scc1 L_fin")
    g.flag_wait(F_GO, 1, 3, 11)
    A("v_lshrrev_b32 v17, 2, v2"); A("v_and_b32 v18, 3, v2")
    A("v_min_u32 v19, 11, v17")
    A("v_lshlrev_b32 v19, 14, v19"); A("v_lshl_add_u32 v19, v18, 4, v19")
    A("v_lshlrev_b32 v17, 14, v17"); A("v_lshl_add_u32 v17, v18, 4, v17")
    A("s_lshl_b32 s77, s2, 6"); A(f"s_add_u32 s77, s77, {FP_OFF}"); A(f"s_add_u32 s78, s77, {16*16384}")
    g.poll(["buffer_load_dwordx4 v[32:35], v17, s[52:55], s77 offen sc1",
            "buffer_load_dwordx4 v[36:39], v19, s[52:55], s78 offen sc1"], list(range(32, 40)), 10)
    g.stamp(7)
    A("v_cmp_gt_u32 vcc, 48, v2")
    nop(2)
    for r in range(4):
        A(f"v_cndmask_b32 v{36+r}, 0, v{36+r}, vcc")
    reduce_p(32)
    rbf([32, 33, 34, 35])
    A(f"s_mov_b32 s68, 0x{f32bits(-1.4426950408889634):08x}")
    for r in range(4):
        A(f"v_mul_f32 v{36+r}, s68, v{32+r}")
    for r in range(4):
        A(f"v_exp_f32 v{36+r}, v{36+r}")
    nop(1)
    for r in range(4):
        A(f"v_add_f32 v{36+r}, 1.0, v{36+r}")
    for r in range(4):
        A(f"v_rcp_f32 v{36+r}, v{36+r}")
    nop(1)
    for r in range(4):
        A(f"v_mul_f32 v{32+r}, v{32+r}, v{36+r}")
    rbf([32, 33, 34, 35])
    A("v_lshlrev_b32 v18, 4, v18")
    A("s_mov_b64 exec, 15")
    A(f"ds_write_b128 v18, v[32:35] offset:{GL}")
    A("s_mov_b64 exec, -1")
    g.flag_add(F_G, 3, 4)
    g.stamp(8)
    lab("L_fin")
    g.stamp_flush()
    lab("L_end")
    A("s_endpgm")
    tail = ['.section .rodata,"a"', ".p2align 6", f".amdhsa_kernel {KN}",
            "  .amdhsa_next_free_vgpr 192", "  .amdhsa_next_free_sgpr 102", "  .amdhsa_accum_offset 192",
            "  .amdhsa_group_segment_fixed_size 0", "  .amdhsa_kernarg_size 96", "  .amdhsa_user_sgpr_count 2",
            "  .amdhsa_user_sgpr_kernarg_segment_ptr 1", "  .amdhsa_system_sgpr_workgroup_id_x 1",
            "  .amdhsa_float_denorm_mode_32 3",
            ".end_amdhsa_kernel"]
    return "\n".join(hdr + g.L + tail) + "\n"

if __name__ == "__main__":
    out = sys.argv[1] if len(sys.argv) > 1 else "recurrent_scan__sliding_block_cached__swiglu_ffn__decode.s"
    stamps = "--stamps" in sys.argv
    kw = {}
    for a in sys.argv[2:]:
        if "=" in a:
            k, v = a.split("=", 1); kw[k] = v
    open(out, "w").write(build(stamps=stamps, **kw))
```

```python
import sys, struct
KN = "recurrent_scan__sliding_block_cached__swiglu_ffn__decode_kernel"

Q_OFF = 0x0
H_OFF = 0x10000
O_OFF = 0x20000
ML_OFF = 0x60000
SP_OFF = 0x80000
FP_OFF = 0x100000
GO_OFF = 0x180000
STAMP_OFF = 0x1000000
F_XN, F_D1, F_Q, F_WO, F_G, F_CLR, F_GO, F_OC, F_RED = 0, 4, 8, 12, 16, 20, 24, 28, 32
XN = 256; XNP = 1040
QL = 8704
D1 = 9728
OC = 11776
OML = 19968
GL = 20224
WOT = 20480
WDT = 36864
W1T = 45056
RED = W1T
LDS_BYTES = 77824

def f32bits(x):
    return struct.unpack("<I", struct.pack("<f", x))[0]

class G:
    def __init__(self, stamps=False, ntkv="nt", ntw="nt", thr=0):
        self.thr = int(thr)
        self.L = []
        self.stamps = stamps
        self.nlab = 0
        self.ntkv = ntkv
        self.ntw = ntw
    def A(self, s):
        self.L.append("  " + s)
    def lab(self, name):
        self.L.append(name + ":")
    def newlab(self, p="L"):
        self.nlab += 1
        return f"{p}_{self.nlab}"
    def nop(self, n):
        while n > 0:
            k = min(n, 16)
            self.A(f"s_nop {k-1}")
            n -= k
    def stamp(self, i):
        if self.stamps:
            self.A(f"s_memrealtime s[{80+2*i}:{81+2*i}]")
    def stamp_flush(self, n=10):
        if not self.stamps:
            return
        A = self.A
        A("s_waitcnt lgkmcnt(0) vmcnt(0)")
        A("s_mov_b64 exec, 1")
        A(f"s_mul_i32 s68, s2, {getattr(self, 'nwaves', 8)}"); A("s_add_u32 s68, s68, s3"); A(f"s_mul_i32 s68, s68, {8*n}")
        A(f"s_add_u32 s68, s68, {STAMP_OFF}")
        A("v_mov_b32 v2, 0")
        for i in range(n):
            A(f"v_mov_b32 v4, s{80+2*i}"); A(f"v_mov_b32 v5, s{81+2*i}")
            A(f"buffer_store_dwordx2 v[4:5], v2, s[52:55], s68 offen offset:{8*i}")
            A("s_nop 1")
    def flag_add(self, off, vz, vone):
        A = self.A
        A("s_waitcnt lgkmcnt(0)")
        A("s_mov_b64 exec, 1")
        A(f"ds_add_u32 v{vz}, v{vone} offset:{off}")
        A("s_mov_b64 exec, -1")
    def flag_wait(self, off, target, vz, vt, st=14, sc=15, sleep=True):
        A = self.A
        l = self.newlab("FW"); d = self.newlab("FD")
        A(f"s_mov_b32 s{sc}, 0x400000")
        self.lab(l)
        A(f"ds_read_b32 v{vt}, v{vz} offset:{off}")
        A("s_waitcnt lgkmcnt(0)")
        A(f"v_readfirstlane_b32 s{st}, v{vt}")
        A(f"s_cmp_ge_u32 s{st}, {target}")
        A(f"s_cbranch_scc1 {d}")
        if sleep:
            A("s_sleep 1")
        A(f"s_sub_u32 s{sc}, s{sc}, 1")
        A(f"s_cmp_lg_u32 s{sc}, 0")
        A(f"s_cbranch_scc1 {l}")
        self.lab(d)
    def poll(self, loads, regs, vt, sc=15, sleep=0):
        A = self.A
        l = self.newlab("PL"); d = self.newlab("PD")
        A(f"s_mov_b32 s{sc}, 0x40000")
        self.lab(l)
        for s in loads:
            A(s)
        A("s_waitcnt vmcnt(0)")
        rs = list(regs)
        A(f"v_max3_u32 v{vt}, v{rs[0]}, v{rs[1]}, v{rs[2] if len(rs) > 2 else rs[1]}")
        rs = rs[3:]
        while rs:
            if len(rs) >= 2:
                A(f"v_max3_u32 v{vt}, v{vt}, v{rs[0]}, v{rs[1]}"); rs = rs[2:]
            else:
                A(f"v_max_u32 v{vt}, v{vt}, v{rs[0]}"); rs = rs[1:]
        A(f"v_cmp_eq_u32 vcc, -1, v{vt}")
        A("s_cmp_eq_u64 vcc, 0")
        A(f"s_cbranch_scc1 {d}")
        if sleep:
            A(f"s_sleep {sleep}")
        A(f"s_sub_u32 s{sc}, s{sc}, 1")
        A(f"s_cmp_lg_u32 s{sc}, 0")
        A(f"s_cbranch_scc1 {l}")
        self.lab(d)
    def allreduce64(self, op, regs, tmps):
        A = self.A
        n = len(regs)
        pad = max(0, 2 - (n - 1))
        for mod in ("quad_perm:[1,0,3,2]", "quad_perm:[2,3,0,1]", "row_half_mirror", "row_mirror"):
            self.nop(pad if n < 3 else 0)
            for r in regs:
                A(f"{op}_dpp v{r}, v{r}, v{r} {mod} row_mask:0xf bank_mask:0xf")
        self.xrow(op, regs, tmps)
    def xrow(self, op, regs, tmps):
        A = self.A
        for sw in ("v_permlane16_swap_b32", "v_permlane32_swap_b32"):
            for r, t in zip(regs, tmps):
                A(f"v_mov_b32 v{t}, v{r}")
            self.nop(2)
            for r, t in zip(regs, tmps):
                A(f"{sw} v{r}, v{t}")
            self.nop(1)
            for r, t in zip(regs, tmps):
                A(f"{op} v{r}, v{r}, v{t}")

def build(stamps=False, ntkv="nt", ntw="nt", thr=0):
    g = G(stamps, ntkv, ntw, thr)
    A = g.A; lab = g.lab; nop = g.nop
    hdr = []
    hdr.append(f"; @launch grid=(256,1,1) block=(512,1,1) lds={LDS_BYTES}")
    hdr.append('.amdgcn_target "amdgcn-amd-amdhsa--gfx950"')
    hdr.append(".text"); hdr.append(f".globl {KN}"); hdr.append(".p2align 8"); hdr.append(f".type {KN},@function")
    hdr.append(f"{KN}:")
    A("s_cmp_ge_u32 s2, 256"); A("s_cbranch_scc1 L_end")
    A("s_load_dwordx16 s[4:19], s[0:1], 0")
    A("s_load_dwordx8 s[20:27], s[0:1], 64")
    g.stamp(0)
    A("v_lshrrev_b32 v1, 6, v0")
    A("v_and_b32 v1, 63, v0") if False else None
    A("v_and_b32 v2, 63, v0")
    A("v_readfirstlane_b32 s3, v1")
    A("v_mov_b32 v3, 0")
    A("v_mov_b32 v4, 1")
    for d, n in ((28, 67108864), (32, 67108864), (44, 4194304), (48, 1835008), (52, 268435456), (56, 8192), (60, 8192), (64, 256)):
        A(f"s_mov_b32 s{d+2}, {n}"); A(f"s_mov_b32 s{d+3}, 0x00020000")
    A("s_mov_b32 s39, 0x00020000"); A("s_mov_b32 s43, 0x00020000")
    A("s_and_b32 s70, s2, 7")
    A("s_lshr_b32 s71, s2, 3")
    A("s_lshr_b32 s72, s71, 2")
    A("s_and_b32 s73, s71, 3")
    A("s_lshl_b32 s74, s70, 2"); A("s_lshr_b32 s68, s71, 3"); A("s_add_u32 s74, s74, s68")
    A("s_and_b32 s75, s71, 7")
    A("s_cmp_lg_u32 s3, 7"); A("s_cbranch_scc1 L_noinit")
    A("v_lshlrev_b32 v5, 2, v2")
    A("ds_write_b32 v5, v3")
    lab("L_noinit")
    A("s_waitcnt lgkmcnt(0)")
    for d, b in ((28, 6), (32, 8), (44, 12), (48, 20), (52, 26), (56, 4), (60, 22), (64, 24)):
        A(f"s_mov_b32 s{d}, s{b}"); A(f"s_mov_b32 s{d+1}, s{b+1}")
    A("s_cmp_ge_u32 s3, 4"); A("s_cbranch_scc1 L_G")

    KR = 16; VR = 80; QF = 144; SR = 160; PP = 176; ACC = 184
    PM = 16
    PB = 48
    A("s_lshl_b32 s76, s72, 3"); A("s_add_u32 s76, s76, s70"); A("s_lshl_b32 s76, s76, 20")
    A("s_lshl_b32 s68, s73, 16"); A("s_add_u32 s76, s76, s68")
    A("s_lshl_b32 s68, s3, 14"); A("s_add_u32 s76, s76, s68")
    A(f"s_add_u32 s76, s76, {3072*256}")
    A("v_and_b32 v5, 15, v2")
    A("v_lshrrev_b32 v6, 4, v2")
    A("v_lshlrev_b32 v7, 8, v5"); A("v_lshl_add_u32 v7, v6, 4, v7")
    A("v_lshlrev_b32 v8, 10, v6"); A("v_lshl_add_u32 v8, v5, 4, v8")
    A("s_barrier")
    for T in range(4):
        if T: A("s_add_u32 s76, s76, 4096")
        for t in range(4):
            r = KR + (T*4 + t)*4
            if g.thr and T*4 + t >= g.thr: A(f"s_waitcnt vmcnt({g.thr-1})")
            A(f"buffer_load_dwordx4 v[{r}:{r+3}], v7, s[28:31], s76 offen offset:{t*64} {g.ntkv}")
    A("s_sub_u32 s76, s76, 12288")
    for q4 in range(4):
        if q4: A("s_add_u32 s76, s76, 4096")
        for jl in range(4):
            r = VR + (q4*4 + jl)*4
            if g.thr and 16 + q4*4 + jl >= g.thr: A(f"s_waitcnt vmcnt({g.thr-1})")
            A(f"buffer_load_dwordx4 v[{r}:{r+3}], v8, s[32:35], s76 offen offset:{jl*256} {g.ntkv}")
    A("v_lshrrev_b32 v9, 3, v2"); A("v_lshlrev_b32 v9, 10, v9")
    A("v_and_b32 v10, 7, v2"); A("v_lshl_add_u32 v9, v10, 4, v9")
    A("s_lshl_b32 s76, s74, 17")
    A("s_lshl_b32 s68, s3, 15"); A("s_add_u32 s76, s76, s68")
    A("s_lshl_b32 s68, s75, 7"); A("s_add_u32 s76, s76, s68")
    A("s_lshl_b32 s77, s3, 12"); A(f"s_add_u32 s77, s77, {WOT}")
    for i in range(4):
        A("s_mov_b32 m0, s77")
        A("s_add_u32 s77, s77, 1024")
        if g.thr: A(f"s_waitcnt vmcnt({g.thr-1})")
        A(f"buffer_load_dwordx4 v9, s[44:47], s76 offen {g.ntw} lds")
        A("s_add_u32 s76, s76, 8192")
    g.stamp(1)
    A("s_mov_b32 s76, 0x05040100"); A("s_mov_b32 s77, 0x07060302")
    c = 1.4426950408889634 * (128 ** -0.5)
    A(f"s_mov_b32 s78, 0x{f32bits(c):08x}")
    A("v_and_b32 v9, 3, v2"); A("v_lshlrev_b32 v9, 8, v9"); A("v_lshl_add_u32 v9, v6, 4, v9")
    g.flag_wait(F_Q, 1, 3, 10)
    g.stamp(2)
    for t in range(4):
        A(f"ds_read_b128 v[{QF+4*t}:{QF+4*t+3}], v9 offset:{QL + t*64}")
    A("s_waitcnt lgkmcnt(0)")
    for T in range(4):
        A(f"s_waitcnt vmcnt({36 - 4*(T+1)})")
        for t in range(4):
            r = KR + (T*4 + t)*4
            cc = "0" if t == 0 else f"v[{SR+4*T}:{SR+4*T+3}]"
            A(f"v_mfma_f32_16x16x32_bf16 v[{SR+4*T}:{SR+4*T+3}], v[{r}:{r+3}], v[{QF+4*t}:{QF+4*t+3}], {cc}")
    nop(8)
    A(f"v_max3_f32 v10, v{SR}, v{SR+1}, v{SR+2}")
    for i in range(3, 15, 2):
        A(f"v_max3_f32 v10, v10, v{SR+i}, v{SR+i+1}")
    A(f"v_max_f32 v10, v10, v{SR+15}")
    g.xrow("v_max_f32", [10], [11])
    A("v_mul_f32 v10, s78, v10")
    for i in range(16):
        A(f"v_fma_f32 v{SR+i}, v{SR+i}, s78, -v10")
    for i in range(16):
        A(f"v_exp_f32 v{SR+i}, v{SR+i}")
    nop(1)
    for i in range(8):
        A(f"v_cvt_pk_bf16_f32 v{PP+i}, v{SR+2*i}, v{SR+2*i+1}")
    A(f"v_add_f32 v11, v{SR}, v{SR+1}")
    for i in range(2, 16):
        A(f"v_add_f32 v11, v11, v{SR+i}")
    g.xrow("v_add_f32", [11], [12])
    for rho in range(4):
        m = 0x000F000F << (4*rho)
        A(f"s_mov_b32 s68, 0x{m:08x}"); A(f"s_mov_b32 s69, 0x{m:08x}")
        for i in range(8):
            A(f"v_cndmask_b32 v{PM+rho*8+i}, 0, v{PP+i}, s[68:69]")
    A("v_lshlrev_b32 v12, 5, v2"); A("s_lshl_b32 s68, s3, 3"); A("v_add_u32 v12, s68, v12")
    A("s_mov_b64 exec, 15")
    A(f"ds_write_b64 v12, v[10:11] offset:{OML}")
    A("s_mov_b64 exec, -1")
    g.stamp(3)
    for G_ in range(2):
        for jj in range(4):
            q = G_*8 + 2*jj
            A(f"s_waitcnt vmcnt({36 - 16 - (q+2)})")
            r0 = VR + q*4; r1 = VR + (q+1)*4
            for e in range(4):
                A(f"v_perm_b32 v{PB + (2*e)*4 + jj}, v{r1+e}, v{r0+e}, s76")
                A(f"v_perm_b32 v{PB + (2*e+1)*4 + jj}, v{r1+e}, v{r0+e}, s77")
        nop(2)
        for i in range(8):
            acc = ACC + (i >> 2)*4
            cc = "0" if (G_ == 0 and (i & 3) == 0) else f"v[{acc}:{acc+3}]"
            pa = PM + (i & 3)*8 + G_*4
            A(f"v_mfma_f32_16x16x32_bf16 v[{acc}:{acc+3}], v[{pa}:{pa+3}], v[{PB+i*4}:{PB+i*4+3}], {cc}")
    g.stamp(4)
    A("v_lshlrev_b32 v12, 2, v2"); A("s_lshl_b32 s68, s3, 11"); A("v_add_u32 v13, s68, v12")
    A(f"v_add_u32 v13, {OC}, v13")
    nop(6)
    for r in range(4):
        A(f"ds_write2st64_b32 v13, v{ACC+r}, v{ACC+4+r} offset0:{2*r} offset1:{2*r+1}")
    g.flag_add(F_OC, 3, 4)
    A("s_lshl_b32 s68, s3, 9"); A("v_add_u32 v13, s68, v12"); A(f"v_add_u32 v13, {OC}, v13")
    A("s_lshl_b32 s68, s3, 5"); A("v_mov_b32 v14, s68")
    g.flag_wait(F_OC, 4, 3, 10, sleep=False)
    A(f"ds_read_b128 v[16:19], v14 offset:{OML}")
    A(f"ds_read_b128 v[20:23], v14 offset:{OML+16}")
    for w in range(4):
        A(f"ds_read2st64_b32 v[{24+2*w}:{25+2*w}], v13 offset0:{8*w} offset1:{8*w+1}")
    A("s_waitcnt lgkmcnt(0)")
    A("v_max3_f32 v32, v16, v18, v20"); A("v_max_f32 v32, v32, v22")
    for w in range(4):
        A(f"v_sub_f32 v{16+2*w}, v{16+2*w}, v32")
    for w in range(4):
        A(f"v_exp_f32 v{16+2*w}, v{16+2*w}")
    nop(1)
    A("v_mul_f32 v34, v16, v24"); A("v_mul_f32 v35, v16, v25"); A("v_mul_f32 v33, v16, v17")
    for w in range(1, 4):
        A(f"v_fmac_f32 v34, v{16+2*w}, v{24+2*w}"); A(f"v_fmac_f32 v35, v{16+2*w}, v{25+2*w}")
        A(f"v_fmac_f32 v33, v{16+2*w}, v{17+2*w}")
    A("v_cvt_pk_bf16_f32 v34, v34, v35")
    A("v_min_u32 v34, -2, v34"); A("v_min_u32 v32, -2, v32"); A("v_min_u32 v33, -2, v33")
    A("s_lshl_b32 s68, s70, 2"); A("s_add_u32 s68, s68, s3")
    A("s_lshl_b32 s69, s68, 2"); A("s_add_u32 s69, s69, s73"); A("s_lshl_b32 s69, s69, 3"); A("s_add_u32 s69, s69, s72")
    A("s_lshl_b32 s69, s69, 8"); A(f"s_add_u32 s69, s69, {O_OFF}")
    A("buffer_store_dword v34, v12, s[52:55], s69 offen sc1")
    A("s_lshl_b32 s69, s68, 3"); A("s_add_u32 s69, s69, s72"); A("s_lshl_b32 s69, s69, 2"); A("s_add_u32 s69, s69, s73")
    A("s_lshl_b32 s69, s69, 3"); A(f"s_add_u32 s69, s69, {ML_OFF}")
    A("s_mov_b64 exec, 1")
    A("buffer_store_dwordx2 v[32:33], v3, s[52:55], s69 offen sc1")
    A("s_mov_b64 exec, -1")
    g.stamp(5)
    A("s_waitcnt vmcnt(0)")
    g.flag_add(F_WO, 3, 4)
    A("v_lshrrev_b32 v16, 2, v5"); A("v_lshlrev_b32 v16, 9, v16")
    A("v_lshl_add_u32 v16, v6, 12, v16")
    A("v_and_b32 v17, 3, v2"); A("v_lshl_add_u32 v16, v17, 3, v16")
    A("s_and_b32 s68, s3, 1"); A("s_lshl_b32 s68, s68, 8"); A("v_add_u32 v16, s68, v16")
    A("v_lshlrev_b32 v17, 8, v5"); A("v_lshl_add_u32 v17, v6, 4, v17")
    A("s_lshl_b32 s76, s74, 13"); A("s_lshr_b32 s69, s3, 1"); A("s_lshl_b32 s69, s69, 12"); A("s_add_u32 s76, s76, s69")
    A("s_lshr_b32 s68, s68, 1"); A("s_add_u32 s76, s76, s68"); A(f"s_add_u32 s76, s76, {O_OFF}")
    A("v_and_b32 v18, 31, v2"); A("v_lshlrev_b32 v18, 3, v18")
    A("s_lshl_b32 s77, s74, 8"); A(f"s_add_u32 s77, s77, {ML_OFF}")
    A("v_and_b32 v19, 1, v6"); A("v_lshlrev_b32 v19, 4, v19"); A("v_lshrrev_b32 v20, 1, v6"); A("v_add_u32 v19, v19, v20")
    A("s_lshr_b32 s69, s3, 1"); A("s_lshl_b32 s69, s69, 1"); A("v_add_u32 v19, s69, v19"); A("v_lshlrev_b32 v19, 2, v19")
    g.flag_wait(F_WO, 4, 3, 10, sleep=False)
    BF = 32
    for nt in range(4):
        for t in range(2):
            r = BF + (nt*2 + t)*4
            off = WOT + t*128 + nt*32
            A(f"ds_read_b64_tr_b16 v[{r}:{r+1}], v16 offset:{off}")
            A(f"ds_read_b64_tr_b16 v[{r+2}:{r+3}], v16 offset:{off + 2048}")
    g.flag_wait(F_GO, 1, 3, 10, sleep=False)
    AF = 64
    g.poll([f"buffer_load_dwordx4 v[{AF}:{AF+3}], v17, s[52:55], s76 offen sc1",
            f"buffer_load_dwordx4 v[{AF+4}:{AF+7}], v17, s[52:55], s76 offen offset:64 sc1",
            f"buffer_load_dwordx2 v[72:73], v18, s[52:55], s77 offen sc1"],
           list(range(AF, AF+10)), 10)
    g.stamp(6)
    DW = 80
    for nt in range(4):
        for t in range(2):
            r = BF + (nt*2 + t)*4
            cc = "0" if t == 0 else f"v[{DW+4*nt}:{DW+4*nt+3}]"
            A(f"v_mfma_f32_16x16x32_bf16 v[{DW+4*nt}:{DW+4*nt+3}], v[{AF+4*t}:{AF+4*t+3}], v[{r}:{r+3}], {cc}")
    A("v_max_f32_dpp v74, v72, v72 quad_perm:[1,0,3,2] row_mask:0xf bank_mask:0xf")
    nop(2)
    A("v_max_f32_dpp v74, v74, v74 quad_perm:[2,3,0,1] row_mask:0xf bank_mask:0xf")
    A("v_sub_f32 v75, v72, v74")
    A("v_exp_f32 v75, v75")
    nop(1)
    A("v_mul_f32 v76, v75, v73")
    nop(2)
    A("v_add_f32_dpp v76, v76, v76 quad_perm:[1,0,3,2] row_mask:0xf bank_mask:0xf")
    nop(2)
    A("v_add_f32_dpp v76, v76, v76 quad_perm:[2,3,0,1] row_mask:0xf bank_mask:0xf")
    A("v_rcp_f32 v76, v76")
    nop(1)
    A("v_mul_f32 v75, v75, v76")
    for r in range(4):
        A(f"ds_bpermute_b32 v{96+r}, v19, v75 offset:{16*r}")
    A("v_lshrrev_b32 v20, 1, v6"); A("s_lshl_b32 s68, s3, 1"); A("v_add_u32 v20, s68, v20"); A("v_lshlrev_b32 v20, 11, v20")
    A("v_lshl_add_u32 v20, v5, 5, v20"); A("v_and_b32 v21, 1, v6"); A("v_lshl_add_u32 v20, v21, 4, v20")
    A("s_waitcnt lgkmcnt(0)")
    for nt in range(4):
        for r in range(4):
            A(f"v_mul_f32 v{DW+4*nt+r}, v{DW+4*nt+r}, v{96+r}")
    for nt in range(4):
        A(f"ds_write_b128 v20, v[{DW+4*nt}:{DW+4*nt+3}] offset:{RED + nt*512}")
    g.flag_add(F_RED, 3, 4)
    A("v_and_b32 v20, 31, v2"); A("v_lshlrev_b32 v20, 4, v20"); A("s_lshl_b32 s68, s3, 9"); A("v_add_u32 v21, s68, v20")
    A("v_lshrrev_b32 v22, 5, v2"); A("v_lshl_add_u32 v21, v22, 13, v21")
    g.flag_wait(F_RED, 4, 3, 10, sleep=False)
    for p in range(4):
        A(f"ds_read_b128 v[{32+4*p}:{35+4*p}], v21 offset:{RED + p*2048}")
    A("s_waitcnt lgkmcnt(0)")
    for r in range(4):
        A(f"v_add_f32 v{32+r}, v{32+r}, v{36+r}"); A(f"v_add_f32 v{40+r}, v{40+r}, v{44+r}")
    for r in range(4):
        A(f"v_add_f32 v{32+r}, v{32+r}, v{40+r}")
    for r in range(4):
        A(f"v_mov_b32 v{36+r}, v{32+r}")
    nop(2)
    for r in range(4):
        A(f"v_permlane32_swap_b32 v{32+r}, v{36+r}")
    nop(1)
    for r in range(4):
        A(f"v_add_f32 v{32+r}, v{32+r}, v{36+r}")
    for r in range(4):
        A(f"v_min_u32 v{32+r}, -2, v{32+r}")
    A("s_lshl_b32 s69, s74, 14"); A("s_lshl_b32 s76, s75, 11"); A("s_add_u32 s69, s69, s76"); A("s_add_u32 s69, s69, s68")
    A(f"s_add_u32 s69, s69, {SP_OFF}")
    A("s_mov_b32 exec_hi, 0")
    A("buffer_store_dwordx4 v[32:35], v20, s[52:55], s69 offen sc1")
    A("s_mov_b64 exec, -1")
    g.stamp(7)
    A("s_cmp_lg_u32 s3, 0"); A("s_cbranch_scc1 L_fin")
    A("v_and_b32 v16, 1, v2"); A("v_lshlrev_b32 v16, 12, v16")
    A("v_bfe_u32 v17, v2, 1, 1"); A("v_lshl_add_u32 v16, v17, 1, v16")
    A("s_lshl_b32 s76, s2, 2")
    for r in range(4):
        A(f"buffer_load_ushort v{100+r}, v16, s[56:59], s76 offen offset:{r*1024}")
    A("v_lshrrev_b32 v17, 2, v2"); A("v_lshlrev_b32 v17, 14, v17"); A("v_and_b32 v18, 3, v2"); A("v_lshl_add_u32 v17, v18, 4, v17")
    A("s_lshl_b32 s77, s2, 6"); A(f"s_add_u32 s77, s77, {SP_OFF}"); A(f"s_add_u32 s78, s77, {16*16384}")
    g.poll(["buffer_load_dwordx4 v[32:35], v17, s[52:55], s77 offen sc1",
            "buffer_load_dwordx4 v[36:39], v17, s[52:55], s78 offen sc1"], list(range(32, 40)), 10)
    g.stamp(8)
    def reduce_p(base):
        for r in range(4):
            A(f"v_add_f32 v{base+r}, v{base+r}, v{base+4+r}")
        for mod in ("row_ror:4", "row_ror:8"):
            nop(1)
            for r in range(4):
                A(f"v_add_f32_dpp v{base+r}, v{base+r}, v{base+r} {mod} row_mask:0xf bank_mask:0xf")
        g.xrow("v_add_f32", [base+r for r in range(4)], [base+4+r for r in range(4)])
    reduce_p(32)
    g.flag_wait(F_G, 1, 3, 10, sleep=False)
    A("v_lshlrev_b32 v18, 4, v18")
    A(f"ds_read_b128 v[40:43], v18 offset:{GL}")
    A("v_cvt_pk_bf16_f32 v36, v32, v33"); A("v_cvt_pk_bf16_f32 v37, v34, v35")
    A("v_lshlrev_b32 v32, 16, v36"); A("v_and_b32 v33, 0xffff0000, v36")
    A("v_lshlrev_b32 v34, 16, v37"); A("v_and_b32 v35, 0xffff0000, v37")
    A("s_waitcnt lgkmcnt(0)")
    for r in range(4):
        A(f"v_mul_f32 v{32+r}, v{32+r}, v{40+r}")
    A("v_cvt_pk_bf16_f32 v36, v32, v33"); A("v_cvt_pk_bf16_f32 v37, v34, v35")
    A("v_lshlrev_b32 v32, 16, v36"); A("v_and_b32 v33, 0xffff0000, v36")
    A("v_lshlrev_b32 v34, 16, v37"); A("v_and_b32 v35, 0xffff0000, v37")
    for r in range(4):
        A(f"v_lshlrev_b32 v{100+r}, 16, v{100+r}")
    for r in range(4):
        A(f"v_add_f32 v{32+r}, v{32+r}, v{100+r}")
    A("v_cvt_pk_bf16_f32 v36, v32, v33"); A("v_cvt_pk_bf16_f32 v37, v34, v35")
    A("s_mov_b64 exec, 15")
    A("buffer_store_short v36, v16, s[60:63], s76 offen")
    A("buffer_store_short_d16_hi v36, v16, s[60:63], s76 offen offset:1024")
    A("buffer_store_short v37, v16, s[60:63], s76 offen offset:2048")
    A("buffer_store_short_d16_hi v37, v16, s[60:63], s76 offen offset:3072")
    A("s_mov_b64 exec, -1")
    g.stamp(9)
    A("s_branch L_fin")

    lab("L_G")
    A("s_setprio 3")
    A("v_and_b32 v5, 15, v2")
    A("v_lshrrev_b32 v6, 4, v2")
    A("v_lshlrev_b32 v7, 4, v2")
    A("s_cmp_ge_u32 s3, 6"); A("s_cbranch_scc1 L_SX")
    A("s_cmp_ge_u32 s71, 30"); A("s_cbranch_scc1 L_bar_down")
    A("s_sub_u32 s77, s3, 4")
    A("s_lshl_b32 s68, s77, 12")
    XR = 16
    for r in range(4):
        A(f"buffer_load_dwordx4 v[{XR+4*r}:{XR+4*r+3}], v7, s[56:59], s68 offen offset:{r*1024}")
    A("s_cmp_ge_u32 s71, 16"); A("s_cbranch_scc1 L_roleB")
    A("s_mov_b32 s36, s10"); A("s_mov_b32 s37, s11"); A("s_mov_b32 s38, 4194304")
    A("s_mov_b32 s40, s10"); A("s_mov_b32 s41, s11"); A("s_mov_b32 s42, 4194304")
    A("s_lshl_b32 s76, s70, 10"); A("s_lshl_b32 s68, s71, 6"); A("s_add_u32 s76, s76, s68")
    A("s_add_u32 s78, s76, 32")
    A("s_movk_i32 s69, 8192")
    A("s_branch L_roleJ")
    lab("L_roleB")
    A("s_mov_b32 s36, s16"); A("s_mov_b32 s37, s17"); A("s_mov_b32 s38, 1835008")
    A("s_mov_b32 s40, s18"); A("s_mov_b32 s41, s19"); A("s_mov_b32 s42, 1835008")
    A("s_mul_i32 s76, s70, 14"); A("s_add_u32 s76, s76, s71"); A("s_sub_u32 s76, s76, 16"); A("s_lshl_b32 s76, s76, 5")
    A("s_mov_b32 s78, s76")
    A("s_movk_i32 s69, 3584")
    lab("L_roleJ")
    A("v_lshrrev_b32 v8, 1, v2"); A("v_mul_lo_u32 v8, v8, s69"); A("v_and_b32 v9, 1, v2"); A("v_lshl_add_u32 v8, v9, 4, v8")
    A("s_lshl_b32 s68, s77, 8"); A("s_mul_i32 s68, s68, s69")
    A("s_add_u32 s100, s76, s68"); A("s_add_u32 s101, s78, s68")
    A("s_lshl_b32 s69, s69, 5")
    A("s_lshl_b32 s68, s77, 14"); A(f"s_add_u32 s68, s68, {W1T}")
    for i in range(8):
        A("s_mov_b32 m0, s68")
        A("s_add_u32 s68, s68, 8192")
        A(f"buffer_load_dwordx4 v8, s[36:39], s100 offen {g.ntw} lds")
        A("s_mov_b32 m0, s68")
        A("s_sub_u32 s68, s68, 7168")
        A(f"buffer_load_dwordx4 v8, s[40:43], s101 offen {g.ntw} lds")
        A("s_add_u32 s100, s100, s69"); A("s_add_u32 s101, s101, s69")
    A("s_barrier")
    g.stamp(1)
    A("s_waitcnt vmcnt(16)")
    XF = 32
    for r in range(4):
        for e in range(4):
            A(f"v_lshlrev_b32 v{XF+8*r+2*e}, 16, v{XR+4*r+e}")
            A(f"v_and_b32 v{XF+8*r+2*e+1}, 0xffff0000, v{XR+4*r+e}")
    SM = 64
    for r in range(4):
        A(f"v_add_f32 v{SM+r}, v{XF+8*r}, v{XF+8*r+1}")
    for e in range(2, 8):
        for r in range(4):
            A(f"v_add_f32 v{SM+r}, v{SM+r}, v{XF+8*r+e}")
    g.allreduce64("v_add_f32", [SM+r for r in range(4)], [SM+4+r for r in range(4)])
    A(f"s_mov_b32 s68, 0x{f32bits(1.0/512):08x}")
    for r in range(4):
        A(f"v_mul_f32 v{SM+r}, s68, v{SM+r}")
    VS = 72
    for e in range(8):
        for r in range(4):
            A(f"v_sub_f32 v{80+r}, v{XF+8*r+e}, v{SM+r}")
        for r in range(4):
            if e == 0:
                A(f"v_mul_f32 v{VS+r}, v{80+r}, v{80+r}")
            else:
                A(f"v_fmac_f32 v{VS+r}, v{80+r}, v{80+r}")
    g.allreduce64("v_add_f32", [VS+r for r in range(4)], [VS+4+r for r in range(4)])
    for r in range(4):
        A(f"v_mul_f32 v{VS+r}, s68, v{VS+r}")
    def rbf(regs):
        for r in regs:
            A(f"v_cvt_pk_bf16_f32 v{r}, v{r}, v{r}")
        for r in regs:
            A(f"v_and_b32 v{r}, 0xffff0000, v{r}")
    rbf([SM+r for r in range(4)] + [VS+r for r in range(4)])
    for r in range(4):
        A(f"v_add_f32 v{VS+r}, 0x{f32bits(1e-5):08x}, v{VS+r}")
    rbf([VS+r for r in range(4)])
    for r in range(4):
        A(f"v_sqrt_f32 v{VS+r}, v{VS+r}")
    nop(1)
    rbf([VS+r for r in range(4)])
    for r in range(4):
        A(f"v_rcp_f32 v{VS+r}, v{VS+r}")
    for r in range(4):
        for e in range(8):
            A(f"v_sub_f32 v{XF+8*r+e}, v{XF+8*r+e}, v{SM+r}")
    for r in range(4):
        for e in range(4):
            A(f"v_cvt_pk_bf16_f32 v{XR+4*r+e}, v{XF+8*r+2*e}, v{XF+8*r+2*e+1}")
    for r in range(4):
        for e in range(4):
            A(f"v_lshlrev_b32 v{XF+8*r+2*e}, 16, v{XR+4*r+e}")
            A(f"v_and_b32 v{XF+8*r+2*e+1}, 0xffff0000, v{XR+4*r+e}")
    for r in range(4):
        for e in range(8):
            A(f"v_mul_f32 v{XF+8*r+e}, v{XF+8*r+e}, v{VS+r}")
    for r in range(4):
        for e in range(4):
            A(f"v_cvt_pk_bf16_f32 v{XR+4*r+e}, v{XF+8*r+2*e}, v{XF+8*r+2*e+1}")
    A(f"s_mul_i32 s68, s77, {4*XNP}"); A("v_add_u32 v9, s68, v7")
    for r in range(4):
        A(f"ds_write_b128 v9, v[{XR+4*r}:{XR+4*r+3}] offset:{XN + r*XNP}")
    g.flag_add(F_XN, 3, 4)
    g.stamp(2)
    A("v_and_b32 v9, 7, v2"); A(f"v_mul_u32_u24 v9, {XNP}, v9"); A("v_lshl_add_u32 v9, v6, 4, v9")
    A("s_lshl_b32 s68, s77, 9"); A("v_add_u32 v9, s68, v9")
    A("v_lshlrev_b32 v10, 8, v6"); A("v_lshl_add_u32 v10, v5, 3, v10")
    A("s_lshl_b32 s68, s77, 14"); A("v_add_u32 v10, s68, v10")
    g.flag_wait(F_XN, 2, 3, 11)
    XA = 32
    for t in range(8):
        A(f"ds_read_b128 v[{XA+4*t}:{XA+4*t+3}], v9 offset:{XN + t*64}")
    A("s_waitcnt vmcnt(0)")
    g.stamp(3)
    WB = 64
    for sub in range(2):
        for t in range(8):
            r = WB + (sub*8 + t)*4
            off = W1T + sub*8192 + t*1024
            A(f"ds_read_b64_tr_b16 v[{r}:{r+1}], v10 offset:{off}")
            A(f"ds_read_b64_tr_b16 v[{r+2}:{r+3}], v10 offset:{off+128}")
        A("s_waitcnt lgkmcnt(0)")
    for t in range(8):
        for sub in range(2):
            r = WB + (sub*8 + t)*4
            d = 128 + sub*4
            cc = "0" if t == 0 else f"v[{d}:{d+3}]"
            A(f"v_mfma_f32_16x16x32_bf16 v[{d}:{d+3}], v[{XA+4*t}:{XA+4*t+3}], v[{r}:{r+3}], {cc}")
    A("v_lshlrev_b32 v11, 9, v6"); A("v_lshl_add_u32 v11, v5, 2, v11"); A("s_lshl_b32 s68, s77, 10"); A("v_add_u32 v11, s68, v11")
    nop(6)
    A("s_mov_b32 exec_hi, 0")
    for sub in range(2):
        for r in range(4):
            A(f"ds_write_b32 v11, v{128+sub*4+r} offset:{D1 + r*128 + sub*64}")
    A("s_mov_b64 exec, -1")
    g.flag_add(F_D1, 3, 4)
    A("s_cmp_lg_u32 s3, 4"); A("s_cbranch_scc1 L_down")
    g.flag_wait(F_D1, 2, 3, 11)
    g.flag_wait(F_CLR, 1, 3, 11)
    A("s_cmp_ge_u32 s71, 16"); A("s_cbranch_scc1 L_finB")
    A("v_and_b32 v11, 31, v2"); A("v_lshlrev_b32 v12, 5, v11")
    for gw in range(2):
        A(f"ds_read_b128 v[{32+8*gw}:{35+8*gw}], v12 offset:{D1 + gw*1024}")
        A(f"ds_read_b128 v[{36+8*gw}:{39+8*gw}], v12 offset:{D1 + gw*1024 + 16}")
    A("s_waitcnt lgkmcnt(0)")
    for e in range(8):
        A(f"v_add_f32 v{32+e}, v{32+e}, v{40+e}")
    for e in range(4):
        A(f"v_cvt_pk_bf16_f32 v{48+e}, v{32+2*e}, v{33+2*e}")
    for e in range(4):
        A(f"v_min_u32 v{48+e}, -2, v{48+e}")
    A("v_lshrrev_b32 v12, 2, v11"); A("v_lshlrev_b32 v12, 13, v12"); A("v_and_b32 v13, 3, v2"); A("v_lshl_add_u32 v12, v13, 4, v12")
    A("s_mov_b32 exec_hi, 0")
    A(f"buffer_store_dwordx4 v[48:51], v12, s[52:55], s76 offen offset:{Q_OFF} sc1")
    A("s_mov_b64 exec, -1")
    g.stamp(4)
    A("s_branch L_down")
    lab("L_finB")
    A("v_lshrrev_b32 v11, 1, v5"); A("v_lshlrev_b32 v12, 7, v11"); A("v_and_b32 v13, 1, v2"); A("v_lshl_add_u32 v12, v13, 5, v12")
    for gw in range(2):
        for sub in range(2):
            r = 32 + gw*16 + sub*8
            A(f"ds_read_b128 v[{r}:{r+3}], v12 offset:{D1 + gw*1024 + sub*64}")
            A(f"ds_read_b128 v[{r+4}:{r+7}], v12 offset:{D1 + gw*1024 + sub*64 + 16}")
    A("s_waitcnt lgkmcnt(0)")
    for e in range(16):
        A(f"v_add_f32 v{32+e}, v{32+e}, v{48+e}")
    rbf(list(range(32, 48)))
    A(f"s_mov_b32 s68, 0x{f32bits(-1.4426950408889634):08x}")
    for e in range(8):
        A(f"v_mul_f32 v{48+e}, s68, v{32+e}")
    for e in range(8):
        A(f"v_exp_f32 v{48+e}, v{48+e}")
    nop(1)
    for e in range(8):
        A(f"v_add_f32 v{48+e}, 1.0, v{48+e}")
    for e in range(8):
        A(f"v_rcp_f32 v{48+e}, v{48+e}")
    nop(1)
    for e in range(8):
        A(f"v_mul_f32 v{32+e}, v{32+e}, v{48+e}")
    rbf(list(range(32, 40)))
    for e in range(8):
        A(f"v_mul_f32 v{32+e}, v{32+e}, v{40+e}")
    for e in range(4):
        A(f"v_cvt_pk_bf16_f32 v{48+e}, v{32+2*e}, v{33+2*e}")
    for e in range(4):
        A(f"v_min_u32 v{48+e}, -2, v{48+e}")
    A("v_mul_u32_u24 v12, 3584, v11"); A("v_lshl_add_u32 v12, v13, 4, v12")
    A(f"s_add_u32 s68, s76, {H_OFF}")
    A("s_mov_b64 exec, 0xffff")
    A("buffer_store_dwordx4 v[48:51], v12, s[52:55], s68 offen sc1")
    A("s_mov_b64 exec, -1")
    g.stamp(4)
    A("s_branch L_down")

    lab("L_SX")
    A("s_cmp_eq_u32 s3, 7"); A("s_cbranch_scc1 L_bar_down")
    for r in range(4):
        A(f"v_mov_b32 v{16+r}, -1")
    A("v_lshlrev_b32 v8, 13, v6"); A("v_lshl_add_u32 v8, v5, 4, v8")
    A("s_lshl_b32 s68, s70, 15"); A("s_lshl_b32 s69, s73, 11"); A("s_add_u32 s68, s68, s69")
    A("s_lshl_b32 s69, s72, 8"); A("s_add_u32 s68, s68, s69"); A(f"s_add_u32 s68, s68, {O_OFF}")
    A("buffer_store_dwordx4 v[16:19], v8, s[52:55], s68 offen sc1")
    A("s_lshl_b32 s68, s74, 14"); A("s_lshl_b32 s69, s75, 11"); A("s_add_u32 s68, s68, s69")
    A(f"s_add_u32 s69, s68, {SP_OFF}")
    A("buffer_store_dwordx4 v[16:19], v7, s[52:55], s69 offen sc1")
    A("buffer_store_dwordx4 v[16:19], v7, s[52:55], s69 offen offset:1024 sc1")
    A("s_cmp_ge_u32 s74, 28"); A("s_cbranch_scc1 L_nofpclr")
    A(f"s_add_u32 s69, s68, {FP_OFF}")
    A("buffer_store_dwordx4 v[16:19], v7, s[52:55], s69 offen sc1")
    A("buffer_store_dwordx4 v[16:19], v7, s[52:55], s69 offen offset:1024 sc1")
    lab("L_nofpclr")
    A("v_lshlrev_b32 v8, 8, v2")
    A("s_lshl_b32 s68, s70, 10"); A("s_lshl_b32 s69, s72, 5"); A("s_add_u32 s68, s68, s69")
    A("s_lshl_b32 s69, s73, 3"); A("s_add_u32 s68, s68, s69"); A(f"s_add_u32 s68, s68, {ML_OFF}")
    A("s_mov_b64 exec, 15")
    A("buffer_store_dwordx2 v[16:17], v8, s[52:55], s68 offen sc1")
    A("s_mov_b64 exec, -1")
    A("s_cmp_ge_u32 s71, 30"); A("s_cbranch_scc1 L_clrdone")
    A("s_cmp_ge_u32 s71, 16"); A("s_cbranch_scc1 L_clrB")
    A("v_lshrrev_b32 v8, 2, v2"); A("v_lshlrev_b32 v8, 13, v8"); A("v_and_b32 v9, 3, v2"); A("v_lshl_add_u32 v8, v9, 4, v8")
    A("s_lshl_b32 s68, s70, 10"); A("s_lshl_b32 s69, s71, 6"); A("s_add_u32 s68, s68, s69")
    A("s_mov_b32 exec_hi, 0")
    A(f"buffer_store_dwordx4 v[16:19], v8, s[52:55], s68 offen offset:{Q_OFF} sc1")
    A("s_mov_b64 exec, -1")
    A("s_branch L_clrdone")
    lab("L_clrB")
    A("v_lshrrev_b32 v8, 1, v2"); A("v_mul_u32_u24 v8, 3584, v8"); A("v_and_b32 v9, 1, v2"); A("v_lshl_add_u32 v8, v9, 4, v8")
    A("s_mul_i32 s68, s70, 14"); A("s_add_u32 s68, s68, s71"); A("s_sub_u32 s68, s68, 16"); A("s_lshl_b32 s68, s68, 5")
    A(f"s_add_u32 s68, s68, {H_OFF}")
    A("s_mov_b64 exec, 0xffff")
    A("buffer_store_dwordx4 v[16:19], v8, s[52:55], s68 offen sc1")
    A("s_mov_b64 exec, -1")
    lab("L_clrdone")
    A("s_lshl_b32 s76, s2, 7"); A(f"s_add_u32 s76, s76, {GO_OFF}")
    A("s_mov_b64 exec, 1")
    A("buffer_store_dword v16, v3, s[52:55], s76 offen sc1")
    A("s_mov_b64 exec, -1")
    A("s_barrier")
    A("s_waitcnt vmcnt(0)")
    g.stamp(1)
    A("s_mov_b64 exec, 1")
    A("buffer_store_byte v4, v3, s[64:67], s2 offen sc1")
    A("s_mov_b64 exec, -1")
    g.flag_add(F_CLR, 3, 4)
    A("s_cmp_lg_u32 s2, 0"); A("s_cbranch_scc1 L_gopoll")
    A("v_lshlrev_b32 v8, 2, v2")
    A("s_mov_b32 s79, 0x40000")
    A("s_mov_b32 s68, 0x01010101")
    lab("L_dbgpoll")
    A("buffer_load_dword v9, v8, s[64:67], 0 offen sc1")
    A("s_waitcnt vmcnt(0)")
    A("v_cmp_ne_u32 vcc, s68, v9")
    A("s_cmp_eq_u64 vcc, 0")
    A("s_cbranch_scc1 L_dbgdone")
    A("s_sub_u32 s79, s79, 1"); A("s_cmp_lg_u32 s79, 0"); A("s_cbranch_scc1 L_dbgpoll")
    lab("L_dbgdone")
    g.stamp(4)
    A("v_lshlrev_b32 v8, 7, v2")
    for i in range(4):
        A(f"s_mov_b32 s68, {GO_OFF + i*8192}")
        A("buffer_store_dword v4, v8, s[52:55], s68 offen sc1")
    lab("L_gopoll")
    g.poll(["buffer_load_dword v9, v3, s[52:55], s76 offen sc1"], [9, 9], 10)
    g.stamp(2)
    g.flag_add(F_GO, 3, 4)
    A("s_lshl_b32 s68, s72, 13"); A("s_lshl_b32 s69, s70, 10"); A("s_add_u32 s68, s68, s69")
    g.poll([f"buffer_load_dwordx4 v[16:19], v7, s[52:55], s68 offen offset:{Q_OFF} sc1"], [16, 17, 18, 19], 10)
    A(f"ds_write_b128 v7, v[16:19] offset:{QL}")
    g.flag_add(F_Q, 3, 4)
    g.stamp(3)

    A("s_branch L_down")
    lab("L_bar_down")
    A("s_barrier")
    lab("L_down")
    A("s_cmp_ge_u32 s74, 28"); A("s_cbranch_scc1 L_fgather")
    A("s_sub_u32 s77, s3, 4")
    A("v_lshrrev_b32 v8, 1, v2"); A("v_lshlrev_b32 v8, 10, v8"); A("v_and_b32 v9, 1, v2"); A("v_lshl_add_u32 v8, v9, 4, v8")
    A("s_lshl_b32 s68, s74, 16"); A("s_lshl_b32 s69, s75, 7"); A("s_add_u32 s68, s68, s69")
    A("s_lshl_b32 s69, s77, 5"); A("s_add_u32 s68, s68, s69")
    A("s_lshl_b32 s69, s77, 11"); A(f"s_add_u32 s69, s69, {WDT}")
    g.flag_wait(F_GO, 1, 3, 11)
    A("s_mov_b32 m0, s69")
    A("s_add_u32 s69, s69, 1024")
    A(f"buffer_load_dwordx4 v8, s[48:51], s68 offen {g.ntw} lds")
    A("s_mov_b32 m0, s69")
    A("s_add_u32 s68, s68, 32768")
    A(f"buffer_load_dwordx4 v8, s[48:51], s68 offen {g.ntw} lds")
    A("v_and_b32 v9, 7, v2"); A("v_mul_u32_u24 v9, 3584, v9"); A("v_lshl_add_u32 v9, v6, 4, v9")
    A("s_lshl_b32 s68, s74, 7"); A(f"s_add_u32 s68, s68, {H_OFF}")
    g.poll(["buffer_load_dwordx4 v[16:19], v9, s[52:55], s68 offen sc1",
            "buffer_load_dwordx4 v[20:23], v9, s[52:55], s68 offen offset:64 sc1"], list(range(16, 24)), 10)
    g.stamp(5)
    A("v_lshlrev_b32 v10, 8, v6"); A("v_lshl_add_u32 v10, v5, 3, v10"); A("s_lshl_b32 s69, s77, 11"); A("v_add_u32 v10, s69, v10")
    for t in range(2):
        A(f"ds_read_b64_tr_b16 v[{24+4*t}:{25+4*t}], v10 offset:{WDT + t*1024}")
        A(f"ds_read_b64_tr_b16 v[{26+4*t}:{27+4*t}], v10 offset:{WDT + t*1024 + 128}")
    A("s_waitcnt lgkmcnt(0)")
    A("v_mfma_f32_16x16x32_bf16 v[32:35], v[16:19], v[24:27], 0")
    A("v_mfma_f32_16x16x32_bf16 v[32:35], v[20:23], v[28:31], v[32:35]")
    A("v_lshlrev_b32 v11, 5, v5"); A("v_lshl_add_u32 v11, v6, 4, v11")
    A("s_lshl_b32 s68, s74, 14"); A("s_lshl_b32 s69, s75, 11"); A("s_add_u32 s68, s68, s69")
    A("s_lshl_b32 s69, s77, 9"); A("s_add_u32 s68, s68, s69"); A(f"s_add_u32 s68, s68, {FP_OFF}")
    nop(2)
    for r in range(4):
        A(f"v_min_u32 v{32+r}, -2, v{32+r}")
    A("s_mov_b32 exec_hi, 0")
    A("buffer_store_dwordx4 v[32:35], v11, s[52:55], s68 offen sc1")
    A("s_mov_b64 exec, -1")
    g.stamp(6)
    lab("L_fgather")
    A("s_cmp_lg_u32 s3, 7"); A("s_cbranch_scc1 L_fin")
    g.flag_wait(F_GO, 1, 3, 11)
    A("v_lshrrev_b32 v17, 2, v2"); A("v_and_b32 v18, 3, v2")
    A("v_min_u32 v19, 11, v17")
    A("v_lshlrev_b32 v19, 14, v19"); A("v_lshl_add_u32 v19, v18, 4, v19")
    A("v_lshlrev_b32 v17, 14, v17"); A("v_lshl_add_u32 v17, v18, 4, v17")
    A("s_lshl_b32 s77, s2, 6"); A(f"s_add_u32 s77, s77, {FP_OFF}"); A(f"s_add_u32 s78, s77, {16*16384}")
    g.poll(["buffer_load_dwordx4 v[32:35], v17, s[52:55], s77 offen sc1",
            "buffer_load_dwordx4 v[36:39], v19, s[52:55], s78 offen sc1"], list(range(32, 40)), 10)
    g.stamp(7)
    A("v_cmp_gt_u32 vcc, 48, v2")
    nop(2)
    for r in range(4):
        A(f"v_cndmask_b32 v{36+r}, 0, v{36+r}, vcc")
    reduce_p(32)
    rbf([32, 33, 34, 35])
    A(f"s_mov_b32 s68, 0x{f32bits(-1.4426950408889634):08x}")
    for r in range(4):
        A(f"v_mul_f32 v{36+r}, s68, v{32+r}")
    for r in range(4):
        A(f"v_exp_f32 v{36+r}, v{36+r}")
    nop(1)
    for r in range(4):
        A(f"v_add_f32 v{36+r}, 1.0, v{36+r}")
    for r in range(4):
        A(f"v_rcp_f32 v{36+r}, v{36+r}")
    nop(1)
    for r in range(4):
        A(f"v_mul_f32 v{32+r}, v{32+r}, v{36+r}")
    rbf([32, 33, 34, 35])
    A("v_lshlrev_b32 v18, 4, v18")
    A("s_mov_b64 exec, 15")
    A(f"ds_write_b128 v18, v[32:35] offset:{GL}")
    A("s_mov_b64 exec, -1")
    g.flag_add(F_G, 3, 4)
    g.stamp(8)
    lab("L_fin")
    g.stamp_flush()
    lab("L_end")
    A("s_endpgm")
    tail = ['.section .rodata,"a"', ".p2align 6", f".amdhsa_kernel {KN}",
            "  .amdhsa_next_free_vgpr 192", "  .amdhsa_next_free_sgpr 102", "  .amdhsa_accum_offset 192",
            "  .amdhsa_group_segment_fixed_size 0", "  .amdhsa_kernarg_size 96", "  .amdhsa_user_sgpr_count 2",
            "  .amdhsa_user_sgpr_kernarg_segment_ptr 1", "  .amdhsa_system_sgpr_workgroup_id_x 1",
            "  .amdhsa_float_denorm_mode_32 3",
            ".end_amdhsa_kernel"]
    return "\n".join(hdr + g.L + tail) + "\n"

if __name__ == "__main__":
    out = sys.argv[1] if len(sys.argv) > 1 else "recurrent_scan__sliding_block_cached__swiglu_ffn__decode.s"
    stamps = "--stamps" in sys.argv
    kw = {}
    for a in sys.argv[2:]:
        if "=" in a:
            k, v = a.split("=", 1); kw[k] = v
    open(out, "w").write(build(stamps=stamps, **kw))
```

```python
import sys, struct
from gen import G, f32bits, KN

QP_OFF = 0x00000
GP_OFF = 0x80000
O_OFF = 0xF0000
ML_OFF = 0x130000
SP_OFF = 0x132000
FP_OFF = 0x172000
FL_OFF = 0x1B0000
EP_OFF = 0x1B8000
TAGMUL = 0x9E3779B1
STAMP_OFF = 0x1000000
F_XN, F_Q, F_W, F_MX, F_ML, F_K, F_V0, F_V1, F_PUB, F_K2, F_EP = 0, 4, 8, 12, 16, 20, 24, 28, 32, 36, 60
MX = 64; LL = 128; GL = 192
XN = 256; XNP = 272
QL = 2560
PL = 3584; PLP = 528
WOT = 6144
WDT = 22528
W1T = 30720
RED = W1T
VT = 63488
LDS_BYTES = 129024
LOG2E = 1.4426950408889634

def build(stamps=False, ntkv="nt", ntw="nt", thr=6, vthr=24, kdelay=0, vdelay=1, qsleep=2, cut=0, sample=0, dyn=1, vthr2=40, noclr=0, nost=0, kq=16, kv=12, wolate=0):
    kq = int(kq); kv = int(kv); wolate = int(wolate)
    g = G(stamps, ntkv, ntw, thr)
    g.nwaves = 9
    vthr = int(vthr); kdelay = int(kdelay); vdelay = int(vdelay); qsleep = int(qsleep); cut = int(cut)
    A = g.A; lab = g.lab; nop = g.nop
    hdr = [f"; @launch grid=(256,1,1) block=(576,1,1) lds={LDS_BYTES}",
           '.amdgcn_target "amdgcn-amd-amdhsa--gfx950"', ".text", f".globl {KN}", ".p2align 8",
           f".type {KN},@function", f"{KN}:"]
    def rbf(regs):
        for r in regs: A(f"v_cvt_pk_bf16_f32 v{r}, v{r}, v{r}")
        for r in regs: A(f"v_and_b32 v{r}, 0xffff0000, v{r}")
    def unpack(dst, srcs):
        for e, sr in enumerate(srcs):
            A(f"v_lshlrev_b32 v{dst+2*e}, 16, v{sr}")
            A(f"v_and_b32 v{dst+2*e+1}, 0xffff0000, v{sr}")
    def silu(regs, tmp):
        A(f"s_mov_b32 s68, 0x{f32bits(-LOG2E):08x}")
        for i, r in enumerate(regs): A(f"v_mul_f32 v{tmp+i}, s68, v{r}")
        for i, r in enumerate(regs): A(f"v_exp_f32 v{tmp+i}, v{tmp+i}")
        nop(1)
        for i, r in enumerate(regs): A(f"v_add_f32 v{tmp+i}, 1.0, v{tmp+i}")
        for i, r in enumerate(regs): A(f"v_rcp_f32 v{tmp+i}, v{tmp+i}")
        nop(1)
        for i, r in enumerate(regs): A(f"v_mul_f32 v{r}, v{r}, v{tmp+i}")
    def exec_mask(m):
        A(f"s_mov_b32 exec_lo, 0x{m:08x}"); A(f"s_mov_b32 exec_hi, 0x{m:08x}")
    def tagpoll(loads, quads, vt, sleep):
        l = g.newlab("TP"); d = g.newlab("TD")
        A("s_mov_b32 s15, 0x40000")
        lab(l)
        for s_ in loads: A(s_)
        A("s_waitcnt vmcnt(0)")
        first = True
        for q in quads:
            if first:
                A(f"v_xor_b32 v{vt}, s4, v{q+1}"); first = False
            else:
                A(f"v_xor_b32 v{vt+1}, s4, v{q+1}"); A(f"v_or_b32 v{vt}, v{vt}, v{vt+1}")
            A(f"v_xor_b32 v{vt+1}, s5, v{q+3}"); A(f"v_or_b32 v{vt}, v{vt}, v{vt+1}")
        A(f"v_cmp_ne_u32 vcc, 0, v{vt}")
        A("s_cmp_eq_u64 vcc, 0"); A(f"s_cbranch_scc1 {d}")
        if sleep: A(f"s_sleep {sleep}")
        A("s_sub_u32 s15, s15, 1"); A("s_cmp_lg_u32 s15, 0"); A(f"s_cbranch_scc1 {l}")
        lab(d)
    A("s_cmp_ge_u32 s2, 256"); A("s_cbranch_scc1 L_end")
    A("s_load_dwordx16 s[4:19], s[0:1], 0")
    A("s_load_dwordx8 s[20:27], s[0:1], 64")
    g.stamp(0)
    A("v_lshrrev_b32 v1, 6, v0")
    A("v_and_b32 v2, 63, v0")
    A("v_readfirstlane_b32 s3, v1")
    A("v_mov_b32 v3, 0"); A("v_mov_b32 v4, 1")
    A("v_and_b32 v5, 15, v2"); A("v_lshrrev_b32 v6, 4, v2")
    for d, n in ((28, 67108864), (32, 67108864), (44, 4194304), (48, 1835008), (52, 268435456), (56, 8192), (60, 8192)):
        A(f"s_mov_b32 s{d+2}, {n}"); A(f"s_mov_b32 s{d+3}, 0x00020000")
    A("s_mov_b32 s39, 0x00020000")
    A("s_and_b32 s70, s2, 7")
    A("s_lshr_b32 s71, s2, 3")
    A("s_lshr_b32 s72, s71, 2")
    A("s_and_b32 s73, s71, 3")
    A("s_lshl_b32 s74, s70, 2"); A("s_lshr_b32 s68, s71, 3"); A("s_add_u32 s74, s74, s68")
    A("s_and_b32 s75, s71, 7")
    A("s_lshl_b32 s64, s72, 3"); A("s_add_u32 s64, s64, s70"); A("s_lshl_b32 s64, s64, 20")
    A("s_lshl_b32 s68, s73, 16"); A("s_add_u32 s64, s64, s68"); A(f"s_add_u32 s64, s64, {3072*256}")
    A("s_cmp_ge_u32 s3, 4"); A("s_cbranch_scc1 L_H")

    KR = 16; QF = 80; SR = 96; PP = 112; ACC = 120
    PBF = 16
    VF = 48
    A("s_lshl_b32 s68, s3, 14"); A("s_add_u32 s76, s64, s68")
    for i in range(1, 4):
        A(f"s_add_u32 s{76+i}, s76, {i*4096}")
    A("v_lshlrev_b32 v7, 8, v5"); A("v_lshl_add_u32 v7, v6, 4, v7")
    A("s_waitcnt lgkmcnt(0)")
    for d, b in ((28, 6), (52, 26), (56, 4), (60, 22)):
        A(f"s_mov_b32 s{d}, s{b}"); A(f"s_mov_b32 s{d+1}, s{b+1}")
    A("s_barrier")
    if kdelay:
        g.flag_wait(F_W, 2, 3, 10)
    n = 0
    for T in range(4):
        for t in range(4):
            r = KR + (T*4 + t)*4
            if g.thr and n >= g.thr: A(f"s_waitcnt vmcnt({g.thr-1})")
            A(f"buffer_load_dwordx4 v[{r}:{r+3}], v7, s[28:31], s{76+T} offen offset:{t*64} {g.ntkv}"); n += 1
            if n == kv: g.flag_add(F_K2, 3, 4)
            if n == kq: g.flag_add(F_K, 3, 4)
    g.stamp(1)
    if cut:
        A("s_waitcnt vmcnt(0)"); g.stamp(2); A("s_branch L_fin")
    A(f"s_mov_b32 s78, 0x{f32bits(LOG2E * (128 ** -0.5)):08x}")
    A("v_and_b32 v11, 3, v2")
    A("v_lshlrev_b32 v12, 8, v11"); A("v_lshl_add_u32 v12, v6, 4, v12")
    A("v_lshlrev_b32 v13, 4, v11")
    A("s_lshl_b32 s68, s3, 2"); A("v_add_u32 v14, s68, v13")
    A(f"v_mul_u32_u24 v8, {PLP}, v11"); A("v_lshl_add_u32 v9, v6, 4, v8")
    A("v_lshl_add_u32 v8, v6, 3, v8"); A("s_lshl_b32 s68, s3, 7"); A("v_add_u32 v8, s68, v8")
    A("v_lshrrev_b32 v124, 2, v5")
    A("v_and_b32 v125, 1, v6"); A("v_lshl_add_u32 v125, v125, 2, v124"); A("v_lshlrev_b32 v125, 1, v125")
    A("v_lshrrev_b32 v126, 1, v11"); A("s_lshl_b32 s68, s3, 2"); A("v_add_u32 v126, s68, v126"); A("v_xor_b32 v126, v126, v125")
    A("v_lshlrev_b32 v126, 4, v126"); A("v_and_b32 v125, 1, v2"); A("v_lshl_add_u32 v126, v125, 3, v126")
    A("v_lshl_add_u32 v125, v6, 3, v124"); A("v_lshl_add_u32 v126, v125, 8, v126")
    A("v_xor_b32 v127, 32, v126")
    A(f"v_add_u32 v126, {VT}, v126"); A(f"v_add_u32 v127, {VT}, v127")
    A("v_lshlrev_b32 v125, 6, v11"); A("v_lshl_add_u32 v125, v6, 4, v125")
    A("s_lshl_b32 s79, s70, 2"); A("s_add_u32 s79, s79, s73"); A("s_lshl_b32 s79, s79, 3"); A("s_add_u32 s79, s79, s72")
    A("s_lshl_b32 s79, s79, 2"); A("s_add_u32 s79, s79, s3"); A("s_lshl_b32 s79, s79, 8"); A(f"s_add_u32 s79, s79, {O_OFF}")
    g.flag_wait(F_Q, 1, 3, 10)
    g.stamp(2)
    for t in range(4):
        A(f"ds_read_b128 v[{QF+4*t}:{QF+4*t+3}], v12 offset:{QL + t*64}")
    A("s_waitcnt lgkmcnt(0)")
    for T in range(4):
        A(f"s_waitcnt vmcnt({12 - 4*T})")
        for t in range(4):
            r = KR + (T*4 + t)*4
            cc = "0" if t == 0 else f"v[{SR+4*T}:{SR+4*T+3}]"
            A(f"v_mfma_f32_16x16x32_bf16 v[{SR+4*T}:{SR+4*T+3}], v[{r}:{r+3}], v[{QF+4*t}:{QF+4*t+3}], {cc}")
    nop(4)
    A(f"v_max3_f32 v10, v{SR}, v{SR+1}, v{SR+2}")
    for i in range(3, 11, 2):
        A(f"v_max3_f32 v10, v10, v{SR+i}, v{SR+i+1}")
    A(f"v_max_f32 v10, v10, v{SR+11}")
    A(f"v_max3_f32 v10, v10, v{SR+12}, v{SR+13}")
    A(f"v_max3_f32 v10, v10, v{SR+14}, v{SR+15}")
    g.xrow("v_max_f32", [10], [15])
    A("s_mov_b64 exec, 15")
    A(f"ds_write_b32 v14, v10 offset:{MX}")
    g.flag_add(F_MX, 3, 4)
    g.flag_wait(F_MX, 4, 3, 15, sleep=False)
    A(f"ds_read_b128 v[{PP}:{PP+3}], v13 offset:{MX}")
    A("s_waitcnt lgkmcnt(0)")
    A(f"v_max3_f32 v10, v{PP}, v{PP+1}, v{PP+2}"); A(f"v_max_f32 v10, v10, v{PP+3}")
    A("v_mul_f32 v10, s78, v10")
    for i in range(16):
        A(f"v_fma_f32 v{SR+i}, v{SR+i}, s78, -v10")
    for i in range(16):
        A(f"v_exp_f32 v{SR+i}, v{SR+i}")
    nop(1)
    for i in range(8):
        A(f"v_cvt_pk_bf16_f32 v{PP+i}, v{SR+2*i}, v{SR+2*i+1}")
    exec_mask(0x000F000F)
    for T in range(4):
        A(f"ds_write_b64 v8, v[{PP+2*T}:{PP+2*T+1}] offset:{PL + T*32}")
    A("s_mov_b64 exec, -1")
    A(f"v_add_f32 v10, v{SR}, v{SR+1}"); A(f"v_add_f32 v15, v{SR+2}, v{SR+3}")
    for i in range(4, 16, 2):
        A(f"v_add_f32 v10, v10, v{SR+i}"); A(f"v_add_f32 v15, v15, v{SR+i+1}")
    A("v_add_f32 v10, v10, v15")
    g.xrow("v_add_f32", [10], [15])
    A("s_mov_b64 exec, 15")
    A(f"ds_write_b32 v14, v10 offset:{LL}")
    g.flag_add(F_ML, 3, 4)
    g.flag_wait(F_ML, 4, 3, 15, sleep=False)
    for t in range(8):
        A(f"ds_read_b128 v[{PBF+4*t}:{PBF+4*t+3}], v9 offset:{PL + t*64}")
    g.stamp(3)
    A("s_mov_b32 s76, 0")
    for t in range(8):
        lw = g.newlab("VW"); lr = g.newlab("VR")
        A(f"s_cmp_gt_u32 s76, {t}"); A(f"s_cbranch_scc1 {lr}")
        A("s_mov_b32 s15, 0x400000")
        lab(lw)
        A(f"ds_read_b32 v{SR}, v3 offset:{F_V0}")
        A("s_waitcnt lgkmcnt(0)")
        A("s_sub_u32 s15, s15, 1")
        A(f"v_readfirstlane_b32 s76, v{SR}")
        A("s_cmp_eq_u32 s15, 0"); A(f"s_cbranch_scc1 {lr}")
        A(f"s_cmp_gt_u32 s76, {t}"); A(f"s_cbranch_scc0 {lw}")
        lab(lr)
        vf = VF + (t & 1)*8
        for nt in range(2):
            A(f"ds_read_b64_tr_b16 v[{vf+4*nt}:{vf+4*nt+1}], v{126+nt} offset:{t*8192}")
            A(f"ds_read_b64_tr_b16 v[{vf+4*nt+2}:{vf+4*nt+3}], v{126+nt} offset:{t*8192 + 1024}")
        A("s_waitcnt lgkmcnt(0)")
        for nt in range(2):
            acc = 64 + 4*nt
            cc = "0" if t == 0 else f"v[{acc}:{acc+3}]"
            A(f"v_mfma_f32_16x16x32_bf16 v[{acc}:{acc+3}], v[{vf+4*nt}:{vf+4*nt+3}], v[{PBF+4*t}:{PBF+4*t+3}], {cc}")
    g.stamp(4)
    exec_mask(0x000F000F)
    nop(5)
    A("v_cvt_pk_bf16_f32 v72, v64, v65"); A("v_cvt_pk_bf16_f32 v73, v66, v67")
    A("v_cvt_pk_bf16_f32 v74, v68, v69"); A("v_cvt_pk_bf16_f32 v75, v70, v71")
    for e in range(4): A(f"v_min_u32 v{72+e}, -2, v{72+e}")
    A("buffer_store_dwordx4 v[72:75], v125, s[52:55], s79 offen sc1")
    A("s_mov_b64 exec, -1")
    g.stamp(5)
    A("v_and_b32 v18, 7, v2"); A("v_lshlrev_b32 v19, 5, v18")
    A("s_lshl_b32 s77, s74, 8"); A(f"s_add_u32 s77, s77, {ML_OFF}")
    A("v_lshl_add_u32 v16, v6, 2, v124"); A("v_lshlrev_b32 v16, 7, v16"); A("v_lshl_add_u32 v16, v11, 5, v16")
    A("s_and_b32 s68, s3, 1"); A("s_lshl_b32 s69, s68, 13"); A("v_add_u32 v16, s69, v16")
    A("v_lshlrev_b32 v17, 10, v5"); A("v_lshl_add_u32 v17, v6, 4, v17")
    A("s_lshl_b32 s76, s70, 15"); A("s_lshr_b32 s69, s3, 1"); A("s_lshl_b32 s69, s69, 14"); A("s_add_u32 s76, s76, s69")
    A("s_lshl_b32 s68, s68, 9"); A("s_add_u32 s76, s76, s68")
    A("s_lshr_b32 s68, s71, 3"); A("s_lshl_b32 s68, s68, 6"); A("s_add_u32 s76, s76, s68"); A(f"s_add_u32 s76, s76, {O_OFF}")
    A("s_barrier")
    g.poll(["buffer_load_dwordx4 v[64:67], v19, s[52:55], s77 offen sc1",
            "buffer_load_dwordx4 v[68:71], v19, s[52:55], s77 offen offset:16 sc1"], list(range(64, 72)), 10)
    BF = 32
    for nt in range(4):
        for t in range(2):
            r = BF + (nt*2 + t)*4
            off = WOT + t*4096 + nt*8
            A(f"ds_read_b64_tr_b16 v[{r}:{r+1}], v16 offset:{off}")
            A(f"ds_read_b64_tr_b16 v[{r+2}:{r+3}], v16 offset:{off + 2048}")
    A("v_max3_f32 v72, v64, v66, v68"); A("v_max_f32 v72, v72, v70")
    for s in range(4): A(f"v_sub_f32 v{64+2*s}, v{64+2*s}, v72")
    for s in range(4): A(f"v_exp_f32 v{64+2*s}, v{64+2*s}")
    nop(1)
    A("v_mul_f32 v73, v64, v65")
    for s in range(1, 4): A(f"v_fmac_f32 v73, v{64+2*s}, v{65+2*s}")
    A("v_rcp_f32 v73, v73")
    A("s_cmp_ge_u32 s3, 2")
    A("s_cselect_b64 s[68:69], -1, 0")
    A("v_cndmask_b32 v64, v64, v68, s[68:69]"); A("v_cndmask_b32 v66, v66, v70, s[68:69]")
    A("s_mov_b32 s68, 0xff00ff00"); A("s_mov_b32 s69, 0xff00ff00")
    A("v_cndmask_b32 v64, v64, v66, s[68:69]")
    A("v_mul_f32 v72, v64, v73"); A("v_mul_f32 v73, v64, v73")
    A("v_bfe_u32 v20, v2, 3, 1"); A("s_lshl_b32 s68, s3, 1"); A("v_add_u32 v20, s68, v20"); A("v_mul_u32_u24 v20, 2176, v20")
    A("v_mul_u32_u24 v21, 272, v18"); A("v_add_u32 v20, v20, v21"); A("v_lshl_add_u32 v20, v6, 6, v20")
    A("v_lshrrev_b32 v21, 5, v2"); A("v_add_u32 v22, s68, v21"); A("v_mul_u32_u24 v22, 272, v22")
    A("v_and_b32 v23, 31, v2"); A("v_lshl_add_u32 v22, v23, 3, v22")
    A("v_lshlrev_b32 v21, 10, v21"); A("v_lshl_add_u32 v21, v23, 2, v21")
    A("s_lshl_b32 s79, s74, 3"); A("s_add_u32 s79, s79, s68"); A("s_lshl_b32 s79, s79, 10")
    A("s_lshl_b32 s69, s75, 7"); A("s_add_u32 s79, s79, s69"); A(f"s_add_u32 s79, s79, {SP_OFF}")
    A("s_waitcnt lgkmcnt(0)")
    AF = 64
    g.poll([f"buffer_load_dwordx4 v[{AF}:{AF+3}], v17, s[52:55], s76 offen sc1",
            f"buffer_load_dwordx4 v[{AF+4}:{AF+7}], v17, s[52:55], s76 offen offset:256 sc1"],
           list(range(AF, AF+8)), 10)
    g.stamp(6)
    DW = 80
    for t in range(2):
        for nt in range(4):
            r = BF + (nt*2 + t)*4
            cc = "0" if t == 0 else f"v[{DW+4*nt}:{DW+4*nt+3}]"
            A(f"v_mfma_f32_16x16x32_bf16 v[{DW+4*nt}:{DW+4*nt+3}], v[{r}:{r+3}], v[{AF+4*t}:{AF+4*t+3}], {cc}")
    nop(5)
    for nt in range(4):
        A(f"v_pk_mul_f32 v[{DW+4*nt}:{DW+4*nt+1}], v[{DW+4*nt}:{DW+4*nt+1}], v[72:73]")
        A(f"v_pk_mul_f32 v[{DW+4*nt+2}:{DW+4*nt+3}], v[{DW+4*nt+2}:{DW+4*nt+3}], v[72:73]")
        A(f"ds_write_b128 v20, v[{DW+4*nt}:{DW+4*nt+3}] offset:{RED + nt*16}")
    A("s_waitcnt lgkmcnt(0)")
    A("s_barrier")
    for p in range(8):
        A(f"ds_read_b64 v[{32+2*p}:{33+2*p}], v22 offset:{RED + p*2176}")
    A("s_waitcnt lgkmcnt(4)") if not stamps else A("s_waitcnt lgkmcnt(0)")
    A("v_pk_add_f32 v[32:33], v[32:33], v[34:35]"); A("v_pk_add_f32 v[36:37], v[36:37], v[38:39]")
    A("v_pk_add_f32 v[32:33], v[32:33], v[36:37]")
    A("s_waitcnt lgkmcnt(0)")
    A("v_pk_add_f32 v[40:41], v[40:41], v[42:43]"); A("v_pk_add_f32 v[44:45], v[44:45], v[46:47]")
    A("v_pk_add_f32 v[40:41], v[40:41], v[44:45]")
    A("v_pk_add_f32 v[32:33], v[32:33], v[40:41]")
    A("v_cvt_pk_bf16_f32 v32, v32, v33")
    A("v_min_u32 v32, -2, v32")
    A("buffer_store_dword v32, v21, s[52:55], s79 offen sc1")
    g.stamp(7)
    A("s_cmp_ge_u32 s3, 2"); A("s_cbranch_scc1 L_fin")
    A("s_lshr_b32 s68, s2, 5"); A("s_lshl_b32 s68, s68, 10"); A("s_and_b32 s69, s2, 31"); A("s_lshl_b32 s69, s69, 5")
    A("s_add_u32 s76, s68, s69")
    A("v_lshrrev_b32 v17, 1, v2"); A("v_and_b32 v16, 1, v2")
    A("v_lshlrev_b32 v19, 4, v16"); A("v_mov_b32 v20, 0x3f80"); A("v_lshlrev_b32 v20, v19, v20")
    A("v_bfe_u32 v19, v2, 1, 2")
    for e in range(4):
        A(f"v_cmp_eq_u32 vcc, {e}, v19")
        nop(2)
        A(f"v_cndmask_b32 v{40+e}, 0, v20, vcc")
    A("v_lshlrev_b32 v21, 4, v16"); A("v_lshl_add_u32 v21, v6, 3, v21")
    A("s_cmp_eq_u32 s3, 1"); A("s_cbranch_scc1 L_fg")
    A("v_lshlrev_b32 v17, 13, v17"); A("v_lshl_add_u32 v17, v16, 4, v17")
    A(f"s_add_u32 s77, s76, {SP_OFF}")
    A("buffer_load_dwordx2 v[44:45], v21, s[56:59], s76 offen")
    g.poll(["buffer_load_dwordx4 v[32:35], v17, s[52:55], s77 offen sc1"], [32, 33, 34, 35], 10)
    g.stamp(8)
    def red_final():
        A("v_mfma_f32_16x16x32_bf16 v[36:39], v[40:43], v[32:35], 0")
        nop(8)
        for mod in ("row_ror:2", "row_ror:4", "row_ror:8"):
            for r in range(4):
                A(f"v_add_f32_dpp v{36+r}, v{36+r}, v{36+r} {mod} row_mask:0xf bank_mask:0xf")
    red_final()
    A("s_barrier")
    A("v_lshlrev_b32 v22, 1, v21")
    A(f"ds_read_b128 v[48:51], v22 offset:{GL}")
    A("v_cvt_pk_bf16_f32 v32, v36, v37"); A("v_cvt_pk_bf16_f32 v33, v38, v39")
    unpack(36, [32, 33])
    unpack(52, [44, 45])
    A("s_waitcnt lgkmcnt(0)")
    A("v_pk_mul_f32 v[36:37], v[36:37], v[48:49]"); A("v_pk_mul_f32 v[38:39], v[38:39], v[50:51]")
    A("v_cvt_pk_bf16_f32 v32, v36, v37"); A("v_cvt_pk_bf16_f32 v33, v38, v39")
    unpack(36, [32, 33])
    A("v_pk_add_f32 v[36:37], v[36:37], v[52:53]"); A("v_pk_add_f32 v[38:39], v[38:39], v[54:55]")
    A("v_cvt_pk_bf16_f32 v32, v36, v37"); A("v_cvt_pk_bf16_f32 v33, v38, v39")
    A("s_mov_b64 exec, 0x30003")
    A("buffer_store_dwordx2 v[32:33], v21, s[60:63], s76 offen")
    A("s_mov_b64 exec, -1")
    g.stamp(9)
    A("s_cmp_lg_u32 s2, 0"); A("s_cbranch_scc1 L_fin")
    A(f"ds_read_b32 v32, v3 offset:{F_EP}")
    A(f"s_mov_b32 s68, {EP_OFF}")
    A("s_waitcnt lgkmcnt(0)")
    A("s_mov_b64 exec, 1")
    A("buffer_store_dword v32, v3, s[52:55], s68 offen sc1")
    A("s_mov_b64 exec, -1")
    A("s_branch L_fin")
    lab("L_fg")
    A("v_min_u32 v17, 27, v17")
    A("v_lshlrev_b32 v17, 13, v17"); A("v_lshl_add_u32 v17, v16, 4, v17")
    A(f"s_add_u32 s77, s76, {FP_OFF}")
    g.poll(["buffer_load_dwordx4 v[32:35], v17, s[52:55], s77 offen sc1"], [32, 33, 34, 35], 10)
    g.stamp(8)
    A("v_cmp_gt_u32 vcc, 56, v2")
    nop(2)
    for r in range(4):
        A(f"v_cndmask_b32 v{32+r}, 0, v{32+r}, vcc")
    nop(1)
    red_final()
    rbf([36, 37, 38, 39])
    silu([36, 37, 38, 39], 48)
    rbf([36, 37, 38, 39])
    A("v_lshlrev_b32 v22, 1, v21")
    A("s_mov_b64 exec, 0x30003")
    A(f"ds_write_b128 v22, v[36:39] offset:{GL}")
    A("s_mov_b64 exec, -1")
    A("s_waitcnt lgkmcnt(0)")
    A("s_barrier")
    g.stamp(9)
    A("s_branch L_fin")

    lab("L_H")
    A("s_cmp_eq_u32 s3, 8"); A("s_cbranch_scc1 L_load")
    A("s_setprio 3")
    A("v_lshlrev_b32 v7, 4, v2")
    A("s_sub_u32 s77, s3, 4")
    A("s_cmp_lg_u32 s3, 7"); A("s_cbranch_scc1 L_noinit")
    A("v_lshlrev_b32 v8, 2, v5")
    A("ds_write_b32 v8, v3")
    lab("L_noinit")
    A("v_lshrrev_b32 v8, 3, v2"); A("v_and_b32 v9, 7, v2"); A("v_lshlrev_b32 v9, 4, v9")
    A("s_lshl_b32 s68, s77, 11")
    A(f"s_mov_b32 s69, 0x{EP_OFF:x}")
    A("s_waitcnt lgkmcnt(0)")
    A("s_load_dword s79, s[26:27], s69")
    for d, b in ((32, 8), (44, 12), (48, 20), (52, 26), (56, 4)):
        A(f"s_mov_b32 s{d}, s{b}"); A(f"s_mov_b32 s{d+1}, s{b+1}")
    XR = 16
    for r in range(2):
        A(f"buffer_load_dwordx4 v[{XR+4*r}:{XR+4*r+3}], v7, s[56:59], s68 offen offset:{r*1024}")
    A("s_cmp_ge_u32 s3, 6"); A("s_cbranch_scc1 L_SX0")
    A("s_cmp_eq_u32 s3, 5"); A("s_cbranch_scc1 L_G1")
    A("s_mov_b32 s36, s10"); A("s_mov_b32 s37, s11"); A("s_mov_b32 s38, 4194304")
    A("s_lshl_b32 s76, s70, 3"); A("s_add_u32 s76, s76, s72"); A("s_lshl_b32 s76, s76, 7")
    A("s_movk_i32 s69, 8192")
    A("s_lshl_b32 s78, s73, 17"); A("s_lshl_b32 s68, s76, 4"); A("s_add_u32 s78, s78, s68")
    A(f"s_add_u32 s78, s78, {QP_OFF}")
    A("s_branch L_GJ")
    lab("L_G1")
    A("s_cmp_eq_u32 s70, 7"); A("s_cbranch_scc1 L_LN0")
    A("s_bitcmp1_b32 s71, 2")
    A("s_cselect_b32 s36, s18, s16"); A("s_cselect_b32 s37, s19, s17"); A("s_mov_b32 s38, 1835008")
    A("s_lshl_b32 s76, s74, 7")
    A("s_movk_i32 s69, 3584")
    A("s_and_b32 s78, s71, 7"); A(f"s_mul_i32 s78, s78, {28*2048}"); A("s_lshl_b32 s68, s76, 4"); A("s_add_u32 s78, s78, s68")
    A(f"s_add_u32 s78, s78, {GP_OFF}")
    lab("L_GJ")
    A("v_mul_lo_u32 v10, v8, s69"); A("v_add_u32 v10, v10, v9")
    A("s_lshl_b32 s68, s73, 7"); A("s_mul_i32 s68, s68, s69"); A("s_add_u32 s100, s76, s68")
    A("s_lshl_b32 s101, s69, 3")
    A("s_lshl_b32 s68, s77, 14"); A(f"s_add_u32 s68, s68, {W1T}")
    for i in range(16):
        A("s_mov_b32 m0, s68")
        A("s_add_u32 s68, s68, 1024")
        A(f"buffer_load_dwordx4 v10, s[36:39], s100 offen {g.ntw} lds")
        A("s_add_u32 s100, s100, s101")
    A("s_barrier")
    A("s_waitcnt vmcnt(16)")
    A("s_branch L_LN")
    lab("L_SX0")
    A("s_cmp_eq_u32 s3, 7"); A("s_cbranch_scc1 L_LN0")
    if int(noclr): A("s_branch L_LN0")
    for r in range(4):
        A(f"v_mov_b32 v{24+r}, -1")
    A("s_lshl_b32 s68, s70, 2"); A("s_add_u32 s68, s68, s73"); A("s_lshl_b32 s68, s68, 3"); A("s_add_u32 s68, s68, s72")
    A("s_lshl_b32 s68, s68, 10"); A(f"s_add_u32 s68, s68, {O_OFF}")
    A("buffer_store_dwordx4 v[24:27], v7, s[52:55], s68 offen sc1")
    A("v_lshl_add_u32 v10, v8, 10, v9")
    A("s_lshl_b32 s68, s74, 13"); A("s_lshl_b32 s69, s75, 7"); A("s_add_u32 s68, s68, s69")
    A(f"s_add_u32 s69, s68, {SP_OFF}")
    A("buffer_store_dwordx4 v[24:27], v10, s[52:55], s69 offen sc1")
    A("s_cmp_eq_u32 s70, 7"); A("s_cbranch_scc1 L_nofp")
    A(f"s_add_u32 s69, s68, {FP_OFF}")
    A("buffer_store_dwordx4 v[24:27], v10, s[52:55], s69 offen sc1")
    lab("L_nofp")
    A("v_lshlrev_b32 v10, 8, v2")
    A("s_lshl_b32 s68, s70, 10"); A("s_lshl_b32 s69, s72, 5"); A("s_add_u32 s68, s68, s69")
    A("s_lshl_b32 s69, s73, 3"); A("s_add_u32 s68, s68, s69"); A(f"s_add_u32 s68, s68, {ML_OFF}")
    A("s_mov_b64 exec, 15")
    A("buffer_store_dwordx2 v[24:25], v10, s[52:55], s68 offen sc1")
    A("s_mov_b64 exec, -1")
    A("s_barrier")
    A("s_waitcnt vmcnt(3)")
    A("s_cmp_eq_u32 s70, 7"); A("s_cbranch_scc1 L_LN")
    A("s_nop 0")
    A("s_branch L_LN") if False else None
    A("s_waitcnt vmcnt(4)") if False else None
    A("s_branch L_LN")
    lab("L_LN0")
    A("s_barrier")
    A("s_waitcnt vmcnt(0)")
    lab("L_LN")
    if cut == 1:
        g.flag_add(F_W, 3, 4); A("s_branch L_fin")
    XF = 32
    for r in range(2):
        unpack(XF + 8*r, [XR + 4*r + e for e in range(4)])
    SM = 64
    for r in range(2):
        A(f"v_add_f32 v{SM+r}, v{XF+8*r}, v{XF+8*r+1}"); A(f"v_add_f32 v{SM+2+r}, v{XF+8*r+2}, v{XF+8*r+3}")
    for e in range(4, 8, 2):
        for r in range(2):
            A(f"v_add_f32 v{SM+r}, v{SM+r}, v{XF+8*r+e}"); A(f"v_add_f32 v{SM+2+r}, v{SM+2+r}, v{XF+8*r+e+1}")
    for r in range(2):
        A(f"v_add_f32 v{SM+r}, v{SM+r}, v{SM+2+r}")
    g.allreduce64("v_add_f32", [SM, SM+1], [SM+4, SM+5])
    A(f"s_mov_b32 s68, 0x{f32bits(1.0/512):08x}")
    for r in range(2):
        A(f"v_mul_f32 v{SM+r}, s68, v{SM+r}")
    VS = 72
    for e in range(8):
        for r in range(2):
            A(f"v_sub_f32 v{80+2*(e&1)+r}, v{XF+8*r+e}, v{SM+r}")
        for r in range(2):
            t_ = 80+2*(e&1)+r
            if e == 0: A(f"v_mul_f32 v{VS+r}, v{t_}, v{t_}")
            else: A(f"v_fmac_f32 v{VS+r}, v{t_}, v{t_}")
    g.allreduce64("v_add_f32", [VS, VS+1], [VS+4, VS+5])
    for r in range(2):
        A(f"v_mul_f32 v{VS+r}, s68, v{VS+r}")
    rbf([SM, SM+1, VS, VS+1])
    for r in range(2):
        A(f"v_add_f32 v{VS+r}, 0x{f32bits(1e-5):08x}, v{VS+r}")
    rbf([VS, VS+1])
    for r in range(2):
        A(f"v_sqrt_f32 v{VS+r}, v{VS+r}")
    nop(1)
    rbf([VS, VS+1])
    for r in range(2):
        A(f"v_rcp_f32 v{VS+r}, v{VS+r}")
    for r in range(2):
        for e in range(8):
            A(f"v_sub_f32 v{XF+8*r+e}, v{XF+8*r+e}, v{SM+r}")
    for r in range(2):
        for e in range(4):
            A(f"v_cvt_pk_bf16_f32 v{XR+4*r+e}, v{XF+8*r+2*e}, v{XF+8*r+2*e+1}")
    for r in range(2):
        unpack(XF + 8*r, [XR + 4*r + e for e in range(4)])
    for r in range(2):
        for e in range(8):
            A(f"v_mul_f32 v{XF+8*r+e}, v{XF+8*r+e}, v{VS+r}")
    for r in range(2):
        for e in range(4):
            A(f"v_cvt_pk_bf16_f32 v{XR+4*r+e}, v{XF+8*r+2*e}, v{XF+8*r+2*e+1}")
    A(f"s_mul_i32 s68, s77, {2*XNP}"); A("v_lshlrev_b32 v11, 4, v5"); A("v_add_u32 v11, s68, v11")
    A("v_cmp_eq_u32 vcc, s73, v6")
    A("s_and_saveexec_b64 s[68:69], vcc")
    for r in range(2):
        A(f"ds_write_b128 v11, v[{XR+4*r}:{XR+4*r+3}] offset:{XN + r*XNP}")
    g.flag_add(F_XN, 3, 4)
    g.stamp(2)
    A("s_add_u32 s4, s79, 1"); A(f"s_mul_i32 s5, s4, 0x{TAGMUL:x}")
    A("v_lshrrev_b32 v12, 2, v5"); A("v_lshl_add_u32 v12, v6, 3, v12"); A("v_lshlrev_b32 v12, 7, v12")
    A("v_and_b32 v13, 3, v2")
    A("v_and_b32 v14, 7, v2")
    A("s_cmp_ge_u32 s3, 6"); A("s_cbranch_scc1 L_SX1")
    A("s_cmp_lg_u32 s3, 5"); A("s_cbranch_scc1 L_Ggo")
    A("s_cmp_lg_u32 s70, 7"); A("s_cbranch_scc1 L_Ggo")
    g.flag_add(F_W, 3, 4)
    A("s_waitcnt lgkmcnt(0)")
    A("s_branch L_fin")
    lab("L_Ggo")
    A(f"v_mul_u32_u24 v11, {XNP}, v14"); A("v_lshl_add_u32 v11, v6, 4, v11")
    A("v_lshl_add_u32 v12, v13, 3, v12")
    A("s_lshl_b32 s68, s77, 14"); A("v_add_u32 v12, s68, v12")
    A("v_lshlrev_b32 v15, 6, v14"); A("v_lshl_add_u32 v15, v6, 4, v15")
    for nt in range(4):
        A(f"v_mov_b32 v{113+4*nt}, s4"); A(f"v_mov_b32 v{115+4*nt}, s5")
    g.flag_wait(F_XN, 4, 3, 10)
    XB = 16
    for t in range(4):
        A(f"ds_read_b128 v[{XB+4*t}:{XB+4*t+3}], v11 offset:{XN + t*64}")
    WB = 32
    for t in range(4):
        A(f"s_waitcnt vmcnt({12 - 4*t})")
        if t == 3:
            g.flag_add(F_W, 3, 4)
        for nt in range(4):
            r = WB + (t*4 + nt)*4
            off = W1T + t*4096 + nt*32
            A(f"ds_read_b64_tr_b16 v[{r}:{r+1}], v12 offset:{off}")
            A(f"ds_read_b64_tr_b16 v[{r+2}:{r+3}], v12 offset:{off+512}")
        A("s_waitcnt lgkmcnt(0)")
        for nt in range(4):
            r = WB + (t*4 + nt)*4
            d = 96 + nt*4
            cc = "0" if t == 0 else f"v[{d}:{d+3}]"
            A(f"v_mfma_f32_16x16x32_bf16 v[{d}:{d+3}], v[{r}:{r+3}], v[{XB+4*t}:{XB+4*t+3}], {cc}")
    g.stamp(3)
    exec_mask(0x00ff00ff)
    nop(4)
    for nt in range(4):
        A(f"v_cvt_pk_bf16_f32 v{112+4*nt}, v{96+4*nt}, v{97+4*nt}")
        A(f"v_cvt_pk_bf16_f32 v{114+4*nt}, v{98+4*nt}, v{99+4*nt}")
        if not int(nost): A(f"buffer_store_dwordx4 v[{112+4*nt}:{115+4*nt}], v15, s[52:55], s78 offen offset:{nt*512} sc1")
    A("s_mov_b64 exec, -1")
    g.stamp(4)
    A("s_branch L_fin")
    lab("L_load")
    A("s_setprio 2")
    A("v_lshrrev_b32 v8, 3, v2"); A("v_and_b32 v9, 7, v2"); A("v_lshlrev_b32 v9, 4, v9")
    A("v_lshlrev_b32 v16, 1, v6"); A("v_xor_b32 v16, v16, v5"); A("v_xor_b32 v17, 8, v16")
    A("v_lshlrev_b32 v16, 4, v16"); A("v_lshl_add_u32 v16, v6, 8, v16")
    A("v_lshlrev_b32 v17, 4, v17"); A("v_lshl_add_u32 v17, v6, 8, v17")
    A("s_mov_b32 s100, s64")
    A(f"s_mov_b32 s101, {VT}")
    A("v_lshl_add_u32 v18, v8, 10, v9")
    A("s_lshl_b32 s76, s74, 17"); A("s_lshl_b32 s68, s75, 7"); A("s_add_u32 s76, s76, s68")
    A(f"s_mov_b32 s77, {WOT}")
    A("s_waitcnt lgkmcnt(0)")
    for d, b_ in ((32, 8), (44, 12), (52, 26)):
        A(f"s_mov_b32 s{d}, s{b_}"); A(f"s_mov_b32 s{d+1}, s{b_+1}")
    A("s_barrier")
    if cut == 2:
        A("s_branch L_fin")
    if vdelay:
        g.flag_wait(F_K2, 4, 3, 10)
    g.stamp(5)
    NV = 64; NT = 80
    def publish(k):
        if 0 < k <= NV and k % 8 == 0:
            A(f"v_mov_b32 v20, {k//8}")
            A(f"ds_write_b32 v3, v20 offset:{F_V0}")
    for i in range(NT):
        w_ = vthr if (i < NV or not wolate) else wolate
        if i >= w_:
            A(f"s_waitcnt vmcnt({w_-1})")
            lo = (i - vthr + 1) if i <= NV else (i - 1 - w_ + 2)
            for k in range(max(1, min(i - vthr + 1, i - w_ + 1)), i - w_ + 2):
                if k == i - w_ + 1 or (i == NV and k > i - vthr):
                    publish(k)
        if i < NV:
            A("s_mov_b32 m0, s101")
            A("s_add_u32 s101, s101, 1024")
            A(f"buffer_load_dwordx4 v{16 + ((i >> 1) & 1)}, s[32:35], s100 offen {g.ntkv} lds")
            A("s_add_u32 s100, s100, 1024")
        else:
            A("s_mov_b32 m0, s77")
            A("s_add_u32 s77, s77, 1024")
            A(f"buffer_load_dwordx4 v18, s[44:47], s76 offen {g.ntw} lds")
            A("s_add_u32 s76, s76, 8192")
    g.stamp(6)
    wl = wolate if wolate else vthr
    for k in range(max(8, NT - wl + 1), NV + 1):
        if k % 8 == 0:
            A(f"s_waitcnt vmcnt({NT - k})")
            publish(k)
    A("s_waitcnt vmcnt(0) lgkmcnt(0)")
    g.stamp(7)
    A("s_branch L_fin")
    lab("L_SX1")
    A("s_cmp_eq_u32 s3, 7"); A("s_cbranch_scc1 L_X")
    A("v_mov_b32 v16, s4"); A("v_mov_b32 v17, s5")
    A("s_lshl_b32 s7, s2, 3"); A(f"s_add_u32 s7, s7, {FL_OFF}")
    A("s_waitcnt vmcnt(0)")
    A("s_mov_b64 exec, 1")
    A("buffer_store_dwordx2 v[16:17], v3, s[52:55], s7 offen sc1")
    A(f"ds_write_b32 v3, v16 offset:{F_EP}")
    A("s_mov_b64 exec, -1")
    g.stamp(1)
    if cut in (2, 3):
        A("s_branch L_fin")
    A("v_lshrrev_b32 v9, 2, v2"); A("v_lshlrev_b32 v9, 9, v9"); A("v_lshl_add_u32 v9, v13, 4, v9")
    A("s_lshl_b32 s16, s70, 14"); A("s_lshl_b32 s69, s72, 6"); A("s_add_u32 s16, s16, s69"); A(f"s_add_u32 s16, s16, {QP_OFF}")
    for k in range(1, 8):
        A(f"s_add_u32 s{16+k}, s16, {(k>>1)*131072 + (k&1)*8192}")
    A("v_lshlrev_b32 v8, 3, v2")
    A("v_bfe_u32 v12, v2, 3, 2"); A("v_lshlrev_b32 v12, 17, v12"); A("v_lshl_add_u32 v12, v14, 11, v12")
    g.flag_wait(F_K, 4, 3, 10)
    g.stamp(7)
    if int(sample):
        tagpoll([f"buffer_load_dwordx4 v[16:19], v12, s[52:55], s16 offen offset:{3*512+48} sc1"], [16], 10, qsleep)
    g.stamp(8)
    tagpoll([f"buffer_load_dwordx4 v[{16+4*k}:{19+4*k}], v9, s[52:55], s{16+k} offen sc1" for k in range(8)],
            [16+4*k for k in range(8)], 10, qsleep)
    g.stamp(3)
    for k in range(8):
        unpack(48 + 4*k, [16+4*k, 18+4*k])
    for i in range(2):
        for e in range(4):
            A(f"v_add_f32 v{48+4*i+e}, v{48+4*i+e}, v{56+4*i+e}"); A(f"v_add_f32 v{64+4*i+e}, v{64+4*i+e}, v{72+4*i+e}")
    for e in range(8):
        A(f"v_add_f32 v{48+e}, v{48+e}, v{64+e}")
    for e in range(4):
        A(f"v_cvt_pk_bf16_f32 v{16+e}, v{48+2*e}, v{49+2*e}")
    A(f"ds_write_b64 v8, v[16:17] offset:{QL}")
    A(f"ds_write_b64 v8, v[18:19] offset:{QL+512}")
    g.flag_add(F_Q, 3, 4)
    g.stamp(5)
    if cut == 4:
        A("s_branch L_fin")
    A("v_mov_b32 v16, s4"); A("v_mov_b32 v17, s5")
    A(f"s_mov_b32 s6, {FL_OFF}")
    A("v_lshlrev_b32 v8, 7, v2")
    A("s_mov_b32 s15, 0x40000")
    lab("L_alpoll")
    A("buffer_load_dwordx4 v[20:23], v7, s[52:55], s6 offen sc1")
    A("buffer_load_dwordx4 v[24:27], v7, s[52:55], s6 offen offset:1024 sc1")
    A("s_waitcnt vmcnt(0)")
    A("v_cmp_ne_u64 s[8:9], v[16:17], v[20:21]"); A("v_cmp_ne_u64 s[10:11], v[16:17], v[22:23]")
    A("v_cmp_ne_u64 s[12:13], v[16:17], v[24:25]"); A("v_cmp_ne_u64 vcc, v[16:17], v[26:27]")
    A("s_or_b64 s[8:9], s[8:9], s[10:11]"); A("s_or_b64 s[12:13], s[12:13], vcc"); A("s_or_b64 s[8:9], s[8:9], s[12:13]")
    A("s_cbranch_scc0 L_aldone")
    A("s_sleep 4")
    A("s_sub_u32 s15, s15, 1"); A("s_cmp_lg_u32 s15, 0"); A("s_cbranch_scc1 L_alpoll")
    lab("L_aldone")
    g.stamp(4)
    if cut == 5:
        A("s_branch L_fin")
    A("v_lshlrev_b32 v8, 8, v2"); A("v_lshlrev_b32 v9, 4, v13")
    A("s_lshl_b32 s68, s70, 10"); A("s_lshl_b32 s69, s72, 5"); A("s_add_u32 s68, s68, s69")
    A("s_lshl_b32 s69, s73, 3"); A("s_add_u32 s68, s68, s69"); A(f"s_add_u32 s68, s68, {ML_OFF}")
    A(f"s_mov_b32 s78, 0x{f32bits(LOG2E * (128 ** -0.5)):08x}")
    g.flag_wait(F_ML, 4, 3, 10)
    A(f"ds_read_b128 v[16:19], v9 offset:{MX}")
    A(f"ds_read_b128 v[20:23], v9 offset:{LL}")
    A("s_waitcnt lgkmcnt(0)")
    A("v_max3_f32 v24, v16, v17, v18"); A("v_max_f32 v24, v24, v19"); A("v_mul_f32 v24, s78, v24")
    A("v_add_f32 v25, v20, v21"); A("v_add_f32 v26, v22, v23"); A("v_add_f32 v25, v25, v26")
    A("v_min_u32 v24, -2, v24"); A("v_min_u32 v25, -2, v25")
    A("s_mov_b64 exec, 15")
    A("buffer_store_dwordx2 v[24:25], v8, s[52:55], s68 offen sc1")
    A("s_mov_b64 exec, -1")
    g.stamp(6)
    A("s_branch L_fin")
    lab("L_X")
    if cut in (2, 3, 4):
        A("s_branch L_fin")
    A("s_cmp_eq_u32 s70, 7"); A("s_cbranch_scc1 L_fin")
    A("v_lshl_add_u32 v12, v13, 5, v12")
    A("v_lshl_add_u32 v10, v8, 10, v9")
    A("s_lshl_b32 s100, s74, 16"); A("s_lshl_b32 s69, s75, 7"); A("s_add_u32 s100, s100, s69")
    A("v_bfe_u32 v15, v2, 3, 1"); A("v_lshrrev_b32 v11, 1, v6"); A("v_lshl_add_u32 v11, v15, 1, v11"); A("v_lshlrev_b32 v11, 9, v11")
    A("v_lshl_add_u32 v11, v14, 6, v11"); A("v_and_b32 v15, 1, v6"); A("v_lshl_add_u32 v11, v15, 5, v11")
    A("s_lshl_b32 s76, s74, 11"); A(f"s_add_u32 s76, s76, {GP_OFF}")
    A("v_lshlrev_b32 v15, 10, v14"); A("v_lshl_add_u32 v15, v6, 5, v15")
    A("s_lshl_b32 s78, s74, 13"); A("s_add_u32 s78, s78, s69"); A(f"s_add_u32 s78, s78, {FP_OFF}")
    for p in range(8):
        A(f"s_add_u32 s{16+p}, s76, {p*28*2048}")
    g.flag_wait(F_Q, 1, 3, 9)
    A(f"s_mov_b32 s68, {WDT}")
    for i in range(8):
        A("s_mov_b32 m0, s68")
        A("s_add_u32 s68, s68, 1024")
        A(f"buffer_load_dwordx4 v10, s[48:51], s100 offen {g.ntw} lds")
        A("s_add_u32 s100, s100, 8192")
    lds_ = []
    for p in range(8):
        lds_.append(f"buffer_load_dwordx4 v[{16+8*p}:{19+8*p}], v11, s[52:55], s{16+p} offen sc1")
        lds_.append(f"buffer_load_dwordx4 v[{20+8*p}:{23+8*p}], v11, s[52:55], s{16+p} offen offset:16 sc1")
    tagpoll(lds_, [16+4*k for k in range(16)], 8, qsleep)
    g.stamp(5)
    WD = 128
    for p in range(8):
        unpack(80 + 8*p, [16+8*p, 18+8*p, 20+8*p, 22+8*p])
    for mat in range(2):
        b0 = 80 + mat*32
        for e in range(8):
            A(f"v_add_f32 v{b0+e}, v{b0+e}, v{b0+8+e}"); A(f"v_add_f32 v{b0+16+e}, v{b0+16+e}, v{b0+24+e}")
        for e in range(8):
            A(f"v_add_f32 v{b0+e}, v{b0+e}, v{b0+16+e}")
    for t in range(2):
        for nt in range(4):
            r = WD + (t*4 + nt)*4
            off = WDT + t*4096 + nt*8
            A(f"ds_read_b64_tr_b16 v[{r}:{r+1}], v12 offset:{off}")
            A(f"ds_read_b64_tr_b16 v[{r+2}:{r+3}], v12 offset:{off+512}")
    rbf(list(range(80, 88)) + list(range(112, 120)))
    silu(list(range(80, 88)), 88)
    rbf(list(range(80, 88)))
    for e in range(8):
        A(f"v_mul_f32 v{80+e}, v{80+e}, v{112+e}")
    for e in range(4):
        A(f"v_cvt_pk_bf16_f32 v{16+e}, v{80+2*e}, v{81+2*e}")
    A("s_waitcnt lgkmcnt(0)")
    nop(1)
    for t in range(2):
        for nt in range(4):
            r = WD + (t*4 + nt)*4
            d = 32 + t*16 + nt*4
            A(f"v_mfma_f32_16x16x32_bf16 v[{d}:{d+3}], v[{r}:{r+3}], v[16:19], 0")
    nop(8)
    for e in range(16):
        A(f"v_add_f32_dpp v{32+e}, v{48+e}, v{32+e} row_ror:8 row_mask:0xf bank_mask:0xf")
    for e in range(8):
        A(f"v_cvt_pk_bf16_f32 v{64+e}, v{32+2*e}, v{33+2*e}")
    for e in range(8):
        A(f"v_min_u32 v{64+e}, -2, v{64+e}")
    exec_mask(0x00ff00ff)
    A("buffer_store_dwordx4 v[64:67], v15, s[52:55], s78 offen sc1")
    A("buffer_store_dwordx4 v[68:71], v15, s[52:55], s78 offen offset:16 sc1")
    A("s_mov_b64 exec, -1")
    g.stamp(6)
    lab("L_fin")
    g.stamp_flush()
    lab("L_end")
    A("s_endpgm")
    tail = ['.section .rodata,"a"', ".p2align 6", f".amdhsa_kernel {KN}",
            "  .amdhsa_next_free_vgpr 168", "  .amdhsa_next_free_sgpr 102", "  .amdhsa_accum_offset 168",
            "  .amdhsa_group_segment_fixed_size 0", "  .amdhsa_kernarg_size 96", "  .amdhsa_user_sgpr_count 2",
            "  .amdhsa_user_sgpr_kernarg_segment_ptr 1", "  .amdhsa_system_sgpr_workgroup_id_x 1",
            "  .amdhsa_float_denorm_mode_32 3",
            ".end_amdhsa_kernel"]
    return "\n".join(hdr + g.L + tail) + "\n"

if __name__ == "__main__":
    out = sys.argv[1] if len(sys.argv) > 1 else "recurrent_scan__sliding_block_cached__swiglu_ffn__decode.s"
    stamps = "--stamps" in sys.argv
    kw = {}
    for a in sys.argv[2:]:
        if "=" in a:
            k, v = a.split("=", 1); kw[k] = v
    open(out, "w").write(build(stamps=stamps, **kw))
```

```python
import sys, struct
from gen import G, f32bits, KN

QP_OFF = 0x00000
GP_OFF = 0x80000
O_OFF = 0xF0000
ML_OFF = 0x130000
SP_OFF = 0x132000
FP_OFF = 0x172000
FL_OFF = 0x1B0000
EP_OFF = 0x1B8000
TAGMUL = 0x9E3779B1
STAMP_OFF = 0x1000000
F_XN, F_Q, F_W, F_MX, F_ML, F_K, F_V0, F_V1, F_PUB, F_K2, F_EP = 0, 4, 8, 12, 16, 20, 24, 28, 32, 36, 60
MX = 64; LL = 128; GL = 192
XN = 256; XNP = 272
QL = 2560
PL = 3584; PLP = 528
WOT = 6144
WDT = 22528
W1T = 30720
RED = W1T
VT = 63488
LDS_BYTES = 129024
LOG2E = 1.4426950408889634

def build(stamps=False, ntkv="nt", ntw="nt", thr=6, vthr=24, kdelay=0, vdelay=1, qsleep=2, cut=0, sample=0, dyn=1, vthr2=40, noclr=0, nost=0, kq=16, kv=12, wolate=0, dbgspan=0):
    kq = int(kq); kv = int(kv); wolate = int(wolate)
    g = G(stamps, ntkv, ntw, thr)
    g.nwaves = 9
    vthr = int(vthr); kdelay = int(kdelay); vdelay = int(vdelay); qsleep = int(qsleep); cut = int(cut)
    A = g.A; lab = g.lab; nop = g.nop
    hdr = [f"; @launch grid=(256,1,1) block=(576,1,1) lds={LDS_BYTES}",
           '.amdgcn_target "amdgcn-amd-amdhsa--gfx950"', ".text", f".globl {KN}", ".p2align 8",
           f".type {KN},@function", f"{KN}:"]
    def rbf(regs):
        for r in regs: A(f"v_cvt_pk_bf16_f32 v{r}, v{r}, v{r}")
        for r in regs: A(f"v_and_b32 v{r}, 0xffff0000, v{r}")
    def unpack(dst, srcs):
        for e, sr in enumerate(srcs):
            A(f"v_lshlrev_b32 v{dst+2*e}, 16, v{sr}")
            A(f"v_and_b32 v{dst+2*e+1}, 0xffff0000, v{sr}")
    def silu(regs, tmp):
        A(f"s_mov_b32 s68, 0x{f32bits(-LOG2E):08x}")
        for i, r in enumerate(regs): A(f"v_mul_f32 v{tmp+i}, s68, v{r}")
        for i, r in enumerate(regs): A(f"v_exp_f32 v{tmp+i}, v{tmp+i}")
        nop(1)
        for i, r in enumerate(regs): A(f"v_add_f32 v{tmp+i}, 1.0, v{tmp+i}")
        for i, r in enumerate(regs): A(f"v_rcp_f32 v{tmp+i}, v{tmp+i}")
        nop(1)
        for i, r in enumerate(regs): A(f"v_mul_f32 v{r}, v{r}, v{tmp+i}")
    def exec_mask(m):
        A(f"s_mov_b32 exec_lo, 0x{m:08x}"); A(f"s_mov_b32 exec_hi, 0x{m:08x}")
    def tagpoll(loads, quads, vt, sleep):
        l = g.newlab("TP"); d = g.newlab("TD")
        A("s_mov_b32 s15, 0x40000")
        lab(l)
        for s_ in loads: A(s_)
        A("s_waitcnt vmcnt(0)")
        first = True
        for q in quads:
            if first:
                A(f"v_xor_b32 v{vt}, s4, v{q+1}"); first = False
            else:
                A(f"v_xor_b32 v{vt+1}, s4, v{q+1}"); A(f"v_or_b32 v{vt}, v{vt}, v{vt+1}")
            A(f"v_xor_b32 v{vt+1}, s5, v{q+3}"); A(f"v_or_b32 v{vt}, v{vt}, v{vt+1}")
        A(f"v_cmp_ne_u32 vcc, 0, v{vt}")
        A("s_cmp_eq_u64 vcc, 0"); A(f"s_cbranch_scc1 {d}")
        if sleep: A(f"s_sleep {sleep}")
        A("s_sub_u32 s15, s15, 1"); A("s_cmp_lg_u32 s15, 0"); A(f"s_cbranch_scc1 {l}")
        lab(d)
    A("s_cmp_ge_u32 s2, 256"); A("s_cbranch_scc1 L_end")
    A("s_load_dwordx16 s[4:19], s[0:1], 0")
    A("s_load_dwordx8 s[20:27], s[0:1], 64")
    g.stamp(0)
    if int(dbgspan): A("s_memrealtime s[98:99]")
    A("v_lshrrev_b32 v1, 6, v0")
    A("v_and_b32 v2, 63, v0")
    A("v_readfirstlane_b32 s3, v1")
    A("v_mov_b32 v3, 0"); A("v_mov_b32 v4, 1")
    A("v_and_b32 v5, 15, v2"); A("v_lshrrev_b32 v6, 4, v2")
    for d, n in ((28, 67108864), (32, 67108864), (44, 4194304), (48, 1835008), (52, 268435456), (56, 8192), (60, 8192)):
        A(f"s_mov_b32 s{d+2}, {n}"); A(f"s_mov_b32 s{d+3}, 0x00020000")
    A("s_mov_b32 s39, 0x00020000")
    A("s_and_b32 s70, s2, 7")
    A("s_lshr_b32 s71, s2, 3")
    A("s_lshr_b32 s72, s71, 2")
    A("s_and_b32 s73, s71, 3")
    A("s_lshl_b32 s74, s70, 2"); A("s_lshr_b32 s68, s71, 3"); A("s_add_u32 s74, s74, s68")
    A("s_and_b32 s75, s71, 7")
    A("s_lshl_b32 s64, s72, 3"); A("s_add_u32 s64, s64, s70"); A("s_lshl_b32 s64, s64, 20")
    A("s_lshl_b32 s68, s73, 16"); A("s_add_u32 s64, s64, s68"); A(f"s_add_u32 s64, s64, {3072*256}")
    A("s_cmp_ge_u32 s3, 4"); A("s_cbranch_scc1 L_H")

    KR = 16; QF = 80; SR = 96; PP = 112; ACC = 120
    PBF = 16
    VF = 48
    A("s_lshl_b32 s68, s3, 14"); A("s_add_u32 s76, s64, s68")
    for i in range(1, 4):
        A(f"s_add_u32 s{76+i}, s76, {i*4096}")
    A("v_lshlrev_b32 v7, 8, v5"); A("v_lshl_add_u32 v7, v6, 4, v7")
    A("s_waitcnt lgkmcnt(0)")
    for d, b in ((28, 6), (52, 26), (56, 4), (60, 22)):
        A(f"s_mov_b32 s{d}, s{b}"); A(f"s_mov_b32 s{d+1}, s{b+1}")
    A("s_barrier")
    if kdelay:
        g.flag_wait(F_W, 2, 3, 10)
    n = 0
    for T in range(4):
        for t in range(4):
            r = KR + (T*4 + t)*4
            if g.thr and n >= g.thr: A(f"s_waitcnt vmcnt({g.thr-1})")
            A(f"buffer_load_dwordx4 v[{r}:{r+3}], v7, s[28:31], s{76+T} offen offset:{t*64} {g.ntkv}"); n += 1
            if n == kv: g.flag_add(F_K2, 3, 4)
            if n == kq: g.flag_add(F_K, 3, 4)
    g.stamp(1)
    if cut:
        A("s_waitcnt vmcnt(0)"); g.stamp(2); A("s_branch L_fin")
    A(f"s_mov_b32 s78, 0x{f32bits(LOG2E * (128 ** -0.5)):08x}")
    A("v_and_b32 v11, 3, v2")
    A("v_lshlrev_b32 v12, 8, v11"); A("v_lshl_add_u32 v12, v6, 4, v12")
    A("v_lshlrev_b32 v13, 4, v11")
    A("s_lshl_b32 s68, s3, 2"); A("v_add_u32 v14, s68, v13")
    A(f"v_mul_u32_u24 v8, {PLP}, v11"); A("v_lshl_add_u32 v9, v6, 4, v8")
    A("v_lshl_add_u32 v8, v6, 3, v8"); A("s_lshl_b32 s68, s3, 7"); A("v_add_u32 v8, s68, v8")
    A("v_lshrrev_b32 v124, 2, v5")
    A("v_and_b32 v125, 1, v6"); A("v_lshl_add_u32 v125, v125, 2, v124"); A("v_lshlrev_b32 v125, 1, v125")
    A("v_lshrrev_b32 v126, 1, v11"); A("s_lshl_b32 s68, s3, 2"); A("v_add_u32 v126, s68, v126"); A("v_xor_b32 v126, v126, v125")
    A("v_lshlrev_b32 v126, 4, v126"); A("v_and_b32 v125, 1, v2"); A("v_lshl_add_u32 v126, v125, 3, v126")
    A("v_lshl_add_u32 v125, v6, 3, v124"); A("v_lshl_add_u32 v126, v125, 8, v126")
    A("v_xor_b32 v127, 32, v126")
    A(f"v_add_u32 v126, {VT}, v126"); A(f"v_add_u32 v127, {VT}, v127")
    A("v_lshlrev_b32 v125, 6, v11"); A("v_lshl_add_u32 v125, v6, 4, v125")
    A("s_lshl_b32 s79, s70, 2"); A("s_add_u32 s79, s79, s73"); A("s_lshl_b32 s79, s79, 3"); A("s_add_u32 s79, s79, s72")
    A("s_lshl_b32 s79, s79, 2"); A("s_add_u32 s79, s79, s3"); A("s_lshl_b32 s79, s79, 8"); A(f"s_add_u32 s79, s79, {O_OFF}")
    g.flag_wait(F_Q, 1, 3, 10)
    g.stamp(2)
    for t in range(4):
        A(f"ds_read_b128 v[{QF+4*t}:{QF+4*t+3}], v12 offset:{QL + t*64}")
    A("s_waitcnt lgkmcnt(0)")
    for T in range(4):
        A(f"s_waitcnt vmcnt({12 - 4*T})")
        for t in range(4):
            r = KR + (T*4 + t)*4
            cc = "0" if t == 0 else f"v[{SR+4*T}:{SR+4*T+3}]"
            A(f"v_mfma_f32_16x16x32_bf16 v[{SR+4*T}:{SR+4*T+3}], v[{r}:{r+3}], v[{QF+4*t}:{QF+4*t+3}], {cc}")
    nop(4)
    A(f"v_max3_f32 v10, v{SR}, v{SR+1}, v{SR+2}")
    for i in range(3, 11, 2):
        A(f"v_max3_f32 v10, v10, v{SR+i}, v{SR+i+1}")
    A(f"v_max_f32 v10, v10, v{SR+11}")
    A(f"v_max3_f32 v10, v10, v{SR+12}, v{SR+13}")
    A(f"v_max3_f32 v10, v10, v{SR+14}, v{SR+15}")
    g.xrow("v_max_f32", [10], [15])
    A("s_mov_b64 exec, 15")
    A(f"ds_write_b32 v14, v10 offset:{MX}")
    g.flag_add(F_MX, 3, 4)
    g.flag_wait(F_MX, 4, 3, 15, sleep=False)
    A(f"ds_read_b128 v[{PP}:{PP+3}], v13 offset:{MX}")
    A("s_waitcnt lgkmcnt(0)")
    A(f"v_max3_f32 v10, v{PP}, v{PP+1}, v{PP+2}"); A(f"v_max_f32 v10, v10, v{PP+3}")
    A("v_mul_f32 v10, s78, v10")
    for i in range(16):
        A(f"v_fma_f32 v{SR+i}, v{SR+i}, s78, -v10")
    for i in range(16):
        A(f"v_exp_f32 v{SR+i}, v{SR+i}")
    nop(1)
    for i in range(8):
        A(f"v_cvt_pk_bf16_f32 v{PP+i}, v{SR+2*i}, v{SR+2*i+1}")
    exec_mask(0x000F000F)
    for T in range(4):
        A(f"ds_write_b64 v8, v[{PP+2*T}:{PP+2*T+1}] offset:{PL + T*32}")
    A("s_mov_b64 exec, -1")
    A(f"v_add_f32 v10, v{SR}, v{SR+1}"); A(f"v_add_f32 v15, v{SR+2}, v{SR+3}")
    for i in range(4, 16, 2):
        A(f"v_add_f32 v10, v10, v{SR+i}"); A(f"v_add_f32 v15, v15, v{SR+i+1}")
    A("v_add_f32 v10, v10, v15")
    g.xrow("v_add_f32", [10], [15])
    A("s_mov_b64 exec, 15")
    A(f"ds_write_b32 v14, v10 offset:{LL}")
    g.flag_add(F_ML, 3, 4)
    g.flag_wait(F_ML, 4, 3, 15, sleep=False)
    for t in range(8):
        A(f"ds_read_b128 v[{PBF+4*t}:{PBF+4*t+3}], v9 offset:{PL + t*64}")
    g.stamp(3)
    A("s_mov_b32 s76, 0")
    for t in range(8):
        lw = g.newlab("VW"); lr = g.newlab("VR")
        A(f"s_cmp_gt_u32 s76, {t}"); A(f"s_cbranch_scc1 {lr}")
        A("s_mov_b32 s15, 0x400000")
        lab(lw)
        A(f"ds_read_b32 v{SR}, v3 offset:{F_V0}")
        A("s_waitcnt lgkmcnt(0)")
        A("s_sub_u32 s15, s15, 1")
        A(f"v_readfirstlane_b32 s76, v{SR}")
        A("s_cmp_eq_u32 s15, 0"); A(f"s_cbranch_scc1 {lr}")
        A(f"s_cmp_gt_u32 s76, {t}"); A(f"s_cbranch_scc0 {lw}")
        lab(lr)
        vf = VF + (t & 1)*8
        for nt in range(2):
            A(f"ds_read_b64_tr_b16 v[{vf+4*nt}:{vf+4*nt+1}], v{126+nt} offset:{t*8192}")
            A(f"ds_read_b64_tr_b16 v[{vf+4*nt+2}:{vf+4*nt+3}], v{126+nt} offset:{t*8192 + 1024}")
        A("s_waitcnt lgkmcnt(0)")
        for nt in range(2):
            acc = 64 + 4*nt
            cc = "0" if t == 0 else f"v[{acc}:{acc+3}]"
            A(f"v_mfma_f32_16x16x32_bf16 v[{acc}:{acc+3}], v[{vf+4*nt}:{vf+4*nt+3}], v[{PBF+4*t}:{PBF+4*t+3}], {cc}")
    g.stamp(4)
    exec_mask(0x000F000F)
    nop(5)
    A("v_cvt_pk_bf16_f32 v72, v64, v65"); A("v_cvt_pk_bf16_f32 v73, v66, v67")
    A("v_cvt_pk_bf16_f32 v74, v68, v69"); A("v_cvt_pk_bf16_f32 v75, v70, v71")
    for e in range(4): A(f"v_min_u32 v{72+e}, -2, v{72+e}")
    A("buffer_store_dwordx4 v[72:75], v125, s[52:55], s79 offen sc1")
    A("s_mov_b64 exec, -1")
    g.stamp(5)
    A("v_and_b32 v18, 7, v2"); A("v_lshlrev_b32 v19, 5, v18")
    A("s_lshl_b32 s77, s74, 8"); A(f"s_add_u32 s77, s77, {ML_OFF}")
    A("v_lshl_add_u32 v16, v6, 2, v124"); A("v_lshlrev_b32 v16, 7, v16"); A("v_lshl_add_u32 v16, v11, 5, v16")
    A("s_and_b32 s68, s3, 1"); A("s_lshl_b32 s69, s68, 13"); A("v_add_u32 v16, s69, v16")
    A("v_lshlrev_b32 v17, 10, v5"); A("v_lshl_add_u32 v17, v6, 4, v17")
    A("s_lshl_b32 s76, s70, 15"); A("s_lshr_b32 s69, s3, 1"); A("s_lshl_b32 s69, s69, 14"); A("s_add_u32 s76, s76, s69")
    A("s_lshl_b32 s68, s68, 9"); A("s_add_u32 s76, s76, s68")
    A("s_lshr_b32 s68, s71, 3"); A("s_lshl_b32 s68, s68, 6"); A("s_add_u32 s76, s76, s68"); A(f"s_add_u32 s76, s76, {O_OFF}")
    A("s_barrier")
    g.poll(["buffer_load_dwordx4 v[64:67], v19, s[52:55], s77 offen sc1",
            "buffer_load_dwordx4 v[68:71], v19, s[52:55], s77 offen offset:16 sc1"], list(range(64, 72)), 10)
    BF = 32
    for nt in range(4):
        for t in range(2):
            r = BF + (nt*2 + t)*4
            off = WOT + t*4096 + nt*8
            A(f"ds_read_b64_tr_b16 v[{r}:{r+1}], v16 offset:{off}")
            A(f"ds_read_b64_tr_b16 v[{r+2}:{r+3}], v16 offset:{off + 2048}")
    A("v_max3_f32 v72, v64, v66, v68"); A("v_max_f32 v72, v72, v70")
    for s in range(4): A(f"v_sub_f32 v{64+2*s}, v{64+2*s}, v72")
    for s in range(4): A(f"v_exp_f32 v{64+2*s}, v{64+2*s}")
    nop(1)
    A("v_mul_f32 v73, v64, v65")
    for s in range(1, 4): A(f"v_fmac_f32 v73, v{64+2*s}, v{65+2*s}")
    A("v_rcp_f32 v73, v73")
    A("s_cmp_ge_u32 s3, 2")
    A("s_cselect_b64 s[68:69], -1, 0")
    A("v_cndmask_b32 v64, v64, v68, s[68:69]"); A("v_cndmask_b32 v66, v66, v70, s[68:69]")
    A("s_mov_b32 s68, 0xff00ff00"); A("s_mov_b32 s69, 0xff00ff00")
    A("v_cndmask_b32 v64, v64, v66, s[68:69]")
    A("v_mul_f32 v72, v64, v73"); A("v_mul_f32 v73, v64, v73")
    A("v_bfe_u32 v20, v2, 3, 1"); A("s_lshl_b32 s68, s3, 1"); A("v_add_u32 v20, s68, v20"); A("v_mul_u32_u24 v20, 2176, v20")
    A("v_mul_u32_u24 v21, 272, v18"); A("v_add_u32 v20, v20, v21"); A("v_lshl_add_u32 v20, v6, 6, v20")
    A("v_lshrrev_b32 v21, 5, v2"); A("v_add_u32 v22, s68, v21"); A("v_mul_u32_u24 v22, 272, v22")
    A("v_and_b32 v23, 31, v2"); A("v_lshl_add_u32 v22, v23, 3, v22")
    A("v_lshlrev_b32 v21, 10, v21"); A("v_lshl_add_u32 v21, v23, 2, v21")
    A("s_lshl_b32 s79, s74, 3"); A("s_add_u32 s79, s79, s68"); A("s_lshl_b32 s79, s79, 10")
    A("s_lshl_b32 s69, s75, 7"); A("s_add_u32 s79, s79, s69"); A(f"s_add_u32 s79, s79, {SP_OFF}")
    A("s_waitcnt lgkmcnt(0)")
    AF = 64
    g.poll([f"buffer_load_dwordx4 v[{AF}:{AF+3}], v17, s[52:55], s76 offen sc1",
            f"buffer_load_dwordx4 v[{AF+4}:{AF+7}], v17, s[52:55], s76 offen offset:256 sc1"],
           list(range(AF, AF+8)), 10)
    g.stamp(6)
    DW = 80
    for t in range(2):
        for nt in range(4):
            r = BF + (nt*2 + t)*4
            cc = "0" if t == 0 else f"v[{DW+4*nt}:{DW+4*nt+3}]"
            A(f"v_mfma_f32_16x16x32_bf16 v[{DW+4*nt}:{DW+4*nt+3}], v[{r}:{r+3}], v[{AF+4*t}:{AF+4*t+3}], {cc}")
    nop(5)
    for nt in range(4):
        A(f"v_pk_mul_f32 v[{DW+4*nt}:{DW+4*nt+1}], v[{DW+4*nt}:{DW+4*nt+1}], v[72:73]")
        A(f"v_pk_mul_f32 v[{DW+4*nt+2}:{DW+4*nt+3}], v[{DW+4*nt+2}:{DW+4*nt+3}], v[72:73]")
        A(f"ds_write_b128 v20, v[{DW+4*nt}:{DW+4*nt+3}] offset:{RED + nt*16}")
    A("s_waitcnt lgkmcnt(0)")
    A("s_barrier")
    for p in range(8):
        A(f"ds_read_b64 v[{32+2*p}:{33+2*p}], v22 offset:{RED + p*2176}")
    A("s_waitcnt lgkmcnt(4)") if not stamps else A("s_waitcnt lgkmcnt(0)")
    A("v_pk_add_f32 v[32:33], v[32:33], v[34:35]"); A("v_pk_add_f32 v[36:37], v[36:37], v[38:39]")
    A("v_pk_add_f32 v[32:33], v[32:33], v[36:37]")
    A("s_waitcnt lgkmcnt(0)")
    A("v_pk_add_f32 v[40:41], v[40:41], v[42:43]"); A("v_pk_add_f32 v[44:45], v[44:45], v[46:47]")
    A("v_pk_add_f32 v[40:41], v[40:41], v[44:45]")
    A("v_pk_add_f32 v[32:33], v[32:33], v[40:41]")
    A("v_cvt_pk_bf16_f32 v32, v32, v33")
    A("v_min_u32 v32, -2, v32")
    A("buffer_store_dword v32, v21, s[52:55], s79 offen sc1")
    g.stamp(7)
    A("s_cmp_ge_u32 s3, 2"); A("s_cbranch_scc1 L_fin")
    A("s_lshr_b32 s68, s2, 5"); A("s_lshl_b32 s68, s68, 10"); A("s_and_b32 s69, s2, 31"); A("s_lshl_b32 s69, s69, 5")
    A("s_add_u32 s76, s68, s69")
    A("v_lshrrev_b32 v17, 1, v2"); A("v_and_b32 v16, 1, v2")
    A("v_lshlrev_b32 v19, 4, v16"); A("v_mov_b32 v20, 0x3f80"); A("v_lshlrev_b32 v20, v19, v20")
    A("v_bfe_u32 v19, v2, 1, 2")
    for e in range(4):
        A(f"v_cmp_eq_u32 vcc, {e}, v19")
        nop(2)
        A(f"v_cndmask_b32 v{40+e}, 0, v20, vcc")
    A("v_lshlrev_b32 v21, 4, v16"); A("v_lshl_add_u32 v21, v6, 3, v21")
    A("s_cmp_eq_u32 s3, 1"); A("s_cbranch_scc1 L_fg")
    A("v_lshlrev_b32 v17, 13, v17"); A("v_lshl_add_u32 v17, v16, 4, v17")
    A(f"s_add_u32 s77, s76, {SP_OFF}")
    A("buffer_load_dwordx2 v[44:45], v21, s[56:59], s76 offen")
    g.poll(["buffer_load_dwordx4 v[32:35], v17, s[52:55], s77 offen sc1"], [32, 33, 34, 35], 10)
    g.stamp(8)
    def red_final():
        A("v_mfma_f32_16x16x32_bf16 v[36:39], v[40:43], v[32:35], 0")
        nop(8)
        for mod in ("row_ror:2", "row_ror:4", "row_ror:8"):
            for r in range(4):
                A(f"v_add_f32_dpp v{36+r}, v{36+r}, v{36+r} {mod} row_mask:0xf bank_mask:0xf")
    red_final()
    A("s_barrier")
    A("v_lshlrev_b32 v22, 1, v21")
    A(f"ds_read_b128 v[48:51], v22 offset:{GL}")
    A("v_cvt_pk_bf16_f32 v32, v36, v37"); A("v_cvt_pk_bf16_f32 v33, v38, v39")
    unpack(36, [32, 33])
    unpack(52, [44, 45])
    A("s_waitcnt lgkmcnt(0)")
    A("v_pk_mul_f32 v[36:37], v[36:37], v[48:49]"); A("v_pk_mul_f32 v[38:39], v[38:39], v[50:51]")
    A("v_cvt_pk_bf16_f32 v32, v36, v37"); A("v_cvt_pk_bf16_f32 v33, v38, v39")
    unpack(36, [32, 33])
    A("v_pk_add_f32 v[36:37], v[36:37], v[52:53]"); A("v_pk_add_f32 v[38:39], v[38:39], v[54:55]")
    A("v_cvt_pk_bf16_f32 v32, v36, v37"); A("v_cvt_pk_bf16_f32 v33, v38, v39")
    A("s_mov_b64 exec, 0x30003")
    A("buffer_store_dwordx2 v[32:33], v21, s[60:63], s76 offen")
    A("s_mov_b64 exec, -1")
    g.stamp(9)
    if int(dbgspan):
        A("s_memrealtime s[96:97]")
        A("s_mov_b32 s40, s24"); A("s_mov_b32 s41, s25"); A("s_mov_b32 s42, 256"); A("s_mov_b32 s43, 0x00020000")
        A("s_waitcnt lgkmcnt(0)")
        A("s_sub_u32 s98, 0, s98")
        A("v_mov_b32 v40, s98"); A("v_mov_b32 v41, s96")
        A("s_mov_b64 exec, 1")
        A("buffer_atomic_umax v40, v3, s[40:43], 0 offen sc1")
        A("buffer_atomic_umax v41, v3, s[40:43], 0 offen offset:4 sc1")
        A("s_mov_b64 exec, -1")
    A("s_cmp_lg_u32 s2, 0"); A("s_cbranch_scc1 L_fin")
    A(f"ds_read_b32 v32, v3 offset:{F_EP}")
    A(f"s_mov_b32 s68, {EP_OFF}")
    A("s_waitcnt lgkmcnt(0)")
    A("s_mov_b64 exec, 1")
    A("buffer_store_dword v32, v3, s[52:55], s68 offen sc1")
    A("s_mov_b64 exec, -1")
    A("s_branch L_fin")
    lab("L_fg")
    A("v_min_u32 v17, 27, v17")
    A("v_lshlrev_b32 v17, 13, v17"); A("v_lshl_add_u32 v17, v16, 4, v17")
    A(f"s_add_u32 s77, s76, {FP_OFF}")
    g.poll(["buffer_load_dwordx4 v[32:35], v17, s[52:55], s77 offen sc1"], [32, 33, 34, 35], 10)
    g.stamp(8)
    A("v_cmp_gt_u32 vcc, 56, v2")
    nop(2)
    for r in range(4):
        A(f"v_cndmask_b32 v{32+r}, 0, v{32+r}, vcc")
    nop(1)
    red_final()
    rbf([36, 37, 38, 39])
    silu([36, 37, 38, 39], 48)
    rbf([36, 37, 38, 39])
    A("v_lshlrev_b32 v22, 1, v21")
    A("s_mov_b64 exec, 0x30003")
    A(f"ds_write_b128 v22, v[36:39] offset:{GL}")
    A("s_mov_b64 exec, -1")
    A("s_waitcnt lgkmcnt(0)")
    A("s_barrier")
    g.stamp(9)
    A("s_branch L_fin")

    lab("L_H")
    A("s_cmp_eq_u32 s3, 8"); A("s_cbranch_scc1 L_load")
    A("s_setprio 3")
    A("v_lshlrev_b32 v7, 4, v2")
    A("s_sub_u32 s77, s3, 4")
    A("s_cmp_lg_u32 s3, 7"); A("s_cbranch_scc1 L_noinit")
    A("v_lshlrev_b32 v8, 2, v5")
    A("ds_write_b32 v8, v3")
    lab("L_noinit")
    A("v_lshrrev_b32 v8, 3, v2"); A("v_and_b32 v9, 7, v2"); A("v_lshlrev_b32 v9, 4, v9")
    A("s_lshl_b32 s68, s77, 11")
    A(f"s_mov_b32 s69, 0x{EP_OFF:x}")
    A("s_waitcnt lgkmcnt(0)")
    A("s_load_dword s79, s[26:27], s69")
    for d, b in ((32, 8), (44, 12), (48, 20), (52, 26), (56, 4)):
        A(f"s_mov_b32 s{d}, s{b}"); A(f"s_mov_b32 s{d+1}, s{b+1}")
    XR = 16
    for r in range(2):
        A(f"buffer_load_dwordx4 v[{XR+4*r}:{XR+4*r+3}], v7, s[56:59], s68 offen offset:{r*1024}")
    A("s_cmp_ge_u32 s3, 6"); A("s_cbranch_scc1 L_SX0")
    A("s_cmp_eq_u32 s3, 5"); A("s_cbranch_scc1 L_G1")
    A("s_mov_b32 s36, s10"); A("s_mov_b32 s37, s11"); A("s_mov_b32 s38, 4194304")
    A("s_lshl_b32 s76, s70, 3"); A("s_add_u32 s76, s76, s72"); A("s_lshl_b32 s76, s76, 7")
    A("s_movk_i32 s69, 8192")
    A("s_lshl_b32 s78, s73, 17"); A("s_lshl_b32 s68, s76, 4"); A("s_add_u32 s78, s78, s68")
    A(f"s_add_u32 s78, s78, {QP_OFF}")
    A("s_branch L_GJ")
    lab("L_G1")
    A("s_cmp_eq_u32 s70, 7"); A("s_cbranch_scc1 L_LN0")
    A("s_bitcmp1_b32 s71, 2")
    A("s_cselect_b32 s36, s18, s16"); A("s_cselect_b32 s37, s19, s17"); A("s_mov_b32 s38, 1835008")
    A("s_lshl_b32 s76, s74, 7")
    A("s_movk_i32 s69, 3584")
    A("s_and_b32 s78, s71, 7"); A(f"s_mul_i32 s78, s78, {28*2048}"); A("s_lshl_b32 s68, s76, 4"); A("s_add_u32 s78, s78, s68")
    A(f"s_add_u32 s78, s78, {GP_OFF}")
    lab("L_GJ")
    A("v_mul_lo_u32 v10, v8, s69"); A("v_add_u32 v10, v10, v9")
    A("s_lshl_b32 s68, s73, 7"); A("s_mul_i32 s68, s68, s69"); A("s_add_u32 s100, s76, s68")
    A("s_lshl_b32 s101, s69, 3")
    A("s_lshl_b32 s68, s77, 14"); A(f"s_add_u32 s68, s68, {W1T}")
    for i in range(16):
        A("s_mov_b32 m0, s68")
        A("s_add_u32 s68, s68, 1024")
        A(f"buffer_load_dwordx4 v10, s[36:39], s100 offen {g.ntw} lds")
        A("s_add_u32 s100, s100, s101")
    A("s_barrier")
    A("s_waitcnt vmcnt(16)")
    A("s_branch L_LN")
    lab("L_SX0")
    A("s_cmp_eq_u32 s3, 7"); A("s_cbranch_scc1 L_LN0")
    if int(noclr): A("s_branch L_LN0")
    for r in range(4):
        A(f"v_mov_b32 v{24+r}, -1")
    A("s_lshl_b32 s68, s70, 2"); A("s_add_u32 s68, s68, s73"); A("s_lshl_b32 s68, s68, 3"); A("s_add_u32 s68, s68, s72")
    A("s_lshl_b32 s68, s68, 10"); A(f"s_add_u32 s68, s68, {O_OFF}")
    A("buffer_store_dwordx4 v[24:27], v7, s[52:55], s68 offen sc1")
    A("v_lshl_add_u32 v10, v8, 10, v9")
    A("s_lshl_b32 s68, s74, 13"); A("s_lshl_b32 s69, s75, 7"); A("s_add_u32 s68, s68, s69")
    A(f"s_add_u32 s69, s68, {SP_OFF}")
    A("buffer_store_dwordx4 v[24:27], v10, s[52:55], s69 offen sc1")
    A("s_cmp_eq_u32 s70, 7"); A("s_cbranch_scc1 L_nofp")
    A(f"s_add_u32 s69, s68, {FP_OFF}")
    A("buffer_store_dwordx4 v[24:27], v10, s[52:55], s69 offen sc1")
    lab("L_nofp")
    A("v_lshlrev_b32 v10, 8, v2")
    A("s_lshl_b32 s68, s70, 10"); A("s_lshl_b32 s69, s72, 5"); A("s_add_u32 s68, s68, s69")
    A("s_lshl_b32 s69, s73, 3"); A("s_add_u32 s68, s68, s69"); A(f"s_add_u32 s68, s68, {ML_OFF}")
    A("s_mov_b64 exec, 15")
    A("buffer_store_dwordx2 v[24:25], v10, s[52:55], s68 offen sc1")
    A("s_mov_b64 exec, -1")
    A("s_barrier")
    A("s_waitcnt vmcnt(3)")
    A("s_cmp_eq_u32 s70, 7"); A("s_cbranch_scc1 L_LN")
    A("s_nop 0")
    A("s_branch L_LN") if False else None
    A("s_waitcnt vmcnt(4)") if False else None
    A("s_branch L_LN")
    lab("L_LN0")
    A("s_barrier")
    A("s_waitcnt vmcnt(0)")
    lab("L_LN")
    if cut == 1:
        g.flag_add(F_W, 3, 4); A("s_branch L_fin")
    XF = 32
    for r in range(2):
        unpack(XF + 8*r, [XR + 4*r + e for e in range(4)])
    SM = 64
    for r in range(2):
        A(f"v_add_f32 v{SM+r}, v{XF+8*r}, v{XF+8*r+1}"); A(f"v_add_f32 v{SM+2+r}, v{XF+8*r+2}, v{XF+8*r+3}")
    for e in range(4, 8, 2):
        for r in range(2):
            A(f"v_add_f32 v{SM+r}, v{SM+r}, v{XF+8*r+e}"); A(f"v_add_f32 v{SM+2+r}, v{SM+2+r}, v{XF+8*r+e+1}")
    for r in range(2):
        A(f"v_add_f32 v{SM+r}, v{SM+r}, v{SM+2+r}")
    g.allreduce64("v_add_f32", [SM, SM+1], [SM+4, SM+5])
    A(f"s_mov_b32 s68, 0x{f32bits(1.0/512):08x}")
    for r in range(2):
        A(f"v_mul_f32 v{SM+r}, s68, v{SM+r}")
    VS = 72
    for e in range(8):
        for r in range(2):
            A(f"v_sub_f32 v{80+2*(e&1)+r}, v{XF+8*r+e}, v{SM+r}")
        for r in range(2):
            t_ = 80+2*(e&1)+r
            if e == 0: A(f"v_mul_f32 v{VS+r}, v{t_}, v{t_}")
            else: A(f"v_fmac_f32 v{VS+r}, v{t_}, v{t_}")
    g.allreduce64("v_add_f32", [VS, VS+1], [VS+4, VS+5])
    for r in range(2):
        A(f"v_mul_f32 v{VS+r}, s68, v{VS+r}")
    rbf([SM, SM+1, VS, VS+1])
    for r in range(2):
        A(f"v_add_f32 v{VS+r}, 0x{f32bits(1e-5):08x}, v{VS+r}")
    rbf([VS, VS+1])
    for r in range(2):
        A(f"v_sqrt_f32 v{VS+r}, v{VS+r}")
    nop(1)
    rbf([VS, VS+1])
    for r in range(2):
        A(f"v_rcp_f32 v{VS+r}, v{VS+r}")
    for r in range(2):
        for e in range(8):
            A(f"v_sub_f32 v{XF+8*r+e}, v{XF+8*r+e}, v{SM+r}")
    for r in range(2):
        for e in range(4):
            A(f"v_cvt_pk_bf16_f32 v{XR+4*r+e}, v{XF+8*r+2*e}, v{XF+8*r+2*e+1}")
    for r in range(2):
        unpack(XF + 8*r, [XR + 4*r + e for e in range(4)])
    for r in range(2):
        for e in range(8):
            A(f"v_mul_f32 v{XF+8*r+e}, v{XF+8*r+e}, v{VS+r}")
    for r in range(2):
        for e in range(4):
            A(f"v_cvt_pk_bf16_f32 v{XR+4*r+e}, v{XF+8*r+2*e}, v{XF+8*r+2*e+1}")
    A(f"s_mul_i32 s68, s77, {2*XNP}"); A("v_lshlrev_b32 v11, 4, v5"); A("v_add_u32 v11, s68, v11")
    A("v_cmp_eq_u32 vcc, s73, v6")
    A("s_and_saveexec_b64 s[68:69], vcc")
    for r in range(2):
        A(f"ds_write_b128 v11, v[{XR+4*r}:{XR+4*r+3}] offset:{XN + r*XNP}")
    g.flag_add(F_XN, 3, 4)
    g.stamp(2)
    A("s_add_u32 s4, s79, 1"); A(f"s_mul_i32 s5, s4, 0x{TAGMUL:x}")
    A("v_lshrrev_b32 v12, 2, v5"); A("v_lshl_add_u32 v12, v6, 3, v12"); A("v_lshlrev_b32 v12, 7, v12")
    A("v_and_b32 v13, 3, v2")
    A("v_and_b32 v14, 7, v2")
    A("s_cmp_ge_u32 s3, 6"); A("s_cbranch_scc1 L_SX1")
    A("s_cmp_lg_u32 s3, 5"); A("s_cbranch_scc1 L_Ggo")
    A("s_cmp_lg_u32 s70, 7"); A("s_cbranch_scc1 L_Ggo")
    g.flag_add(F_W, 3, 4)
    A("s_waitcnt lgkmcnt(0)")
    A("s_branch L_fin")
    lab("L_Ggo")
    A(f"v_mul_u32_u24 v11, {XNP}, v14"); A("v_lshl_add_u32 v11, v6, 4, v11")
    A("v_lshl_add_u32 v12, v13, 3, v12")
    A("s_lshl_b32 s68, s77, 14"); A("v_add_u32 v12, s68, v12")
    A("v_lshlrev_b32 v15, 6, v14"); A("v_lshl_add_u32 v15, v6, 4, v15")
    for nt in range(4):
        A(f"v_mov_b32 v{113+4*nt}, s4"); A(f"v_mov_b32 v{115+4*nt}, s5")
    g.flag_wait(F_XN, 4, 3, 10)
    XB = 16
    for t in range(4):
        A(f"ds_read_b128 v[{XB+4*t}:{XB+4*t+3}], v11 offset:{XN + t*64}")
    WB = 32
    for t in range(4):
        A(f"s_waitcnt vmcnt({12 - 4*t})")
        if t == 3:
            g.flag_add(F_W, 3, 4)
        for nt in range(4):
            r = WB + (t*4 + nt)*4
            off = W1T + t*4096 + nt*32
            A(f"ds_read_b64_tr_b16 v[{r}:{r+1}], v12 offset:{off}")
            A(f"ds_read_b64_tr_b16 v[{r+2}:{r+3}], v12 offset:{off+512}")
        A("s_waitcnt lgkmcnt(0)")
        for nt in range(4):
            r = WB + (t*4 + nt)*4
            d = 96 + nt*4
            cc = "0" if t == 0 else f"v[{d}:{d+3}]"
            A(f"v_mfma_f32_16x16x32_bf16 v[{d}:{d+3}], v[{r}:{r+3}], v[{XB+4*t}:{XB+4*t+3}], {cc}")
    g.stamp(3)
    exec_mask(0x00ff00ff)
    nop(4)
    for nt in range(4):
        A(f"v_cvt_pk_bf16_f32 v{112+4*nt}, v{96+4*nt}, v{97+4*nt}")
        A(f"v_cvt_pk_bf16_f32 v{114+4*nt}, v{98+4*nt}, v{99+4*nt}")
        if not int(nost): A(f"buffer_store_dwordx4 v[{112+4*nt}:{115+4*nt}], v15, s[52:55], s78 offen offset:{nt*512} sc1")
    A("s_mov_b64 exec, -1")
    g.stamp(4)
    A("s_branch L_fin")
    lab("L_load")
    A("s_setprio 2")
    A("v_lshrrev_b32 v8, 3, v2"); A("v_and_b32 v9, 7, v2"); A("v_lshlrev_b32 v9, 4, v9")
    A("v_lshlrev_b32 v16, 1, v6"); A("v_xor_b32 v16, v16, v5"); A("v_xor_b32 v17, 8, v16")
    A("v_lshlrev_b32 v16, 4, v16"); A("v_lshl_add_u32 v16, v6, 8, v16")
    A("v_lshlrev_b32 v17, 4, v17"); A("v_lshl_add_u32 v17, v6, 8, v17")
    A("s_mov_b32 s100, s64")
    A(f"s_mov_b32 s101, {VT}")
    A("v_lshl_add_u32 v18, v8, 10, v9")
    A("s_lshl_b32 s76, s74, 17"); A("s_lshl_b32 s68, s75, 7"); A("s_add_u32 s76, s76, s68")
    A(f"s_mov_b32 s77, {WOT}")
    A("s_waitcnt lgkmcnt(0)")
    for d, b_ in ((32, 8), (44, 12), (52, 26)):
        A(f"s_mov_b32 s{d}, s{b_}"); A(f"s_mov_b32 s{d+1}, s{b_+1}")
    A("s_barrier")
    if cut == 2:
        A("s_branch L_fin")
    if vdelay:
        g.flag_wait(F_K2, 4, 3, 10)
    g.stamp(5)
    NV = 64; NT = 80
    def publish(k):
        if 0 < k <= NV and k % 8 == 0:
            A(f"v_mov_b32 v20, {k//8}")
            A(f"ds_write_b32 v3, v20 offset:{F_V0}")
    for i in range(NT):
        w_ = vthr if (i < NV or not wolate) else wolate
        if i >= w_:
            A(f"s_waitcnt vmcnt({w_-1})")
            lo = (i - vthr + 1) if i <= NV else (i - 1 - w_ + 2)
            for k in range(max(1, min(i - vthr + 1, i - w_ + 1)), i - w_ + 2):
                if k == i - w_ + 1 or (i == NV and k > i - vthr):
                    publish(k)
        if i < NV:
            A("s_mov_b32 m0, s101")
            A("s_add_u32 s101, s101, 1024")
            A(f"buffer_load_dwordx4 v{16 + ((i >> 1) & 1)}, s[32:35], s100 offen {g.ntkv} lds")
            A("s_add_u32 s100, s100, 1024")
        else:
            A("s_mov_b32 m0, s77")
            A("s_add_u32 s77, s77, 1024")
            A(f"buffer_load_dwordx4 v18, s[44:47], s76 offen {g.ntw} lds")
            A("s_add_u32 s76, s76, 8192")
    g.stamp(6)
    wl = wolate if wolate else vthr
    for k in range(max(8, NT - wl + 1), NV + 1):
        if k % 8 == 0:
            A(f"s_waitcnt vmcnt({NT - k})")
            publish(k)
    A("s_waitcnt vmcnt(0) lgkmcnt(0)")
    g.stamp(7)
    A("s_branch L_fin")
    lab("L_SX1")
    A("s_cmp_eq_u32 s3, 7"); A("s_cbranch_scc1 L_X")
    A("v_mov_b32 v16, s4"); A("v_mov_b32 v17, s5")
    A("s_lshl_b32 s7, s2, 3"); A(f"s_add_u32 s7, s7, {FL_OFF}")
    A("s_waitcnt vmcnt(0)")
    A("s_mov_b64 exec, 1")
    A("buffer_store_dwordx2 v[16:17], v3, s[52:55], s7 offen sc1")
    A(f"ds_write_b32 v3, v16 offset:{F_EP}")
    A("s_mov_b64 exec, -1")
    g.stamp(1)
    if cut in (2, 3):
        A("s_branch L_fin")
    A("v_lshrrev_b32 v9, 2, v2"); A("v_lshlrev_b32 v9, 9, v9"); A("v_lshl_add_u32 v9, v13, 4, v9")
    A("s_lshl_b32 s16, s70, 14"); A("s_lshl_b32 s69, s72, 6"); A("s_add_u32 s16, s16, s69"); A(f"s_add_u32 s16, s16, {QP_OFF}")
    for k in range(1, 8):
        A(f"s_add_u32 s{16+k}, s16, {(k>>1)*131072 + (k&1)*8192}")
    A("v_lshlrev_b32 v8, 3, v2")
    A("v_bfe_u32 v12, v2, 3, 2"); A("v_lshlrev_b32 v12, 17, v12"); A("v_lshl_add_u32 v12, v14, 11, v12")
    g.flag_wait(F_K, 4, 3, 10)
    g.stamp(7)
    if int(sample):
        tagpoll([f"buffer_load_dwordx4 v[16:19], v12, s[52:55], s16 offen offset:{3*512+48} sc1"], [16], 10, qsleep)
    g.stamp(8)
    tagpoll([f"buffer_load_dwordx4 v[{16+4*k}:{19+4*k}], v9, s[52:55], s{16+k} offen sc1" for k in range(8)],
            [16+4*k for k in range(8)], 10, qsleep)
    g.stamp(3)
    for k in range(8):
        unpack(48 + 4*k, [16+4*k, 18+4*k])
    for i in range(2):
        for e in range(4):
            A(f"v_add_f32 v{48+4*i+e}, v{48+4*i+e}, v{56+4*i+e}"); A(f"v_add_f32 v{64+4*i+e}, v{64+4*i+e}, v{72+4*i+e}")
    for e in range(8):
        A(f"v_add_f32 v{48+e}, v{48+e}, v{64+e}")
    for e in range(4):
        A(f"v_cvt_pk_bf16_f32 v{16+e}, v{48+2*e}, v{49+2*e}")
    A(f"ds_write_b64 v8, v[16:17] offset:{QL}")
    A(f"ds_write_b64 v8, v[18:19] offset:{QL+512}")
    g.flag_add(F_Q, 3, 4)
    g.stamp(5)
    if cut == 4:
        A("s_branch L_fin")
    A("v_mov_b32 v16, s4"); A("v_mov_b32 v17, s5")
    A(f"s_mov_b32 s6, {FL_OFF}")
    A("v_lshlrev_b32 v8, 7, v2")
    A("s_mov_b32 s15, 0x40000")
    lab("L_alpoll")
    A("buffer_load_dwordx4 v[20:23], v7, s[52:55], s6 offen sc1")
    A("buffer_load_dwordx4 v[24:27], v7, s[52:55], s6 offen offset:1024 sc1")
    A("s_waitcnt vmcnt(0)")
    A("v_cmp_ne_u64 s[8:9], v[16:17], v[20:21]"); A("v_cmp_ne_u64 s[10:11], v[16:17], v[22:23]")
    A("v_cmp_ne_u64 s[12:13], v[16:17], v[24:25]"); A("v_cmp_ne_u64 vcc, v[16:17], v[26:27]")
    A("s_or_b64 s[8:9], s[8:9], s[10:11]"); A("s_or_b64 s[12:13], s[12:13], vcc"); A("s_or_b64 s[8:9], s[8:9], s[12:13]")
    A("s_cbranch_scc0 L_aldone")
    A("s_sleep 4")
    A("s_sub_u32 s15, s15, 1"); A("s_cmp_lg_u32 s15, 0"); A("s_cbranch_scc1 L_alpoll")
    lab("L_aldone")
    g.stamp(4)
    if cut == 5:
        A("s_branch L_fin")
    A("v_lshlrev_b32 v8, 8, v2"); A("v_lshlrev_b32 v9, 4, v13")
    A("s_lshl_b32 s68, s70, 10"); A("s_lshl_b32 s69, s72, 5"); A("s_add_u32 s68, s68, s69")
    A("s_lshl_b32 s69, s73, 3"); A("s_add_u32 s68, s68, s69"); A(f"s_add_u32 s68, s68, {ML_OFF}")
    A(f"s_mov_b32 s78, 0x{f32bits(LOG2E * (128 ** -0.5)):08x}")
    g.flag_wait(F_ML, 4, 3, 10)
    A(f"ds_read_b128 v[16:19], v9 offset:{MX}")
    A(f"ds_read_b128 v[20:23], v9 offset:{LL}")
    A("s_waitcnt lgkmcnt(0)")
    A("v_max3_f32 v24, v16, v17, v18"); A("v_max_f32 v24, v24, v19"); A("v_mul_f32 v24, s78, v24")
    A("v_add_f32 v25, v20, v21"); A("v_add_f32 v26, v22, v23"); A("v_add_f32 v25, v25, v26")
    A("v_min_u32 v24, -2, v24"); A("v_min_u32 v25, -2, v25")
    A("s_mov_b64 exec, 15")
    A("buffer_store_dwordx2 v[24:25], v8, s[52:55], s68 offen sc1")
    A("s_mov_b64 exec, -1")
    g.stamp(6)
    A("s_branch L_fin")
    lab("L_X")
    if cut in (2, 3, 4):
        A("s_branch L_fin")
    A("s_cmp_eq_u32 s70, 7"); A("s_cbranch_scc1 L_fin")
    A("v_lshl_add_u32 v12, v13, 5, v12")
    A("v_lshl_add_u32 v10, v8, 10, v9")
    A("s_lshl_b32 s100, s74, 16"); A("s_lshl_b32 s69, s75, 7"); A("s_add_u32 s100, s100, s69")
    A("v_bfe_u32 v15, v2, 3, 1"); A("v_lshrrev_b32 v11, 1, v6"); A("v_lshl_add_u32 v11, v15, 1, v11"); A("v_lshlrev_b32 v11, 9, v11")
    A("v_lshl_add_u32 v11, v14, 6, v11"); A("v_and_b32 v15, 1, v6"); A("v_lshl_add_u32 v11, v15, 5, v11")
    A("s_lshl_b32 s76, s74, 11"); A(f"s_add_u32 s76, s76, {GP_OFF}")
    A("v_lshlrev_b32 v15, 10, v14"); A("v_lshl_add_u32 v15, v6, 5, v15")
    A("s_lshl_b32 s78, s74, 13"); A("s_add_u32 s78, s78, s69"); A(f"s_add_u32 s78, s78, {FP_OFF}")
    for p in range(8):
        A(f"s_add_u32 s{16+p}, s76, {p*28*2048}")
    g.flag_wait(F_Q, 1, 3, 9)
    A(f"s_mov_b32 s68, {WDT}")
    for i in range(8):
        A("s_mov_b32 m0, s68")
        A("s_add_u32 s68, s68, 1024")
        A(f"buffer_load_dwordx4 v10, s[48:51], s100 offen {g.ntw} lds")
        A("s_add_u32 s100, s100, 8192")
    lds_ = []
    for p in range(8):
        lds_.append(f"buffer_load_dwordx4 v[{16+8*p}:{19+8*p}], v11, s[52:55], s{16+p} offen sc1")
        lds_.append(f"buffer_load_dwordx4 v[{20+8*p}:{23+8*p}], v11, s[52:55], s{16+p} offen offset:16 sc1")
    tagpoll(lds_, [16+4*k for k in range(16)], 8, qsleep)
    g.stamp(5)
    WD = 128
    for p in range(8):
        unpack(80 + 8*p, [16+8*p, 18+8*p, 20+8*p, 22+8*p])
    for mat in range(2):
        b0 = 80 + mat*32
        for e in range(8):
            A(f"v_add_f32 v{b0+e}, v{b0+e}, v{b0+8+e}"); A(f"v_add_f32 v{b0+16+e}, v{b0+16+e}, v{b0+24+e}")
        for e in range(8):
            A(f"v_add_f32 v{b0+e}, v{b0+e}, v{b0+16+e}")
    for t in range(2):
        for nt in range(4):
            r = WD + (t*4 + nt)*4
            off = WDT + t*4096 + nt*8
            A(f"ds_read_b64_tr_b16 v[{r}:{r+1}], v12 offset:{off}")
            A(f"ds_read_b64_tr_b16 v[{r+2}:{r+3}], v12 offset:{off+512}")
    rbf(list(range(80, 88)) + list(range(112, 120)))
    silu(list(range(80, 88)), 88)
    rbf(list(range(80, 88)))
    for e in range(8):
        A(f"v_mul_f32 v{80+e}, v{80+e}, v{112+e}")
    for e in range(4):
        A(f"v_cvt_pk_bf16_f32 v{16+e}, v{80+2*e}, v{81+2*e}")
    A("s_waitcnt lgkmcnt(0)")
    nop(1)
    for t in range(2):
        for nt in range(4):
            r = WD + (t*4 + nt)*4
            d = 32 + t*16 + nt*4
            A(f"v_mfma_f32_16x16x32_bf16 v[{d}:{d+3}], v[{r}:{r+3}], v[16:19], 0")
    nop(8)
    for e in range(16):
        A(f"v_add_f32_dpp v{32+e}, v{48+e}, v{32+e} row_ror:8 row_mask:0xf bank_mask:0xf")
    for e in range(8):
        A(f"v_cvt_pk_bf16_f32 v{64+e}, v{32+2*e}, v{33+2*e}")
    for e in range(8):
        A(f"v_min_u32 v{64+e}, -2, v{64+e}")
    exec_mask(0x00ff00ff)
    A("buffer_store_dwordx4 v[64:67], v15, s[52:55], s78 offen sc1")
    A("buffer_store_dwordx4 v[68:71], v15, s[52:55], s78 offen offset:16 sc1")
    A("s_mov_b64 exec, -1")
    g.stamp(6)
    lab("L_fin")
    g.stamp_flush()
    lab("L_end")
    A("s_endpgm")
    tail = ['.section .rodata,"a"', ".p2align 6", f".amdhsa_kernel {KN}",
            "  .amdhsa_next_free_vgpr 168", "  .amdhsa_next_free_sgpr 102", "  .amdhsa_accum_offset 168",
            "  .amdhsa_group_segment_fixed_size 0", "  .amdhsa_kernarg_size 96", "  .amdhsa_user_sgpr_count 2",
            "  .amdhsa_user_sgpr_kernarg_segment_ptr 1", "  .amdhsa_system_sgpr_workgroup_id_x 1",
            "  .amdhsa_float_denorm_mode_32 3",
            ".end_amdhsa_kernel"]
    return "\n".join(hdr + g.L + tail) + "\n"

if __name__ == "__main__":
    out = sys.argv[1] if len(sys.argv) > 1 else "recurrent_scan__sliding_block_cached__swiglu_ffn__decode.s"
    stamps = "--stamps" in sys.argv
    kw = {}
    for a in sys.argv[2:]:
        if "=" in a:
            k, v = a.split("=", 1); kw[k] = v
    open(out, "w").write(build(stamps=stamps, **kw))
```

```python
import sys, struct
KN = "recurrent_scan__sliding_block_cached__swiglu_ffn__decode_kernel"

Q_OFF = 0x0
H_OFF = 0x10000
O_OFF = 0x20000
ML_OFF = 0x60000
SP_OFF = 0x80000
FP_OFF = 0x100000
GO_OFF = 0x180000
STAMP_OFF = 0x1000000
F_XN, F_D1, F_Q, F_WO, F_G, F_CLR, F_GO, F_OC, F_RED = 0, 4, 8, 12, 16, 20, 24, 28, 32
XN = 256; XNP = 1040
QL = 8704
D1 = 9728
OC = 11776
OML = 19968
GL = 20224
WOT = 20480
WDT = 36864
W1T = 45056
RED = W1T
LDS_BYTES = 77824

def f32bits(x):
    return struct.unpack("<I", struct.pack("<f", x))[0]

class G:
    def __init__(self, stamps=False, ntkv="nt", ntw="nt", thr=0):
        self.thr = int(thr)
        self.L = []
        self.stamps = stamps
        self.nlab = 0
        self.ntkv = ntkv
        self.ntw = ntw
    def A(self, s):
        self.L.append("  " + s)
    def lab(self, name):
        self.L.append(name + ":")
    def newlab(self, p="L"):
        self.nlab += 1
        return f"{p}_{self.nlab}"
    def nop(self, n):
        while n > 0:
            k = min(n, 16)
            self.A(f"s_nop {k-1}")
            n -= k
    def stamp(self, i):
        if self.stamps and (not getattr(self, "only", None) or i in self.only):
            self.A(f"s_memrealtime s[{80+2*i}:{81+2*i}]")
    def stamp_flush(self, n=10):
        if not self.stamps:
            return
        A = self.A
        A("s_waitcnt lgkmcnt(0) vmcnt(0)")
        A("s_mov_b64 exec, 1")
        A(f"s_mul_i32 s68, s2, {getattr(self, 'nwaves', 8)}"); A("s_add_u32 s68, s68, s3"); A(f"s_mul_i32 s68, s68, {8*n}")
        A(f"s_add_u32 s68, s68, {STAMP_OFF}")
        A("v_mov_b32 v2, 0")
        for i in range(n):
            A(f"v_mov_b32 v4, s{80+2*i}"); A(f"v_mov_b32 v5, s{81+2*i}")
            A(f"buffer_store_dwordx2 v[4:5], v2, s[52:55], s68 offen offset:{8*i}")
            A("s_nop 1")
    def flag_add(self, off, vz, vone):
        A = self.A
        A("s_waitcnt lgkmcnt(0)")
        A("s_mov_b64 exec, 1")
        A(f"ds_add_u32 v{vz}, v{vone} offset:{off}")
        A("s_mov_b64 exec, -1")
    def flag_wait(self, off, target, vz, vt, st=14, sc=15, sleep=True):
        A = self.A
        l = self.newlab("FW"); d = self.newlab("FD")
        A(f"s_mov_b32 s{sc}, 0x400000")
        self.lab(l)
        A(f"ds_read_b32 v{vt}, v{vz} offset:{off}")
        A("s_waitcnt lgkmcnt(0)")
        A(f"v_readfirstlane_b32 s{st}, v{vt}")
        A(f"s_cmp_ge_u32 s{st}, {target}")
        A(f"s_cbranch_scc1 {d}")
        if sleep:
            A("s_sleep 1")
        A(f"s_sub_u32 s{sc}, s{sc}, 1")
        A(f"s_cmp_lg_u32 s{sc}, 0")
        A(f"s_cbranch_scc1 {l}")
        self.lab(d)
    def poll(self, loads, regs, vt, sc=15, sleep=0, preissued=False):
        A = self.A
        l = self.newlab("PL"); d = self.newlab("PD"); c = self.newlab("PC")
        A(f"s_mov_b32 s{sc}, 0x40000")
        if preissued:
            A(f"s_branch {c}")
        self.lab(l)
        for s in loads:
            A(s)
        self.lab(c)
        A("s_waitcnt vmcnt(0)")
        rs = list(regs)
        A(f"v_max3_u32 v{vt}, v{rs[0]}, v{rs[1]}, v{rs[2] if len(rs) > 2 else rs[1]}")
        rs = rs[3:]
        while rs:
            if len(rs) >= 2:
                A(f"v_max3_u32 v{vt}, v{vt}, v{rs[0]}, v{rs[1]}"); rs = rs[2:]
            else:
                A(f"v_max_u32 v{vt}, v{vt}, v{rs[0]}"); rs = rs[1:]
        A(f"v_cmp_eq_u32 vcc, -1, v{vt}")
        A("s_and_b64 exec, exec, vcc")
        A(f"s_cbranch_scc0 {d}")
        if sleep:
            A(f"s_sleep {sleep}")
        A(f"s_sub_u32 s{sc}, s{sc}, 1")
        A(f"s_cmp_lg_u32 s{sc}, 0")
        A(f"s_cbranch_scc1 {l}")
        self.lab(d)
        A("s_mov_b64 exec, -1")
    def allreduce64(self, op, regs, tmps):
        A = self.A
        n = len(regs)
        pad = max(0, 2 - (n - 1))
        for mod in ("quad_perm:[1,0,3,2]", "quad_perm:[2,3,0,1]", "row_half_mirror", "row_mirror"):
            self.nop(pad if n < 3 else 0)
            for r in regs:
                A(f"{op}_dpp v{r}, v{r}, v{r} {mod} row_mask:0xf bank_mask:0xf")
        self.xrow(op, regs, tmps)
    def xrow(self, op, regs, tmps):
        A = self.A
        for sw in ("v_permlane16_swap_b32", "v_permlane32_swap_b32"):
            for r, t in zip(regs, tmps):
                A(f"v_mov_b32 v{t}, v{r}")
            self.nop(2)
            for r, t in zip(regs, tmps):
                A(f"{sw} v{r}, v{t}")
            self.nop(1)
            for r, t in zip(regs, tmps):
                A(f"{op} v{r}, v{r}, v{t}")

def build(stamps=False, ntkv="nt", ntw="nt", thr=0):
    g = G(stamps, ntkv, ntw, thr)
    A = g.A; lab = g.lab; nop = g.nop
    hdr = []
    hdr.append(f"; @launch grid=(256,1,1) block=(512,1,1) lds={LDS_BYTES}")
    hdr.append('.amdgcn_target "amdgcn-amd-amdhsa--gfx950"')
    hdr.append(".text"); hdr.append(f".globl {KN}"); hdr.append(".p2align 8"); hdr.append(f".type {KN},@function")
    hdr.append(f"{KN}:")
    A("s_cmp_ge_u32 s2, 256"); A("s_cbranch_scc1 L_end")
    A("s_load_dwordx16 s[4:19], s[0:1], 0")
    A("s_load_dwordx8 s[20:27], s[0:1], 64")
    g.stamp(0)
    A("v_lshrrev_b32 v1, 6, v0")
    A("v_and_b32 v1, 63, v0") if False else None
    A("v_and_b32 v2, 63, v0")
    A("v_readfirstlane_b32 s3, v1")
    A("v_mov_b32 v3, 0")
    A("v_mov_b32 v4, 1")
    for d, n in ((28, 67108864), (32, 67108864), (44, 4194304), (48, 1835008), (52, 268435456), (56, 8192), (60, 8192), (64, 256)):
        A(f"s_mov_b32 s{d+2}, {n}"); A(f"s_mov_b32 s{d+3}, 0x00020000")
    A("s_mov_b32 s39, 0x00020000"); A("s_mov_b32 s43, 0x00020000")
    A("s_and_b32 s70, s2, 7")
    A("s_lshr_b32 s71, s2, 3")
    A("s_lshr_b32 s72, s71, 2")
    A("s_and_b32 s73, s71, 3")
    A("s_lshl_b32 s74, s70, 2"); A("s_lshr_b32 s68, s71, 3"); A("s_add_u32 s74, s74, s68")
    A("s_and_b32 s75, s71, 7")
    A("s_cmp_lg_u32 s3, 7"); A("s_cbranch_scc1 L_noinit")
    A("v_lshlrev_b32 v5, 2, v2")
    A("ds_write_b32 v5, v3")
    lab("L_noinit")
    A("s_waitcnt lgkmcnt(0)")
    for d, b in ((28, 6), (32, 8), (44, 12), (48, 20), (52, 26), (56, 4), (60, 22), (64, 24)):
        A(f"s_mov_b32 s{d}, s{b}"); A(f"s_mov_b32 s{d+1}, s{b+1}")
    A("s_cmp_ge_u32 s3, 4"); A("s_cbranch_scc1 L_G")

    KR = 16; VR = 80; QF = 144; SR = 160; PP = 176; ACC = 184
    PM = 16
    PB = 48
    A("s_lshl_b32 s76, s72, 3"); A("s_add_u32 s76, s76, s70"); A("s_lshl_b32 s76, s76, 20")
    A("s_lshl_b32 s68, s73, 16"); A("s_add_u32 s76, s76, s68")
    A("s_lshl_b32 s68, s3, 14"); A("s_add_u32 s76, s76, s68")
    A(f"s_add_u32 s76, s76, {3072*256}")
    A("v_and_b32 v5, 15, v2")
    A("v_lshrrev_b32 v6, 4, v2")
    A("v_lshlrev_b32 v7, 8, v5"); A("v_lshl_add_u32 v7, v6, 4, v7")
    A("v_lshlrev_b32 v8, 10, v6"); A("v_lshl_add_u32 v8, v5, 4, v8")
    A("s_barrier")
    for T in range(4):
        if T: A("s_add_u32 s76, s76, 4096")
        for t in range(4):
            r = KR + (T*4 + t)*4
            if g.thr and T*4 + t >= g.thr: A(f"s_waitcnt vmcnt({g.thr-1})")
            A(f"buffer_load_dwordx4 v[{r}:{r+3}], v7, s[28:31], s76 offen offset:{t*64} {g.ntkv}")
    A("s_sub_u32 s76, s76, 12288")
    for q4 in range(4):
        if q4: A("s_add_u32 s76, s76, 4096")
        for jl in range(4):
            r = VR + (q4*4 + jl)*4
            if g.thr and 16 + q4*4 + jl >= g.thr: A(f"s_waitcnt vmcnt({g.thr-1})")
            A(f"buffer_load_dwordx4 v[{r}:{r+3}], v8, s[32:35], s76 offen offset:{jl*256} {g.ntkv}")
    A("v_lshrrev_b32 v9, 3, v2"); A("v_lshlrev_b32 v9, 10, v9")
    A("v_and_b32 v10, 7, v2"); A("v_lshl_add_u32 v9, v10, 4, v9")
    A("s_lshl_b32 s76, s74, 17")
    A("s_lshl_b32 s68, s3, 15"); A("s_add_u32 s76, s76, s68")
    A("s_lshl_b32 s68, s75, 7"); A("s_add_u32 s76, s76, s68")
    A("s_lshl_b32 s77, s3, 12"); A(f"s_add_u32 s77, s77, {WOT}")
    for i in range(4):
        A("s_mov_b32 m0, s77")
        A("s_add_u32 s77, s77, 1024")
        if g.thr: A(f"s_waitcnt vmcnt({g.thr-1})")
        A(f"buffer_load_dwordx4 v9, s[44:47], s76 offen {g.ntw} lds")
        A("s_add_u32 s76, s76, 8192")
    g.stamp(1)
    A("s_mov_b32 s76, 0x05040100"); A("s_mov_b32 s77, 0x07060302")
    c = 1.4426950408889634 * (128 ** -0.5)
    A(f"s_mov_b32 s78, 0x{f32bits(c):08x}")
    A("v_and_b32 v9, 3, v2"); A("v_lshlrev_b32 v9, 8, v9"); A("v_lshl_add_u32 v9, v6, 4, v9")
    g.flag_wait(F_Q, 1, 3, 10)
    g.stamp(2)
    for t in range(4):
        A(f"ds_read_b128 v[{QF+4*t}:{QF+4*t+3}], v9 offset:{QL + t*64}")
    A("s_waitcnt lgkmcnt(0)")
    for T in range(4):
        A(f"s_waitcnt vmcnt({36 - 4*(T+1)})")
        for t in range(4):
            r = KR + (T*4 + t)*4
            cc = "0" if t == 0 else f"v[{SR+4*T}:{SR+4*T+3}]"
            A(f"v_mfma_f32_16x16x32_bf16 v[{SR+4*T}:{SR+4*T+3}], v[{r}:{r+3}], v[{QF+4*t}:{QF+4*t+3}], {cc}")
    nop(8)
    A(f"v_max3_f32 v10, v{SR}, v{SR+1}, v{SR+2}")
    for i in range(3, 15, 2):
        A(f"v_max3_f32 v10, v10, v{SR+i}, v{SR+i+1}")
    A(f"v_max_f32 v10, v10, v{SR+15}")
    g.xrow("v_max_f32", [10], [11])
    A("v_mul_f32 v10, s78, v10")
    for i in range(16):
        A(f"v_fma_f32 v{SR+i}, v{SR+i}, s78, -v10")
    for i in range(16):
        A(f"v_exp_f32 v{SR+i}, v{SR+i}")
    nop(1)
    for i in range(8):
        A(f"v_cvt_pk_bf16_f32 v{PP+i}, v{SR+2*i}, v{SR+2*i+1}")
    A(f"v_add_f32 v11, v{SR}, v{SR+1}")
    for i in range(2, 16):
        A(f"v_add_f32 v11, v11, v{SR+i}")
    g.xrow("v_add_f32", [11], [12])
    for rho in range(4):
        m = 0x000F000F << (4*rho)
        A(f"s_mov_b32 s68, 0x{m:08x}"); A(f"s_mov_b32 s69, 0x{m:08x}")
        for i in range(8):
            A(f"v_cndmask_b32 v{PM+rho*8+i}, 0, v{PP+i}, s[68:69]")
    A("v_lshlrev_b32 v12, 5, v2"); A("s_lshl_b32 s68, s3, 3"); A("v_add_u32 v12, s68, v12")
    A("s_mov_b64 exec, 15")
    A(f"ds_write_b64 v12, v[10:11] offset:{OML}")
    A("s_mov_b64 exec, -1")
    g.stamp(3)
    for G_ in range(2):
        for jj in range(4):
            q = G_*8 + 2*jj
            A(f"s_waitcnt vmcnt({36 - 16 - (q+2)})")
            r0 = VR + q*4; r1 = VR + (q+1)*4
            for e in range(4):
                A(f"v_perm_b32 v{PB + (2*e)*4 + jj}, v{r1+e}, v{r0+e}, s76")
                A(f"v_perm_b32 v{PB + (2*e+1)*4 + jj}, v{r1+e}, v{r0+e}, s77")
        nop(2)
        for i in range(8):
            acc = ACC + (i >> 2)*4
            cc = "0" if (G_ == 0 and (i & 3) == 0) else f"v[{acc}:{acc+3}]"
            pa = PM + (i & 3)*8 + G_*4
            A(f"v_mfma_f32_16x16x32_bf16 v[{acc}:{acc+3}], v[{pa}:{pa+3}], v[{PB+i*4}:{PB+i*4+3}], {cc}")
    g.stamp(4)
    A("v_lshlrev_b32 v12, 2, v2"); A("s_lshl_b32 s68, s3, 11"); A("v_add_u32 v13, s68, v12")
    A(f"v_add_u32 v13, {OC}, v13")
    nop(6)
    for r in range(4):
        A(f"ds_write2st64_b32 v13, v{ACC+r}, v{ACC+4+r} offset0:{2*r} offset1:{2*r+1}")
    g.flag_add(F_OC, 3, 4)
    A("s_lshl_b32 s68, s3, 9"); A("v_add_u32 v13, s68, v12"); A(f"v_add_u32 v13, {OC}, v13")
    A("s_lshl_b32 s68, s3, 5"); A("v_mov_b32 v14, s68")
    g.flag_wait(F_OC, 4, 3, 10, sleep=False)
    A(f"ds_read_b128 v[16:19], v14 offset:{OML}")
    A(f"ds_read_b128 v[20:23], v14 offset:{OML+16}")
    for w in range(4):
        A(f"ds_read2st64_b32 v[{24+2*w}:{25+2*w}], v13 offset0:{8*w} offset1:{8*w+1}")
    A("s_waitcnt lgkmcnt(0)")
    A("v_max3_f32 v32, v16, v18, v20"); A("v_max_f32 v32, v32, v22")
    for w in range(4):
        A(f"v_sub_f32 v{16+2*w}, v{16+2*w}, v32")
    for w in range(4):
        A(f"v_exp_f32 v{16+2*w}, v{16+2*w}")
    nop(1)
    A("v_mul_f32 v34, v16, v24"); A("v_mul_f32 v35, v16, v25"); A("v_mul_f32 v33, v16, v17")
    for w in range(1, 4):
        A(f"v_fmac_f32 v34, v{16+2*w}, v{24+2*w}"); A(f"v_fmac_f32 v35, v{16+2*w}, v{25+2*w}")
        A(f"v_fmac_f32 v33, v{16+2*w}, v{17+2*w}")
    A("v_cvt_pk_bf16_f32 v34, v34, v35")
    A("v_min_u32 v34, -2, v34"); A("v_min_u32 v32, -2, v32"); A("v_min_u32 v33, -2, v33")
    A("s_lshl_b32 s68, s70, 2"); A("s_add_u32 s68, s68, s3")
    A("s_lshl_b32 s69, s68, 2"); A("s_add_u32 s69, s69, s73"); A("s_lshl_b32 s69, s69, 3"); A("s_add_u32 s69, s69, s72")
    A("s_lshl_b32 s69, s69, 8"); A(f"s_add_u32 s69, s69, {O_OFF}")
    A("buffer_store_dword v34, v12, s[52:55], s69 offen sc1")
    A("s_lshl_b32 s69, s68, 3"); A("s_add_u32 s69, s69, s72"); A("s_lshl_b32 s69, s69, 2"); A("s_add_u32 s69, s69, s73")
    A("s_lshl_b32 s69, s69, 3"); A(f"s_add_u32 s69, s69, {ML_OFF}")
    A("s_mov_b64 exec, 1")
    A("buffer_store_dwordx2 v[32:33], v3, s[52:55], s69 offen sc1")
    A("s_mov_b64 exec, -1")
    g.stamp(5)
    A("s_waitcnt vmcnt(0)")
    g.flag_add(F_WO, 3, 4)
    A("v_lshrrev_b32 v16, 2, v5"); A("v_lshlrev_b32 v16, 9, v16")
    A("v_lshl_add_u32 v16, v6, 12, v16")
    A("v_and_b32 v17, 3, v2"); A("v_lshl_add_u32 v16, v17, 3, v16")
    A("s_and_b32 s68, s3, 1"); A("s_lshl_b32 s68, s68, 8"); A("v_add_u32 v16, s68, v16")
    A("v_lshlrev_b32 v17, 8, v5"); A("v_lshl_add_u32 v17, v6, 4, v17")
    A("s_lshl_b32 s76, s74, 13"); A("s_lshr_b32 s69, s3, 1"); A("s_lshl_b32 s69, s69, 12"); A("s_add_u32 s76, s76, s69")
    A("s_lshr_b32 s68, s68, 1"); A("s_add_u32 s76, s76, s68"); A(f"s_add_u32 s76, s76, {O_OFF}")
    A("v_and_b32 v18, 31, v2"); A("v_lshlrev_b32 v18, 3, v18")
    A("s_lshl_b32 s77, s74, 8"); A(f"s_add_u32 s77, s77, {ML_OFF}")
    A("v_and_b32 v19, 1, v6"); A("v_lshlrev_b32 v19, 4, v19"); A("v_lshrrev_b32 v20, 1, v6"); A("v_add_u32 v19, v19, v20")
    A("s_lshr_b32 s69, s3, 1"); A("s_lshl_b32 s69, s69, 1"); A("v_add_u32 v19, s69, v19"); A("v_lshlrev_b32 v19, 2, v19")
    g.flag_wait(F_WO, 4, 3, 10, sleep=False)
    BF = 32
    for nt in range(4):
        for t in range(2):
            r = BF + (nt*2 + t)*4
            off = WOT + t*128 + nt*32
            A(f"ds_read_b64_tr_b16 v[{r}:{r+1}], v16 offset:{off}")
            A(f"ds_read_b64_tr_b16 v[{r+2}:{r+3}], v16 offset:{off + 2048}")
    g.flag_wait(F_GO, 1, 3, 10, sleep=False)
    AF = 64
    g.poll([f"buffer_load_dwordx4 v[{AF}:{AF+3}], v17, s[52:55], s76 offen sc1",
            f"buffer_load_dwordx4 v[{AF+4}:{AF+7}], v17, s[52:55], s76 offen offset:64 sc1",
            f"buffer_load_dwordx2 v[72:73], v18, s[52:55], s77 offen sc1"],
           list(range(AF, AF+10)), 10)
    g.stamp(6)
    DW = 80
    for nt in range(4):
        for t in range(2):
            r = BF + (nt*2 + t)*4
            cc = "0" if t == 0 else f"v[{DW+4*nt}:{DW+4*nt+3}]"
            A(f"v_mfma_f32_16x16x32_bf16 v[{DW+4*nt}:{DW+4*nt+3}], v[{AF+4*t}:{AF+4*t+3}], v[{r}:{r+3}], {cc}")
    A("v_max_f32_dpp v74, v72, v72 quad_perm:[1,0,3,2] row_mask:0xf bank_mask:0xf")
    nop(2)
    A("v_max_f32_dpp v74, v74, v74 quad_perm:[2,3,0,1] row_mask:0xf bank_mask:0xf")
    A("v_sub_f32 v75, v72, v74")
    A("v_exp_f32 v75, v75")
    nop(1)
    A("v_mul_f32 v76, v75, v73")
    nop(2)
    A("v_add_f32_dpp v76, v76, v76 quad_perm:[1,0,3,2] row_mask:0xf bank_mask:0xf")
    nop(2)
    A("v_add_f32_dpp v76, v76, v76 quad_perm:[2,3,0,1] row_mask:0xf bank_mask:0xf")
    A("v_rcp_f32 v76, v76")
    nop(1)
    A("v_mul_f32 v75, v75, v76")
    for r in range(4):
        A(f"ds_bpermute_b32 v{96+r}, v19, v75 offset:{16*r}")
    A("v_lshrrev_b32 v20, 1, v6"); A("s_lshl_b32 s68, s3, 1"); A("v_add_u32 v20, s68, v20"); A("v_lshlrev_b32 v20, 11, v20")
    A("v_lshl_add_u32 v20, v5, 5, v20"); A("v_and_b32 v21, 1, v6"); A("v_lshl_add_u32 v20, v21, 4, v20")
    A("s_waitcnt lgkmcnt(0)")
    for nt in range(4):
        for r in range(4):
            A(f"v_mul_f32 v{DW+4*nt+r}, v{DW+4*nt+r}, v{96+r}")
    for nt in range(4):
        A(f"ds_write_b128 v20, v[{DW+4*nt}:{DW+4*nt+3}] offset:{RED + nt*512}")
    g.flag_add(F_RED, 3, 4)
    A("v_and_b32 v20, 31, v2"); A("v_lshlrev_b32 v20, 4, v20"); A("s_lshl_b32 s68, s3, 9"); A("v_add_u32 v21, s68, v20")
    A("v_lshrrev_b32 v22, 5, v2"); A("v_lshl_add_u32 v21, v22, 13, v21")
    g.flag_wait(F_RED, 4, 3, 10, sleep=False)
    for p in range(4):
        A(f"ds_read_b128 v[{32+4*p}:{35+4*p}], v21 offset:{RED + p*2048}")
    A("s_waitcnt lgkmcnt(0)")
    for r in range(4):
        A(f"v_add_f32 v{32+r}, v{32+r}, v{36+r}"); A(f"v_add_f32 v{40+r}, v{40+r}, v{44+r}")
    for r in range(4):
        A(f"v_add_f32 v{32+r}, v{32+r}, v{40+r}")
    for r in range(4):
        A(f"v_mov_b32 v{36+r}, v{32+r}")
    nop(2)
    for r in range(4):
        A(f"v_permlane32_swap_b32 v{32+r}, v{36+r}")
    nop(1)
    for r in range(4):
        A(f"v_add_f32 v{32+r}, v{32+r}, v{36+r}")
    for r in range(4):
        A(f"v_min_u32 v{32+r}, -2, v{32+r}")
    A("s_lshl_b32 s69, s74, 14"); A("s_lshl_b32 s76, s75, 11"); A("s_add_u32 s69, s69, s76"); A("s_add_u32 s69, s69, s68")
    A(f"s_add_u32 s69, s69, {SP_OFF}")
    A("s_mov_b32 exec_hi, 0")
    A("buffer_store_dwordx4 v[32:35], v20, s[52:55], s69 offen sc1")
    A("s_mov_b64 exec, -1")
    g.stamp(7)
    A("s_cmp_lg_u32 s3, 0"); A("s_cbranch_scc1 L_fin")
    A("v_and_b32 v16, 1, v2"); A("v_lshlrev_b32 v16, 12, v16")
    A("v_bfe_u32 v17, v2, 1, 1"); A("v_lshl_add_u32 v16, v17, 1, v16")
    A("s_lshl_b32 s76, s2, 2")
    for r in range(4):
        A(f"buffer_load_ushort v{100+r}, v16, s[56:59], s76 offen offset:{r*1024}")
    A("v_lshrrev_b32 v17, 2, v2"); A("v_lshlrev_b32 v17, 14, v17"); A("v_and_b32 v18, 3, v2"); A("v_lshl_add_u32 v17, v18, 4, v17")
    A("s_lshl_b32 s77, s2, 6"); A(f"s_add_u32 s77, s77, {SP_OFF}"); A(f"s_add_u32 s78, s77, {16*16384}")
    g.poll(["buffer_load_dwordx4 v[32:35], v17, s[52:55], s77 offen sc1",
            "buffer_load_dwordx4 v[36:39], v17, s[52:55], s78 offen sc1"], list(range(32, 40)), 10)
    g.stamp(8)
    def reduce_p(base):
        for r in range(4):
            A(f"v_add_f32 v{base+r}, v{base+r}, v{base+4+r}")
        for mod in ("row_ror:4", "row_ror:8"):
            nop(1)
            for r in range(4):
                A(f"v_add_f32_dpp v{base+r}, v{base+r}, v{base+r} {mod} row_mask:0xf bank_mask:0xf")
        g.xrow("v_add_f32", [base+r for r in range(4)], [base+4+r for r in range(4)])
    reduce_p(32)
    g.flag_wait(F_G, 1, 3, 10, sleep=False)
    A("v_lshlrev_b32 v18, 4, v18")
    A(f"ds_read_b128 v[40:43], v18 offset:{GL}")
    A("v_cvt_pk_bf16_f32 v36, v32, v33"); A("v_cvt_pk_bf16_f32 v37, v34, v35")
    A("v_lshlrev_b32 v32, 16, v36"); A("v_and_b32 v33, 0xffff0000, v36")
    A("v_lshlrev_b32 v34, 16, v37"); A("v_and_b32 v35, 0xffff0000, v37")
    A("s_waitcnt lgkmcnt(0)")
    for r in range(4):
        A(f"v_mul_f32 v{32+r}, v{32+r}, v{40+r}")
    A("v_cvt_pk_bf16_f32 v36, v32, v33"); A("v_cvt_pk_bf16_f32 v37, v34, v35")
    A("v_lshlrev_b32 v32, 16, v36"); A("v_and_b32 v33, 0xffff0000, v36")
    A("v_lshlrev_b32 v34, 16, v37"); A("v_and_b32 v35, 0xffff0000, v37")
    for r in range(4):
        A(f"v_lshlrev_b32 v{100+r}, 16, v{100+r}")
    for r in range(4):
        A(f"v_add_f32 v{32+r}, v{32+r}, v{100+r}")
    A("v_cvt_pk_bf16_f32 v36, v32, v33"); A("v_cvt_pk_bf16_f32 v37, v34, v35")
    A("s_mov_b64 exec, 15")
    A("buffer_store_short v36, v16, s[60:63], s76 offen")
    A("buffer_store_short_d16_hi v36, v16, s[60:63], s76 offen offset:1024")
    A("buffer_store_short v37, v16, s[60:63], s76 offen offset:2048")
    A("buffer_store_short_d16_hi v37, v16, s[60:63], s76 offen offset:3072")
    A("s_mov_b64 exec, -1")
    g.stamp(9)
    A("s_branch L_fin")

    lab("L_G")
    A("s_setprio 3")
    A("v_and_b32 v5, 15, v2")
    A("v_lshrrev_b32 v6, 4, v2")
    A("v_lshlrev_b32 v7, 4, v2")
    A("s_cmp_ge_u32 s3, 6"); A("s_cbranch_scc1 L_SX")
    A("s_cmp_ge_u32 s71, 30"); A("s_cbranch_scc1 L_bar_down")
    A("s_sub_u32 s77, s3, 4")
    A("s_lshl_b32 s68, s77, 12")
    XR = 16
    for r in range(4):
        A(f"buffer_load_dwordx4 v[{XR+4*r}:{XR+4*r+3}], v7, s[56:59], s68 offen offset:{r*1024}")
    A("s_cmp_ge_u32 s71, 16"); A("s_cbranch_scc1 L_roleB")
    A("s_mov_b32 s36, s10"); A("s_mov_b32 s37, s11"); A("s_mov_b32 s38, 4194304")
    A("s_mov_b32 s40, s10"); A("s_mov_b32 s41, s11"); A("s_mov_b32 s42, 4194304")
    A("s_lshl_b32 s76, s70, 10"); A("s_lshl_b32 s68, s71, 6"); A("s_add_u32 s76, s76, s68")
    A("s_add_u32 s78, s76, 32")
    A("s_movk_i32 s69, 8192")
    A("s_branch L_roleJ")
    lab("L_roleB")
    A("s_mov_b32 s36, s16"); A("s_mov_b32 s37, s17"); A("s_mov_b32 s38, 1835008")
    A("s_mov_b32 s40, s18"); A("s_mov_b32 s41, s19"); A("s_mov_b32 s42, 1835008")
    A("s_mul_i32 s76, s70, 14"); A("s_add_u32 s76, s76, s71"); A("s_sub_u32 s76, s76, 16"); A("s_lshl_b32 s76, s76, 5")
    A("s_mov_b32 s78, s76")
    A("s_movk_i32 s69, 3584")
    lab("L_roleJ")
    A("v_lshrrev_b32 v8, 1, v2"); A("v_mul_lo_u32 v8, v8, s69"); A("v_and_b32 v9, 1, v2"); A("v_lshl_add_u32 v8, v9, 4, v8")
    A("s_lshl_b32 s68, s77, 8"); A("s_mul_i32 s68, s68, s69")
    A("s_add_u32 s100, s76, s68"); A("s_add_u32 s101, s78, s68")
    A("s_lshl_b32 s69, s69, 5")
    A("s_lshl_b32 s68, s77, 14"); A(f"s_add_u32 s68, s68, {W1T}")
    for i in range(8):
        A("s_mov_b32 m0, s68")
        A("s_add_u32 s68, s68, 8192")
        A(f"buffer_load_dwordx4 v8, s[36:39], s100 offen {g.ntw} lds")
        A("s_mov_b32 m0, s68")
        A("s_sub_u32 s68, s68, 7168")
        A(f"buffer_load_dwordx4 v8, s[40:43], s101 offen {g.ntw} lds")
        A("s_add_u32 s100, s100, s69"); A("s_add_u32 s101, s101, s69")
    A("s_barrier")
    g.stamp(1)
    A("s_waitcnt vmcnt(16)")
    XF = 32
    for r in range(4):
        for e in range(4):
            A(f"v_lshlrev_b32 v{XF+8*r+2*e}, 16, v{XR+4*r+e}")
            A(f"v_and_b32 v{XF+8*r+2*e+1}, 0xffff0000, v{XR+4*r+e}")
    SM = 64
    for r in range(4):
        A(f"v_add_f32 v{SM+r}, v{XF+8*r}, v{XF+8*r+1}")
    for e in range(2, 8):
        for r in range(4):
            A(f"v_add_f32 v{SM+r}, v{SM+r}, v{XF+8*r+e}")
    g.allreduce64("v_add_f32", [SM+r for r in range(4)], [SM+4+r for r in range(4)])
    A(f"s_mov_b32 s68, 0x{f32bits(1.0/512):08x}")
    for r in range(4):
        A(f"v_mul_f32 v{SM+r}, s68, v{SM+r}")
    VS = 72
    for e in range(8):
        for r in range(4):
            A(f"v_sub_f32 v{80+r}, v{XF+8*r+e}, v{SM+r}")
        for r in range(4):
            if e == 0:
                A(f"v_mul_f32 v{VS+r}, v{80+r}, v{80+r}")
            else:
                A(f"v_fmac_f32 v{VS+r}, v{80+r}, v{80+r}")
    g.allreduce64("v_add_f32", [VS+r for r in range(4)], [VS+4+r for r in range(4)])
    for r in range(4):
        A(f"v_mul_f32 v{VS+r}, s68, v{VS+r}")
    def rbf(regs):
        for r in regs:
            A(f"v_cvt_pk_bf16_f32 v{r}, v{r}, v{r}")
        for r in regs:
            A(f"v_and_b32 v{r}, 0xffff0000, v{r}")
    rbf([SM+r for r in range(4)] + [VS+r for r in range(4)])
    for r in range(4):
        A(f"v_add_f32 v{VS+r}, 0x{f32bits(1e-5):08x}, v{VS+r}")
    rbf([VS+r for r in range(4)])
    for r in range(4):
        A(f"v_sqrt_f32 v{VS+r}, v{VS+r}")
    nop(1)
    rbf([VS+r for r in range(4)])
    for r in range(4):
        A(f"v_rcp_f32 v{VS+r}, v{VS+r}")
    for r in range(4):
        for e in range(8):
            A(f"v_sub_f32 v{XF+8*r+e}, v{XF+8*r+e}, v{SM+r}")
    for r in range(4):
        for e in range(4):
            A(f"v_cvt_pk_bf16_f32 v{XR+4*r+e}, v{XF+8*r+2*e}, v{XF+8*r+2*e+1}")
    for r in range(4):
        for e in range(4):
            A(f"v_lshlrev_b32 v{XF+8*r+2*e}, 16, v{XR+4*r+e}")
            A(f"v_and_b32 v{XF+8*r+2*e+1}, 0xffff0000, v{XR+4*r+e}")
    for r in range(4):
        for e in range(8):
            A(f"v_mul_f32 v{XF+8*r+e}, v{XF+8*r+e}, v{VS+r}")
    for r in range(4):
        for e in range(4):
            A(f"v_cvt_pk_bf16_f32 v{XR+4*r+e}, v{XF+8*r+2*e}, v{XF+8*r+2*e+1}")
    A(f"s_mul_i32 s68, s77, {4*XNP}"); A("v_add_u32 v9, s68, v7")
    for r in range(4):
        A(f"ds_write_b128 v9, v[{XR+4*r}:{XR+4*r+3}] offset:{XN + r*XNP}")
    g.flag_add(F_XN, 3, 4)
    g.stamp(2)
    A("v_and_b32 v9, 7, v2"); A(f"v_mul_u32_u24 v9, {XNP}, v9"); A("v_lshl_add_u32 v9, v6, 4, v9")
    A("s_lshl_b32 s68, s77, 9"); A("v_add_u32 v9, s68, v9")
    A("v_lshlrev_b32 v10, 8, v6"); A("v_lshl_add_u32 v10, v5, 3, v10")
    A("s_lshl_b32 s68, s77, 14"); A("v_add_u32 v10, s68, v10")
    g.flag_wait(F_XN, 2, 3, 11)
    XA = 32
    for t in range(8):
        A(f"ds_read_b128 v[{XA+4*t}:{XA+4*t+3}], v9 offset:{XN + t*64}")
    A("s_waitcnt vmcnt(0)")
    g.stamp(3)
    WB = 64
    for sub in range(2):
        for t in range(8):
            r = WB + (sub*8 + t)*4
            off = W1T + sub*8192 + t*1024
            A(f"ds_read_b64_tr_b16 v[{r}:{r+1}], v10 offset:{off}")
            A(f"ds_read_b64_tr_b16 v[{r+2}:{r+3}], v10 offset:{off+128}")
        A("s_waitcnt lgkmcnt(0)")
    for t in range(8):
        for sub in range(2):
            r = WB + (sub*8 + t)*4
            d = 128 + sub*4
            cc = "0" if t == 0 else f"v[{d}:{d+3}]"
            A(f"v_mfma_f32_16x16x32_bf16 v[{d}:{d+3}], v[{XA+4*t}:{XA+4*t+3}], v[{r}:{r+3}], {cc}")
    A("v_lshlrev_b32 v11, 9, v6"); A("v_lshl_add_u32 v11, v5, 2, v11"); A("s_lshl_b32 s68, s77, 10"); A("v_add_u32 v11, s68, v11")
    nop(6)
    A("s_mov_b32 exec_hi, 0")
    for sub in range(2):
        for r in range(4):
            A(f"ds_write_b32 v11, v{128+sub*4+r} offset:{D1 + r*128 + sub*64}")
    A("s_mov_b64 exec, -1")
    g.flag_add(F_D1, 3, 4)
    A("s_cmp_lg_u32 s3, 4"); A("s_cbranch_scc1 L_down")
    g.flag_wait(F_D1, 2, 3, 11)
    g.flag_wait(F_CLR, 1, 3, 11)
    A("s_cmp_ge_u32 s71, 16"); A("s_cbranch_scc1 L_finB")
    A("v_and_b32 v11, 31, v2"); A("v_lshlrev_b32 v12, 5, v11")
    for gw in range(2):
        A(f"ds_read_b128 v[{32+8*gw}:{35+8*gw}], v12 offset:{D1 + gw*1024}")
        A(f"ds_read_b128 v[{36+8*gw}:{39+8*gw}], v12 offset:{D1 + gw*1024 + 16}")
    A("s_waitcnt lgkmcnt(0)")
    for e in range(8):
        A(f"v_add_f32 v{32+e}, v{32+e}, v{40+e}")
    for e in range(4):
        A(f"v_cvt_pk_bf16_f32 v{48+e}, v{32+2*e}, v{33+2*e}")
    for e in range(4):
        A(f"v_min_u32 v{48+e}, -2, v{48+e}")
    A("v_lshrrev_b32 v12, 2, v11"); A("v_lshlrev_b32 v12, 13, v12"); A("v_and_b32 v13, 3, v2"); A("v_lshl_add_u32 v12, v13, 4, v12")
    A("s_mov_b32 exec_hi, 0")
    A(f"buffer_store_dwordx4 v[48:51], v12, s[52:55], s76 offen offset:{Q_OFF} sc1")
    A("s_mov_b64 exec, -1")
    g.stamp(4)
    A("s_branch L_down")
    lab("L_finB")
    A("v_lshrrev_b32 v11, 1, v5"); A("v_lshlrev_b32 v12, 7, v11"); A("v_and_b32 v13, 1, v2"); A("v_lshl_add_u32 v12, v13, 5, v12")
    for gw in range(2):
        for sub in range(2):
            r = 32 + gw*16 + sub*8
            A(f"ds_read_b128 v[{r}:{r+3}], v12 offset:{D1 + gw*1024 + sub*64}")
            A(f"ds_read_b128 v[{r+4}:{r+7}], v12 offset:{D1 + gw*1024 + sub*64 + 16}")
    A("s_waitcnt lgkmcnt(0)")
    for e in range(16):
        A(f"v_add_f32 v{32+e}, v{32+e}, v{48+e}")
    rbf(list(range(32, 48)))
    A(f"s_mov_b32 s68, 0x{f32bits(-1.4426950408889634):08x}")
    for e in range(8):
        A(f"v_mul_f32 v{48+e}, s68, v{32+e}")
    for e in range(8):
        A(f"v_exp_f32 v{48+e}, v{48+e}")
    nop(1)
    for e in range(8):
        A(f"v_add_f32 v{48+e}, 1.0, v{48+e}")
    for e in range(8):
        A(f"v_rcp_f32 v{48+e}, v{48+e}")
    nop(1)
    for e in range(8):
        A(f"v_mul_f32 v{32+e}, v{32+e}, v{48+e}")
    rbf(list(range(32, 40)))
    for e in range(8):
        A(f"v_mul_f32 v{32+e}, v{32+e}, v{40+e}")
    for e in range(4):
        A(f"v_cvt_pk_bf16_f32 v{48+e}, v{32+2*e}, v{33+2*e}")
    for e in range(4):
        A(f"v_min_u32 v{48+e}, -2, v{48+e}")
    A("v_mul_u32_u24 v12, 3584, v11"); A("v_lshl_add_u32 v12, v13, 4, v12")
    A(f"s_add_u32 s68, s76, {H_OFF}")
    A("s_mov_b64 exec, 0xffff")
    A("buffer_store_dwordx4 v[48:51], v12, s[52:55], s68 offen sc1")
    A("s_mov_b64 exec, -1")
    g.stamp(4)
    A("s_branch L_down")

    lab("L_SX")
    A("s_cmp_eq_u32 s3, 7"); A("s_cbranch_scc1 L_bar_down")
    for r in range(4):
        A(f"v_mov_b32 v{16+r}, -1")
    A("v_lshlrev_b32 v8, 13, v6"); A("v_lshl_add_u32 v8, v5, 4, v8")
    A("s_lshl_b32 s68, s70, 15"); A("s_lshl_b32 s69, s73, 11"); A("s_add_u32 s68, s68, s69")
    A("s_lshl_b32 s69, s72, 8"); A("s_add_u32 s68, s68, s69"); A(f"s_add_u32 s68, s68, {O_OFF}")
    A("buffer_store_dwordx4 v[16:19], v8, s[52:55], s68 offen sc1")
    A("s_lshl_b32 s68, s74, 14"); A("s_lshl_b32 s69, s75, 11"); A("s_add_u32 s68, s68, s69")
    A(f"s_add_u32 s69, s68, {SP_OFF}")
    A("buffer_store_dwordx4 v[16:19], v7, s[52:55], s69 offen sc1")
    A("buffer_store_dwordx4 v[16:19], v7, s[52:55], s69 offen offset:1024 sc1")
    A("s_cmp_ge_u32 s74, 28"); A("s_cbranch_scc1 L_nofpclr")
    A(f"s_add_u32 s69, s68, {FP_OFF}")
    A("buffer_store_dwordx4 v[16:19], v7, s[52:55], s69 offen sc1")
    A("buffer_store_dwordx4 v[16:19], v7, s[52:55], s69 offen offset:1024 sc1")
    lab("L_nofpclr")
    A("v_lshlrev_b32 v8, 8, v2")
    A("s_lshl_b32 s68, s70, 10"); A("s_lshl_b32 s69, s72, 5"); A("s_add_u32 s68, s68, s69")
    A("s_lshl_b32 s69, s73, 3"); A("s_add_u32 s68, s68, s69"); A(f"s_add_u32 s68, s68, {ML_OFF}")
    A("s_mov_b64 exec, 15")
    A("buffer_store_dwordx2 v[16:17], v8, s[52:55], s68 offen sc1")
    A("s_mov_b64 exec, -1")
    A("s_cmp_ge_u32 s71, 30"); A("s_cbranch_scc1 L_clrdone")
    A("s_cmp_ge_u32 s71, 16"); A("s_cbranch_scc1 L_clrB")
    A("v_lshrrev_b32 v8, 2, v2"); A("v_lshlrev_b32 v8, 13, v8"); A("v_and_b32 v9, 3, v2"); A("v_lshl_add_u32 v8, v9, 4, v8")
    A("s_lshl_b32 s68, s70, 10"); A("s_lshl_b32 s69, s71, 6"); A("s_add_u32 s68, s68, s69")
    A("s_mov_b32 exec_hi, 0")
    A(f"buffer_store_dwordx4 v[16:19], v8, s[52:55], s68 offen offset:{Q_OFF} sc1")
    A("s_mov_b64 exec, -1")
    A("s_branch L_clrdone")
    lab("L_clrB")
    A("v_lshrrev_b32 v8, 1, v2"); A("v_mul_u32_u24 v8, 3584, v8"); A("v_and_b32 v9, 1, v2"); A("v_lshl_add_u32 v8, v9, 4, v8")
    A("s_mul_i32 s68, s70, 14"); A("s_add_u32 s68, s68, s71"); A("s_sub_u32 s68, s68, 16"); A("s_lshl_b32 s68, s68, 5")
    A(f"s_add_u32 s68, s68, {H_OFF}")
    A("s_mov_b64 exec, 0xffff")
    A("buffer_store_dwordx4 v[16:19], v8, s[52:55], s68 offen sc1")
    A("s_mov_b64 exec, -1")
    lab("L_clrdone")
    A("s_lshl_b32 s76, s2, 7"); A(f"s_add_u32 s76, s76, {GO_OFF}")
    A("s_mov_b64 exec, 1")
    A("buffer_store_dword v16, v3, s[52:55], s76 offen sc1")
    A("s_mov_b64 exec, -1")
    A("s_barrier")
    A("s_waitcnt vmcnt(0)")
    g.stamp(1)
    A("s_mov_b64 exec, 1")
    A("buffer_store_byte v4, v3, s[64:67], s2 offen sc1")
    A("s_mov_b64 exec, -1")
    g.flag_add(F_CLR, 3, 4)
    A("s_cmp_lg_u32 s2, 0"); A("s_cbranch_scc1 L_gopoll")
    A("v_lshlrev_b32 v8, 2, v2")
    A("s_mov_b32 s79, 0x40000")
    A("s_mov_b32 s68, 0x01010101")
    lab("L_dbgpoll")
    A("buffer_load_dword v9, v8, s[64:67], 0 offen sc1")
    A("s_waitcnt vmcnt(0)")
    A("v_cmp_ne_u32 vcc, s68, v9")
    A("s_cmp_eq_u64 vcc, 0")
    A("s_cbranch_scc1 L_dbgdone")
    A("s_sub_u32 s79, s79, 1"); A("s_cmp_lg_u32 s79, 0"); A("s_cbranch_scc1 L_dbgpoll")
    lab("L_dbgdone")
    g.stamp(4)
    A("v_lshlrev_b32 v8, 7, v2")
    for i in range(4):
        A(f"s_mov_b32 s68, {GO_OFF + i*8192}")
        A("buffer_store_dword v4, v8, s[52:55], s68 offen sc1")
    lab("L_gopoll")
    g.poll(["buffer_load_dword v9, v3, s[52:55], s76 offen sc1"], [9, 9], 10)
    g.stamp(2)
    g.flag_add(F_GO, 3, 4)
    A("s_lshl_b32 s68, s72, 13"); A("s_lshl_b32 s69, s70, 10"); A("s_add_u32 s68, s68, s69")
    g.poll([f"buffer_load_dwordx4 v[16:19], v7, s[52:55], s68 offen offset:{Q_OFF} sc1"], [16, 17, 18, 19], 10)
    A(f"ds_write_b128 v7, v[16:19] offset:{QL}")
    g.flag_add(F_Q, 3, 4)
    g.stamp(3)

    A("s_branch L_down")
    lab("L_bar_down")
    A("s_barrier")
    lab("L_down")
    A("s_cmp_ge_u32 s74, 28"); A("s_cbranch_scc1 L_fgather")
    A("s_sub_u32 s77, s3, 4")
    A("v_lshrrev_b32 v8, 1, v2"); A("v_lshlrev_b32 v8, 10, v8"); A("v_and_b32 v9, 1, v2"); A("v_lshl_add_u32 v8, v9, 4, v8")
    A("s_lshl_b32 s68, s74, 16"); A("s_lshl_b32 s69, s75, 7"); A("s_add_u32 s68, s68, s69")
    A("s_lshl_b32 s69, s77, 5"); A("s_add_u32 s68, s68, s69")
    A("s_lshl_b32 s69, s77, 11"); A(f"s_add_u32 s69, s69, {WDT}")
    g.flag_wait(F_GO, 1, 3, 11)
    A("s_mov_b32 m0, s69")
    A("s_add_u32 s69, s69, 1024")
    A(f"buffer_load_dwordx4 v8, s[48:51], s68 offen {g.ntw} lds")
    A("s_mov_b32 m0, s69")
    A("s_add_u32 s68, s68, 32768")
    A(f"buffer_load_dwordx4 v8, s[48:51], s68 offen {g.ntw} lds")
    A("v_and_b32 v9, 7, v2"); A("v_mul_u32_u24 v9, 3584, v9"); A("v_lshl_add_u32 v9, v6, 4, v9")
    A("s_lshl_b32 s68, s74, 7"); A(f"s_add_u32 s68, s68, {H_OFF}")
    g.poll(["buffer_load_dwordx4 v[16:19], v9, s[52:55], s68 offen sc1",
            "buffer_load_dwordx4 v[20:23], v9, s[52:55], s68 offen offset:64 sc1"], list(range(16, 24)), 10)
    g.stamp(5)
    A("v_lshlrev_b32 v10, 8, v6"); A("v_lshl_add_u32 v10, v5, 3, v10"); A("s_lshl_b32 s69, s77, 11"); A("v_add_u32 v10, s69, v10")
    for t in range(2):
        A(f"ds_read_b64_tr_b16 v[{24+4*t}:{25+4*t}], v10 offset:{WDT + t*1024}")
        A(f"ds_read_b64_tr_b16 v[{26+4*t}:{27+4*t}], v10 offset:{WDT + t*1024 + 128}")
    A("s_waitcnt lgkmcnt(0)")
    A("v_mfma_f32_16x16x32_bf16 v[32:35], v[16:19], v[24:27], 0")
    A("v_mfma_f32_16x16x32_bf16 v[32:35], v[20:23], v[28:31], v[32:35]")
    A("v_lshlrev_b32 v11, 5, v5"); A("v_lshl_add_u32 v11, v6, 4, v11")
    A("s_lshl_b32 s68, s74, 14"); A("s_lshl_b32 s69, s75, 11"); A("s_add_u32 s68, s68, s69")
    A("s_lshl_b32 s69, s77, 9"); A("s_add_u32 s68, s68, s69"); A(f"s_add_u32 s68, s68, {FP_OFF}")
    nop(2)
    for r in range(4):
        A(f"v_min_u32 v{32+r}, -2, v{32+r}")
    A("s_mov_b32 exec_hi, 0")
    A("buffer_store_dwordx4 v[32:35], v11, s[52:55], s68 offen sc1")
    A("s_mov_b64 exec, -1")
    g.stamp(6)
    lab("L_fgather")
    A("s_cmp_lg_u32 s3, 7"); A("s_cbranch_scc1 L_fin")
    g.flag_wait(F_GO, 1, 3, 11)
    A("v_lshrrev_b32 v17, 2, v2"); A("v_and_b32 v18, 3, v2")
    A("v_min_u32 v19, 11, v17")
    A("v_lshlrev_b32 v19, 14, v19"); A("v_lshl_add_u32 v19, v18, 4, v19")
    A("v_lshlrev_b32 v17, 14, v17"); A("v_lshl_add_u32 v17, v18, 4, v17")
    A("s_lshl_b32 s77, s2, 6"); A(f"s_add_u32 s77, s77, {FP_OFF}"); A(f"s_add_u32 s78, s77, {16*16384}")
    g.poll(["buffer_load_dwordx4 v[32:35], v17, s[52:55], s77 offen sc1",
            "buffer_load_dwordx4 v[36:39], v19, s[52:55], s78 offen sc1"], list(range(32, 40)), 10)
    g.stamp(7)
    A("v_cmp_gt_u32 vcc, 48, v2")
    nop(2)
    for r in range(4):
        A(f"v_cndmask_b32 v{36+r}, 0, v{36+r}, vcc")
    reduce_p(32)
    rbf([32, 33, 34, 35])
    A(f"s_mov_b32 s68, 0x{f32bits(-1.4426950408889634):08x}")
    for r in range(4):
        A(f"v_mul_f32 v{36+r}, s68, v{32+r}")
    for r in range(4):
        A(f"v_exp_f32 v{36+r}, v{36+r}")
    nop(1)
    for r in range(4):
        A(f"v_add_f32 v{36+r}, 1.0, v{36+r}")
    for r in range(4):
        A(f"v_rcp_f32 v{36+r}, v{36+r}")
    nop(1)
    for r in range(4):
        A(f"v_mul_f32 v{32+r}, v{32+r}, v{36+r}")
    rbf([32, 33, 34, 35])
    A("v_lshlrev_b32 v18, 4, v18")
    A("s_mov_b64 exec, 15")
    A(f"ds_write_b128 v18, v[32:35] offset:{GL}")
    A("s_mov_b64 exec, -1")
    g.flag_add(F_G, 3, 4)
    g.stamp(8)
    lab("L_fin")
    g.stamp_flush()
    lab("L_end")
    A("s_endpgm")
    tail = ['.section .rodata,"a"', ".p2align 6", f".amdhsa_kernel {KN}",
            "  .amdhsa_next_free_vgpr 192", "  .amdhsa_next_free_sgpr 102", "  .amdhsa_accum_offset 192",
            "  .amdhsa_group_segment_fixed_size 0", "  .amdhsa_kernarg_size 96", "  .amdhsa_user_sgpr_count 2",
            "  .amdhsa_user_sgpr_kernarg_segment_ptr 1", "  .amdhsa_system_sgpr_workgroup_id_x 1",
            "  .amdhsa_float_denorm_mode_32 3",
            ".end_amdhsa_kernel"]
    return "\n".join(hdr + g.L + tail) + "\n"

if __name__ == "__main__":
    out = sys.argv[1] if len(sys.argv) > 1 else "recurrent_scan__sliding_block_cached__swiglu_ffn__decode.s"
    stamps = "--stamps" in sys.argv
    kw = {}
    for a in sys.argv[2:]:
        if "=" in a:
            k, v = a.split("=", 1); kw[k] = v
    open(out, "w").write(build(stamps=stamps, **kw))
```

```python
import sys, struct
from gen import G, f32bits, KN

QP_OFF = 0x00000
GP_OFF = 0x80000
O_OFF = 0xF0000
ML_OFF = 0x1C0000
SP_OFF = 0x132000
FP_OFF = 0x172000
FL_OFF = 0x1B0000
EP_OFF = 0x1B8000
TAGMUL = 0x9E3779B1
STAMP_OFF = 0x1000000
F_XN, F_Q, F_W, F_MX, F_ML, F_K, F_V0, F_V1, F_PUB, F_K2, F_WO, F_WT, F_EP = 0, 4, 8, 12, 16, 20, 24, 28, 32, 36, 40, 44, 60
F_TOK = F_V1
WT = 2432
MX = 64; LL = 128; GL = 192
XN = 256; XNP = 272
QL = 2560
PL = 3584; PLP = 528
WOT = 6144
WDT = 22528
W1T = 30720
RED = W1T
VT = 63488
LDS_BYTES = 129024
LOG2E = 1.4426950408889634

def build(stamps=False, ntkv="nt", ntw="nt", thr=8, vthr=48, kdelay=0, vdelay=1, qsleep=2, cut=0, sample=0, dyn=1, vthr2=40, noclr=0, nost=0, kq=12, kv=16, wolate=0, dbgspan=0, mlchunk=6, xtrig=0, osleep=0, mlsleep=2, only=''):
    kq = int(kq); kv = int(kv); wolate = int(wolate)
    g = G(stamps, ntkv, ntw, thr)
    g.nwaves = 9
    g.only = [int(c) for c in only] if only else None
    vthr = int(vthr); kdelay = int(kdelay); vdelay = int(vdelay); qsleep = int(qsleep); cut = int(cut)
    A = g.A; lab = g.lab; nop = g.nop
    hdr = [f"; @launch grid=(256,1,1) block=(576,1,1) lds={LDS_BYTES}",
           '.amdgcn_target "amdgcn-amd-amdhsa--gfx950"', ".text", f".globl {KN}", ".p2align 8",
           f".type {KN},@function", f"{KN}:"]
    def rbf(regs):
        for r in regs: A(f"v_cvt_pk_bf16_f32 v{r}, v{r}, v{r}")
        for r in regs: A(f"v_and_b32 v{r}, 0xffff0000, v{r}")
    def unpack(dst, srcs):
        for e, sr in enumerate(srcs):
            A(f"v_lshlrev_b32 v{dst+2*e}, 16, v{sr}")
            A(f"v_and_b32 v{dst+2*e+1}, 0xffff0000, v{sr}")
    def silu(regs, tmp):
        A(f"s_mov_b32 s68, 0x{f32bits(-LOG2E):08x}")
        for i, r in enumerate(regs): A(f"v_mul_f32 v{tmp+i}, s68, v{r}")
        for i, r in enumerate(regs): A(f"v_exp_f32 v{tmp+i}, v{tmp+i}")
        nop(1)
        for i, r in enumerate(regs): A(f"v_add_f32 v{tmp+i}, 1.0, v{tmp+i}")
        for i, r in enumerate(regs): A(f"v_rcp_f32 v{tmp+i}, v{tmp+i}")
        nop(1)
        for i, r in enumerate(regs): A(f"v_mul_f32 v{r}, v{r}, v{tmp+i}")
    def exec_mask(m):
        A(f"s_mov_b32 exec_lo, 0x{m:08x}"); A(f"s_mov_b32 exec_hi, 0x{m:08x}")
    def tagpoll(loads, quads, vt, sleep):
        l = g.newlab("TP"); d = g.newlab("TD")
        A("s_mov_b32 s15, 0x40000")
        lab(l)
        for s_ in loads: A(s_)
        A("s_waitcnt vmcnt(0)")
        first = True
        for q in quads:
            if first:
                A(f"v_xor_b32 v{vt}, s4, v{q+1}"); first = False
            else:
                A(f"v_xor_b32 v{vt+1}, s4, v{q+1}"); A(f"v_or_b32 v{vt}, v{vt}, v{vt+1}")
            A(f"v_xor_b32 v{vt+1}, s5, v{q+3}"); A(f"v_or_b32 v{vt}, v{vt}, v{vt+1}")
        A(f"v_cmp_ne_u32 vcc, 0, v{vt}")
        A("s_and_b64 exec, exec, vcc"); A(f"s_cbranch_scc0 {d}")
        if sleep: A(f"s_sleep {sleep}")
        A("s_sub_u32 s15, s15, 1"); A("s_cmp_lg_u32 s15, 0"); A(f"s_cbranch_scc1 {l}")
        lab(d)
        A("s_mov_b64 exec, -1")
    A("s_cmp_ge_u32 s2, 256"); A("s_cbranch_scc1 L_end")
    A("s_load_dwordx16 s[4:19], s[0:1], 0")
    A("s_load_dwordx8 s[20:27], s[0:1], 64")
    g.stamp(0)
    if int(dbgspan): A("s_memrealtime s[98:99]")
    A("v_lshrrev_b32 v1, 6, v0")
    A("v_and_b32 v2, 63, v0")
    A("v_readfirstlane_b32 s3, v1")
    A("v_mov_b32 v3, 0"); A("v_mov_b32 v4, 1")
    A("v_and_b32 v5, 15, v2"); A("v_lshrrev_b32 v6, 4, v2")
    for d, n in ((28, 67108864), (32, 67108864), (44, 4194304), (48, 1835008), (52, 268435456), (56, 8192), (60, 8192)):
        A(f"s_mov_b32 s{d+2}, {n}"); A(f"s_mov_b32 s{d+3}, 0x00020000")
    A("s_mov_b32 s39, 0x00020000")
    A("s_and_b32 s70, s2, 7")
    A("s_lshr_b32 s71, s2, 3")
    A("s_lshr_b32 s72, s71, 2")
    A("s_and_b32 s73, s71, 3")
    A("s_lshl_b32 s74, s70, 2"); A("s_lshr_b32 s68, s71, 3"); A("s_add_u32 s74, s74, s68")
    A("s_and_b32 s75, s71, 7")
    A("s_lshl_b32 s64, s72, 3"); A("s_add_u32 s64, s64, s70"); A("s_lshl_b32 s64, s64, 20")
    A("s_lshl_b32 s68, s73, 16"); A("s_add_u32 s64, s64, s68"); A(f"s_add_u32 s64, s64, {3072*256}")
    A("s_cmp_ge_u32 s3, 4"); A("s_cbranch_scc1 L_H")

    KR = 16; QF = 80; SR = 96; PP = 112; ACC = 120
    PBF = 16
    VF = 48
    A("s_lshl_b32 s68, s3, 14"); A("s_add_u32 s76, s64, s68")
    for i in range(1, 4):
        A(f"s_add_u32 s{76+i}, s76, {i*4096}")
    A("v_lshlrev_b32 v7, 8, v5"); A("v_lshl_add_u32 v7, v6, 4, v7")
    A("s_waitcnt lgkmcnt(0)")
    for d, b in ((28, 6), (52, 26), (56, 4), (60, 22)):
        A(f"s_mov_b32 s{d}, s{b}"); A(f"s_mov_b32 s{d+1}, s{b+1}")
    A("s_barrier")
    if kdelay:
        g.flag_wait(F_W, 2, 3, 10)
    n = 0
    for T in range(4):
        for t in range(4):
            r = KR + (T*4 + t)*4
            if g.thr and n >= g.thr: A(f"s_waitcnt vmcnt({g.thr-1})")
            A(f"buffer_load_dwordx4 v[{r}:{r+3}], v7, s[28:31], s{76+T} offen offset:{t*64} {g.ntkv}"); n += 1
            if n == kv: g.flag_add(F_K2, 3, 4)
            if n == kq: g.flag_add(F_K, 3, 4)
    g.stamp(1)
    if cut:
        A("s_waitcnt vmcnt(0)"); g.stamp(2); A("s_branch L_fin")
    A(f"s_mov_b32 s78, 0x{f32bits(LOG2E * (128 ** -0.5)):08x}")
    A("v_and_b32 v11, 3, v2")
    A("v_lshlrev_b32 v12, 8, v11"); A("v_lshl_add_u32 v12, v6, 4, v12")
    A("v_lshlrev_b32 v13, 4, v11")
    A("s_lshl_b32 s68, s3, 2"); A("v_add_u32 v14, s68, v13")
    A(f"v_mul_u32_u24 v8, {PLP}, v11"); A("v_lshl_add_u32 v9, v6, 4, v8")
    A("v_lshl_add_u32 v8, v6, 3, v8"); A("s_lshl_b32 s68, s3, 7"); A("v_add_u32 v8, s68, v8")
    A("v_lshrrev_b32 v124, 2, v5")
    A("v_and_b32 v125, 1, v6"); A("v_lshl_add_u32 v125, v125, 2, v124"); A("v_lshlrev_b32 v125, 1, v125")
    A("v_lshrrev_b32 v126, 1, v11"); A("s_lshl_b32 s68, s3, 2"); A("v_add_u32 v126, s68, v126"); A("v_xor_b32 v126, v126, v125")
    A("v_lshlrev_b32 v126, 4, v126"); A("v_and_b32 v125, 1, v2"); A("v_lshl_add_u32 v126, v125, 3, v126")
    A("v_lshl_add_u32 v125, v6, 3, v124"); A("v_lshl_add_u32 v126, v125, 8, v126")
    A("v_xor_b32 v127, 32, v126")
    A(f"v_add_u32 v126, {VT}, v126"); A(f"v_add_u32 v127, {VT}, v127")
    A("v_lshlrev_b32 v125, 6, v11"); A("v_lshl_add_u32 v125, v6, 4, v125")
    A("s_lshl_b32 s79, s70, 2"); A("s_add_u32 s79, s79, s73"); A("s_lshl_b32 s79, s79, 3"); A("s_add_u32 s79, s79, s72")
    A("s_lshl_b32 s79, s79, 2"); A("s_add_u32 s79, s79, s3"); A("s_lshl_b32 s79, s79, 8"); A(f"s_add_u32 s79, s79, {O_OFF}")
    g.flag_wait(F_Q, 1, 3, 10)
    g.stamp(2)
    for t in range(4):
        A(f"ds_read_b128 v[{QF+4*t}:{QF+4*t+3}], v12 offset:{QL + t*64}")
    A("s_waitcnt lgkmcnt(0)")
    for T in range(4):
        A(f"s_waitcnt vmcnt({12 - 4*T})")
        for t in range(4):
            r = KR + (T*4 + t)*4
            cc = "0" if t == 0 else f"v[{SR+4*T}:{SR+4*T+3}]"
            A(f"v_mfma_f32_16x16x32_bf16 v[{SR+4*T}:{SR+4*T+3}], v[{r}:{r+3}], v[{QF+4*t}:{QF+4*t+3}], {cc}")
    nop(4)
    A(f"v_max3_f32 v10, v{SR}, v{SR+1}, v{SR+2}")
    for i in range(3, 11, 2):
        A(f"v_max3_f32 v10, v10, v{SR+i}, v{SR+i+1}")
    A(f"v_max_f32 v10, v10, v{SR+11}")
    A(f"v_max3_f32 v10, v10, v{SR+12}, v{SR+13}")
    A(f"v_max3_f32 v10, v10, v{SR+14}, v{SR+15}")
    g.xrow("v_max_f32", [10], [15])
    A("s_mov_b64 exec, 15")
    A(f"ds_write_b32 v14, v10 offset:{MX}")
    g.flag_add(F_MX, 3, 4)
    g.flag_wait(F_MX, 4, 3, 15, sleep=False)
    A(f"ds_read_b128 v[{PP}:{PP+3}], v13 offset:{MX}")
    A("s_waitcnt lgkmcnt(0)")
    A(f"v_max3_f32 v10, v{PP}, v{PP+1}, v{PP+2}"); A(f"v_max_f32 v10, v10, v{PP+3}")
    A("v_mul_f32 v10, s78, v10")
    for i in range(16):
        A(f"v_fma_f32 v{SR+i}, v{SR+i}, s78, -v10")
    for i in range(16):
        A(f"v_exp_f32 v{SR+i}, v{SR+i}")
    nop(1)
    for i in range(8):
        A(f"v_cvt_pk_bf16_f32 v{PP+i}, v{SR+2*i}, v{SR+2*i+1}")
    exec_mask(0x000F000F)
    for T in range(4):
        A(f"ds_write_b64 v8, v[{PP+2*T}:{PP+2*T+1}] offset:{PL + T*32}")
    A("s_mov_b64 exec, -1")
    A(f"v_add_f32 v10, v{SR}, v{SR+1}"); A(f"v_add_f32 v15, v{SR+2}, v{SR+3}")
    for i in range(4, 16, 2):
        A(f"v_add_f32 v10, v10, v{SR+i}"); A(f"v_add_f32 v15, v15, v{SR+i+1}")
    A("v_add_f32 v10, v10, v15")
    g.xrow("v_add_f32", [10], [15])
    A("s_mov_b64 exec, 15")
    A(f"ds_write_b32 v14, v10 offset:{LL}")
    g.flag_add(F_ML, 3, 4)
    g.flag_wait(F_ML, 4, 3, 15, sleep=False)
    for t in range(8):
        A(f"ds_read_b128 v[{PBF+4*t}:{PBF+4*t+3}], v9 offset:{PL + t*64}")
    g.stamp(3)
    A("v_and_b32 v100, 7, v2")
    A("v_lshl_add_u32 v101, v6, 2, v124"); A("v_lshlrev_b32 v101, 7, v101"); A("v_lshl_add_u32 v101, v11, 5, v101")
    A("s_and_b32 s68, s3, 1"); A("s_lshl_b32 s69, s68, 13"); A("v_add_u32 v101, s69, v101")
    A("v_lshlrev_b32 v102, 10, v5"); A("v_lshl_add_u32 v102, v6, 4, v102")
    A("s_lshl_b32 s77, s70, 15"); A("s_lshr_b32 s69, s3, 1"); A("s_lshl_b32 s69, s69, 14"); A("s_add_u32 s77, s77, s69")
    A("s_lshl_b32 s68, s68, 9"); A("s_add_u32 s77, s77, s68")
    A("s_lshr_b32 s68, s71, 3"); A("s_lshl_b32 s68, s68, 6"); A("s_add_u32 s77, s77, s68"); A(f"s_add_u32 s77, s77, {O_OFF}")
    A("v_bfe_u32 v103, v2, 3, 1"); A("s_lshl_b32 s68, s3, 1"); A("v_add_u32 v104, s68, v103"); A("v_mul_u32_u24 v104, 2176, v104")
    A("v_mul_u32_u24 v105, 272, v100"); A("v_add_u32 v104, v104, v105"); A("v_lshl_add_u32 v104, v6, 6, v104")
    A("s_and_b32 s69, s3, 2"); A("v_add_u32 v103, s69, v103"); A("v_lshl_add_u32 v103, v103, 4, v5"); A("v_lshlrev_b32 v103, 2, v103")
    A("v_lshl_add_u32 v108, v100, 2, v6"); A("v_lshlrev_b32 v108, 7, v108")
    A("s_lshl_b32 s65, s70, 12"); A("s_lshr_b32 s69, s71, 3"); A("s_lshl_b32 s69, s69, 3"); A("s_add_u32 s65, s65, s69"); A(f"s_add_u32 s65, s65, {ML_OFF}")
    A("v_lshrrev_b32 v105, 5, v2"); A("v_add_u32 v106, s68, v105"); A("v_mul_u32_u24 v106, 272, v106")
    A("v_and_b32 v107, 31, v2"); A("v_lshl_add_u32 v106, v107, 3, v106")
    A("v_lshlrev_b32 v105, 10, v105"); A("v_lshl_add_u32 v105, v107, 2, v105")
    A("s_lshl_b32 s78, s74, 3"); A("s_add_u32 s78, s78, s68"); A("s_lshl_b32 s78, s78, 10")
    A("s_lshl_b32 s69, s75, 7"); A("s_add_u32 s78, s78, s69"); A(f"s_add_u32 s78, s78, {SP_OFF}")
    A("s_mov_b32 s76, 0")
    A("s_waitcnt lgkmcnt(0)")
    def pv_mfma(t):
        vf = 128 + (t & 3)*8
        for nt in range(2):
            acc = 64 + 4*nt
            cc = "0" if t == 0 else f"v[{acc}:{acc+3}]"
            A(f"v_mfma_f32_16x16x32_bf16 v[{acc}:{acc+3}], v[{vf+4*nt}:{vf+4*nt+3}], v[{PBF+4*t}:{PBF+4*t+3}], {cc}")
    for t in range(8):
        lw = g.newlab("VW"); lr = g.newlab("VR")
        A(f"s_cmp_gt_u32 s76, {t}"); A(f"s_cbranch_scc1 {lr}")
        A("s_mov_b32 s15, 0x400000")
        lab(lw)
        A(f"ds_read_b64 v[{SR}:{SR+1}], v3 offset:{F_V0}")
        A("s_waitcnt lgkmcnt(0)")
        A(f"v_add_u32 v{SR+1}, 7, v{SR+1}")
        A(f"v_min_u32 v{SR}, v{SR}, v{SR+1}")
        A("s_sub_u32 s15, s15, 1")
        A(f"v_readfirstlane_b32 s76, v{SR}")
        A("s_cmp_eq_u32 s15, 0"); A(f"s_cbranch_scc1 {lr}")
        A(f"s_cmp_gt_u32 s76, {t}"); A(f"s_cbranch_scc0 {lw}")
        lab(lr)
        vf = 128 + (t & 3)*8
        for nt in range(2):
            A(f"ds_read_b64_tr_b16 v[{vf+4*nt}:{vf+4*nt+1}], v{126+nt} offset:{t*8192}")
            A(f"ds_read_b64_tr_b16 v[{vf+4*nt+2}:{vf+4*nt+3}], v{126+nt} offset:{t*8192 + 1024}")
        if t >= 2:
            A("s_waitcnt lgkmcnt(8)")
            pv_mfma(t - 2)
    A("s_waitcnt lgkmcnt(4)")
    pv_mfma(6)
    A("s_waitcnt lgkmcnt(0)")
    pv_mfma(7)
    g.stamp(4)
    exec_mask(0x000F000F)
    nop(5)
    A("v_cvt_pk_bf16_f32 v72, v64, v65"); A("v_cvt_pk_bf16_f32 v73, v66, v67")
    A("v_cvt_pk_bf16_f32 v74, v68, v69"); A("v_cvt_pk_bf16_f32 v75, v70, v71")
    for e in range(4): A(f"v_min_u32 v{72+e}, -2, v{72+e}")
    A("buffer_store_dwordx4 v[72:75], v125, s[52:55], s79 offen sc1")
    A("s_mov_b64 exec, -1")
    g.stamp(5)
    AF = 64
    oloads = [f"buffer_load_dwordx4 v[{AF}:{AF+3}], v102, s[52:55], s77 offen sc1",
              f"buffer_load_dwordx4 v[{AF+4}:{AF+7}], v102, s[52:55], s77 offen offset:256 sc1",
              "buffer_load_dwordx2 v[76:77], v108, s[52:55], s65 offen sc1"]
    for l_ in oloads: A(l_)
    g.flag_wait(F_WO, 1, 3, 10, sleep=False)
    BF = 32
    for nt in range(4):
        for t in range(2):
            r = BF + (nt*2 + t)*4
            off = WOT + t*4096 + nt*8
            A(f"ds_read_b64_tr_b16 v[{r}:{r+1}], v101 offset:{off}")
            A(f"ds_read_b64_tr_b16 v[{r+2}:{r+3}], v101 offset:{off + 2048}")
    g.poll(oloads, list(range(AF, AF+8)) + [76, 77], 10, sleep=int(osleep), preissued=True)
    A("s_waitcnt lgkmcnt(0)")
    g.stamp(6)
    DW = 80
    for t in range(2):
        for nt in range(4):
            r = BF + (nt*2 + t)*4
            cc = "0" if t == 0 else f"v[{DW+4*nt}:{DW+4*nt+3}]"
            A(f"v_mfma_f32_16x16x32_bf16 v[{DW+4*nt}:{DW+4*nt+3}], v[{r}:{r+3}], v[{AF+4*t}:{AF+4*t+3}], {cc}")
    A("v_mov_b32 v78, v76")
    g.xrow("v_max_f32", [78], [79])
    A("v_sub_f32 v76, v76, v78")
    A("v_exp_f32 v76, v76")
    nop(1)
    A("v_mul_f32 v77, v76, v77")
    A("ds_bpermute_b32 v76, v103, v76")
    g.xrow("v_add_f32", [77], [79])
    A("v_rcp_f32 v77, v77")
    A("s_waitcnt lgkmcnt(0)")
    A("v_mul_f32 v76, v76, v77"); A("v_mov_b32 v77, v76")
    for nt in range(4):
        A(f"v_pk_mul_f32 v[{DW+4*nt}:{DW+4*nt+1}], v[{DW+4*nt}:{DW+4*nt+1}], v[76:77]")
        A(f"v_pk_mul_f32 v[{DW+4*nt+2}:{DW+4*nt+3}], v[{DW+4*nt+2}:{DW+4*nt+3}], v[76:77]")
        A(f"ds_write_b128 v104, v[{DW+4*nt}:{DW+4*nt+3}] offset:{RED + nt*16}")
    A("s_waitcnt lgkmcnt(0)")
    A("s_barrier")
    for p in range(8):
        A(f"ds_read_b64 v[{32+2*p}:{33+2*p}], v106 offset:{RED + p*2176}")
    A("s_waitcnt lgkmcnt(4)") if (not stamps or only) else A("s_waitcnt lgkmcnt(0)")
    A("v_pk_add_f32 v[32:33], v[32:33], v[34:35]"); A("v_pk_add_f32 v[36:37], v[36:37], v[38:39]")
    A("v_pk_add_f32 v[32:33], v[32:33], v[36:37]")
    A("s_waitcnt lgkmcnt(0)")
    A("v_pk_add_f32 v[40:41], v[40:41], v[42:43]"); A("v_pk_add_f32 v[44:45], v[44:45], v[46:47]")
    A("v_pk_add_f32 v[40:41], v[40:41], v[44:45]")
    A("v_pk_add_f32 v[32:33], v[32:33], v[40:41]")
    A("v_cvt_pk_bf16_f32 v32, v32, v33")
    A("v_min_u32 v32, -2, v32")
    A("buffer_store_dword v32, v105, s[52:55], s78 offen sc1")
    g.stamp(7)
    A("s_cmp_ge_u32 s3, 2"); A("s_cbranch_scc1 L_fin")
    A("s_lshr_b32 s68, s2, 5"); A("s_lshl_b32 s68, s68, 10"); A("s_and_b32 s69, s2, 31"); A("s_lshl_b32 s69, s69, 5")
    A("s_add_u32 s76, s68, s69")
    A("v_lshrrev_b32 v17, 1, v2"); A("v_and_b32 v16, 1, v2")
    A("v_lshlrev_b32 v19, 4, v16"); A("v_mov_b32 v20, 0x3f80"); A("v_lshlrev_b32 v20, v19, v20")
    A("v_bfe_u32 v19, v2, 1, 2")
    for e in range(4):
        A(f"v_cmp_eq_u32 vcc, {e}, v19")
        nop(2)
        A(f"v_cndmask_b32 v{40+e}, 0, v20, vcc")
    A("v_lshlrev_b32 v21, 4, v16"); A("v_lshl_add_u32 v21, v6, 3, v21")
    A("s_cmp_eq_u32 s3, 1"); A("s_cbranch_scc1 L_fg")
    A("v_lshlrev_b32 v17, 13, v17"); A("v_lshl_add_u32 v17, v16, 4, v17")
    A(f"s_add_u32 s77, s76, {SP_OFF}")
    A("buffer_load_dwordx2 v[44:45], v21, s[56:59], s76 offen")
    g.poll(["buffer_load_dwordx4 v[32:35], v17, s[52:55], s77 offen sc1"], [32, 33, 34, 35], 10)
    g.stamp(8)
    def red_final():
        A("v_mfma_f32_16x16x32_bf16 v[36:39], v[40:43], v[32:35], 0")
        nop(8)
        for mod in ("row_ror:2", "row_ror:4", "row_ror:8"):
            for r in range(4):
                A(f"v_add_f32_dpp v{36+r}, v{36+r}, v{36+r} {mod} row_mask:0xf bank_mask:0xf")
    red_final()
    A("s_barrier")
    A("v_lshlrev_b32 v22, 1, v21")
    A(f"ds_read_b128 v[48:51], v22 offset:{GL}")
    A("v_cvt_pk_bf16_f32 v32, v36, v37"); A("v_cvt_pk_bf16_f32 v33, v38, v39")
    unpack(36, [32, 33])
    unpack(52, [44, 45])
    A("s_waitcnt lgkmcnt(0)")
    A("v_pk_mul_f32 v[36:37], v[36:37], v[48:49]"); A("v_pk_mul_f32 v[38:39], v[38:39], v[50:51]")
    A("v_cvt_pk_bf16_f32 v32, v36, v37"); A("v_cvt_pk_bf16_f32 v33, v38, v39")
    unpack(36, [32, 33])
    A("v_pk_add_f32 v[36:37], v[36:37], v[52:53]"); A("v_pk_add_f32 v[38:39], v[38:39], v[54:55]")
    A("v_cvt_pk_bf16_f32 v32, v36, v37"); A("v_cvt_pk_bf16_f32 v33, v38, v39")
    A("s_mov_b64 exec, 0x30003")
    A("buffer_store_dwordx2 v[32:33], v21, s[60:63], s76 offen")
    A("s_mov_b64 exec, -1")
    g.stamp(9)
    if int(dbgspan):
        A("s_memrealtime s[96:97]")
        A("s_mov_b32 s40, s24"); A("s_mov_b32 s41, s25"); A("s_mov_b32 s42, 256"); A("s_mov_b32 s43, 0x00020000")
        A("s_waitcnt lgkmcnt(0)")
        A("s_sub_u32 s98, 0, s98")
        A("v_mov_b32 v40, s98"); A("v_mov_b32 v41, s96")
        A("s_mov_b64 exec, 1")
        A("buffer_atomic_umax v40, v3, s[40:43], 0 offen sc1")
        A("buffer_atomic_umax v41, v3, s[40:43], 0 offen offset:4 sc1")
        A("s_mov_b64 exec, -1")
    A("s_cmp_lg_u32 s2, 0"); A("s_cbranch_scc1 L_fin")
    A(f"ds_read_b32 v32, v3 offset:{F_EP}")
    A(f"s_mov_b32 s68, {EP_OFF}")
    A("s_waitcnt lgkmcnt(0)")
    A("s_mov_b64 exec, 1")
    A("buffer_store_dword v32, v3, s[52:55], s68 offen sc1")
    A("s_mov_b64 exec, -1")
    A("s_branch L_fin")
    lab("L_fg")
    A("v_min_u32 v17, 27, v17")
    A("v_lshlrev_b32 v17, 13, v17"); A("v_lshl_add_u32 v17, v16, 4, v17")
    A(f"s_add_u32 s77, s76, {FP_OFF}")
    g.poll(["buffer_load_dwordx4 v[32:35], v17, s[52:55], s77 offen sc1"], [32, 33, 34, 35], 10)
    g.stamp(8)
    A("v_cmp_gt_u32 vcc, 56, v2")
    nop(2)
    for r in range(4):
        A(f"v_cndmask_b32 v{32+r}, 0, v{32+r}, vcc")
    nop(1)
    red_final()
    rbf([36, 37, 38, 39])
    silu([36, 37, 38, 39], 48)
    rbf([36, 37, 38, 39])
    A("v_lshlrev_b32 v22, 1, v21")
    A("s_mov_b64 exec, 0x30003")
    A(f"ds_write_b128 v22, v[36:39] offset:{GL}")
    A("s_mov_b64 exec, -1")
    A("s_waitcnt lgkmcnt(0)")
    A("s_barrier")
    g.stamp(9)
    A("s_branch L_fin")

    lab("L_H")
    A("s_cmp_eq_u32 s3, 8"); A("s_cbranch_scc1 L_load")
    A("s_setprio 3")
    A("v_lshlrev_b32 v7, 4, v2")
    A("s_sub_u32 s77, s3, 4")
    A("s_cmp_lg_u32 s3, 7"); A("s_cbranch_scc1 L_noinit")
    A("v_lshlrev_b32 v8, 2, v5")
    A("ds_write_b32 v8, v3")
    lab("L_noinit")
    A("v_lshrrev_b32 v8, 3, v2"); A("v_and_b32 v9, 7, v2"); A("v_lshlrev_b32 v9, 4, v9")
    A("s_lshl_b32 s68, s77, 11")
    A(f"s_mov_b32 s69, 0x{EP_OFF:x}")
    A("s_waitcnt lgkmcnt(0)")
    A("s_load_dword s79, s[26:27], s69")
    for d, b in ((32, 8), (44, 12), (48, 20), (52, 26), (56, 4)):
        A(f"s_mov_b32 s{d}, s{b}"); A(f"s_mov_b32 s{d+1}, s{b+1}")
    XR = 16
    for r in range(2):
        A(f"buffer_load_dwordx4 v[{XR+4*r}:{XR+4*r+3}], v7, s[56:59], s68 offen offset:{r*1024}")
    A("s_cmp_ge_u32 s3, 6"); A("s_cbranch_scc1 L_SX0")
    A("s_cmp_eq_u32 s3, 5"); A("s_cbranch_scc1 L_G1")
    A("s_mov_b32 s36, s10"); A("s_mov_b32 s37, s11"); A("s_mov_b32 s38, 4194304")
    A("s_lshl_b32 s76, s70, 3"); A("s_add_u32 s76, s76, s72"); A("s_lshl_b32 s76, s76, 7")
    A("s_movk_i32 s69, 8192")
    A("s_lshl_b32 s78, s73, 17"); A("s_lshl_b32 s68, s76, 4"); A("s_add_u32 s78, s78, s68")
    A(f"s_add_u32 s78, s78, {QP_OFF}")
    A("s_branch L_GJ")
    lab("L_G1")
    A("s_cmp_eq_u32 s70, 7"); A("s_cbranch_scc1 L_LN0")
    A("s_bitcmp1_b32 s71, 2")
    A("s_cselect_b32 s36, s18, s16"); A("s_cselect_b32 s37, s19, s17"); A("s_mov_b32 s38, 1835008")
    A("s_lshl_b32 s76, s74, 7")
    A("s_movk_i32 s69, 3584")
    A("s_and_b32 s78, s71, 7"); A(f"s_mul_i32 s78, s78, {28*2048}"); A("s_lshl_b32 s68, s76, 4"); A("s_add_u32 s78, s78, s68")
    A(f"s_add_u32 s78, s78, {GP_OFF}")
    lab("L_GJ")
    A("v_mul_lo_u32 v10, v8, s69"); A("v_add_u32 v10, v10, v9")
    A("s_lshl_b32 s68, s73, 7"); A("s_mul_i32 s68, s68, s69"); A("s_add_u32 s100, s76, s68")
    A("s_lshl_b32 s101, s69, 3")
    A("s_lshl_b32 s68, s77, 14"); A(f"s_add_u32 s68, s68, {W1T}")
    for i in range(16):
        A("s_mov_b32 m0, s68")
        A("s_add_u32 s68, s68, 1024")
        A(f"buffer_load_dwordx4 v10, s[36:39], s100 offen {g.ntw} lds")
        A("s_add_u32 s100, s100, s101")
    A("s_barrier")
    A("s_waitcnt vmcnt(16)")
    A("s_branch L_LN")
    lab("L_SX0")
    A("s_cmp_eq_u32 s3, 7"); A("s_cbranch_scc1 L_LN0")
    if int(noclr): A("s_branch L_LN0")
    for r in range(4):
        A(f"v_mov_b32 v{24+r}, -1")
    A("s_lshl_b32 s68, s70, 2"); A("s_add_u32 s68, s68, s73"); A("s_lshl_b32 s68, s68, 3"); A("s_add_u32 s68, s68, s72")
    A("s_lshl_b32 s68, s68, 10"); A(f"s_add_u32 s68, s68, {O_OFF}")
    A("buffer_store_dwordx4 v[24:27], v7, s[52:55], s68 offen sc1")
    A("v_lshl_add_u32 v10, v8, 10, v9")
    A("s_lshl_b32 s68, s74, 13"); A("s_lshl_b32 s69, s75, 7"); A("s_add_u32 s68, s68, s69")
    A(f"s_add_u32 s69, s68, {SP_OFF}")
    A("buffer_store_dwordx4 v[24:27], v10, s[52:55], s69 offen sc1")
    A("s_cmp_eq_u32 s70, 7"); A("s_cbranch_scc1 L_nofp")
    A(f"s_add_u32 s69, s68, {FP_OFF}")
    A("buffer_store_dwordx4 v[24:27], v10, s[52:55], s69 offen sc1")
    lab("L_nofp")
    A("s_lshl_b32 s68, s70, 5"); A("s_add_u32 s68, s68, s71"); A("s_lshl_b32 s68, s68, 7"); A(f"s_add_u32 s68, s68, {ML_OFF}")
    A("s_mov_b64 exec, 3")
    A("buffer_store_dwordx4 v[24:27], v7, s[52:55], s68 offen sc1")
    A("s_mov_b64 exec, -1")
    A("s_barrier")
    A("s_waitcnt vmcnt(3)")
    A("s_cmp_eq_u32 s70, 7"); A("s_cbranch_scc1 L_LN")
    A("s_nop 0")
    A("s_branch L_LN") if False else None
    A("s_waitcnt vmcnt(4)") if False else None
    A("s_branch L_LN")
    lab("L_LN0")
    A("s_barrier")
    A("s_waitcnt vmcnt(0)")
    lab("L_LN")
    if cut == 1:
        g.flag_add(F_W, 3, 4); A("s_branch L_fin")
    XF = 32
    for r in range(2):
        unpack(XF + 8*r, [XR + 4*r + e for e in range(4)])
    SM = 64
    for r in range(2):
        A(f"v_add_f32 v{SM+r}, v{XF+8*r}, v{XF+8*r+1}"); A(f"v_add_f32 v{SM+2+r}, v{XF+8*r+2}, v{XF+8*r+3}")
    for e in range(4, 8, 2):
        for r in range(2):
            A(f"v_add_f32 v{SM+r}, v{SM+r}, v{XF+8*r+e}"); A(f"v_add_f32 v{SM+2+r}, v{SM+2+r}, v{XF+8*r+e+1}")
    for r in range(2):
        A(f"v_add_f32 v{SM+r}, v{SM+r}, v{SM+2+r}")
    g.allreduce64("v_add_f32", [SM, SM+1], [SM+4, SM+5])
    A(f"s_mov_b32 s68, 0x{f32bits(1.0/512):08x}")
    for r in range(2):
        A(f"v_mul_f32 v{SM+r}, s68, v{SM+r}")
    VS = 72
    for e in range(8):
        for r in range(2):
            A(f"v_sub_f32 v{80+2*(e&1)+r}, v{XF+8*r+e}, v{SM+r}")
        for r in range(2):
            t_ = 80+2*(e&1)+r
            if e == 0: A(f"v_mul_f32 v{VS+r}, v{t_}, v{t_}")
            else: A(f"v_fmac_f32 v{VS+r}, v{t_}, v{t_}")
    g.allreduce64("v_add_f32", [VS, VS+1], [VS+4, VS+5])
    for r in range(2):
        A(f"v_mul_f32 v{VS+r}, s68, v{VS+r}")
    rbf([SM, SM+1, VS, VS+1])
    for r in range(2):
        A(f"v_add_f32 v{VS+r}, 0x{f32bits(1e-5):08x}, v{VS+r}")
    rbf([VS, VS+1])
    for r in range(2):
        A(f"v_sqrt_f32 v{VS+r}, v{VS+r}")
    nop(1)
    rbf([VS, VS+1])
    for r in range(2):
        A(f"v_rcp_f32 v{VS+r}, v{VS+r}")
    for r in range(2):
        for e in range(8):
            A(f"v_sub_f32 v{XF+8*r+e}, v{XF+8*r+e}, v{SM+r}")
    for r in range(2):
        for e in range(4):
            A(f"v_cvt_pk_bf16_f32 v{XR+4*r+e}, v{XF+8*r+2*e}, v{XF+8*r+2*e+1}")
    for r in range(2):
        unpack(XF + 8*r, [XR + 4*r + e for e in range(4)])
    for r in range(2):
        for e in range(8):
            A(f"v_mul_f32 v{XF+8*r+e}, v{XF+8*r+e}, v{VS+r}")
    for r in range(2):
        for e in range(4):
            A(f"v_cvt_pk_bf16_f32 v{XR+4*r+e}, v{XF+8*r+2*e}, v{XF+8*r+2*e+1}")
    A(f"s_mul_i32 s68, s77, {2*XNP}"); A("v_lshlrev_b32 v11, 4, v5"); A("v_add_u32 v11, s68, v11")
    A("v_cmp_eq_u32 vcc, s73, v6")
    A("s_and_saveexec_b64 s[68:69], vcc")
    for r in range(2):
        A(f"ds_write_b128 v11, v[{XR+4*r}:{XR+4*r+3}] offset:{XN + r*XNP}")
    g.flag_add(F_XN, 3, 4)
    g.stamp(2)
    A("s_add_u32 s4, s79, 1"); A(f"s_mul_i32 s5, s4, 0x{TAGMUL:x}")
    A("v_lshrrev_b32 v12, 2, v5"); A("v_lshl_add_u32 v12, v6, 3, v12"); A("v_lshlrev_b32 v12, 7, v12")
    A("v_and_b32 v13, 3, v2")
    A("v_and_b32 v14, 7, v2")
    A("s_cmp_ge_u32 s3, 6"); A("s_cbranch_scc1 L_SX1")
    A("s_cmp_lg_u32 s3, 5"); A("s_cbranch_scc1 L_Ggo")
    A("s_cmp_lg_u32 s70, 7"); A("s_cbranch_scc1 L_Ggo")
    g.flag_add(F_W, 3, 4)
    A("s_branch L_G1post")
    lab("L_Ggo")
    A(f"v_mul_u32_u24 v11, {XNP}, v14"); A("v_lshl_add_u32 v11, v6, 4, v11")
    A("v_lshl_add_u32 v12, v13, 3, v12")
    A("s_lshl_b32 s68, s77, 14"); A("v_add_u32 v12, s68, v12")
    A("v_lshlrev_b32 v15, 6, v14"); A("v_lshl_add_u32 v15, v6, 4, v15")
    for nt in range(4):
        A(f"v_mov_b32 v{113+4*nt}, s4"); A(f"v_mov_b32 v{115+4*nt}, s5")
    g.flag_wait(F_XN, 4, 3, 10)
    XB = 16
    for t in range(4):
        A(f"ds_read_b128 v[{XB+4*t}:{XB+4*t+3}], v11 offset:{XN + t*64}")
    WB = 32
    for t in range(4):
        A(f"s_waitcnt vmcnt({12 - 4*t})")
        if t == 3:
            g.flag_add(F_W, 3, 4)
        for nt in range(4):
            r = WB + (t*4 + nt)*4
            off = W1T + t*4096 + nt*32
            A(f"ds_read_b64_tr_b16 v[{r}:{r+1}], v12 offset:{off}")
            A(f"ds_read_b64_tr_b16 v[{r+2}:{r+3}], v12 offset:{off+512}")
        A("s_waitcnt lgkmcnt(0)")
        for nt in range(4):
            r = WB + (t*4 + nt)*4
            d = 96 + nt*4
            cc = "0" if t == 0 else f"v[{d}:{d+3}]"
            A(f"v_mfma_f32_16x16x32_bf16 v[{d}:{d+3}], v[{r}:{r+3}], v[{XB+4*t}:{XB+4*t+3}], {cc}")
    g.stamp(3)
    exec_mask(0x00ff00ff)
    nop(4)
    for nt in range(4):
        A(f"v_cvt_pk_bf16_f32 v{112+4*nt}, v{96+4*nt}, v{97+4*nt}")
        A(f"v_cvt_pk_bf16_f32 v{114+4*nt}, v{98+4*nt}, v{99+4*nt}")
        if not int(nost): A(f"buffer_store_dwordx4 v[{112+4*nt}:{115+4*nt}], v15, s[52:55], s78 offen offset:{nt*512} sc1")
    A("s_mov_b64 exec, -1")
    g.stamp(4)
    lab("L_Gpost")
    A("s_cmp_eq_u32 s3, 5"); A("s_cbranch_scc1 L_G1post")
    A(f"s_mov_b32 s6, {FL_OFF}")
    g.flag_wait(F_K2, 4, 3, 10)
    g.stamp(5)
    A("s_mov_b32 s15, 0x40000")
    lab("L_alpoll")
    A("buffer_load_dwordx4 v[20:23], v7, s[52:55], s6 offen sc1")
    A("buffer_load_dwordx4 v[24:27], v7, s[52:55], s6 offen offset:1024 sc1")
    A("s_waitcnt vmcnt(0)")
    for e in range(4):
        A(f"v_xor_b32 v{28+2*e}, s4, v{20+2*e}"); A(f"v_xor_b32 v{29+2*e}, s5, v{21+2*e}")
    A("v_or3_b32 v28, v28, v29, v30"); A("v_or3_b32 v31, v31, v32, v33"); A("v_or3_b32 v28, v28, v34, v35"); A("v_or_b32 v28, v28, v31")
    A("v_cmp_ne_u32 vcc, 0, v28")
    A("s_and_b64 exec, exec, vcc"); A("s_cbranch_scc0 L_aldone")
    A("s_sleep 4")
    A("s_sub_u32 s15, s15, 1"); A("s_cmp_lg_u32 s15, 0"); A("s_cbranch_scc1 L_alpoll")
    lab("L_aldone")
    g.flag_add(F_TOK, 3, 4)
    g.stamp(6)
    A("s_waitcnt lgkmcnt(0)")
    A("s_branch L_fin")
    lab("L_G1post")
    A("s_waitcnt lgkmcnt(0)")
    A("s_branch L_fin")
    lab("L_load")
    A("s_setprio 2")
    A("v_lshrrev_b32 v8, 3, v2"); A("v_and_b32 v9, 7, v2"); A("v_lshlrev_b32 v9, 4, v9")
    A("v_lshlrev_b32 v16, 1, v6"); A("v_xor_b32 v16, v16, v5"); A("v_xor_b32 v17, 8, v16")
    A("v_lshlrev_b32 v16, 4, v16"); A("v_lshl_add_u32 v16, v6, 8, v16")
    A("v_lshlrev_b32 v17, 4, v17"); A("v_lshl_add_u32 v17, v6, 8, v17")
    A("s_mov_b32 s100, s64")
    A(f"s_mov_b32 s101, {VT}")
    A("v_lshl_add_u32 v18, v8, 10, v9")
    A("s_lshl_b32 s76, s74, 17"); A("s_lshl_b32 s68, s75, 7"); A("s_add_u32 s76, s76, s68")
    A(f"s_mov_b32 s77, {WOT}")
    A("s_waitcnt lgkmcnt(0)")
    for d, b_ in ((32, 8), (44, 12), (52, 26)):
        A(f"s_mov_b32 s{d}, s{b_}"); A(f"s_mov_b32 s{d+1}, s{b_+1}")
    A("s_barrier")
    if cut == 2:
        A("s_branch L_fin")
    if vdelay:
        g.flag_wait(F_K2, 4, 3, 10)
    g.stamp(5)
    NV = 64; NT = 80
    def publish(k):
        if 0 < k <= NV and k % 8 == 0:
            A(f"v_mov_b32 v20, {k//8}")
            A(f"ds_write_b32 v3, v20 offset:{F_V0}")
    for i in range(NT):
        w_ = vthr if (i < NV or not wolate) else wolate
        if i >= w_:
            A(f"s_waitcnt vmcnt({w_-1})")
            lo = (i - vthr + 1) if i <= NV else (i - 1 - w_ + 2)
            for k in range(max(1, min(i - vthr + 1, i - w_ + 1)), i - w_ + 2):
                if k == i - w_ + 1 or (i == NV and k > i - vthr):
                    publish(k)
        if i < NV:
            A("s_mov_b32 m0, s101")
            A("s_add_u32 s101, s101, 1024")
            A(f"buffer_load_dwordx4 v{16 + ((i >> 1) & 1)}, s[32:35], s100 offen {g.ntkv} lds")
            A("s_add_u32 s100, s100, 1024")
        else:
            A("s_mov_b32 m0, s77")
            A("s_add_u32 s77, s77, 1024")
            A(f"buffer_load_dwordx4 v18, s[44:47], s76 offen {g.ntw} lds")
            A("s_add_u32 s76, s76, 8192")
    g.stamp(6)
    wl = wolate if wolate else vthr
    for k in range(max(8, NT - wl + 1), NV + 1):
        if k % 8 == 0:
            A(f"s_waitcnt vmcnt({NT - k})")
            publish(k)
    A("s_waitcnt vmcnt(0)")
    g.flag_add(F_WO, 3, 4)
    g.stamp(7)
    A("s_waitcnt lgkmcnt(0)")
    A("s_branch L_fin")
    lab("L_SX1")
    A("s_cmp_eq_u32 s3, 7"); A("s_cbranch_scc1 L_X")
    A("v_mov_b32 v16, s4"); A("v_mov_b32 v17, s5")
    A("s_lshl_b32 s7, s2, 3"); A(f"s_add_u32 s7, s7, {FL_OFF}")
    A("s_waitcnt vmcnt(0)")
    A("s_mov_b64 exec, 1")
    A("buffer_store_dwordx2 v[16:17], v3, s[52:55], s7 offen sc1")
    A(f"ds_write_b32 v3, v16 offset:{F_EP}")
    A("s_mov_b64 exec, -1")
    g.stamp(1)
    if cut in (2, 3):
        A("s_branch L_fin")
    A("v_lshrrev_b32 v9, 2, v2"); A("v_lshlrev_b32 v9, 9, v9"); A("v_lshl_add_u32 v9, v13, 4, v9")
    A("s_lshl_b32 s16, s70, 14"); A("s_lshl_b32 s69, s72, 6"); A("s_add_u32 s16, s16, s69"); A(f"s_add_u32 s16, s16, {QP_OFF}")
    for k in range(1, 8):
        A(f"s_add_u32 s{16+k}, s16, {(k>>1)*131072 + (k&1)*8192}")
    A("v_lshlrev_b32 v8, 3, v2")
    A("v_bfe_u32 v12, v2, 3, 2"); A("v_lshlrev_b32 v12, 17, v12"); A("v_lshl_add_u32 v12, v14, 11, v12")
    g.flag_wait(F_K, 4, 3, 10)
    g.stamp(7)
    if int(sample):
        tagpoll([f"buffer_load_dwordx4 v[16:19], v12, s[52:55], s16 offen offset:{3*512+48} sc1"], [16], 10, qsleep)
    g.stamp(8)
    tagpoll([f"buffer_load_dwordx4 v[{16+4*k}:{19+4*k}], v9, s[52:55], s{16+k} offen sc1" for k in range(8)],
            [16+4*k for k in range(8)], 10, qsleep)
    g.stamp(3)
    for k in range(8):
        unpack(48 + 4*k, [16+4*k, 18+4*k])
    for i in range(2):
        for e in range(4):
            A(f"v_add_f32 v{48+4*i+e}, v{48+4*i+e}, v{56+4*i+e}"); A(f"v_add_f32 v{64+4*i+e}, v{64+4*i+e}, v{72+4*i+e}")
    for e in range(8):
        A(f"v_add_f32 v{48+e}, v{48+e}, v{64+e}")
    for e in range(4):
        A(f"v_cvt_pk_bf16_f32 v{16+e}, v{48+2*e}, v{49+2*e}")
    A(f"ds_write_b64 v8, v[16:17] offset:{QL}")
    A(f"ds_write_b64 v8, v[18:19] offset:{QL+512}")
    g.flag_add(F_Q, 3, 4)
    g.stamp(5)
    if cut == 4:
        A("s_branch L_fin")
    A("v_lshlrev_b32 v8, 3, v2"); A("v_lshlrev_b32 v9, 4, v13")
    A("s_lshl_b32 s6, s70, 12"); A(f"s_add_u32 s6, s6, {ML_OFF}")
    A("s_lshl_b32 s68, s71, 7"); A("s_add_u32 s68, s68, s6")
    A(f"s_mov_b32 s78, 0x{f32bits(LOG2E * (128 ** -0.5)):08x}")
    A("v_and_b32 v12, 31, v2"); A("v_lshlrev_b32 v11, 2, v12"); A("v_lshlrev_b32 v12, 7, v12")
    A("s_lshr_b32 s69, s71, 3"); A("s_lshl_b32 s69, s69, 3"); A("s_add_u32 s6, s6, s69")
    g.flag_wait(F_ML, 4, 3, 10)
    A(f"ds_read_b128 v[16:19], v9 offset:{MX}")
    A(f"ds_read_b128 v[20:23], v9 offset:{LL}")
    A("s_waitcnt lgkmcnt(0)")
    A("v_max3_f32 v24, v16, v17, v18"); A("v_max_f32 v24, v24, v19"); A("v_mul_f32 v24, s78, v24")
    A("v_add_f32 v25, v20, v21"); A("v_add_f32 v26, v22, v23"); A("v_add_f32 v25, v25, v26")
    A("v_min_u32 v24, -2, v24"); A("v_min_u32 v25, -2, v25")
    A("s_mov_b64 exec, 15")
    A("buffer_store_dwordx2 v[24:25], v8, s[52:55], s68 offen sc1")
    A("s_mov_b64 exec, -1")
    g.stamp(6)
    if stamps:
        A("s_waitcnt vmcnt(0)")
        g.stamp(9)
    A("s_branch L_fin")
    lab("L_X")
    if cut in (2, 3, 4):
        A("s_branch L_fin")
    A("s_cmp_eq_u32 s70, 7"); A("s_cbranch_scc1 L_fin")
    A("v_lshl_add_u32 v12, v13, 5, v12")
    A("v_lshl_add_u32 v10, v8, 10, v9")
    A("s_lshl_b32 s100, s74, 16"); A("s_lshl_b32 s69, s75, 7"); A("s_add_u32 s100, s100, s69")
    A("v_bfe_u32 v15, v2, 3, 1"); A("v_lshrrev_b32 v11, 1, v6"); A("v_lshl_add_u32 v11, v15, 1, v11"); A("v_lshlrev_b32 v11, 9, v11")
    A("v_lshl_add_u32 v11, v14, 6, v11"); A("v_and_b32 v15, 1, v6"); A("v_lshl_add_u32 v11, v15, 5, v11")
    A("s_lshl_b32 s76, s74, 11"); A(f"s_add_u32 s76, s76, {GP_OFF}")
    A("v_lshlrev_b32 v15, 10, v14"); A("v_lshl_add_u32 v15, v6, 5, v15")
    A("s_lshl_b32 s78, s74, 13"); A("s_add_u32 s78, s78, s69"); A(f"s_add_u32 s78, s78, {FP_OFF}")
    for p in range(8):
        A(f"s_add_u32 s{16+p}, s76, {p*28*2048}")
    if int(xtrig) == 0: g.flag_wait(F_K, 4, 3, 9)
    elif int(xtrig) == 1: g.flag_wait(F_Q, 1, 3, 9)
    else: g.flag_wait(F_K2, 4, 3, 9)
    A(f"s_mov_b32 s68, {WDT}")
    for i in range(8):
        A("s_mov_b32 m0, s68")
        A("s_add_u32 s68, s68, 1024")
        A(f"buffer_load_dwordx4 v10, s[48:51], s100 offen {g.ntw} lds")
        A("s_add_u32 s100, s100, 8192")
    lds_ = []
    for p in range(8):
        lds_.append(f"buffer_load_dwordx4 v[{16+8*p}:{19+8*p}], v11, s[52:55], s{16+p} offen sc1")
        lds_.append(f"buffer_load_dwordx4 v[{20+8*p}:{23+8*p}], v11, s[52:55], s{16+p} offen offset:16 sc1")
    tagpoll(lds_, [16+4*k for k in range(16)], 8, qsleep)
    g.stamp(5)
    WD = 128
    for p in range(8):
        unpack(80 + 8*p, [16+8*p, 18+8*p, 20+8*p, 22+8*p])
    for mat in range(2):
        b0 = 80 + mat*32
        for e in range(8):
            A(f"v_add_f32 v{b0+e}, v{b0+e}, v{b0+8+e}"); A(f"v_add_f32 v{b0+16+e}, v{b0+16+e}, v{b0+24+e}")
        for e in range(8):
            A(f"v_add_f32 v{b0+e}, v{b0+e}, v{b0+16+e}")
    for t in range(2):
        for nt in range(4):
            r = WD + (t*4 + nt)*4
            off = WDT + t*4096 + nt*8
            A(f"ds_read_b64_tr_b16 v[{r}:{r+1}], v12 offset:{off}")
            A(f"ds_read_b64_tr_b16 v[{r+2}:{r+3}], v12 offset:{off+512}")
    rbf(list(range(80, 88)) + list(range(112, 120)))
    silu(list(range(80, 88)), 88)
    rbf(list(range(80, 88)))
    for e in range(8):
        A(f"v_mul_f32 v{80+e}, v{80+e}, v{112+e}")
    for e in range(4):
        A(f"v_cvt_pk_bf16_f32 v{16+e}, v{80+2*e}, v{81+2*e}")
    A("s_waitcnt lgkmcnt(0)")
    nop(1)
    for t in range(2):
        for nt in range(4):
            r = WD + (t*4 + nt)*4
            d = 32 + t*16 + nt*4
            A(f"v_mfma_f32_16x16x32_bf16 v[{d}:{d+3}], v[{r}:{r+3}], v[16:19], 0")
    nop(8)
    for e in range(16):
        A(f"v_add_f32_dpp v{32+e}, v{48+e}, v{32+e} row_ror:8 row_mask:0xf bank_mask:0xf")
    for e in range(8):
        A(f"v_cvt_pk_bf16_f32 v{64+e}, v{32+2*e}, v{33+2*e}")
    for e in range(8):
        A(f"v_min_u32 v{64+e}, -2, v{64+e}")
    g.flag_wait(F_Q, 1, 3, 9)
    exec_mask(0x00ff00ff)
    A("buffer_store_dwordx4 v[64:67], v15, s[52:55], s78 offen sc1")
    A("buffer_store_dwordx4 v[68:71], v15, s[52:55], s78 offen offset:16 sc1")
    A("s_mov_b64 exec, -1")
    g.stamp(6)
    lab("L_fin")
    g.stamp_flush()
    lab("L_end")
    A("s_endpgm")
    tail = ['.section .rodata,"a"', ".p2align 6", f".amdhsa_kernel {KN}",
            "  .amdhsa_next_free_vgpr 168", "  .amdhsa_next_free_sgpr 102", "  .amdhsa_accum_offset 168",
            "  .amdhsa_group_segment_fixed_size 0", "  .amdhsa_kernarg_size 96", "  .amdhsa_user_sgpr_count 2",
            "  .amdhsa_user_sgpr_kernarg_segment_ptr 1", "  .amdhsa_system_sgpr_workgroup_id_x 1",
            "  .amdhsa_float_denorm_mode_32 3",
            ".end_amdhsa_kernel"]
    return "\n".join(hdr + g.L + tail) + "\n"

if __name__ == "__main__":
    out = sys.argv[1] if len(sys.argv) > 1 else "recurrent_scan__sliding_block_cached__swiglu_ffn__decode.s"
    stamps = "--stamps" in sys.argv
    kw = {}
    for a in sys.argv[2:]:
        if "=" in a:
            k, v = a.split("=", 1); kw[k] = v
    open(out, "w").write(build(stamps=stamps, **kw))
```

```python
import sys, struct
from gen import G, f32bits, KN

QP_OFF = 0x00000
GP_OFF = 0x80000
O_OFF = 0xF0000
ML_OFF = 0x1C0000
SP_OFF = 0x132000
FP_OFF = 0x172000
FL_OFF = 0x1B0000
EP_OFF = 0x1B8000
TAGMUL = 0x9E3779B1
DUP = 0x200000
STAMP_OFF = 0x1000000
F_XN, F_Q, F_W, F_MX, F_ML, F_K, F_V0, F_V1, F_PUB, F_K2, F_WO, F_WT, F_EP = 0, 4, 8, 12, 16, 20, 24, 28, 32, 36, 40, 44, 60
F_TOK = F_V1
WT = 2432
MX = 64; LL = 128; GL = 192
XN = 256; XNP = 272
QL = 2560
PL = 3584; PLP = 528
WOT = 6144
WDT = 22528
W1T = 30720
RED = W1T
VT = 63488
LDS_BYTES = 129024
LOG2E = 1.4426950408889634

def build(stamps=False, ntkv="nt", ntw="nt", thr=8, vthr=48, kdelay=0, vdelay=1, qsleep=2, cut=0, sample=0, dyn=1, vthr2=40, noclr=0, nost=0, kq=12, kv=16, wolate=0, dbgspan=0, mlchunk=6, xtrig=0, osleep=0, mlsleep=2, only='', bmask=7):
    kq = int(kq); kv = int(kv); wolate = int(wolate)
    g = G(stamps, ntkv, ntw, thr)
    g.nwaves = 9
    g.only = [int(c) for c in only] if only else None
    vthr = int(vthr); kdelay = int(kdelay); vdelay = int(vdelay); qsleep = int(qsleep); cut = int(cut)
    A = g.A; lab = g.lab; nop = g.nop
    hdr = [f"; @launch grid=(256,1,1) block=(576,1,1) lds={LDS_BYTES}",
           '.amdgcn_target "amdgcn-amd-amdhsa--gfx950"', ".text", f".globl {KN}", ".p2align 8",
           f".type {KN},@function", f"{KN}:"]
    def rbf(regs):
        for r in regs: A(f"v_cvt_pk_bf16_f32 v{r}, v{r}, v{r}")
        for r in regs: A(f"v_and_b32 v{r}, 0xffff0000, v{r}")
    def unpack(dst, srcs):
        for e, sr in enumerate(srcs):
            A(f"v_lshlrev_b32 v{dst+2*e}, 16, v{sr}")
            A(f"v_and_b32 v{dst+2*e+1}, 0xffff0000, v{sr}")
    def silu(regs, tmp):
        A(f"s_mov_b32 s68, 0x{f32bits(-LOG2E):08x}")
        for i, r in enumerate(regs): A(f"v_mul_f32 v{tmp+i}, s68, v{r}")
        for i, r in enumerate(regs): A(f"v_exp_f32 v{tmp+i}, v{tmp+i}")
        nop(1)
        for i, r in enumerate(regs): A(f"v_add_f32 v{tmp+i}, 1.0, v{tmp+i}")
        for i, r in enumerate(regs): A(f"v_rcp_f32 v{tmp+i}, v{tmp+i}")
        nop(1)
        for i, r in enumerate(regs): A(f"v_mul_f32 v{r}, v{r}, v{tmp+i}")
    def exec_mask(m):
        A(f"s_mov_b32 exec_lo, 0x{m:08x}"); A(f"s_mov_b32 exec_hi, 0x{m:08x}")
    def tagpoll(loads, quads, vt, sleep):
        l = g.newlab("TP"); d = g.newlab("TD")
        A("s_mov_b32 s15, 0x40000")
        lab(l)
        for s_ in loads: A(s_)
        A("s_waitcnt vmcnt(0)")
        first = True
        for q in quads:
            if first:
                A(f"v_xor_b32 v{vt}, s4, v{q+1}"); first = False
            else:
                A(f"v_xor_b32 v{vt+1}, s4, v{q+1}"); A(f"v_or_b32 v{vt}, v{vt}, v{vt+1}")
            A(f"v_xor_b32 v{vt+1}, s5, v{q+3}"); A(f"v_or_b32 v{vt}, v{vt}, v{vt+1}")
        A(f"v_cmp_ne_u32 vcc, 0, v{vt}")
        A("s_and_b64 exec, exec, vcc"); A(f"s_cbranch_scc0 {d}")
        if sleep: A(f"s_sleep {sleep}")
        A("s_sub_u32 s15, s15, 1"); A("s_cmp_lg_u32 s15, 0"); A(f"s_cbranch_scc1 {l}")
        lab(d)
        A("s_mov_b64 exec, -1")
    A("s_cmp_ge_u32 s2, 256"); A("s_cbranch_scc1 L_end")
    A("s_load_dwordx16 s[4:19], s[0:1], 0")
    A("s_load_dwordx8 s[20:27], s[0:1], 64")
    g.stamp(0)
    if int(dbgspan): A("s_memrealtime s[98:99]")
    A("v_lshrrev_b32 v1, 6, v0")
    A("v_and_b32 v2, 63, v0")
    A("v_readfirstlane_b32 s3, v1")
    A("v_mov_b32 v3, 0"); A("v_mov_b32 v4, 1")
    A("v_and_b32 v5, 15, v2"); A("v_lshrrev_b32 v6, 4, v2")
    for d, n in ((28, 67108864), (32, 67108864), (44, 4194304), (48, 1835008), (52, 268435456), (56, 8192), (60, 8192)):
        A(f"s_mov_b32 s{d+2}, {n}"); A(f"s_mov_b32 s{d+3}, 0x00020000")
    A("s_mov_b32 s39, 0x00020000")
    A("s_and_b32 s70, s2, 7")
    A("s_lshr_b32 s71, s2, 3")
    A("s_lshr_b32 s72, s71, 2")
    A("s_and_b32 s73, s71, 3")
    A("s_lshl_b32 s74, s70, 2"); A("s_lshr_b32 s68, s71, 3"); A("s_add_u32 s74, s74, s68")
    A("s_and_b32 s75, s71, 7")
    A("s_lshl_b32 s64, s72, 3"); A("s_add_u32 s64, s64, s70"); A("s_lshl_b32 s64, s64, 20")
    A("s_lshl_b32 s68, s73, 16"); A("s_add_u32 s64, s64, s68"); A(f"s_add_u32 s64, s64, {3072*256}")
    A("s_cmp_ge_u32 s3, 4"); A("s_cbranch_scc1 L_H")

    KR = 16; QF = 80; SR = 96; PP = 112; ACC = 120
    PBF = 16
    VF = 48
    A("s_lshl_b32 s68, s3, 14"); A("s_add_u32 s76, s64, s68")
    for i in range(1, 4):
        A(f"s_add_u32 s{76+i}, s76, {i*4096}")
    A("v_lshlrev_b32 v7, 8, v5"); A("v_lshl_add_u32 v7, v6, 4, v7")
    A("s_waitcnt lgkmcnt(0)")
    for d, b in ((28, 6), (52, 26), (56, 4), (60, 22)):
        A(f"s_mov_b32 s{d}, s{b}"); A(f"s_mov_b32 s{d+1}, s{b+1}")
    A("s_barrier")
    if kdelay:
        g.flag_wait(F_W, 2, 3, 10)
    n = 0
    for T in range(4):
        for t in range(4):
            r = KR + (T*4 + t)*4
            if g.thr and n >= g.thr: A(f"s_waitcnt vmcnt({g.thr-1})")
            A(f"buffer_load_dwordx4 v[{r}:{r+3}], v7, s[28:31], s{76+T} offen offset:{t*64} {g.ntkv}"); n += 1
            if n == kv: g.flag_add(F_K2, 3, 4)
            if n == kq: g.flag_add(F_K, 3, 4)
    g.stamp(1)
    if cut:
        A("s_waitcnt vmcnt(0)"); g.stamp(2); A("s_branch L_fin")
    A(f"s_mov_b32 s78, 0x{f32bits(LOG2E * (128 ** -0.5)):08x}")
    A("v_and_b32 v11, 3, v2")
    A("v_lshlrev_b32 v12, 8, v11"); A("v_lshl_add_u32 v12, v6, 4, v12")
    A("v_lshlrev_b32 v13, 4, v11")
    A("s_lshl_b32 s68, s3, 2"); A("v_add_u32 v14, s68, v13")
    A(f"v_mul_u32_u24 v8, {PLP}, v11"); A("v_lshl_add_u32 v9, v6, 4, v8")
    A("v_lshl_add_u32 v8, v6, 3, v8"); A("s_lshl_b32 s68, s3, 7"); A("v_add_u32 v8, s68, v8")
    A("v_lshrrev_b32 v124, 2, v5")
    A("v_and_b32 v125, 1, v6"); A("v_lshl_add_u32 v125, v125, 2, v124"); A("v_lshlrev_b32 v125, 1, v125")
    A("v_lshrrev_b32 v126, 1, v11"); A("s_lshl_b32 s68, s3, 2"); A("v_add_u32 v126, s68, v126"); A("v_xor_b32 v126, v126, v125")
    A("v_lshlrev_b32 v126, 4, v126"); A("v_and_b32 v125, 1, v2"); A("v_lshl_add_u32 v126, v125, 3, v126")
    A("v_lshl_add_u32 v125, v6, 3, v124"); A("v_lshl_add_u32 v126, v125, 8, v126")
    A("v_xor_b32 v127, 32, v126")
    A(f"v_add_u32 v126, {VT}, v126"); A(f"v_add_u32 v127, {VT}, v127")
    A("v_lshlrev_b32 v125, 6, v11"); A("v_lshl_add_u32 v125, v6, 4, v125")
    A("s_lshl_b32 s79, s70, 2"); A("s_add_u32 s79, s79, s73"); A("s_lshl_b32 s79, s79, 3"); A("s_add_u32 s79, s79, s72")
    A("s_lshl_b32 s79, s79, 2"); A("s_add_u32 s79, s79, s3"); A("s_lshl_b32 s79, s79, 8"); A(f"s_add_u32 s79, s79, {O_OFF}")
    g.flag_wait(F_Q, 1, 3, 10)
    g.stamp(2)
    for t in range(4):
        A(f"ds_read_b128 v[{QF+4*t}:{QF+4*t+3}], v12 offset:{QL + t*64}")
    A("s_waitcnt lgkmcnt(0)")
    for T in range(4):
        A(f"s_waitcnt vmcnt({12 - 4*T})")
        for t in range(4):
            r = KR + (T*4 + t)*4
            cc = "0" if t == 0 else f"v[{SR+4*T}:{SR+4*T+3}]"
            A(f"v_mfma_f32_16x16x32_bf16 v[{SR+4*T}:{SR+4*T+3}], v[{r}:{r+3}], v[{QF+4*t}:{QF+4*t+3}], {cc}")
    nop(4)
    A(f"v_max3_f32 v10, v{SR}, v{SR+1}, v{SR+2}")
    for i in range(3, 11, 2):
        A(f"v_max3_f32 v10, v10, v{SR+i}, v{SR+i+1}")
    A(f"v_max_f32 v10, v10, v{SR+11}")
    A(f"v_max3_f32 v10, v10, v{SR+12}, v{SR+13}")
    A(f"v_max3_f32 v10, v10, v{SR+14}, v{SR+15}")
    g.xrow("v_max_f32", [10], [15])
    A("s_mov_b64 exec, 15")
    A(f"ds_write_b32 v14, v10 offset:{MX}")
    g.flag_add(F_MX, 3, 4)
    g.flag_wait(F_MX, 4, 3, 15, sleep=False)
    A(f"ds_read_b128 v[{PP}:{PP+3}], v13 offset:{MX}")
    A("s_waitcnt lgkmcnt(0)")
    A(f"v_max3_f32 v10, v{PP}, v{PP+1}, v{PP+2}"); A(f"v_max_f32 v10, v10, v{PP+3}")
    A("v_mul_f32 v10, s78, v10")
    for i in range(16):
        A(f"v_fma_f32 v{SR+i}, v{SR+i}, s78, -v10")
    for i in range(16):
        A(f"v_exp_f32 v{SR+i}, v{SR+i}")
    nop(1)
    for i in range(8):
        A(f"v_cvt_pk_bf16_f32 v{PP+i}, v{SR+2*i}, v{SR+2*i+1}")
    exec_mask(0x000F000F)
    for T in range(4):
        A(f"ds_write_b64 v8, v[{PP+2*T}:{PP+2*T+1}] offset:{PL + T*32}")
    A("s_mov_b64 exec, -1")
    A(f"v_add_f32 v10, v{SR}, v{SR+1}"); A(f"v_add_f32 v15, v{SR+2}, v{SR+3}")
    for i in range(4, 16, 2):
        A(f"v_add_f32 v10, v10, v{SR+i}"); A(f"v_add_f32 v15, v15, v{SR+i+1}")
    A("v_add_f32 v10, v10, v15")
    g.xrow("v_add_f32", [10], [15])
    A("s_mov_b64 exec, 15")
    A(f"ds_write_b32 v14, v10 offset:{LL}")
    g.flag_add(F_ML, 3, 4)
    g.flag_wait(F_ML, 4, 3, 15, sleep=False)
    for t in range(8):
        A(f"ds_read_b128 v[{PBF+4*t}:{PBF+4*t+3}], v9 offset:{PL + t*64}")
    g.stamp(3)
    A("v_and_b32 v100, 7, v2")
    A("v_lshl_add_u32 v101, v6, 2, v124"); A("v_lshlrev_b32 v101, 7, v101"); A("v_lshl_add_u32 v101, v11, 5, v101")
    A("s_and_b32 s68, s3, 1"); A("s_lshl_b32 s69, s68, 13"); A("v_add_u32 v101, s69, v101")
    A("v_lshlrev_b32 v102, 10, v5"); A("v_lshl_add_u32 v102, v6, 4, v102")
    A("s_lshl_b32 s77, s70, 15"); A("s_lshr_b32 s69, s3, 1"); A("s_lshl_b32 s69, s69, 14"); A("s_add_u32 s77, s77, s69")
    A("s_lshl_b32 s68, s68, 9"); A("s_add_u32 s77, s77, s68")
    A("s_lshr_b32 s68, s71, 3"); A("s_lshl_b32 s68, s68, 6"); A("s_add_u32 s77, s77, s68"); A(f"s_add_u32 s77, s77, {O_OFF}")
    A("v_bfe_u32 v103, v2, 3, 1"); A("s_lshl_b32 s68, s3, 1"); A("v_add_u32 v104, s68, v103"); A("v_mul_u32_u24 v104, 2176, v104")
    A("v_mul_u32_u24 v105, 272, v100"); A("v_add_u32 v104, v104, v105"); A("v_lshl_add_u32 v104, v6, 6, v104")
    A("s_and_b32 s69, s3, 2"); A("v_add_u32 v103, s69, v103"); A("v_lshl_add_u32 v103, v103, 4, v5"); A("v_lshlrev_b32 v103, 2, v103")
    A("v_lshl_add_u32 v108, v100, 2, v6"); A("v_lshlrev_b32 v108, 7, v108")
    A("s_lshl_b32 s65, s70, 12"); A("s_lshr_b32 s69, s71, 3"); A("s_lshl_b32 s69, s69, 3"); A("s_add_u32 s65, s65, s69"); A(f"s_add_u32 s65, s65, {ML_OFF}")
    A("v_lshrrev_b32 v105, 5, v2"); A("v_add_u32 v106, s68, v105"); A("v_mul_u32_u24 v106, 272, v106")
    A("v_and_b32 v107, 31, v2"); A("v_lshl_add_u32 v106, v107, 3, v106")
    A("v_lshlrev_b32 v105, 10, v105"); A("v_lshl_add_u32 v105, v107, 2, v105")
    A("s_lshl_b32 s78, s74, 3"); A("s_add_u32 s78, s78, s68"); A("s_lshl_b32 s78, s78, 10")
    A("s_lshl_b32 s69, s75, 7"); A("s_add_u32 s78, s78, s69"); A(f"s_add_u32 s78, s78, {SP_OFF}")
    A(f"s_add_u32 s66, s79, {DUP}"); A(f"s_add_u32 s67, s77, {DUP}"); A(f"s_add_u32 s40, s65, {DUP}")
    A("s_mov_b32 s76, 0")
    A("s_waitcnt lgkmcnt(0)")
    def pv_mfma(t):
        vf = 128 + (t & 3)*8
        for nt in range(2):
            acc = 64 + 4*nt
            cc = "0" if t == 0 else f"v[{acc}:{acc+3}]"
            A(f"v_mfma_f32_16x16x32_bf16 v[{acc}:{acc+3}], v[{vf+4*nt}:{vf+4*nt+3}], v[{PBF+4*t}:{PBF+4*t+3}], {cc}")
    for t in range(8):
        lw = g.newlab("VW"); lr = g.newlab("VR")
        A(f"s_cmp_gt_u32 s76, {t}"); A(f"s_cbranch_scc1 {lr}")
        A("s_mov_b32 s15, 0x400000")
        lab(lw)
        A(f"ds_read_b64 v[{SR}:{SR+1}], v3 offset:{F_V0}")
        A("s_waitcnt lgkmcnt(0)")
        A(f"v_add_u32 v{SR+1}, 7, v{SR+1}")
        A(f"v_min_u32 v{SR}, v{SR}, v{SR+1}")
        A("s_sub_u32 s15, s15, 1")
        A(f"v_readfirstlane_b32 s76, v{SR}")
        A("s_cmp_eq_u32 s15, 0"); A(f"s_cbranch_scc1 {lr}")
        A(f"s_cmp_gt_u32 s76, {t}"); A(f"s_cbranch_scc0 {lw}")
        lab(lr)
        vf = 128 + (t & 3)*8
        for nt in range(2):
            A(f"ds_read_b64_tr_b16 v[{vf+4*nt}:{vf+4*nt+1}], v{126+nt} offset:{t*8192}")
            A(f"ds_read_b64_tr_b16 v[{vf+4*nt+2}:{vf+4*nt+3}], v{126+nt} offset:{t*8192 + 1024}")
        if t >= 2:
            A("s_waitcnt lgkmcnt(8)")
            pv_mfma(t - 2)
    A("s_waitcnt lgkmcnt(4)")
    pv_mfma(6)
    A("s_waitcnt lgkmcnt(0)")
    pv_mfma(7)
    g.stamp(4)
    exec_mask(0x000F000F)
    nop(5)
    A("v_cvt_pk_bf16_f32 v72, v64, v65"); A("v_cvt_pk_bf16_f32 v73, v66, v67")
    A("v_cvt_pk_bf16_f32 v74, v68, v69"); A("v_cvt_pk_bf16_f32 v75, v70, v71")
    for e in range(4): A(f"v_min_u32 v{72+e}, -2, v{72+e}")
    A("buffer_store_dwordx4 v[72:75], v125, s[52:55], s66 offen")
    A("buffer_store_dwordx4 v[72:75], v125, s[52:55], s79 offen sc1")
    A("s_mov_b64 exec, -1")
    g.stamp(5)
    AF = 64
    def oloads(so, sm):
        return [f"buffer_load_dwordx4 v[{AF}:{AF+3}], v102, s[52:55], s{so} offen sc1",
                f"buffer_load_dwordx4 v[{AF+4}:{AF+7}], v102, s[52:55], s{so} offen offset:256 sc1",
                f"buffer_load_dwordx2 v[76:77], v108, s[52:55], s{sm} offen sc1"]
    for l_ in oloads(67, 40): A(l_)
    g.flag_wait(F_WO, 1, 3, 10, sleep=False)
    BF = 32
    for nt in range(4):
        for t in range(2):
            r = BF + (nt*2 + t)*4
            off = WOT + t*4096 + nt*8
            A(f"ds_read_b64_tr_b16 v[{r}:{r+1}], v101 offset:{off}")
            A(f"ds_read_b64_tr_b16 v[{r+2}:{r+3}], v101 offset:{off + 2048}")
    l0 = g.newlab("OP"); l1 = g.newlab("OC"); ld = g.newlab("OD"); lb = g.newlab("OB")
    A("s_mov_b32 s15, 0x40000")
    A(f"s_branch {l1}")
    lab(l0)
    A(f"s_and_b32 s14, s15, {int(bmask)}"); A("s_cmp_eq_u32 s14, 0"); A(f"s_cbranch_scc1 {lb}")
    for l_ in oloads(67, 40): A(l_)
    A(f"s_branch {l1}")
    lab(lb)
    for l_ in oloads(77, 65): A(l_)
    lab(l1)
    A("s_waitcnt vmcnt(0)")
    A(f"v_max3_u32 v10, v{AF}, v{AF+1}, v{AF+2}"); A(f"v_max3_u32 v15, v{AF+3}, v{AF+4}, v{AF+5}")
    A(f"v_max3_u32 v10, v10, v{AF+6}, v{AF+7}"); A("v_max3_u32 v15, v15, v76, v77"); A("v_max_u32 v10, v10, v15")
    A("v_cmp_eq_u32 vcc, -1, v10")
    A("s_and_b64 exec, exec, vcc"); A(f"s_cbranch_scc0 {ld}")
    if int(osleep): A(f"s_sleep {int(osleep)}")
    A("s_sub_u32 s15, s15, 1"); A("s_cmp_lg_u32 s15, 0"); A(f"s_cbranch_scc1 {l0}")
    lab(ld)
    A("s_mov_b64 exec, -1")
    A("s_waitcnt lgkmcnt(0)")
    g.stamp(6)
    DW = 80
    for t in range(2):
        for nt in range(4):
            r = BF + (nt*2 + t)*4
            cc = "0" if t == 0 else f"v[{DW+4*nt}:{DW+4*nt+3}]"
            A(f"v_mfma_f32_16x16x32_bf16 v[{DW+4*nt}:{DW+4*nt+3}], v[{r}:{r+3}], v[{AF+4*t}:{AF+4*t+3}], {cc}")
    A("v_mov_b32 v78, v76")
    g.xrow("v_max_f32", [78], [79])
    A("v_sub_f32 v76, v76, v78")
    A("v_exp_f32 v76, v76")
    nop(1)
    A("v_mul_f32 v77, v76, v77")
    A("ds_bpermute_b32 v76, v103, v76")
    g.xrow("v_add_f32", [77], [79])
    A("v_rcp_f32 v77, v77")
    A("s_waitcnt lgkmcnt(0)")
    A("v_mul_f32 v76, v76, v77"); A("v_mov_b32 v77, v76")
    for nt in range(4):
        A(f"v_pk_mul_f32 v[{DW+4*nt}:{DW+4*nt+1}], v[{DW+4*nt}:{DW+4*nt+1}], v[76:77]")
        A(f"v_pk_mul_f32 v[{DW+4*nt+2}:{DW+4*nt+3}], v[{DW+4*nt+2}:{DW+4*nt+3}], v[76:77]")
        A(f"ds_write_b128 v104, v[{DW+4*nt}:{DW+4*nt+3}] offset:{RED + nt*16}")
    A("s_waitcnt lgkmcnt(0)")
    A("s_barrier")
    for p in range(8):
        A(f"ds_read_b64 v[{32+2*p}:{33+2*p}], v106 offset:{RED + p*2176}")
    A("s_waitcnt lgkmcnt(4)") if (not stamps or only) else A("s_waitcnt lgkmcnt(0)")
    A("v_pk_add_f32 v[32:33], v[32:33], v[34:35]"); A("v_pk_add_f32 v[36:37], v[36:37], v[38:39]")
    A("v_pk_add_f32 v[32:33], v[32:33], v[36:37]")
    A("s_waitcnt lgkmcnt(0)")
    A("v_pk_add_f32 v[40:41], v[40:41], v[42:43]"); A("v_pk_add_f32 v[44:45], v[44:45], v[46:47]")
    A("v_pk_add_f32 v[40:41], v[40:41], v[44:45]")
    A("v_pk_add_f32 v[32:33], v[32:33], v[40:41]")
    A("v_cvt_pk_bf16_f32 v32, v32, v33")
    A("v_min_u32 v32, -2, v32")
    A("buffer_store_dword v32, v105, s[52:55], s78 offen sc1")
    g.stamp(7)
    A("s_cmp_ge_u32 s3, 2"); A("s_cbranch_scc1 L_fin")
    A("s_lshr_b32 s68, s2, 5"); A("s_lshl_b32 s68, s68, 10"); A("s_and_b32 s69, s2, 31"); A("s_lshl_b32 s69, s69, 5")
    A("s_add_u32 s76, s68, s69")
    A("v_lshrrev_b32 v17, 1, v2"); A("v_and_b32 v16, 1, v2")
    A("v_lshlrev_b32 v19, 4, v16"); A("v_mov_b32 v20, 0x3f80"); A("v_lshlrev_b32 v20, v19, v20")
    A("v_bfe_u32 v19, v2, 1, 2")
    for e in range(4):
        A(f"v_cmp_eq_u32 vcc, {e}, v19")
        nop(2)
        A(f"v_cndmask_b32 v{40+e}, 0, v20, vcc")
    A("v_lshlrev_b32 v21, 4, v16"); A("v_lshl_add_u32 v21, v6, 3, v21")
    A("s_cmp_eq_u32 s3, 1"); A("s_cbranch_scc1 L_fg")
    A("v_lshlrev_b32 v17, 13, v17"); A("v_lshl_add_u32 v17, v16, 4, v17")
    A(f"s_add_u32 s77, s76, {SP_OFF}")
    A("buffer_load_dwordx2 v[44:45], v21, s[56:59], s76 offen")
    g.poll(["buffer_load_dwordx4 v[32:35], v17, s[52:55], s77 offen sc1"], [32, 33, 34, 35], 10)
    g.stamp(8)
    def red_final():
        A("v_mfma_f32_16x16x32_bf16 v[36:39], v[40:43], v[32:35], 0")
        nop(8)
        for mod in ("row_ror:2", "row_ror:4", "row_ror:8"):
            for r in range(4):
                A(f"v_add_f32_dpp v{36+r}, v{36+r}, v{36+r} {mod} row_mask:0xf bank_mask:0xf")
    red_final()
    A("s_barrier")
    A("v_lshlrev_b32 v22, 1, v21")
    A(f"ds_read_b128 v[48:51], v22 offset:{GL}")
    A("v_cvt_pk_bf16_f32 v32, v36, v37"); A("v_cvt_pk_bf16_f32 v33, v38, v39")
    unpack(36, [32, 33])
    unpack(52, [44, 45])
    A("s_waitcnt lgkmcnt(0)")
    A("v_pk_mul_f32 v[36:37], v[36:37], v[48:49]"); A("v_pk_mul_f32 v[38:39], v[38:39], v[50:51]")
    A("v_cvt_pk_bf16_f32 v32, v36, v37"); A("v_cvt_pk_bf16_f32 v33, v38, v39")
    unpack(36, [32, 33])
    A("v_pk_add_f32 v[36:37], v[36:37], v[52:53]"); A("v_pk_add_f32 v[38:39], v[38:39], v[54:55]")
    A("v_cvt_pk_bf16_f32 v32, v36, v37"); A("v_cvt_pk_bf16_f32 v33, v38, v39")
    A("s_mov_b64 exec, 0x30003")
    A("buffer_store_dwordx2 v[32:33], v21, s[60:63], s76 offen")
    A("s_mov_b64 exec, -1")
    g.stamp(9)
    if int(dbgspan):
        A("s_memrealtime s[96:97]")
        A("s_mov_b32 s40, s24"); A("s_mov_b32 s41, s25"); A("s_mov_b32 s42, 256"); A("s_mov_b32 s43, 0x00020000")
        A("s_waitcnt lgkmcnt(0)")
        A("s_sub_u32 s98, 0, s98")
        A("v_mov_b32 v40, s98"); A("v_mov_b32 v41, s96")
        A("s_mov_b64 exec, 1")
        A("buffer_atomic_umax v40, v3, s[40:43], 0 offen sc1")
        A("buffer_atomic_umax v41, v3, s[40:43], 0 offen offset:4 sc1")
        A("s_mov_b64 exec, -1")
    A("s_cmp_lg_u32 s2, 0"); A("s_cbranch_scc1 L_fin")
    A(f"ds_read_b32 v32, v3 offset:{F_EP}")
    A(f"s_mov_b32 s68, {EP_OFF}")
    A("s_waitcnt lgkmcnt(0)")
    A("s_mov_b64 exec, 1")
    A("buffer_store_dword v32, v3, s[52:55], s68 offen sc1")
    A("s_mov_b64 exec, -1")
    A("s_branch L_fin")
    lab("L_fg")
    A("v_min_u32 v17, 27, v17")
    A("v_lshlrev_b32 v17, 13, v17"); A("v_lshl_add_u32 v17, v16, 4, v17")
    A(f"s_add_u32 s77, s76, {FP_OFF}")
    g.poll(["buffer_load_dwordx4 v[32:35], v17, s[52:55], s77 offen sc1"], [32, 33, 34, 35], 10)
    g.stamp(8)
    A("v_cmp_gt_u32 vcc, 56, v2")
    nop(2)
    for r in range(4):
        A(f"v_cndmask_b32 v{32+r}, 0, v{32+r}, vcc")
    nop(1)
    red_final()
    rbf([36, 37, 38, 39])
    silu([36, 37, 38, 39], 48)
    rbf([36, 37, 38, 39])
    A("v_lshlrev_b32 v22, 1, v21")
    A("s_mov_b64 exec, 0x30003")
    A(f"ds_write_b128 v22, v[36:39] offset:{GL}")
    A("s_mov_b64 exec, -1")
    A("s_waitcnt lgkmcnt(0)")
    A("s_barrier")
    g.stamp(9)
    A("s_branch L_fin")

    lab("L_H")
    A("s_cmp_eq_u32 s3, 8"); A("s_cbranch_scc1 L_load")
    A("s_setprio 3")
    A("v_lshlrev_b32 v7, 4, v2")
    A("s_sub_u32 s77, s3, 4")
    A("s_cmp_lg_u32 s3, 7"); A("s_cbranch_scc1 L_noinit")
    A("v_lshlrev_b32 v8, 2, v5")
    A("ds_write_b32 v8, v3")
    lab("L_noinit")
    A("v_lshrrev_b32 v8, 3, v2"); A("v_and_b32 v9, 7, v2"); A("v_lshlrev_b32 v9, 4, v9")
    A("s_lshl_b32 s68, s77, 11")
    A(f"s_mov_b32 s69, 0x{EP_OFF:x}")
    A("s_waitcnt lgkmcnt(0)")
    A("s_load_dword s79, s[26:27], s69")
    for d, b in ((32, 8), (44, 12), (48, 20), (52, 26), (56, 4)):
        A(f"s_mov_b32 s{d}, s{b}"); A(f"s_mov_b32 s{d+1}, s{b+1}")
    XR = 16
    for r in range(2):
        A(f"buffer_load_dwordx4 v[{XR+4*r}:{XR+4*r+3}], v7, s[56:59], s68 offen offset:{r*1024}")
    A("s_cmp_ge_u32 s3, 6"); A("s_cbranch_scc1 L_SX0")
    A("s_cmp_eq_u32 s3, 5"); A("s_cbranch_scc1 L_G1")
    A("s_mov_b32 s36, s10"); A("s_mov_b32 s37, s11"); A("s_mov_b32 s38, 4194304")
    A("s_lshl_b32 s76, s70, 3"); A("s_add_u32 s76, s76, s72"); A("s_lshl_b32 s76, s76, 7")
    A("s_movk_i32 s69, 8192")
    A("s_lshl_b32 s78, s73, 17"); A("s_lshl_b32 s68, s76, 4"); A("s_add_u32 s78, s78, s68")
    A(f"s_add_u32 s78, s78, {QP_OFF}")
    A("s_branch L_GJ")
    lab("L_G1")
    A("s_cmp_eq_u32 s70, 7"); A("s_cbranch_scc1 L_LN0")
    A("s_bitcmp1_b32 s71, 2")
    A("s_cselect_b32 s36, s18, s16"); A("s_cselect_b32 s37, s19, s17"); A("s_mov_b32 s38, 1835008")
    A("s_lshl_b32 s76, s74, 7")
    A("s_movk_i32 s69, 3584")
    A("s_and_b32 s78, s71, 7"); A(f"s_mul_i32 s78, s78, {28*2048}"); A("s_lshl_b32 s68, s76, 4"); A("s_add_u32 s78, s78, s68")
    A(f"s_add_u32 s78, s78, {GP_OFF}")
    lab("L_GJ")
    A("v_mul_lo_u32 v10, v8, s69"); A("v_add_u32 v10, v10, v9")
    A("s_lshl_b32 s68, s73, 7"); A("s_mul_i32 s68, s68, s69"); A("s_add_u32 s100, s76, s68")
    A("s_lshl_b32 s101, s69, 3")
    A("s_lshl_b32 s68, s77, 14"); A(f"s_add_u32 s68, s68, {W1T}")
    for i in range(16):
        A("s_mov_b32 m0, s68")
        A("s_add_u32 s68, s68, 1024")
        A(f"buffer_load_dwordx4 v10, s[36:39], s100 offen {g.ntw} lds")
        A("s_add_u32 s100, s100, s101")
    A("s_barrier")
    A("s_waitcnt vmcnt(16)")
    A("s_branch L_LN")
    lab("L_SX0")
    A("s_cmp_eq_u32 s3, 7"); A("s_cbranch_scc1 L_LN0")
    if int(noclr): A("s_branch L_LN0")
    for r in range(4):
        A(f"v_mov_b32 v{24+r}, -1")
    A("s_lshl_b32 s68, s70, 2"); A("s_add_u32 s68, s68, s73"); A("s_lshl_b32 s68, s68, 3"); A("s_add_u32 s68, s68, s72")
    A("s_lshl_b32 s68, s68, 10"); A(f"s_add_u32 s68, s68, {O_OFF}")
    A("buffer_store_dwordx4 v[24:27], v7, s[52:55], s68 offen sc1")
    A(f"s_add_u32 s68, s68, {DUP}")
    A("buffer_store_dwordx4 v[24:27], v7, s[52:55], s68 offen sc1")
    A("v_lshl_add_u32 v10, v8, 10, v9")
    A("s_lshl_b32 s68, s74, 13"); A("s_lshl_b32 s69, s75, 7"); A("s_add_u32 s68, s68, s69")
    A(f"s_add_u32 s69, s68, {SP_OFF}")
    A("buffer_store_dwordx4 v[24:27], v10, s[52:55], s69 offen sc1")
    A("s_cmp_eq_u32 s70, 7"); A("s_cbranch_scc1 L_nofp")
    A(f"s_add_u32 s69, s68, {FP_OFF}")
    A("buffer_store_dwordx4 v[24:27], v10, s[52:55], s69 offen sc1")
    lab("L_nofp")
    A("s_lshl_b32 s68, s70, 5"); A("s_add_u32 s68, s68, s71"); A("s_lshl_b32 s68, s68, 7"); A(f"s_add_u32 s68, s68, {ML_OFF}")
    A("s_mov_b64 exec, 3")
    A("buffer_store_dwordx4 v[24:27], v7, s[52:55], s68 offen sc1")
    A(f"s_add_u32 s68, s68, {DUP}")
    A("buffer_store_dwordx4 v[24:27], v7, s[52:55], s68 offen sc1")
    A("s_mov_b64 exec, -1")
    A("s_barrier")
    A("s_waitcnt vmcnt(5)")
    A("s_cmp_eq_u32 s70, 7"); A("s_cbranch_scc1 L_LN")
    A("s_nop 0")
    A("s_branch L_LN") if False else None
    A("s_waitcnt vmcnt(4)") if False else None
    A("s_branch L_LN")
    lab("L_LN0")
    A("s_barrier")
    A("s_waitcnt vmcnt(0)")
    lab("L_LN")
    if cut == 1:
        g.flag_add(F_W, 3, 4); A("s_branch L_fin")
    XF = 32
    for r in range(2):
        unpack(XF + 8*r, [XR + 4*r + e for e in range(4)])
    SM = 64
    for r in range(2):
        A(f"v_add_f32 v{SM+r}, v{XF+8*r}, v{XF+8*r+1}"); A(f"v_add_f32 v{SM+2+r}, v{XF+8*r+2}, v{XF+8*r+3}")
    for e in range(4, 8, 2):
        for r in range(2):
            A(f"v_add_f32 v{SM+r}, v{SM+r}, v{XF+8*r+e}"); A(f"v_add_f32 v{SM+2+r}, v{SM+2+r}, v{XF+8*r+e+1}")
    for r in range(2):
        A(f"v_add_f32 v{SM+r}, v{SM+r}, v{SM+2+r}")
    g.allreduce64("v_add_f32", [SM, SM+1], [SM+4, SM+5])
    A(f"s_mov_b32 s68, 0x{f32bits(1.0/512):08x}")
    for r in range(2):
        A(f"v_mul_f32 v{SM+r}, s68, v{SM+r}")
    VS = 72
    for e in range(8):
        for r in range(2):
            A(f"v_sub_f32 v{80+2*(e&1)+r}, v{XF+8*r+e}, v{SM+r}")
        for r in range(2):
            t_ = 80+2*(e&1)+r
            if e == 0: A(f"v_mul_f32 v{VS+r}, v{t_}, v{t_}")
            else: A(f"v_fmac_f32 v{VS+r}, v{t_}, v{t_}")
    g.allreduce64("v_add_f32", [VS, VS+1], [VS+4, VS+5])
    for r in range(2):
        A(f"v_mul_f32 v{VS+r}, s68, v{VS+r}")
    rbf([SM, SM+1, VS, VS+1])
    for r in range(2):
        A(f"v_add_f32 v{VS+r}, 0x{f32bits(1e-5):08x}, v{VS+r}")
    rbf([VS, VS+1])
    for r in range(2):
        A(f"v_sqrt_f32 v{VS+r}, v{VS+r}")
    nop(1)
    rbf([VS, VS+1])
    for r in range(2):
        A(f"v_rcp_f32 v{VS+r}, v{VS+r}")
    for r in range(2):
        for e in range(8):
            A(f"v_sub_f32 v{XF+8*r+e}, v{XF+8*r+e}, v{SM+r}")
    for r in range(2):
        for e in range(4):
            A(f"v_cvt_pk_bf16_f32 v{XR+4*r+e}, v{XF+8*r+2*e}, v{XF+8*r+2*e+1}")
    for r in range(2):
        unpack(XF + 8*r, [XR + 4*r + e for e in range(4)])
    for r in range(2):
        for e in range(8):
            A(f"v_mul_f32 v{XF+8*r+e}, v{XF+8*r+e}, v{VS+r}")
    for r in range(2):
        for e in range(4):
            A(f"v_cvt_pk_bf16_f32 v{XR+4*r+e}, v{XF+8*r+2*e}, v{XF+8*r+2*e+1}")
    A(f"s_mul_i32 s68, s77, {2*XNP}"); A("v_lshlrev_b32 v11, 4, v5"); A("v_add_u32 v11, s68, v11")
    A("v_cmp_eq_u32 vcc, s73, v6")
    A("s_and_saveexec_b64 s[68:69], vcc")
    for r in range(2):
        A(f"ds_write_b128 v11, v[{XR+4*r}:{XR+4*r+3}] offset:{XN + r*XNP}")
    g.flag_add(F_XN, 3, 4)
    g.stamp(2)
    A("s_add_u32 s4, s79, 1"); A(f"s_mul_i32 s5, s4, 0x{TAGMUL:x}")
    A("v_lshrrev_b32 v12, 2, v5"); A("v_lshl_add_u32 v12, v6, 3, v12"); A("v_lshlrev_b32 v12, 7, v12")
    A("v_and_b32 v13, 3, v2")
    A("v_and_b32 v14, 7, v2")
    A("s_cmp_ge_u32 s3, 6"); A("s_cbranch_scc1 L_SX1")
    A("s_cmp_lg_u32 s3, 5"); A("s_cbranch_scc1 L_Ggo")
    A("s_cmp_lg_u32 s70, 7"); A("s_cbranch_scc1 L_Ggo")
    g.flag_add(F_W, 3, 4)
    A("s_branch L_G1post")
    lab("L_Ggo")
    A(f"v_mul_u32_u24 v11, {XNP}, v14"); A("v_lshl_add_u32 v11, v6, 4, v11")
    A("v_lshl_add_u32 v12, v13, 3, v12")
    A("s_lshl_b32 s68, s77, 14"); A("v_add_u32 v12, s68, v12")
    A("v_lshlrev_b32 v15, 6, v14"); A("v_lshl_add_u32 v15, v6, 4, v15")
    for nt in range(4):
        A(f"v_mov_b32 v{113+4*nt}, s4"); A(f"v_mov_b32 v{115+4*nt}, s5")
    g.flag_wait(F_XN, 4, 3, 10)
    XB = 16
    for t in range(4):
        A(f"ds_read_b128 v[{XB+4*t}:{XB+4*t+3}], v11 offset:{XN + t*64}")
    WB = 32
    for t in range(4):
        A(f"s_waitcnt vmcnt({12 - 4*t})")
        if t == 3:
            g.flag_add(F_W, 3, 4)
        for nt in range(4):
            r = WB + (t*4 + nt)*4
            off = W1T + t*4096 + nt*32
            A(f"ds_read_b64_tr_b16 v[{r}:{r+1}], v12 offset:{off}")
            A(f"ds_read_b64_tr_b16 v[{r+2}:{r+3}], v12 offset:{off+512}")
        A("s_waitcnt lgkmcnt(0)")
        for nt in range(4):
            r = WB + (t*4 + nt)*4
            d = 96 + nt*4
            cc = "0" if t == 0 else f"v[{d}:{d+3}]"
            A(f"v_mfma_f32_16x16x32_bf16 v[{d}:{d+3}], v[{r}:{r+3}], v[{XB+4*t}:{XB+4*t+3}], {cc}")
    g.stamp(3)
    exec_mask(0x00ff00ff)
    nop(4)
    for nt in range(4):
        A(f"v_cvt_pk_bf16_f32 v{112+4*nt}, v{96+4*nt}, v{97+4*nt}")
        A(f"v_cvt_pk_bf16_f32 v{114+4*nt}, v{98+4*nt}, v{99+4*nt}")
        if not int(nost): A(f"buffer_store_dwordx4 v[{112+4*nt}:{115+4*nt}], v15, s[52:55], s78 offen offset:{nt*512} sc1")
    A("s_mov_b64 exec, -1")
    g.stamp(4)
    lab("L_Gpost")
    A("s_cmp_eq_u32 s3, 5"); A("s_cbranch_scc1 L_G1post")
    A(f"s_mov_b32 s6, {FL_OFF}")
    g.flag_wait(F_K2, 4, 3, 10)
    g.stamp(5)
    A("s_mov_b32 s15, 0x40000")
    lab("L_alpoll")
    A("buffer_load_dwordx4 v[20:23], v7, s[52:55], s6 offen sc1")
    A("buffer_load_dwordx4 v[24:27], v7, s[52:55], s6 offen offset:1024 sc1")
    A("s_waitcnt vmcnt(0)")
    for e in range(4):
        A(f"v_xor_b32 v{28+2*e}, s4, v{20+2*e}"); A(f"v_xor_b32 v{29+2*e}, s5, v{21+2*e}")
    A("v_or3_b32 v28, v28, v29, v30"); A("v_or3_b32 v31, v31, v32, v33"); A("v_or3_b32 v28, v28, v34, v35"); A("v_or_b32 v28, v28, v31")
    A("v_cmp_ne_u32 vcc, 0, v28")
    A("s_and_b64 exec, exec, vcc"); A("s_cbranch_scc0 L_aldone")
    A("s_sleep 4")
    A("s_sub_u32 s15, s15, 1"); A("s_cmp_lg_u32 s15, 0"); A("s_cbranch_scc1 L_alpoll")
    lab("L_aldone")
    g.flag_add(F_TOK, 3, 4)
    g.stamp(6)
    A("s_waitcnt lgkmcnt(0)")
    A("s_branch L_fin")
    lab("L_G1post")
    A("s_waitcnt lgkmcnt(0)")
    A("s_branch L_fin")
    lab("L_load")
    A("s_setprio 2")
    A("v_lshrrev_b32 v8, 3, v2"); A("v_and_b32 v9, 7, v2"); A("v_lshlrev_b32 v9, 4, v9")
    A("v_lshlrev_b32 v16, 1, v6"); A("v_xor_b32 v16, v16, v5"); A("v_xor_b32 v17, 8, v16")
    A("v_lshlrev_b32 v16, 4, v16"); A("v_lshl_add_u32 v16, v6, 8, v16")
    A("v_lshlrev_b32 v17, 4, v17"); A("v_lshl_add_u32 v17, v6, 8, v17")
    A("s_mov_b32 s100, s64")
    A(f"s_mov_b32 s101, {VT}")
    A("v_lshl_add_u32 v18, v8, 10, v9")
    A("s_lshl_b32 s76, s74, 17"); A("s_lshl_b32 s68, s75, 7"); A("s_add_u32 s76, s76, s68")
    A(f"s_mov_b32 s77, {WOT}")
    A("s_waitcnt lgkmcnt(0)")
    for d, b_ in ((32, 8), (44, 12), (52, 26)):
        A(f"s_mov_b32 s{d}, s{b_}"); A(f"s_mov_b32 s{d+1}, s{b_+1}")
    A("s_barrier")
    if cut == 2:
        A("s_branch L_fin")
    if vdelay:
        g.flag_wait(F_K2, 4, 3, 10)
    g.stamp(5)
    NV = 64; NT = 80
    def publish(k):
        if 0 < k <= NV and k % 8 == 0:
            A(f"v_mov_b32 v20, {k//8}")
            A(f"ds_write_b32 v3, v20 offset:{F_V0}")
    for i in range(NT):
        w_ = vthr if (i < NV or not wolate) else wolate
        if i >= w_:
            A(f"s_waitcnt vmcnt({w_-1})")
            lo = (i - vthr + 1) if i <= NV else (i - 1 - w_ + 2)
            for k in range(max(1, min(i - vthr + 1, i - w_ + 1)), i - w_ + 2):
                if k == i - w_ + 1 or (i == NV and k > i - vthr):
                    publish(k)
        if i < NV:
            A("s_mov_b32 m0, s101")
            A("s_add_u32 s101, s101, 1024")
            A(f"buffer_load_dwordx4 v{16 + ((i >> 1) & 1)}, s[32:35], s100 offen {g.ntkv} lds")
            A("s_add_u32 s100, s100, 1024")
        else:
            A("s_mov_b32 m0, s77")
            A("s_add_u32 s77, s77, 1024")
            A(f"buffer_load_dwordx4 v18, s[44:47], s76 offen {g.ntw} lds")
            A("s_add_u32 s76, s76, 8192")
    g.stamp(6)
    wl = wolate if wolate else vthr
    for k in range(max(8, NT - wl + 1), NV + 1):
        if k % 8 == 0:
            A(f"s_waitcnt vmcnt({NT - k})")
            publish(k)
    A("s_waitcnt vmcnt(0)")
    g.flag_add(F_WO, 3, 4)
    g.stamp(7)
    A("s_waitcnt lgkmcnt(0)")
    A("s_branch L_fin")
    lab("L_SX1")
    A("s_cmp_eq_u32 s3, 7"); A("s_cbranch_scc1 L_X")
    A("v_mov_b32 v16, s4"); A("v_mov_b32 v17, s5")
    A("s_lshl_b32 s7, s2, 3"); A(f"s_add_u32 s7, s7, {FL_OFF}")
    A("s_waitcnt vmcnt(0)")
    A("s_mov_b64 exec, 1")
    A("buffer_store_dwordx2 v[16:17], v3, s[52:55], s7 offen sc1")
    A(f"ds_write_b32 v3, v16 offset:{F_EP}")
    A("s_mov_b64 exec, -1")
    g.stamp(1)
    if cut in (2, 3):
        A("s_branch L_fin")
    A("v_lshrrev_b32 v9, 2, v2"); A("v_lshlrev_b32 v9, 9, v9"); A("v_lshl_add_u32 v9, v13, 4, v9")
    A("s_lshl_b32 s16, s70, 14"); A("s_lshl_b32 s69, s72, 6"); A("s_add_u32 s16, s16, s69"); A(f"s_add_u32 s16, s16, {QP_OFF}")
    for k in range(1, 8):
        A(f"s_add_u32 s{16+k}, s16, {(k>>1)*131072 + (k&1)*8192}")
    A("v_lshlrev_b32 v8, 3, v2")
    A("v_bfe_u32 v12, v2, 3, 2"); A("v_lshlrev_b32 v12, 17, v12"); A("v_lshl_add_u32 v12, v14, 11, v12")
    g.flag_wait(F_K, 4, 3, 10)
    g.stamp(7)
    if int(sample):
        tagpoll([f"buffer_load_dwordx4 v[16:19], v12, s[52:55], s16 offen offset:{3*512+48} sc1"], [16], 10, qsleep)
    g.stamp(8)
    tagpoll([f"buffer_load_dwordx4 v[{16+4*k}:{19+4*k}], v9, s[52:55], s{16+k} offen sc1" for k in range(8)],
            [16+4*k for k in range(8)], 10, qsleep)
    g.stamp(3)
    for k in range(8):
        unpack(48 + 4*k, [16+4*k, 18+4*k])
    for i in range(2):
        for e in range(4):
            A(f"v_add_f32 v{48+4*i+e}, v{48+4*i+e}, v{56+4*i+e}"); A(f"v_add_f32 v{64+4*i+e}, v{64+4*i+e}, v{72+4*i+e}")
    for e in range(8):
        A(f"v_add_f32 v{48+e}, v{48+e}, v{64+e}")
    for e in range(4):
        A(f"v_cvt_pk_bf16_f32 v{16+e}, v{48+2*e}, v{49+2*e}")
    A(f"ds_write_b64 v8, v[16:17] offset:{QL}")
    A(f"ds_write_b64 v8, v[18:19] offset:{QL+512}")
    g.flag_add(F_Q, 3, 4)
    g.stamp(5)
    if cut == 4:
        A("s_branch L_fin")
    A("v_lshlrev_b32 v8, 3, v2"); A("v_lshlrev_b32 v9, 4, v13")
    A("s_lshl_b32 s6, s70, 12"); A(f"s_add_u32 s6, s6, {ML_OFF}")
    A("s_lshl_b32 s68, s71, 7"); A("s_add_u32 s68, s68, s6")
    A(f"s_mov_b32 s78, 0x{f32bits(LOG2E * (128 ** -0.5)):08x}")
    A("v_and_b32 v12, 31, v2"); A("v_lshlrev_b32 v11, 2, v12"); A("v_lshlrev_b32 v12, 7, v12")
    A("s_lshr_b32 s69, s71, 3"); A("s_lshl_b32 s69, s69, 3"); A("s_add_u32 s6, s6, s69")
    g.flag_wait(F_ML, 4, 3, 10)
    A(f"ds_read_b128 v[16:19], v9 offset:{MX}")
    A(f"ds_read_b128 v[20:23], v9 offset:{LL}")
    A("s_waitcnt lgkmcnt(0)")
    A("v_max3_f32 v24, v16, v17, v18"); A("v_max_f32 v24, v24, v19"); A("v_mul_f32 v24, s78, v24")
    A("v_add_f32 v25, v20, v21"); A("v_add_f32 v26, v22, v23"); A("v_add_f32 v25, v25, v26")
    A("v_min_u32 v24, -2, v24"); A("v_min_u32 v25, -2, v25")
    A(f"s_add_u32 s69, s68, {DUP}")
    A("s_mov_b64 exec, 0xffff")
    A("buffer_store_dwordx2 v[24:25], v8, s[52:55], s69 offen")
    A("s_mov_b64 exec, 15")
    A("buffer_store_dwordx2 v[24:25], v8, s[52:55], s68 offen sc1")
    A("s_mov_b64 exec, -1")
    g.stamp(6)
    if stamps:
        A("s_waitcnt vmcnt(0)")
        g.stamp(9)
    A("s_branch L_fin")
    lab("L_X")
    if cut in (2, 3, 4):
        A("s_branch L_fin")
    A("s_cmp_eq_u32 s70, 7"); A("s_cbranch_scc1 L_fin")
    A("v_lshl_add_u32 v12, v13, 5, v12")
    A("v_lshl_add_u32 v10, v8, 10, v9")
    A("s_lshl_b32 s100, s74, 16"); A("s_lshl_b32 s69, s75, 7"); A("s_add_u32 s100, s100, s69")
    A("v_bfe_u32 v15, v2, 3, 1"); A("v_lshrrev_b32 v11, 1, v6"); A("v_lshl_add_u32 v11, v15, 1, v11"); A("v_lshlrev_b32 v11, 9, v11")
    A("v_lshl_add_u32 v11, v14, 6, v11"); A("v_and_b32 v15, 1, v6"); A("v_lshl_add_u32 v11, v15, 5, v11")
    A("s_lshl_b32 s76, s74, 11"); A(f"s_add_u32 s76, s76, {GP_OFF}")
    A("v_lshlrev_b32 v15, 10, v14"); A("v_lshl_add_u32 v15, v6, 5, v15")
    A("s_lshl_b32 s78, s74, 13"); A("s_add_u32 s78, s78, s69"); A(f"s_add_u32 s78, s78, {FP_OFF}")
    for p in range(8):
        A(f"s_add_u32 s{16+p}, s76, {p*28*2048}")
    if int(xtrig) == 0: g.flag_wait(F_K, 4, 3, 9)
    elif int(xtrig) == 1: g.flag_wait(F_Q, 1, 3, 9)
    else: g.flag_wait(F_K2, 4, 3, 9)
    A(f"s_mov_b32 s68, {WDT}")
    for i in range(8):
        A("s_mov_b32 m0, s68")
        A("s_add_u32 s68, s68, 1024")
        A(f"buffer_load_dwordx4 v10, s[48:51], s100 offen {g.ntw} lds")
        A("s_add_u32 s100, s100, 8192")
    lds_ = []
    for p in range(8):
        lds_.append(f"buffer_load_dwordx4 v[{16+8*p}:{19+8*p}], v11, s[52:55], s{16+p} offen sc1")
        lds_.append(f"buffer_load_dwordx4 v[{20+8*p}:{23+8*p}], v11, s[52:55], s{16+p} offen offset:16 sc1")
    tagpoll(lds_, [16+4*k for k in range(16)], 8, qsleep)
    g.stamp(5)
    WD = 128
    for p in range(8):
        unpack(80 + 8*p, [16+8*p, 18+8*p, 20+8*p, 22+8*p])
    for mat in range(2):
        b0 = 80 + mat*32
        for e in range(8):
            A(f"v_add_f32 v{b0+e}, v{b0+e}, v{b0+8+e}"); A(f"v_add_f32 v{b0+16+e}, v{b0+16+e}, v{b0+24+e}")
        for e in range(8):
            A(f"v_add_f32 v{b0+e}, v{b0+e}, v{b0+16+e}")
    for t in range(2):
        for nt in range(4):
            r = WD + (t*4 + nt)*4
            off = WDT + t*4096 + nt*8
            A(f"ds_read_b64_tr_b16 v[{r}:{r+1}], v12 offset:{off}")
            A(f"ds_read_b64_tr_b16 v[{r+2}:{r+3}], v12 offset:{off+512}")
    rbf(list(range(80, 88)) + list(range(112, 120)))
    silu(list(range(80, 88)), 88)
    rbf(list(range(80, 88)))
    for e in range(8):
        A(f"v_mul_f32 v{80+e}, v{80+e}, v{112+e}")
    for e in range(4):
        A(f"v_cvt_pk_bf16_f32 v{16+e}, v{80+2*e}, v{81+2*e}")
    A("s_waitcnt lgkmcnt(0)")
    nop(1)
    for t in range(2):
        for nt in range(4):
            r = WD + (t*4 + nt)*4
            d = 32 + t*16 + nt*4
            A(f"v_mfma_f32_16x16x32_bf16 v[{d}:{d+3}], v[{r}:{r+3}], v[16:19], 0")
    nop(8)
    for e in range(16):
        A(f"v_add_f32_dpp v{32+e}, v{48+e}, v{32+e} row_ror:8 row_mask:0xf bank_mask:0xf")
    for e in range(8):
        A(f"v_cvt_pk_bf16_f32 v{64+e}, v{32+2*e}, v{33+2*e}")
    for e in range(8):
        A(f"v_min_u32 v{64+e}, -2, v{64+e}")
    g.flag_wait(F_Q, 1, 3, 9)
    exec_mask(0x00ff00ff)
    A("buffer_store_dwordx4 v[64:67], v15, s[52:55], s78 offen sc1")
    A("buffer_store_dwordx4 v[68:71], v15, s[52:55], s78 offen offset:16 sc1")
    A("s_mov_b64 exec, -1")
    g.stamp(6)
    lab("L_fin")
    g.stamp_flush()
    lab("L_end")
    A("s_endpgm")
    tail = ['.section .rodata,"a"', ".p2align 6", f".amdhsa_kernel {KN}",
            "  .amdhsa_next_free_vgpr 168", "  .amdhsa_next_free_sgpr 102", "  .amdhsa_accum_offset 168",
            "  .amdhsa_group_segment_fixed_size 0", "  .amdhsa_kernarg_size 96", "  .amdhsa_user_sgpr_count 2",
            "  .amdhsa_user_sgpr_kernarg_segment_ptr 1", "  .amdhsa_system_sgpr_workgroup_id_x 1",
            "  .amdhsa_float_denorm_mode_32 3",
            ".end_amdhsa_kernel"]
    return "\n".join(hdr + g.L + tail) + "\n"

if __name__ == "__main__":
    out = sys.argv[1] if len(sys.argv) > 1 else "recurrent_scan__sliding_block_cached__swiglu_ffn__decode.s"
    stamps = "--stamps" in sys.argv
    kw = {}
    for a in sys.argv[2:]:
        if "=" in a:
            k, v = a.split("=", 1); kw[k] = v
    open(out, "w").write(build(stamps=stamps, **kw))
```

```python
import sys, struct
from gen import G, f32bits, KN

QP_OFF = 0x00000
GP_OFF = 0x80000
O_OFF = 0xF0000
ML_OFF = 0x1C0000
SP_OFF = 0x132000
FP_OFF = 0x172000
FL_OFF = 0x1B0000
EP_OFF = 0x1B8000
TAGMUL = 0x9E3779B1
MLD_OFF = 0x3E0000
DUP = 0x200000
STAMP_OFF = 0x1000000
F_XN, F_Q, F_W, F_MX, F_ML, F_K, F_V0, F_V1, F_PUB, F_K2, F_WO, F_WT, F_WD, F_EP = 0, 4, 8, 12, 16, 20, 24, 28, 32, 36, 40, 44, 48, 60
F_TOK = F_V1
F_GD = 52
WDT2 = 30720 + 20480
WT = 2432
MX = 64; LL = 128; GL = 192
XN = 256; XNP = 272
QL = 2560
PL = 3584; PLP = 528
WOT = 6144
WDT = 22528
W1T = 30720
RED = W1T
VT = 63488
LDS_BYTES = 129024
LOG2E = 1.4426950408889634

def build(stamps=False, ntkv="nt", ntw="nt", thr=8, vthr=48, kdelay=0, vdelay=1, qsleep=2, cut=0, sample=0, dyn=1, vthr2=40, noclr=0, nost=0, kq=13, kv=16, wolate=0, dbgspan=0, mlchunk=6, xtrig=0, osleep=0, mlsleep=2, only='', bmask=7, qdual=0, dlate=0, tailst=0, olate=1, mlrep=1, dshift=0, spx4=1):
    dshift = int(dshift)
    tailst = int(tailst)
    kq = int(kq); kv = int(kv); wolate = int(wolate)
    g = G(stamps, ntkv, ntw, thr)
    g.nwaves = 9
    g.only = [int(c) for c in only] if only else None
    vthr = int(vthr); kdelay = int(kdelay); vdelay = int(vdelay); qsleep = int(qsleep); cut = int(cut)
    A = g.A; lab = g.lab; nop = g.nop
    hdr = ["; Fused decode block: LN -> (GQA attention over the last 1024 cached keys -> wo) * silu(SwiGLU FFN) + x",
           "; kernarg: x, k_cache, v_cache, wq, wo, B_x(unused), w_gate, w_up, w_down, out, debug, ws (8-byte pointers)",
           "; One persistent launch, 256 workgroups x 9 waves (generated by gen/gen18.py):",
           ";   waves 0-3 attention + wo stage + final, 4/5 q / gate-up split-K tiles, 6 sync + q gather,",
           ";   7 down projection, 8 V / wo LDS-DMA loader.  Hand-offs go through ws: launch-tagged granules",
           ";   (tag = epoch word + 1) or sentinel words cleared by their producer and confirmed by tagged tokens.",
           f"; @launch grid=(256,1,1) block=(576,1,1) lds={LDS_BYTES}",
           '.amdgcn_target "amdgcn-amd-amdhsa--gfx950"', ".text", f".globl {KN}", ".p2align 8",
           f".type {KN},@function", f"{KN}:"]
    def rbf(regs):
        for r in regs: A(f"v_cvt_pk_bf16_f32 v{r}, v{r}, v{r}")
        for r in regs: A(f"v_and_b32 v{r}, 0xffff0000, v{r}")
    def unpack(dst, srcs):
        for e, sr in enumerate(srcs):
            A(f"v_lshlrev_b32 v{dst+2*e}, 16, v{sr}")
            A(f"v_and_b32 v{dst+2*e+1}, 0xffff0000, v{sr}")
    def silu(regs, tmp):
        A(f"s_mov_b32 s68, 0x{f32bits(-LOG2E):08x}")
        for i, r in enumerate(regs): A(f"v_mul_f32 v{tmp+i}, s68, v{r}")
        for i, r in enumerate(regs): A(f"v_exp_f32 v{tmp+i}, v{tmp+i}")
        nop(1)
        for i, r in enumerate(regs): A(f"v_add_f32 v{tmp+i}, 1.0, v{tmp+i}")
        for i, r in enumerate(regs): A(f"v_rcp_f32 v{tmp+i}, v{tmp+i}")
        nop(1)
        for i, r in enumerate(regs): A(f"v_mul_f32 v{r}, v{r}, v{tmp+i}")
    def exec_mask(m):
        A(f"s_mov_b32 exec_lo, 0x{m:08x}"); A(f"s_mov_b32 exec_hi, 0x{m:08x}")
    def tagpoll(loads, quads, vt, sleep, vaddr=None):
        l = g.newlab("TP"); d = g.newlab("TD")
        A("s_mov_b32 s15, 0x3ffff")
        if vaddr is not None and int(qdual):
            A(f"v_add_u32 v{vaddr}, 0x{DUP:x}, v{vaddr}")
        lab(l)
        for s_ in loads: A(s_)
        if vaddr is not None and int(qdual):
            A("s_and_b32 s14, s15, 3"); A("s_cmp_lt_u32 s14, 2")
            A(f"s_cselect_b32 s14, 0x{DUP:x}, 0")
            A(f"v_xor_b32 v{vaddr}, s14, v{vaddr}")
        A("s_waitcnt vmcnt(0)")
        first = True
        for q in quads:
            if first:
                A(f"v_xor_b32 v{vt}, s4, v{q+1}"); first = False
            else:
                A(f"v_xor_b32 v{vt+1}, s4, v{q+1}"); A(f"v_or_b32 v{vt}, v{vt}, v{vt+1}")
            A(f"v_xor_b32 v{vt+1}, s5, v{q+3}"); A(f"v_or_b32 v{vt}, v{vt}, v{vt+1}")
        A(f"v_cmp_ne_u32 vcc, 0, v{vt}")
        A("s_and_b64 exec, exec, vcc"); A(f"s_cbranch_scc0 {d}")
        if sleep: A(f"s_sleep {sleep}")
        A("s_sub_u32 s15, s15, 1"); A("s_cmp_lg_u32 s15, 0"); A(f"s_cbranch_scc1 {l}")
        lab(d)
        A("s_mov_b64 exec, -1")
    def down_ids(skb, scg, none):
        if dshift:
            A("s_cmp_ge_u32 s70, 4"); A(f"s_cbranch_scc1 {none}")
            A("s_cmp_ge_u32 s71, 28"); A(f"s_cbranch_scc1 {none}")
            A(f"s_mul_i32 s{scg}, s70, 28"); A(f"s_add_u32 s{scg}, s{scg}, s71")
            A(f"s_lshr_b32 s{skb}, s{scg}, 2"); A(f"s_and_b32 s{scg}, s{scg}, 3"); A(f"s_lshl_b32 s{scg}, s{scg}, 1")
        else:
            A("s_cmp_eq_u32 s70, 7"); A(f"s_cbranch_scc1 {none}")
            A(f"s_mov_b32 s{skb}, s74"); A(f"s_mov_b32 s{scg}, s75")
    A("s_cmp_ge_u32 s2, 256"); A("s_cbranch_scc1 L_end")
    A("s_load_dwordx16 s[4:19], s[0:1], 0")
    A("s_load_dwordx8 s[20:27], s[0:1], 64")
    g.stamp(0)
    if int(dbgspan): A("s_memrealtime s[98:99]")
    A("v_lshrrev_b32 v1, 6, v0")
    A("v_and_b32 v2, 63, v0")
    A("v_readfirstlane_b32 s3, v1")
    A("v_mov_b32 v3, 0"); A("v_mov_b32 v4, 1")
    A("v_and_b32 v5, 15, v2"); A("v_lshrrev_b32 v6, 4, v2")
    for d, n in ((28, 67108864), (32, 67108864), (44, 4194304), (48, 1835008), (52, 268435456), (56, 8192), (60, 8192)):
        A(f"s_mov_b32 s{d+2}, {n}"); A(f"s_mov_b32 s{d+3}, 0x00020000")
    A("s_mov_b32 s39, 0x00020000")
    A("s_and_b32 s70, s2, 7")
    A("s_lshr_b32 s71, s2, 3")
    A("s_lshr_b32 s72, s71, 2")
    A("s_and_b32 s73, s71, 3")
    A("s_lshl_b32 s74, s70, 2"); A("s_lshr_b32 s68, s71, 3"); A("s_add_u32 s74, s74, s68")
    A("s_and_b32 s75, s71, 7")
    A("s_lshl_b32 s64, s72, 3"); A("s_add_u32 s64, s64, s70"); A("s_lshl_b32 s64, s64, 20")
    A("s_lshl_b32 s68, s73, 16"); A("s_add_u32 s64, s64, s68"); A(f"s_add_u32 s64, s64, {3072*256}")
    A("s_cmp_ge_u32 s3, 4"); A("s_cbranch_scc1 L_H")

    KR = 16; QF = 80; SR = 96; PP = 112; ACC = 120
    PBF = 16
    VF = 48
    A("s_lshl_b32 s68, s3, 14"); A("s_add_u32 s76, s64, s68")
    for i in range(1, 4):
        A(f"s_add_u32 s{76+i}, s76, {i*4096}")
    A("v_lshlrev_b32 v7, 8, v5"); A("v_lshl_add_u32 v7, v6, 4, v7")
    A("s_waitcnt lgkmcnt(0)")
    for d, b in ((28, 6), (52, 26), (56, 4), (60, 22)):
        A(f"s_mov_b32 s{d}, s{b}"); A(f"s_mov_b32 s{d+1}, s{b+1}")
    A("s_barrier")
    if kdelay:
        g.flag_wait(F_W, 2, 3, 10)
    n = 0
    for T in range(4):
        for t in range(4):
            r = KR + (T*4 + t)*4
            if g.thr and n >= g.thr: A(f"s_waitcnt vmcnt({g.thr-1})")
            A(f"buffer_load_dwordx4 v[{r}:{r+3}], v7, s[28:31], s{76+T} offen offset:{t*64} {g.ntkv}"); n += 1
            if n == kv: g.flag_add(F_K2, 3, 4)
            if n == kq: g.flag_add(F_K, 3, 4)
    if not tailst: g.stamp(1)
    if cut:
        A("s_waitcnt vmcnt(0)"); g.stamp(2); A("s_branch L_fin")
    A(f"s_mov_b32 s78, 0x{f32bits(LOG2E * (128 ** -0.5)):08x}")
    A("v_and_b32 v11, 3, v2")
    A("v_lshlrev_b32 v12, 8, v11"); A("v_lshl_add_u32 v12, v6, 4, v12")
    A("v_lshlrev_b32 v13, 4, v11")
    A("s_lshl_b32 s68, s3, 2"); A("v_add_u32 v14, s68, v13")
    A(f"v_mul_u32_u24 v8, {PLP}, v11"); A("v_lshl_add_u32 v9, v6, 4, v8")
    A("v_lshl_add_u32 v8, v6, 3, v8"); A("s_lshl_b32 s68, s3, 7"); A("v_add_u32 v8, s68, v8")
    A("v_lshrrev_b32 v124, 2, v5")
    A("v_and_b32 v125, 1, v6"); A("v_lshl_add_u32 v125, v125, 2, v124"); A("v_lshlrev_b32 v125, 1, v125")
    A("v_lshrrev_b32 v126, 1, v11"); A("s_lshl_b32 s68, s3, 2"); A("v_add_u32 v126, s68, v126"); A("v_xor_b32 v126, v126, v125")
    A("v_lshlrev_b32 v126, 4, v126"); A("v_and_b32 v125, 1, v2"); A("v_lshl_add_u32 v126, v125, 3, v126")
    A("v_lshl_add_u32 v125, v6, 3, v124"); A("v_lshl_add_u32 v126, v125, 8, v126")
    A("v_xor_b32 v127, 32, v126")
    A(f"v_add_u32 v126, {VT}, v126"); A(f"v_add_u32 v127, {VT}, v127")
    A("v_lshlrev_b32 v125, 6, v11"); A("v_lshl_add_u32 v125, v6, 4, v125")
    A("s_lshl_b32 s79, s70, 2"); A("s_add_u32 s79, s79, s73"); A("s_lshl_b32 s79, s79, 3"); A("s_add_u32 s79, s79, s72")
    A("s_lshl_b32 s79, s79, 2"); A("s_add_u32 s79, s79, s3"); A("s_lshl_b32 s79, s79, 8"); A(f"s_add_u32 s79, s79, {O_OFF}")
    g.flag_wait(F_Q, 1, 3, 10)
    if not tailst: g.stamp(2)
    for t in range(4):
        A(f"ds_read_b128 v[{QF+4*t}:{QF+4*t+3}], v12 offset:{QL + t*64}")
    A("s_waitcnt lgkmcnt(0)")
    for T in range(4):
        A(f"s_waitcnt vmcnt({12 - 4*T})")
        for t in range(4):
            r = KR + (T*4 + t)*4
            cc = "0" if t == 0 else f"v[{SR+4*T}:{SR+4*T+3}]"
            A(f"v_mfma_f32_16x16x32_bf16 v[{SR+4*T}:{SR+4*T+3}], v[{r}:{r+3}], v[{QF+4*t}:{QF+4*t+3}], {cc}")
    nop(4)
    A(f"v_max3_f32 v10, v{SR}, v{SR+1}, v{SR+2}")
    for i in range(3, 11, 2):
        A(f"v_max3_f32 v10, v10, v{SR+i}, v{SR+i+1}")
    A(f"v_max_f32 v10, v10, v{SR+11}")
    A(f"v_max3_f32 v10, v10, v{SR+12}, v{SR+13}")
    A(f"v_max3_f32 v10, v10, v{SR+14}, v{SR+15}")
    g.xrow("v_max_f32", [10], [15])
    A("s_mov_b64 exec, 15")
    A(f"ds_write_b32 v14, v10 offset:{MX}")
    g.flag_add(F_MX, 3, 4)
    g.flag_wait(F_MX, 4, 3, 15, sleep=False)
    A(f"ds_read_b128 v[{PP}:{PP+3}], v13 offset:{MX}")
    A("s_waitcnt lgkmcnt(0)")
    A(f"v_max3_f32 v10, v{PP}, v{PP+1}, v{PP+2}"); A(f"v_max_f32 v10, v10, v{PP+3}")
    A("v_mul_f32 v10, s78, v10")
    for i in range(16):
        A(f"v_fma_f32 v{SR+i}, v{SR+i}, s78, -v10")
    for i in range(16):
        A(f"v_exp_f32 v{SR+i}, v{SR+i}")
    nop(1)
    for i in range(8):
        A(f"v_cvt_pk_bf16_f32 v{PP+i}, v{SR+2*i}, v{SR+2*i+1}")
    exec_mask(0x000F000F)
    for T in range(4):
        A(f"ds_write_b64 v8, v[{PP+2*T}:{PP+2*T+1}] offset:{PL + T*32}")
    A("s_mov_b64 exec, -1")
    A(f"v_add_f32 v10, v{SR}, v{SR+1}"); A(f"v_add_f32 v15, v{SR+2}, v{SR+3}")
    for i in range(4, 16, 2):
        A(f"v_add_f32 v10, v10, v{SR+i}"); A(f"v_add_f32 v15, v15, v{SR+i+1}")
    A("v_add_f32 v10, v10, v15")
    g.xrow("v_add_f32", [10], [15])
    A("s_mov_b64 exec, 15")
    A(f"ds_write_b32 v14, v10 offset:{LL}")
    g.flag_add(F_ML, 3, 4)
    g.flag_wait(F_ML, 4, 3, 15, sleep=False)
    for t in range(8):
        A(f"ds_read_b128 v[{PBF+4*t}:{PBF+4*t+3}], v9 offset:{PL + t*64}")
    if not tailst: g.stamp(3)
    A("s_lshl_b32 s68, s3, 4"); A("v_mov_b32 v113, s68")
    A(f"ds_read_b128 v[116:119], v113 offset:{MX}")
    A(f"ds_read_b128 v[120:123], v113 offset:{LL}")
    A("s_waitcnt lgkmcnt(0)")
    A("v_max3_f32 v114, v116, v117, v118"); A("v_max_f32 v114, v114, v119"); A("v_mul_f32 v114, s78, v114")
    A("v_add_f32 v115, v120, v121"); A("v_add_f32 v116, v122, v123"); A("v_add_f32 v115, v115, v116")
    A("v_min_u32 v114, -2, v114"); A("v_min_u32 v115, -2, v115")
    A("s_lshl_b32 s36, s70, 2"); A("s_add_u32 s36, s36, s3"); A("s_lshl_b32 s36, s36, 8"); A("s_lshl_b32 s68, s71, 3"); A("s_add_u32 s36, s36, s68")
    A(f"s_add_u32 s36, s36, {MLD_OFF}")
    A("s_lshl_b32 s37, s70, 5"); A("s_add_u32 s37, s37, s71"); A("s_lshl_b32 s37, s37, 7"); A("s_lshl_b32 s68, s3, 3"); A("s_add_u32 s37, s37, s68")
    A(f"s_add_u32 s37, s37, {ML_OFF}")
    A("v_and_b32 v100, 7, v2")
    A("v_lshl_add_u32 v101, v6, 2, v124"); A("v_bfe_u32 v109, v101, 1, 2"); A("v_lshlrev_b32 v101, 7, v101")
    A("v_lshl_add_u32 v101, v109, 5, v101"); A("v_lshl_add_u32 v101, v11, 3, v101")
    A("s_and_b32 s68, s3, 1"); A("s_lshl_b32 s69, s68, 13"); A("v_add_u32 v101, s69, v101")
    A("v_xor_b32 v109, 32, v101"); A("v_xor_b32 v110, 64, v101"); A("v_xor_b32 v111, 0x60, v101")
    A("v_lshlrev_b32 v102, 10, v5"); A("v_lshl_add_u32 v102, v6, 4, v102")
    A("s_lshl_b32 s77, s70, 15"); A("s_lshr_b32 s69, s3, 1"); A("s_lshl_b32 s69, s69, 14"); A("s_add_u32 s77, s77, s69")
    A("s_lshl_b32 s68, s68, 9"); A("s_add_u32 s77, s77, s68")
    A("s_lshr_b32 s68, s71, 3"); A("s_lshl_b32 s68, s68, 6"); A("s_add_u32 s77, s77, s68"); A(f"s_add_u32 s77, s77, {O_OFF}")
    A("v_bfe_u32 v103, v2, 3, 1"); A("s_lshl_b32 s68, s3, 1"); A("v_add_u32 v104, s68, v103"); A("v_mul_u32_u24 v104, 2176, v104")
    A("v_mul_u32_u24 v105, 272, v100"); A("v_add_u32 v104, v104, v105"); A("v_lshl_add_u32 v104, v6, 4, v104")
    A("s_and_b32 s69, s3, 2"); A("v_add_u32 v103, s69, v103"); A("v_lshl_add_u32 v103, v103, 4, v5"); A("v_lshlrev_b32 v103, 2, v103")
    A("v_lshl_add_u32 v108, v100, 2, v6"); A("v_lshlrev_b32 v108, 7, v108")
    A("s_lshl_b32 s65, s70, 12"); A("s_lshr_b32 s69, s71, 3"); A("s_lshl_b32 s69, s69, 3"); A("s_add_u32 s65, s65, s69"); A(f"s_add_u32 s65, s65, {ML_OFF}")
    A("v_lshrrev_b32 v105, 5, v2"); A("v_add_u32 v106, s68, v105"); A("v_mul_u32_u24 v106, 272, v106")
    A("v_and_b32 v107, 31, v2"); A("v_lshl_add_u32 v106, v107, 3, v106")
    A("v_lshlrev_b32 v105, 10, v105"); A("v_lshl_add_u32 v105, v107, 2, v105")
    A("s_lshl_b32 s78, s74, 3"); A("s_add_u32 s78, s78, s68"); A("s_lshl_b32 s78, s78, 10")
    A("s_lshl_b32 s69, s75, 7"); A("s_add_u32 s78, s78, s69"); A(f"s_add_u32 s78, s78, {SP_OFF}")
    A(f"s_add_u32 s66, s79, {DUP}"); A(f"s_add_u32 s67, s77, {DUP}"); A("s_lshl_b32 s40, s74, 8"); A(f"s_add_u32 s40, s40, {MLD_OFF}"); A("v_lshrrev_b32 v112, 4, v108")
    A("s_mov_b32 s76, 0")
    A("s_waitcnt lgkmcnt(0)")
    def pv_mfma(t):
        vf = 128 + (t & 3)*8
        for nt in range(2):
            acc = 64 + 4*nt
            cc = "0" if t == 0 else f"v[{acc}:{acc+3}]"
            A(f"v_mfma_f32_16x16x32_bf16 v[{acc}:{acc+3}], v[{vf+4*nt}:{vf+4*nt+3}], v[{PBF+4*t}:{PBF+4*t+3}], {cc}")
    for t in range(8):
        lw = g.newlab("VW"); lr = g.newlab("VR")
        A(f"s_cmp_gt_u32 s76, {t}"); A(f"s_cbranch_scc1 {lr}")
        A("s_mov_b32 s15, 0x400000")
        lab(lw)
        A(f"ds_read_b64 v[{SR}:{SR+1}], v3 offset:{F_V0}")
        A("s_waitcnt lgkmcnt(0)")
        A(f"v_add_u32 v{SR+1}, 7, v{SR+1}")
        A(f"v_min_u32 v{SR}, v{SR}, v{SR+1}")
        A(f"v_readfirstlane_b32 s41, v{SR+1}")
        A("s_sub_u32 s15, s15, 1")
        A(f"v_readfirstlane_b32 s76, v{SR}")
        A("s_cmp_eq_u32 s15, 0"); A(f"s_cbranch_scc1 {lr}")
        A(f"s_cmp_gt_u32 s76, {t}"); A(f"s_cbranch_scc0 {lw}")
        lab(lr)
        vf = 128 + (t & 3)*8
        for nt in range(2):
            A(f"ds_read_b64_tr_b16 v[{vf+4*nt}:{vf+4*nt+1}], v{126+nt} offset:{t*8192}")
            A(f"ds_read_b64_tr_b16 v[{vf+4*nt+2}:{vf+4*nt+3}], v{126+nt} offset:{t*8192 + 1024}")
        if t >= 2:
            A("s_waitcnt lgkmcnt(8)")
            pv_mfma(t - 2)
    A("s_cmp_eq_u32 s41, 8")
    A("s_cselect_b32 s67, s67, s77"); A("s_cselect_b32 s40, s40, s65"); A("s_cselect_b64 s[42:43], -1, 0")
    A("v_cndmask_b32 v112, v108, v112, s[42:43]")
    A("s_waitcnt lgkmcnt(4)")
    pv_mfma(6)
    A("s_waitcnt lgkmcnt(0)")
    pv_mfma(7)
    g.stamp(4)
    exec_mask(0x000F000F)
    nop(5)
    A("v_cvt_pk_bf16_f32 v72, v64, v65"); A("v_cvt_pk_bf16_f32 v73, v66, v67")
    A("v_cvt_pk_bf16_f32 v74, v68, v69"); A("v_cvt_pk_bf16_f32 v75, v70, v71")
    for e in range(4): A(f"v_min_u32 v{72+e}, -2, v{72+e}")
    A("s_cmp_eq_u32 s41, 8"); A("s_cbranch_scc0 L_oglob")
    A("buffer_store_dwordx4 v[72:75], v125, s[52:55], s66 offen")
    if int(mlrep):
        A("s_mov_b64 exec, 1")
        A("buffer_store_dwordx2 v[114:115], v3, s[52:55], s36 offen")
    A("s_branch L_ostored")
    lab("L_oglob")
    A("buffer_store_dwordx4 v[72:75], v125, s[52:55], s79 offen sc1")
    lab("L_ostored")
    A("s_mov_b64 exec, -1")
    g.stamp(5)
    AF = 64
    def oloads(so):
        return [f"buffer_load_dwordx4 v[{AF}:{AF+3}], v102, s[52:55], s{so} offen sc1",
                f"buffer_load_dwordx4 v[{AF+4}:{AF+7}], v102, s[52:55], s{so} offen offset:256 sc1"]
    def mloads(sm):
        return [f"buffer_load_dwordx2 v[76:77], v{112 if sm == 40 else 108}, s[52:55], s{sm} offen sc1"]
    def ensure_store():
        le = g.newlab("ES")
        A(f"s_cmp_lg_u32 s41, 0"); A(f"s_cbranch_scc1 {le}")
        A("s_mov_b32 s41, 1")
        A("s_mov_b64 s[42:43], exec")
        exec_mask(0x000F000F)
        A("buffer_store_dwordx4 v[72:75], v125, s[52:55], s79 offen sc1")
        A("s_mov_b64 exec, s[42:43]")
        lab(le)
    def dualpoll(la, lb_, regs, first_wait):
        l0 = g.newlab("OP"); l1 = g.newlab("OC"); ld = g.newlab("OD"); lb = g.newlab("OB"); l2 = g.newlab("OW")
        A("s_mov_b32 s15, 0x40000")
        A(f"s_waitcnt vmcnt({first_wait})")
        A(f"s_branch {l1}")
        lab(l0)
        A(f"s_and_b32 s14, s15, {int(bmask)}"); A("s_cmp_eq_u32 s14, 0"); A(f"s_cbranch_scc1 {lb}")
        for l_ in la: A(l_)
        A(f"s_branch {l2}")
        lab(lb)
        ensure_store()
        for l_ in lb_: A(l_)
        lab(l2)
        A("s_waitcnt vmcnt(0)")
        lab(l1)
        rs = list(regs)
        if len(rs) == 2:
            A(f"v_max_u32 v10, v{rs[0]}, v{rs[1]}")
        else:
            A(f"v_max3_u32 v10, v{rs[0]}, v{rs[1]}, v{rs[2]}"); A(f"v_max3_u32 v15, v{rs[3]}, v{rs[4]}, v{rs[5]}")
            A(f"v_max3_u32 v10, v10, v{rs[6]}, v{rs[7]}"); A("v_max_u32 v10, v10, v15")
        A("v_cmp_eq_u32 vcc, -1, v10")
        A("s_and_b64 exec, exec, vcc"); A(f"s_cbranch_scc0 {ld}")
        if int(osleep): A(f"s_sleep {int(osleep)}")
        A("s_sub_u32 s15, s15, 1"); A("s_cmp_lg_u32 s15, 0"); A(f"s_cbranch_scc1 {l0}")
        lab(ld)
        A("s_mov_b64 exec, -1")
    g.poll(mloads(40), [76, 77], 10)
    for l_ in oloads(67): A(l_)
    if tailst: g.stamp(1)
    A("v_mov_b32 v78, v76")
    g.xrow("v_max_f32", [78], [79])
    A("v_sub_f32 v76, v76, v78")
    A("v_exp_f32 v76, v76")
    nop(1)
    A("v_mul_f32 v77, v76, v77")
    A("ds_bpermute_b32 v76, v103, v76")
    g.xrow("v_add_f32", [77], [79])
    A("v_rcp_f32 v77, v77")
    A("s_waitcnt lgkmcnt(0)")
    A("v_mul_f32 v76, v76, v77"); A("v_mov_b32 v77, v76")
    g.flag_wait(F_WO, 1, 3, 10, sleep=False)
    if tailst: g.stamp(2)
    BF = 32
    for nt in range(4):
        for t in range(2):
            r = BF + (nt*2 + t)*4
            off = WOT + t*4096
            va = (101, 109, 110, 111)[nt]
            A(f"ds_read_b64_tr_b16 v[{r}:{r+1}], v{va} offset:{off}")
            A(f"ds_read_b64_tr_b16 v[{r+2}:{r+3}], v{va} offset:{off + 2048}")
    g.poll(oloads(67), list(range(AF, AF+8)), 10, preissued=True)
    A("s_waitcnt lgkmcnt(0)")
    if tailst:
        A("s_sub_u32 s86, 0x40000, s15"); A("s_add_u32 s86, s86, s80"); A("s_mov_b32 s87, s81")
    g.stamp(6)
    DW = 80
    for t in range(2):
        for nt in range(4):
            r = BF + (nt*2 + t)*4
            cc = "0" if t == 0 else f"v[{DW+4*nt}:{DW+4*nt+3}]"
            A(f"v_mfma_f32_16x16x32_bf16 v[{DW+4*nt}:{DW+4*nt+3}], v[{r}:{r+3}], v[{AF+4*t}:{AF+4*t+3}], {cc}")
    nop(5)
    for nt in range(4):
        A(f"v_pk_mul_f32 v[{DW+4*nt}:{DW+4*nt+1}], v[{DW+4*nt}:{DW+4*nt+1}], v[76:77]")
        A(f"v_pk_mul_f32 v[{DW+4*nt+2}:{DW+4*nt+3}], v[{DW+4*nt+2}:{DW+4*nt+3}], v[76:77]")
        A(f"ds_write_b128 v104, v[{DW+4*nt}:{DW+4*nt+3}] offset:{RED + nt*64}")
    A("s_waitcnt lgkmcnt(0)")
    A("s_barrier")
    for p in range(8):
        A(f"ds_read_b64 v[{32+2*p}:{33+2*p}], v106 offset:{RED + p*2176}")
    A("s_waitcnt lgkmcnt(4)") if (not stamps or only) else A("s_waitcnt lgkmcnt(0)")
    A("v_pk_add_f32 v[32:33], v[32:33], v[34:35]"); A("v_pk_add_f32 v[36:37], v[36:37], v[38:39]")
    A("v_pk_add_f32 v[32:33], v[32:33], v[36:37]")
    A("s_waitcnt lgkmcnt(0)")
    A("v_pk_add_f32 v[40:41], v[40:41], v[42:43]"); A("v_pk_add_f32 v[44:45], v[44:45], v[46:47]")
    A("v_pk_add_f32 v[40:41], v[40:41], v[44:45]")
    A("v_pk_add_f32 v[32:33], v[32:33], v[40:41]")
    A("v_cvt_pk_bf16_f32 v32, v32, v33")
    A("v_min_u32 v32, -2, v32")
    if int(spx4):
        nop(2)
        A("v_mov_b32_dpp v33, v32 quad_perm:[1,1,1,1] row_mask:0xf bank_mask:0xf")
        A("v_mov_b32_dpp v34, v32 quad_perm:[2,2,2,2] row_mask:0xf bank_mask:0xf")
        A("v_mov_b32_dpp v35, v32 quad_perm:[3,3,3,3] row_mask:0xf bank_mask:0xf")
        exec_mask(0x11111111)
        A("buffer_store_dwordx4 v[32:35], v105, s[52:55], s78 offen sc1")
        A("s_mov_b64 exec, -1")
    else:
        A("buffer_store_dword v32, v105, s[52:55], s78 offen sc1")
    g.stamp(7)
    A("s_cmp_ge_u32 s3, 2"); A("s_cbranch_scc1 L_fin")
    A("s_lshr_b32 s68, s2, 5"); A("s_lshl_b32 s68, s68, 10"); A("s_and_b32 s69, s2, 31"); A("s_lshl_b32 s69, s69, 5")
    A("s_add_u32 s76, s68, s69")
    A("v_lshrrev_b32 v17, 1, v2"); A("v_and_b32 v16, 1, v2")
    A("v_lshlrev_b32 v19, 4, v16"); A("v_mov_b32 v20, 0x3f80"); A("v_lshlrev_b32 v20, v19, v20")
    A("v_bfe_u32 v19, v2, 1, 2")
    for e in range(4):
        A(f"v_cmp_eq_u32 vcc, {e}, v19")
        nop(2)
        A(f"v_cndmask_b32 v{40+e}, 0, v20, vcc")
    A("v_lshlrev_b32 v21, 4, v16"); A("v_lshl_add_u32 v21, v6, 3, v21")
    A("s_cmp_eq_u32 s3, 1"); A("s_cbranch_scc1 L_fg")
    A("v_lshlrev_b32 v17, 13, v17"); A("v_lshl_add_u32 v17, v16, 4, v17")
    A(f"s_add_u32 s77, s76, {SP_OFF}")
    A("buffer_load_dwordx2 v[44:45], v21, s[56:59], s76 offen")
    g.poll(["buffer_load_dwordx4 v[32:35], v17, s[52:55], s77 offen sc1"], [32, 33, 34, 35], 10)
    g.stamp(8)
    def red_final():
        A("v_mfma_f32_16x16x32_bf16 v[36:39], v[40:43], v[32:35], 0")
        nop(8)
        for mod in ("row_ror:2", "row_ror:4", "row_ror:8"):
            for r in range(4):
                A(f"v_add_f32_dpp v{36+r}, v{36+r}, v{36+r} {mod} row_mask:0xf bank_mask:0xf")
    red_final()
    A("s_barrier")
    A("v_lshlrev_b32 v22, 1, v21")
    A(f"ds_read_b128 v[48:51], v22 offset:{GL}")
    A("v_cvt_pk_bf16_f32 v32, v36, v37"); A("v_cvt_pk_bf16_f32 v33, v38, v39")
    unpack(36, [32, 33])
    unpack(52, [44, 45])
    A("s_waitcnt lgkmcnt(0)")
    A("v_pk_mul_f32 v[36:37], v[36:37], v[48:49]"); A("v_pk_mul_f32 v[38:39], v[38:39], v[50:51]")
    A("v_cvt_pk_bf16_f32 v32, v36, v37"); A("v_cvt_pk_bf16_f32 v33, v38, v39")
    unpack(36, [32, 33])
    A("v_pk_add_f32 v[36:37], v[36:37], v[52:53]"); A("v_pk_add_f32 v[38:39], v[38:39], v[54:55]")
    A("v_cvt_pk_bf16_f32 v32, v36, v37"); A("v_cvt_pk_bf16_f32 v33, v38, v39")
    A("s_mov_b64 exec, 0x30003")
    A("buffer_store_dwordx2 v[32:33], v21, s[60:63], s76 offen")
    A("s_mov_b64 exec, -1")
    g.stamp(9)
    if int(dbgspan):
        A("s_memrealtime s[96:97]")
        A("s_mov_b32 s40, s24"); A("s_mov_b32 s41, s25"); A("s_mov_b32 s42, 256"); A("s_mov_b32 s43, 0x00020000")
        A("s_waitcnt lgkmcnt(0)")
        A("s_sub_u32 s98, 0, s98")
        A("v_mov_b32 v40, s98"); A("v_mov_b32 v41, s96")
        A("s_mov_b64 exec, 1")
        A("buffer_atomic_umax v40, v3, s[40:43], 0 offen sc1")
        A("buffer_atomic_umax v41, v3, s[40:43], 0 offen offset:4 sc1")
        A("s_mov_b64 exec, -1")
    A("s_cmp_lg_u32 s2, 0"); A("s_cbranch_scc1 L_fin")
    A(f"ds_read_b32 v32, v3 offset:{F_EP}")
    A(f"s_mov_b32 s68, {EP_OFF}")
    A("s_waitcnt lgkmcnt(0)")
    A("s_mov_b64 exec, 1")
    A("buffer_store_dword v32, v3, s[52:55], s68 offen sc1")
    A("s_mov_b64 exec, -1")
    A("s_branch L_fin")
    lab("L_fg")
    A("v_min_u32 v17, 27, v17")
    A("v_lshlrev_b32 v17, 13, v17"); A("v_lshl_add_u32 v17, v16, 4, v17")
    A(f"s_add_u32 s77, s76, {FP_OFF}")
    g.poll(["buffer_load_dwordx4 v[32:35], v17, s[52:55], s77 offen sc1"], [32, 33, 34, 35], 10)
    g.stamp(8)
    A("v_cmp_gt_u32 vcc, 56, v2")
    nop(2)
    for r in range(4):
        A(f"v_cndmask_b32 v{32+r}, 0, v{32+r}, vcc")
    nop(1)
    red_final()
    rbf([36, 37, 38, 39])
    silu([36, 37, 38, 39], 48)
    rbf([36, 37, 38, 39])
    A("v_lshlrev_b32 v22, 1, v21")
    A("s_mov_b64 exec, 0x30003")
    A(f"ds_write_b128 v22, v[36:39] offset:{GL}")
    A("s_mov_b64 exec, -1")
    A("s_waitcnt lgkmcnt(0)")
    A("s_barrier")
    g.stamp(9)
    A("s_branch L_fin")

    lab("L_H")
    A("s_cmp_eq_u32 s3, 8"); A("s_cbranch_scc1 L_load")
    A("s_setprio 3")
    A("v_lshlrev_b32 v7, 4, v2")
    A("s_sub_u32 s77, s3, 4")
    A("s_cmp_lg_u32 s3, 7"); A("s_cbranch_scc1 L_noinit")
    A("v_lshlrev_b32 v8, 2, v5")
    A("ds_write_b32 v8, v3")
    lab("L_noinit")
    A("v_lshrrev_b32 v8, 3, v2"); A("v_and_b32 v9, 7, v2"); A("v_lshlrev_b32 v9, 4, v9")
    A("s_lshl_b32 s68, s77, 11")
    A(f"s_mov_b32 s69, 0x{EP_OFF:x}")
    A("s_waitcnt lgkmcnt(0)")
    A("s_load_dword s79, s[26:27], s69")
    for d, b in ((32, 8), (44, 12), (48, 20), (52, 26), (56, 4)):
        A(f"s_mov_b32 s{d}, s{b}"); A(f"s_mov_b32 s{d+1}, s{b+1}")
    XR = 16
    for r in range(2):
        A(f"buffer_load_dwordx4 v[{XR+4*r}:{XR+4*r+3}], v7, s[56:59], s68 offen offset:{r*1024}")
    A("s_cmp_ge_u32 s3, 6"); A("s_cbranch_scc1 L_SX0")
    A("s_cmp_eq_u32 s3, 5"); A("s_cbranch_scc1 L_G1")
    A("s_mov_b32 s36, s10"); A("s_mov_b32 s37, s11"); A("s_mov_b32 s38, 4194304")
    A("s_lshl_b32 s76, s70, 3"); A("s_add_u32 s76, s76, s72"); A("s_lshl_b32 s76, s76, 7")
    A("s_movk_i32 s69, 8192")
    A("s_lshl_b32 s78, s73, 17"); A("s_lshl_b32 s68, s76, 4"); A("s_add_u32 s78, s78, s68")
    A(f"s_add_u32 s78, s78, {QP_OFF}")
    A("s_branch L_GJ")
    lab("L_G1")
    A("s_cmp_eq_u32 s70, 7"); A("s_cbranch_scc1 L_LN0")
    A("s_bitcmp1_b32 s71, 2")
    A("s_cselect_b32 s36, s18, s16"); A("s_cselect_b32 s37, s19, s17"); A("s_mov_b32 s38, 1835008")
    A("s_lshl_b32 s76, s74, 7")
    A("s_movk_i32 s69, 3584")
    A("s_and_b32 s78, s71, 7"); A(f"s_mul_i32 s78, s78, {28*2048}"); A("s_lshl_b32 s68, s76, 4"); A("s_add_u32 s78, s78, s68")
    A(f"s_add_u32 s78, s78, {GP_OFF}")
    lab("L_GJ")
    A("v_mul_lo_u32 v10, v8, s69"); A("v_add_u32 v10, v10, v9")
    A("s_lshl_b32 s68, s73, 7"); A("s_mul_i32 s68, s68, s69"); A("s_add_u32 s100, s76, s68")
    A("s_lshl_b32 s101, s69, 3")
    A("s_lshl_b32 s68, s77, 14"); A(f"s_add_u32 s68, s68, {W1T}")
    for i in range(16):
        A("s_mov_b32 m0, s68")
        A("s_add_u32 s68, s68, 1024")
        A(f"buffer_load_dwordx4 v10, s[36:39], s100 offen {g.ntw} lds")
        A("s_add_u32 s100, s100, s101")
    A("s_barrier")
    A("s_waitcnt vmcnt(16)")
    A("s_branch L_LN")
    lab("L_SX0")
    A("s_cmp_eq_u32 s3, 7"); A("s_cbranch_scc1 L_LN0")
    if int(noclr): A("s_branch L_LN0")
    for r in range(4):
        A(f"v_mov_b32 v{24+r}, -1")
    A("s_lshl_b32 s68, s70, 2"); A("s_add_u32 s68, s68, s73"); A("s_lshl_b32 s68, s68, 3"); A("s_add_u32 s68, s68, s72")
    A("s_lshl_b32 s68, s68, 10"); A(f"s_add_u32 s68, s68, {O_OFF}")
    A("buffer_store_dwordx4 v[24:27], v7, s[52:55], s68 offen sc1")
    A(f"s_add_u32 s68, s68, {DUP}")
    A("buffer_store_dwordx4 v[24:27], v7, s[52:55], s68 offen sc1")
    A("v_lshl_add_u32 v10, v8, 10, v9")
    A("s_lshl_b32 s68, s74, 13"); A("s_lshl_b32 s69, s75, 7"); A("s_add_u32 s68, s68, s69")
    A(f"s_add_u32 s69, s68, {SP_OFF}")
    A("buffer_store_dwordx4 v[24:27], v10, s[52:55], s69 offen sc1")
    down_ids(68, 69, "L_nofp")
    A("s_lshl_b32 s68, s68, 13"); A("s_lshl_b32 s69, s69, 7"); A("s_add_u32 s69, s69, s68"); A(f"s_add_u32 s69, s69, {FP_OFF}")
    A("buffer_store_dwordx4 v[24:27], v10, s[52:55], s69 offen sc1")
    if dshift: A("buffer_store_dwordx4 v[24:27], v10, s[52:55], s69 offen offset:128 sc1")
    lab("L_nofp")
    A("s_lshl_b32 s68, s70, 5"); A("s_add_u32 s68, s68, s71"); A("s_lshl_b32 s68, s68, 7"); A(f"s_add_u32 s68, s68, {ML_OFF}")
    A("s_mov_b64 exec, 3")
    A("buffer_store_dwordx4 v[24:27], v7, s[52:55], s68 offen sc1")
    A("s_mov_b64 exec, 15")
    A("v_lshlrev_b32 v10, 8, v2")
    A("s_lshl_b32 s68, s70, 10"); A("s_lshl_b32 s69, s71, 3"); A("s_add_u32 s68, s68, s69"); A(f"s_add_u32 s68, s68, {MLD_OFF}")
    A("buffer_store_dwordx2 v[24:25], v10, s[52:55], s68 offen sc1")
    A("s_mov_b64 exec, -1")
    A("s_barrier")
    A("s_waitcnt vmcnt(5)")
    A("s_cmp_eq_u32 s70, 7"); A("s_cbranch_scc1 L_LN")
    A("s_nop 0")
    A("s_branch L_LN") if False else None
    A("s_waitcnt vmcnt(4)") if False else None
    A("s_branch L_LN")
    lab("L_LN0")
    A("s_barrier")
    A("s_waitcnt vmcnt(0)")
    lab("L_LN")
    if cut == 1:
        g.flag_add(F_W, 3, 4); A("s_branch L_fin")
    XF = 32
    for r in range(2):
        unpack(XF + 8*r, [XR + 4*r + e for e in range(4)])
    SM = 64
    for r in range(2):
        A(f"v_add_f32 v{SM+r}, v{XF+8*r}, v{XF+8*r+1}"); A(f"v_add_f32 v{SM+2+r}, v{XF+8*r+2}, v{XF+8*r+3}")
    for e in range(4, 8, 2):
        for r in range(2):
            A(f"v_add_f32 v{SM+r}, v{SM+r}, v{XF+8*r+e}"); A(f"v_add_f32 v{SM+2+r}, v{SM+2+r}, v{XF+8*r+e+1}")
    for r in range(2):
        A(f"v_add_f32 v{SM+r}, v{SM+r}, v{SM+2+r}")
    g.allreduce64("v_add_f32", [SM, SM+1], [SM+4, SM+5])
    A(f"s_mov_b32 s68, 0x{f32bits(1.0/512):08x}")
    for r in range(2):
        A(f"v_mul_f32 v{SM+r}, s68, v{SM+r}")
    VS = 72
    for e in range(8):
        for r in range(2):
            A(f"v_sub_f32 v{80+2*(e&1)+r}, v{XF+8*r+e}, v{SM+r}")
        for r in range(2):
            t_ = 80+2*(e&1)+r
            if e == 0: A(f"v_mul_f32 v{VS+r}, v{t_}, v{t_}")
            else: A(f"v_fmac_f32 v{VS+r}, v{t_}, v{t_}")
    g.allreduce64("v_add_f32", [VS, VS+1], [VS+4, VS+5])
    for r in range(2):
        A(f"v_mul_f32 v{VS+r}, s68, v{VS+r}")
    rbf([SM, SM+1, VS, VS+1])
    for r in range(2):
        A(f"v_add_f32 v{VS+r}, 0x{f32bits(1e-5):08x}, v{VS+r}")
    rbf([VS, VS+1])
    for r in range(2):
        A(f"v_sqrt_f32 v{VS+r}, v{VS+r}")
    nop(1)
    rbf([VS, VS+1])
    for r in range(2):
        A(f"v_rcp_f32 v{VS+r}, v{VS+r}")
    for r in range(2):
        for e in range(8):
            A(f"v_sub_f32 v{XF+8*r+e}, v{XF+8*r+e}, v{SM+r}")
    for r in range(2):
        for e in range(4):
            A(f"v_cvt_pk_bf16_f32 v{XR+4*r+e}, v{XF+8*r+2*e}, v{XF+8*r+2*e+1}")
    for r in range(2):
        unpack(XF + 8*r, [XR + 4*r + e for e in range(4)])
    for r in range(2):
        for e in range(8):
            A(f"v_mul_f32 v{XF+8*r+e}, v{XF+8*r+e}, v{VS+r}")
    for r in range(2):
        for e in range(4):
            A(f"v_cvt_pk_bf16_f32 v{XR+4*r+e}, v{XF+8*r+2*e}, v{XF+8*r+2*e+1}")
    A(f"s_mul_i32 s68, s77, {2*XNP}"); A("v_lshlrev_b32 v11, 4, v5"); A("v_add_u32 v11, s68, v11")
    A("v_cmp_eq_u32 vcc, s73, v6")
    A("s_and_saveexec_b64 s[68:69], vcc")
    for r in range(2):
        A(f"ds_write_b128 v11, v[{XR+4*r}:{XR+4*r+3}] offset:{XN + r*XNP}")
    g.flag_add(F_XN, 3, 4)
    g.stamp(2)
    A("s_add_u32 s4, s79, 1"); A(f"s_mul_i32 s5, s4, 0x{TAGMUL:x}")
    A("v_lshrrev_b32 v12, 2, v5"); A("v_lshl_add_u32 v12, v6, 3, v12"); A("v_lshlrev_b32 v12, 7, v12")
    A("v_and_b32 v13, 3, v2")
    A("v_and_b32 v14, 7, v2")
    A("s_cmp_ge_u32 s3, 6"); A("s_cbranch_scc1 L_SX1")
    A("s_cmp_lg_u32 s3, 5"); A("s_cbranch_scc1 L_Ggo")
    A("s_cmp_lg_u32 s70, 7"); A("s_cbranch_scc1 L_Ggo")
    g.flag_add(F_W, 3, 4)
    g.flag_add(F_GD, 3, 4)
    A("s_branch L_G1post")
    lab("L_Ggo")
    A(f"v_mul_u32_u24 v11, {XNP}, v14"); A("v_lshl_add_u32 v11, v6, 4, v11")
    A("v_lshl_add_u32 v12, v13, 3, v12")
    A("s_lshl_b32 s68, s77, 14"); A("v_add_u32 v12, s68, v12")
    A("v_lshlrev_b32 v15, 6, v14"); A("v_lshl_add_u32 v15, v6, 4, v15")
    for nt in range(4):
        A(f"v_mov_b32 v{113+4*nt}, s4"); A(f"v_mov_b32 v{115+4*nt}, s5")
    A(f"s_add_u32 s66, s78, {DUP}")
    g.flag_wait(F_XN, 4, 3, 10)
    XB = 16
    for t in range(4):
        A(f"ds_read_b128 v[{XB+4*t}:{XB+4*t+3}], v11 offset:{XN + t*64}")
    WB = 32
    for t in range(4):
        A(f"s_waitcnt vmcnt({12 - 4*t})")
        if t == 3:
            g.flag_add(F_W, 3, 4)
        for nt in range(4):
            r = WB + (t*4 + nt)*4
            off = W1T + t*4096 + nt*32
            A(f"ds_read_b64_tr_b16 v[{r}:{r+1}], v12 offset:{off}")
            A(f"ds_read_b64_tr_b16 v[{r+2}:{r+3}], v12 offset:{off+512}")
        A("s_waitcnt lgkmcnt(0)")
        for nt in range(4):
            r = WB + (t*4 + nt)*4
            d = 96 + nt*4
            cc = "0" if t == 0 else f"v[{d}:{d+3}]"
            A(f"v_mfma_f32_16x16x32_bf16 v[{d}:{d+3}], v[{r}:{r+3}], v[{XB+4*t}:{XB+4*t+3}], {cc}")
    g.stamp(3)
    g.flag_add(F_GD, 3, 4)
    exec_mask(0x00ff00ff)
    nop(2)
    for nt in range(4):
        A(f"v_cvt_pk_bf16_f32 v{112+4*nt}, v{96+4*nt}, v{97+4*nt}")
        A(f"v_cvt_pk_bf16_f32 v{114+4*nt}, v{98+4*nt}, v{99+4*nt}")
        if int(qdual): A(f"buffer_store_dwordx4 v[{112+4*nt}:{115+4*nt}], v15, s[52:55], s66 offen offset:{nt*512}")
        else: A(f"buffer_store_dwordx4 v[{112+4*nt}:{115+4*nt}], v15, s[52:55], s78 offen offset:{nt*512} sc1")
    if int(qdual):
      for nt in range(4):
        A(f"buffer_store_dwordx4 v[{112+4*nt}:{115+4*nt}], v15, s[52:55], s78 offen offset:{nt*512} sc1")
    A("s_mov_b64 exec, -1")
    g.stamp(4)
    lab("L_Gpost")
    A("s_cmp_eq_u32 s3, 5"); A("s_cbranch_scc1 L_G1post")
    A(f"s_mov_b32 s6, {FL_OFF}")
    A("s_getreg_b32 s7, hwreg(HW_REG_XCC_ID, 0, 4)")
    A("s_andn2_b32 s8, s5, 15"); A("s_or_b32 s8, s8, s7")
    g.flag_wait(F_K2, 4, 3, 10)
    g.stamp(5)
    A("s_mov_b32 s15, 0x40000")
    lab("L_alpoll")
    A("buffer_load_dwordx4 v[20:23], v7, s[52:55], s6 offen sc1")
    A("buffer_load_dwordx4 v[24:27], v7, s[52:55], s6 offen offset:1024 sc1")
    A("s_waitcnt vmcnt(0)")
    for e in range(4):
        A(f"v_xor_b32 v{28+2*e}, s4, v{20+2*e}"); A(f"v_xor_b32 v{29+2*e}, s8, v{21+2*e}")
    A("v_or3_b32 v36, v29, v31, v33"); A("v_or_b32 v36, v36, v35"); A("v_and_b32 v36, -16, v36")
    A("v_or3_b32 v36, v36, v28, v30"); A("v_or3_b32 v36, v36, v32, v34")
    A("v_cmp_ne_u32 vcc, 0, v36")
    A("s_and_b64 exec, exec, vcc"); A("s_cbranch_scc0 L_aldone")
    A("s_sleep 4")
    A("s_sub_u32 s15, s15, 1"); A("s_cmp_lg_u32 s15, 0"); A("s_cbranch_scc1 L_alpoll")
    lab("L_aldone")
    A("s_mov_b64 exec, -1")
    A("v_or_b32 v29, v29, v33"); A("v_or_b32 v31, v31, v35")
    A("s_bitcmp1_b32 s70, 0"); A("s_cselect_b64 s[8:9], -1, 0")
    A("v_cndmask_b32 v29, v29, v31, s[8:9]")
    A("s_lshr_b32 s8, s70, 1")
    A("v_cmp_eq_u32 vcc, s8, v13")
    A("v_cmp_ne_u32 s[8:9], 0, v29")
    A("s_and_b64 s[8:9], s[8:9], vcc")
    A("s_cselect_b32 s8, 2, 1")
    A("v_mov_b32 v20, s8")
    A(f"ds_write_b32 v3, v20 offset:{F_TOK}")
    g.stamp(6)
    A("s_waitcnt lgkmcnt(0)")
    A("s_branch L_fin")
    lab("L_G1post")
    A("s_waitcnt lgkmcnt(0)")
    A("s_branch L_fin")
    lab("L_load")
    A("s_setprio 2")
    A("v_lshrrev_b32 v8, 3, v2"); A("v_and_b32 v9, 7, v2"); A("v_lshlrev_b32 v9, 4, v9")
    A("v_lshlrev_b32 v16, 1, v6"); A("v_xor_b32 v16, v16, v5"); A("v_xor_b32 v17, 8, v16")
    A("v_lshlrev_b32 v16, 4, v16"); A("v_lshl_add_u32 v16, v6, 8, v16")
    A("v_lshlrev_b32 v17, 4, v17"); A("v_lshl_add_u32 v17, v6, 8, v17")
    A("s_mov_b32 s100, s64")
    A(f"s_mov_b32 s101, {VT}")
    A("v_lshl_add_u32 v18, v8, 10, v9")
    A("v_lshlrev_b32 v21, 5, v6"); A("v_xor_b32 v21, v21, v18")
    A("s_lshl_b32 s76, s74, 17"); A("s_lshl_b32 s68, s75, 7"); A("s_add_u32 s76, s76, s68")
    A(f"s_mov_b32 s77, {WOT}")
    A("s_lshl_b32 s78, s74, 16"); A("s_add_u32 s78, s78, s68")
    A(f"s_mov_b32 s79, {WDT}")
    A("s_waitcnt lgkmcnt(0)")
    for d, b_ in ((32, 8), (44, 12), (48, 20), (52, 26)):
        A(f"s_mov_b32 s{d}, s{b_}"); A(f"s_mov_b32 s{d+1}, s{b_+1}")
    A("s_barrier")
    if cut == 2:
        A("s_branch L_fin")
    if vdelay:
        g.flag_wait(F_K2, 4, 3, 10)
    g.stamp(5)
    NV = 64
    dl = int(dlate)
    seq = [("v", i) for i in range(NV)]
    if dl == 1: seq += [("d", i) for i in range(8)]
    seq += [("w", i) for i in range(16)]
    if dl == 2: seq += [("d", i) for i in range(8)]
    NT = len(seq)
    marks = {}
    for k in range(8, NV + 1, 8): marks[k] = ("V", k // 8)
    if dl == 1: marks[NV + 8] = ("F", F_WD)
    if dl == 2: marks[NV + 16] = ("F", F_WO)
    def publish(k):
        if k in marks:
            kind, val = marks.pop(k)
            if kind == "V":
                A(f"v_mov_b32 v20, {val}")
                A(f"ds_write_b32 v3, v20 offset:{F_V0}")
            else:
                A(f"ds_write_b32 v3, v4 offset:{val}")
    for i, (kind, j) in enumerate(seq):
        if i >= vthr:
            A(f"s_waitcnt vmcnt({vthr-1})")
            publish(i - vthr + 1)
        if kind == "v":
            A("s_mov_b32 m0, s101")
            A("s_add_u32 s101, s101, 1024")
            A(f"buffer_load_dwordx4 v{16 + ((j >> 1) & 1)}, s[32:35], s100 offen {g.ntkv} lds")
            A("s_add_u32 s100, s100, 1024")
        elif kind == "w":
            A("s_mov_b32 m0, s77")
            A("s_add_u32 s77, s77, 1024")
            A(f"buffer_load_dwordx4 v21, s[44:47], s76 offen {g.ntw} lds")
            A("s_add_u32 s76, s76, 8192")
        else:
            A("s_mov_b32 m0, s79")
            A("s_add_u32 s79, s79, 1024")
            A(f"buffer_load_dwordx4 v18, s[48:51], s78 offen {g.ntw} lds")
            A("s_add_u32 s78, s78, 8192")
    g.stamp(6)
    for k in sorted(marks):
        A(f"s_waitcnt vmcnt({NT - k})")
        publish(k)
    A("s_waitcnt vmcnt(0)")
    A(f"ds_write_b32 v3, v4 offset:{F_WD if dl == 2 else F_WO}")
    g.stamp(7)
    A("s_waitcnt lgkmcnt(0)")
    A("s_branch L_fin")
    lab("L_SX1")
    A("s_cmp_eq_u32 s3, 7"); A("s_cbranch_scc1 L_X")
    A("s_getreg_b32 s6, hwreg(HW_REG_XCC_ID, 0, 4)")
    A("s_andn2_b32 s7, s5, 15"); A("s_or_b32 s7, s7, s6")
    A("v_mov_b32 v16, s4"); A("v_mov_b32 v17, s7")
    A("s_lshl_b32 s7, s2, 3"); A(f"s_add_u32 s7, s7, {FL_OFF}")
    A("s_waitcnt vmcnt(0)")
    A("s_mov_b64 exec, 1")
    A("buffer_store_dwordx2 v[16:17], v3, s[52:55], s7 offen sc1")
    A(f"ds_write_b32 v3, v16 offset:{F_EP}")
    A("s_mov_b64 exec, -1")
    g.stamp(1)
    if cut in (2, 3):
        A("s_branch L_fin")
    A("v_lshrrev_b32 v9, 2, v2"); A("v_lshlrev_b32 v9, 9, v9"); A("v_lshl_add_u32 v9, v13, 4, v9")
    A("s_lshl_b32 s16, s70, 14"); A("s_lshl_b32 s69, s72, 6"); A("s_add_u32 s16, s16, s69"); A(f"s_add_u32 s16, s16, {QP_OFF}")
    for k in range(1, 8):
        A(f"s_add_u32 s{16+k}, s16, {(k>>1)*131072 + (k&1)*8192}")
    A("v_lshlrev_b32 v8, 3, v2")
    A("v_bfe_u32 v12, v2, 3, 2"); A("v_lshlrev_b32 v12, 17, v12"); A("v_lshl_add_u32 v12, v14, 11, v12")
    g.flag_wait(F_K, 4, 3, 10)
    g.stamp(7)
    if int(sample):
        tagpoll([f"buffer_load_dwordx4 v[16:19], v12, s[52:55], s16 offen offset:{3*512+48} sc1"], [16], 10, qsleep)
    g.stamp(8)
    tagpoll([f"buffer_load_dwordx4 v[{16+4*k}:{19+4*k}], v9, s[52:55], s{16+k} offen sc1" for k in range(8)],
            [16+4*k for k in range(8)], 10, qsleep, vaddr=9)
    g.stamp(3)
    for k in range(8):
        unpack(48 + 4*k, [16+4*k, 18+4*k])
    for i in range(2):
        for e in range(4):
            A(f"v_add_f32 v{48+4*i+e}, v{48+4*i+e}, v{56+4*i+e}"); A(f"v_add_f32 v{64+4*i+e}, v{64+4*i+e}, v{72+4*i+e}")
    for e in range(8):
        A(f"v_add_f32 v{48+e}, v{48+e}, v{64+e}")
    for e in range(4):
        A(f"v_cvt_pk_bf16_f32 v{16+e}, v{48+2*e}, v{49+2*e}")
    A(f"ds_write_b64 v8, v[16:17] offset:{QL}")
    A(f"ds_write_b64 v8, v[18:19] offset:{QL+512}")
    g.flag_add(F_Q, 3, 4)
    g.stamp(5)
    if cut == 4:
        A("s_branch L_fin")
    A("v_lshlrev_b32 v8, 3, v2"); A("v_lshlrev_b32 v9, 4, v13")
    A("s_lshl_b32 s6, s70, 12"); A(f"s_add_u32 s6, s6, {ML_OFF}")
    A("s_lshl_b32 s68, s71, 7"); A("s_add_u32 s68, s68, s6")
    A(f"s_mov_b32 s78, 0x{f32bits(LOG2E * (128 ** -0.5)):08x}")
    A("v_and_b32 v12, 31, v2"); A("v_lshlrev_b32 v11, 2, v12"); A("v_lshlrev_b32 v12, 7, v12")
    A("s_lshr_b32 s69, s71, 3"); A("s_lshl_b32 s69, s69, 3"); A("s_add_u32 s6, s6, s69")
    g.flag_wait(F_ML, 4, 3, 10)
    A(f"ds_read_b128 v[16:19], v9 offset:{MX}")
    A(f"ds_read_b128 v[20:23], v9 offset:{LL}")
    A("s_waitcnt lgkmcnt(0)")
    A("v_max3_f32 v24, v16, v17, v18"); A("v_max_f32 v24, v24, v19"); A("v_mul_f32 v24, s78, v24")
    A("v_add_f32 v25, v20, v21"); A("v_add_f32 v26, v22, v23"); A("v_add_f32 v25, v25, v26")
    A("v_min_u32 v24, -2, v24"); A("v_min_u32 v25, -2, v25")
    A("s_lshl_b32 s69, s70, 10"); A("s_lshl_b32 s7, s71, 3"); A("s_add_u32 s69, s69, s7"); A(f"s_add_u32 s69, s69, {MLD_OFF}")
    A("v_lshlrev_b32 v10, 8, v2")
    A("s_mov_b64 exec, 15")
    A("buffer_store_dwordx2 v[24:25], v10, s[52:55], s69 offen")
    A("buffer_store_dwordx2 v[24:25], v8, s[52:55], s68 offen sc1")
    A("s_mov_b64 exec, -1")
    g.stamp(6)
    if stamps:
        A("s_waitcnt vmcnt(0)")
        g.stamp(9)
    A("s_branch L_fin")
    lab("L_X")
    if cut in (2, 3, 4):
        A("s_branch L_fin")
    down_ids(6, 7, "L_fin")
    NSUB = 2 if dshift else 1
    A("v_lshl_add_u32 v12, v13, 5, v12")
    A("v_lshl_add_u32 v10, v8, 10, v9")
    A("s_lshl_b32 s100, s6, 16"); A("s_lshl_b32 s69, s7, 7"); A("s_add_u32 s100, s100, s69")
    A("v_bfe_u32 v15, v2, 3, 1"); A("v_lshrrev_b32 v11, 1, v6"); A("v_lshl_add_u32 v11, v15, 1, v11"); A("v_lshlrev_b32 v11, 9, v11")
    A("v_lshl_add_u32 v11, v14, 6, v11"); A("v_and_b32 v15, 1, v6"); A("v_lshl_add_u32 v11, v15, 5, v11")
    A("s_lshl_b32 s76, s6, 11"); A(f"s_add_u32 s76, s76, {GP_OFF}")
    A("v_lshlrev_b32 v15, 10, v14"); A("v_lshl_add_u32 v15, v6, 5, v15")
    A("s_lshl_b32 s78, s6, 13"); A("s_add_u32 s78, s78, s69"); A(f"s_add_u32 s78, s78, {FP_OFF}")
    for p in range(8):
        A(f"s_add_u32 s{16+p}, s76, {p*28*2048}")
    if int(xtrig) == 0: g.flag_wait(F_K, 4, 3, 9)
    elif int(xtrig) == 1: g.flag_wait(F_Q, 1, 3, 9)
    else: g.flag_wait(F_K2, 4, 3, 9)
    g.flag_wait(F_GD, 2, 3, 9)
    A(f"s_mov_b32 s68, {WDT}"); A(f"s_mov_b32 s69, {WDT2}"); A("s_add_u32 s101, s100, 128")
    for i in range(8):
        A("s_mov_b32 m0, s68")
        A("s_add_u32 s68, s68, 1024")
        A(f"buffer_load_dwordx4 v10, s[48:51], s100 offen {g.ntw} lds")
        A("s_add_u32 s100, s100, 8192")
        if dshift:
            A("s_mov_b32 m0, s69")
            A("s_add_u32 s69, s69, 1024")
            A(f"buffer_load_dwordx4 v10, s[48:51], s101 offen {g.ntw} lds")
            A("s_add_u32 s101, s101, 8192")
    lds_ = []
    for p in range(8):
        lds_.append(f"buffer_load_dwordx4 v[{16+8*p}:{19+8*p}], v11, s[52:55], s{16+p} offen sc1")
        lds_.append(f"buffer_load_dwordx4 v[{20+8*p}:{23+8*p}], v11, s[52:55], s{16+p} offen offset:16 sc1")
    tagpoll(lds_, [16+4*k for k in range(16)], 8, qsleep, vaddr=11)
    g.stamp(5)
    WD = 128
    for p in range(8):
        unpack(80 + 8*p, [16+8*p, 18+8*p, 20+8*p, 22+8*p])
    for mat in range(2):
        b0 = 80 + mat*32
        for e in range(8):
            A(f"v_add_f32 v{b0+e}, v{b0+e}, v{b0+8+e}"); A(f"v_add_f32 v{b0+16+e}, v{b0+16+e}, v{b0+24+e}")
        for e in range(8):
            A(f"v_add_f32 v{b0+e}, v{b0+e}, v{b0+16+e}")
    rbf(list(range(80, 88)) + list(range(112, 120)))
    silu(list(range(80, 88)), 88)
    rbf(list(range(80, 88)))
    for e in range(8):
        A(f"v_mul_f32 v{80+e}, v{80+e}, v{112+e}")
    for e in range(4):
        A(f"v_cvt_pk_bf16_f32 v{16+e}, v{80+2*e}, v{81+2*e}")
    g.flag_wait(F_Q, 1, 3, 9)
    for sub in range(NSUB):
        base = (WDT, WDT2)[sub]
        WD = (128, 80)[sub]
        for t in range(2):
            for nt in range(4):
                r = WD + (t*4 + nt)*4
                off = base + t*4096 + nt*8
                A(f"ds_read_b64_tr_b16 v[{r}:{r+1}], v12 offset:{off}")
                A(f"ds_read_b64_tr_b16 v[{r+2}:{r+3}], v12 offset:{off+512}")
    A("s_waitcnt lgkmcnt(0)")
    for sub in range(NSUB):
        WD = (128, 80)[sub]
        for t in range(2):
            for nt in range(4):
                r = WD + (t*4 + nt)*4
                d = 32 + t*16 + nt*4
                A(f"v_mfma_f32_16x16x32_bf16 v[{d}:{d+3}], v[{r}:{r+3}], v[16:19], 0")
        nop(8)
        for e in range(16):
            A(f"v_add_f32_dpp v{32+e}, v{48+e}, v{32+e} row_ror:8 row_mask:0xf bank_mask:0xf")
        o = 64 + 8*sub
        for e in range(8):
            A(f"v_cvt_pk_bf16_f32 v{o+e}, v{32+2*e}, v{33+2*e}")
        for e in range(8):
            A(f"v_min_u32 v{o+e}, -2, v{o+e}")
        exec_mask(0x00ff00ff)
        A(f"buffer_store_dwordx4 v[{o}:{o+3}], v15, s[52:55], s78 offen offset:{128*sub} sc1")
        A(f"buffer_store_dwordx4 v[{o+4}:{o+7}], v15, s[52:55], s78 offen offset:{128*sub+16} sc1")
        A("s_mov_b64 exec, -1")
    g.stamp(6)
    lab("L_fin")
    g.stamp_flush()
    lab("L_end")
    A("s_endpgm")
    tail = ['.section .rodata,"a"', ".p2align 6", f".amdhsa_kernel {KN}",
            "  .amdhsa_next_free_vgpr 168", "  .amdhsa_next_free_sgpr 102", "  .amdhsa_accum_offset 168",
            "  .amdhsa_group_segment_fixed_size 0", "  .amdhsa_kernarg_size 96", "  .amdhsa_user_sgpr_count 2",
            "  .amdhsa_user_sgpr_kernarg_segment_ptr 1", "  .amdhsa_system_sgpr_workgroup_id_x 1",
            "  .amdhsa_float_denorm_mode_32 3",
            ".end_amdhsa_kernel"]
    return "\n".join(hdr + g.L + tail) + "\n"

if __name__ == "__main__":
    out = sys.argv[1] if len(sys.argv) > 1 else "recurrent_scan__sliding_block_cached__swiglu_ffn__decode.s"
    stamps = "--stamps" in sys.argv
    kw = {}
    for a in sys.argv[2:]:
        if "=" in a:
            k, v = a.split("=", 1); kw[k] = v
    open(out, "w").write(build(stamps=stamps, **kw))
```

```python
import sys, struct
from gen import G, f32bits, KN

QP_OFF = 0x00000
GP_OFF = 0x80000
O_OFF = 0xF0000
ML_OFF = 0x1C0000
SP_OFF = 0x132000
FP_OFF = 0x172000
FL_OFF = 0x1B0000
EP_OFF = 0x1B8000
TAGMUL = 0x9E3779B1
MLD_OFF = 0x3E0000
DUP = 0x200000
STAMP_OFF = 0x1000000
F_XN, F_Q, F_W, F_MX, F_ML, F_K, F_V0, F_V1, F_PUB, F_K2, F_WO, F_WT, F_WD, F_EP = 0, 4, 8, 12, 16, 20, 24, 28, 32, 36, 40, 44, 48, 60
F_TOK = F_V1
F_GD = 52
WDT2 = 30720 + 20480
WT = 2432
MX = 64; LL = 128; GL = 192
XN = 256; XNP = 272
QL = 2560
PL = 3584; PLP = 528
WOT = 6144
WDT = 22528
W1T = 30720
RED = W1T
VT = 63488
LDS_BYTES = 129024
LOG2E = 1.4426950408889634

def build(stamps=False, ntkv="nt", ntw="nt", thr=8, vthr=48, kdelay=0, vdelay=1, qsleep=2, cut=0, sample=0, dyn=1, vthr2=40, noclr=0, nost=0, kq=13, kv=16, wolate=0, dbgspan=0, mlchunk=6, xtrig=0, osleep=0, mlsleep=2, only='', bmask=7, qdual=0, dlate=0, tailst=0, olate=1, mlrep=1, dshift=0, spx4=1, vpre=0, touch=0, kearly=0):
    dshift = int(dshift)
    tailst = int(tailst)
    kq = int(kq); kv = int(kv); wolate = int(wolate)
    g = G(stamps, ntkv, ntw, thr)
    g.nwaves = 9
    g.only = [int(c) for c in only] if only else None
    vthr = int(vthr); kdelay = int(kdelay); vdelay = int(vdelay); qsleep = int(qsleep); cut = int(cut)
    A = g.A; lab = g.lab; nop = g.nop
    hdr = ["; Fused decode block: LN -> (GQA attention over the last 1024 cached keys -> wo) * silu(SwiGLU FFN) + x",
           "; kernarg: x, k_cache, v_cache, wq, wo, B_x(unused), w_gate, w_up, w_down, out, debug, ws (8-byte pointers)",
           "; One persistent launch, 256 workgroups x 9 waves (generated by gen/gen19.py):",
           ";   waves 0-3 attention + wo stage + final, 4/5 q / gate-up split-K tiles, 6 sync + q gather,",
           ";   7 down projection, 8 V / wo LDS-DMA loader.  Hand-offs go through ws: launch-tagged granules",
           ";   (tag = epoch word + 1) or sentinel words cleared by their producer and confirmed by tagged tokens.",
           f"; @launch grid=(256,1,1) block=(576,1,1) lds={LDS_BYTES}",
           '.amdgcn_target "amdgcn-amd-amdhsa--gfx950"', ".text", f".globl {KN}", ".p2align 8",
           f".type {KN},@function", f"{KN}:"]
    def rbf(regs):
        for r in regs: A(f"v_cvt_pk_bf16_f32 v{r}, v{r}, v{r}")
        for r in regs: A(f"v_and_b32 v{r}, 0xffff0000, v{r}")
    def unpack(dst, srcs):
        for e, sr in enumerate(srcs):
            A(f"v_lshlrev_b32 v{dst+2*e}, 16, v{sr}")
            A(f"v_and_b32 v{dst+2*e+1}, 0xffff0000, v{sr}")
    def silu(regs, tmp):
        A(f"s_mov_b32 s68, 0x{f32bits(-LOG2E):08x}")
        for i, r in enumerate(regs): A(f"v_mul_f32 v{tmp+i}, s68, v{r}")
        for i, r in enumerate(regs): A(f"v_exp_f32 v{tmp+i}, v{tmp+i}")
        nop(1)
        for i, r in enumerate(regs): A(f"v_add_f32 v{tmp+i}, 1.0, v{tmp+i}")
        for i, r in enumerate(regs): A(f"v_rcp_f32 v{tmp+i}, v{tmp+i}")
        nop(1)
        for i, r in enumerate(regs): A(f"v_mul_f32 v{r}, v{r}, v{tmp+i}")
    def exec_mask(m):
        A(f"s_mov_b32 exec_lo, 0x{m:08x}"); A(f"s_mov_b32 exec_hi, 0x{m:08x}")
    def tagpoll(loads, quads, vt, sleep, vaddr=None):
        l = g.newlab("TP"); d = g.newlab("TD")
        A("s_mov_b32 s15, 0x3ffff")
        if vaddr is not None and int(qdual):
            A(f"v_add_u32 v{vaddr}, 0x{DUP:x}, v{vaddr}")
        lab(l)
        for s_ in loads: A(s_)
        if vaddr is not None and int(qdual):
            A("s_and_b32 s14, s15, 3"); A("s_cmp_lt_u32 s14, 2")
            A(f"s_cselect_b32 s14, 0x{DUP:x}, 0")
            A(f"v_xor_b32 v{vaddr}, s14, v{vaddr}")
        A("s_waitcnt vmcnt(0)")
        first = True
        for q in quads:
            if first:
                A(f"v_xor_b32 v{vt}, s4, v{q+1}"); first = False
            else:
                A(f"v_xor_b32 v{vt+1}, s4, v{q+1}"); A(f"v_or_b32 v{vt}, v{vt}, v{vt+1}")
            A(f"v_xor_b32 v{vt+1}, s5, v{q+3}"); A(f"v_or_b32 v{vt}, v{vt}, v{vt+1}")
        A(f"v_cmp_ne_u32 vcc, 0, v{vt}")
        A("s_and_b64 exec, exec, vcc"); A(f"s_cbranch_scc0 {d}")
        if sleep: A(f"s_sleep {sleep}")
        A("s_sub_u32 s15, s15, 1"); A("s_cmp_lg_u32 s15, 0"); A(f"s_cbranch_scc1 {l}")
        lab(d)
        A("s_mov_b64 exec, -1")
    def down_ids(skb, scg, none):
        if dshift:
            A("s_cmp_ge_u32 s70, 4"); A(f"s_cbranch_scc1 {none}")
            A("s_cmp_ge_u32 s71, 28"); A(f"s_cbranch_scc1 {none}")
            A(f"s_mul_i32 s{scg}, s70, 28"); A(f"s_add_u32 s{scg}, s{scg}, s71")
            A(f"s_lshr_b32 s{skb}, s{scg}, 2"); A(f"s_and_b32 s{scg}, s{scg}, 3"); A(f"s_lshl_b32 s{scg}, s{scg}, 1")
        else:
            A("s_cmp_eq_u32 s70, 7"); A(f"s_cbranch_scc1 {none}")
            A(f"s_mov_b32 s{skb}, s74"); A(f"s_mov_b32 s{scg}, s75")
    A("s_cmp_ge_u32 s2, 256"); A("s_cbranch_scc1 L_end")
    A("s_load_dwordx16 s[4:19], s[0:1], 0")
    A("s_load_dwordx8 s[20:27], s[0:1], 64")
    g.stamp(0)
    if int(dbgspan): A("s_memrealtime s[98:99]")
    A("v_lshrrev_b32 v1, 6, v0")
    A("v_and_b32 v2, 63, v0")
    A("v_readfirstlane_b32 s3, v1")
    A("v_mov_b32 v3, 0"); A("v_mov_b32 v4, 1")
    A("v_and_b32 v5, 15, v2"); A("v_lshrrev_b32 v6, 4, v2")
    for d, n in ((28, 67108864), (32, 67108864), (44, 4194304), (48, 1835008), (52, 268435456), (56, 8192), (60, 8192)):
        A(f"s_mov_b32 s{d+2}, {n}"); A(f"s_mov_b32 s{d+3}, 0x00020000")
    A("s_mov_b32 s39, 0x00020000")
    A("s_and_b32 s70, s2, 7")
    A("s_lshr_b32 s71, s2, 3")
    A("s_lshr_b32 s72, s71, 2")
    A("s_and_b32 s73, s71, 3")
    A("s_lshl_b32 s74, s70, 2"); A("s_lshr_b32 s68, s71, 3"); A("s_add_u32 s74, s74, s68")
    A("s_and_b32 s75, s71, 7")
    A("s_lshl_b32 s64, s72, 3"); A("s_add_u32 s64, s64, s70"); A("s_lshl_b32 s64, s64, 20")
    A("s_lshl_b32 s68, s73, 16"); A("s_add_u32 s64, s64, s68"); A(f"s_add_u32 s64, s64, {3072*256}")
    A("s_cmp_ge_u32 s3, 4"); A("s_cbranch_scc1 L_H")

    KR = 16; QF = 80; SR = 96; PP = 112; ACC = 120
    PBF = 16
    VF = 48
    A("s_lshl_b32 s68, s3, 14"); A("s_add_u32 s76, s64, s68")
    for i in range(1, 4):
        A(f"s_add_u32 s{76+i}, s76, {i*4096}")
    A("v_lshlrev_b32 v7, 8, v5"); A("v_lshl_add_u32 v7, v6, 4, v7")
    A("s_waitcnt lgkmcnt(0)")
    for d, b in ((28, 6), (52, 26), (56, 4), (60, 22)):
        A(f"s_mov_b32 s{d}, s{b}"); A(f"s_mov_b32 s{d+1}, s{b+1}")
    if not int(kearly): A("s_barrier")
    if kdelay:
        g.flag_wait(F_W, 2, 3, 10)
    n = 0
    for T in range(4):
        for t in range(4):
            r = KR + (T*4 + t)*4
            if int(kearly) and n == int(kearly): A("s_barrier")
            if g.thr and n >= g.thr: A(f"s_waitcnt vmcnt({g.thr-1})")
            A(f"buffer_load_dwordx4 v[{r}:{r+3}], v7, s[28:31], s{76+T} offen offset:{t*64} {g.ntkv}"); n += 1
            if n == kv: g.flag_add(F_K2, 3, 4)
            if n == kq: g.flag_add(F_K, 3, 4)
    if not tailst: g.stamp(1)
    if cut:
        A("s_waitcnt vmcnt(0)"); g.stamp(2); A("s_branch L_fin")
    A(f"s_mov_b32 s78, 0x{f32bits(LOG2E * (128 ** -0.5)):08x}")
    A("v_and_b32 v11, 3, v2")
    A("v_lshlrev_b32 v12, 8, v11"); A("v_lshl_add_u32 v12, v6, 4, v12")
    A("v_lshlrev_b32 v13, 4, v11")
    A("s_lshl_b32 s68, s3, 2"); A("v_add_u32 v14, s68, v13")
    A(f"v_mul_u32_u24 v8, {PLP}, v11"); A("v_lshl_add_u32 v9, v6, 4, v8")
    A("v_lshl_add_u32 v8, v6, 3, v8"); A("s_lshl_b32 s68, s3, 7"); A("v_add_u32 v8, s68, v8")
    A("v_lshrrev_b32 v124, 2, v5")
    A("v_and_b32 v125, 1, v6"); A("v_lshl_add_u32 v125, v125, 2, v124"); A("v_lshlrev_b32 v125, 1, v125")
    A("v_lshrrev_b32 v126, 1, v11"); A("s_lshl_b32 s68, s3, 2"); A("v_add_u32 v126, s68, v126"); A("v_xor_b32 v126, v126, v125")
    A("v_lshlrev_b32 v126, 4, v126"); A("v_and_b32 v125, 1, v2"); A("v_lshl_add_u32 v126, v125, 3, v126")
    A("v_lshl_add_u32 v125, v6, 3, v124"); A("v_lshl_add_u32 v126, v125, 8, v126")
    A("v_xor_b32 v127, 32, v126")
    A(f"v_add_u32 v126, {VT}, v126"); A(f"v_add_u32 v127, {VT}, v127")
    A("v_lshlrev_b32 v125, 6, v11"); A("v_lshl_add_u32 v125, v6, 4, v125")
    A("s_lshl_b32 s79, s70, 2"); A("s_add_u32 s79, s79, s73"); A("s_lshl_b32 s79, s79, 3"); A("s_add_u32 s79, s79, s72")
    A("s_lshl_b32 s79, s79, 2"); A("s_add_u32 s79, s79, s3"); A("s_lshl_b32 s79, s79, 8"); A(f"s_add_u32 s79, s79, {O_OFF}")
    g.flag_wait(F_Q, 1, 3, 10)
    if not tailst: g.stamp(2)
    for t in range(4):
        A(f"ds_read_b128 v[{QF+4*t}:{QF+4*t+3}], v12 offset:{QL + t*64}")
    A("s_waitcnt lgkmcnt(0)")
    for T in range(4):
        A(f"s_waitcnt vmcnt({12 - 4*T})")
        for t in range(4):
            r = KR + (T*4 + t)*4
            cc = "0" if t == 0 else f"v[{SR+4*T}:{SR+4*T+3}]"
            A(f"v_mfma_f32_16x16x32_bf16 v[{SR+4*T}:{SR+4*T+3}], v[{r}:{r+3}], v[{QF+4*t}:{QF+4*t+3}], {cc}")
    nop(4)
    A(f"v_max3_f32 v10, v{SR}, v{SR+1}, v{SR+2}")
    for i in range(3, 11, 2):
        A(f"v_max3_f32 v10, v10, v{SR+i}, v{SR+i+1}")
    A(f"v_max_f32 v10, v10, v{SR+11}")
    A(f"v_max3_f32 v10, v10, v{SR+12}, v{SR+13}")
    A(f"v_max3_f32 v10, v10, v{SR+14}, v{SR+15}")
    g.xrow("v_max_f32", [10], [15])
    A("s_mov_b64 exec, 15")
    A(f"ds_write_b32 v14, v10 offset:{MX}")
    g.flag_add(F_MX, 3, 4)
    g.flag_wait(F_MX, 4, 3, 15, sleep=False)
    A(f"ds_read_b128 v[{PP}:{PP+3}], v13 offset:{MX}")
    A("s_waitcnt lgkmcnt(0)")
    A(f"v_max3_f32 v10, v{PP}, v{PP+1}, v{PP+2}"); A(f"v_max_f32 v10, v10, v{PP+3}")
    A("v_mul_f32 v10, s78, v10")
    for i in range(16):
        A(f"v_fma_f32 v{SR+i}, v{SR+i}, s78, -v10")
    for i in range(16):
        A(f"v_exp_f32 v{SR+i}, v{SR+i}")
    nop(1)
    for i in range(8):
        A(f"v_cvt_pk_bf16_f32 v{PP+i}, v{SR+2*i}, v{SR+2*i+1}")
    exec_mask(0x000F000F)
    for T in range(4):
        A(f"ds_write_b64 v8, v[{PP+2*T}:{PP+2*T+1}] offset:{PL + T*32}")
    A("s_mov_b64 exec, -1")
    A(f"v_add_f32 v10, v{SR}, v{SR+1}"); A(f"v_add_f32 v15, v{SR+2}, v{SR+3}")
    for i in range(4, 16, 2):
        A(f"v_add_f32 v10, v10, v{SR+i}"); A(f"v_add_f32 v15, v15, v{SR+i+1}")
    A("v_add_f32 v10, v10, v15")
    g.xrow("v_add_f32", [10], [15])
    A("s_mov_b64 exec, 15")
    A(f"ds_write_b32 v14, v10 offset:{LL}")
    g.flag_add(F_ML, 3, 4)
    g.flag_wait(F_ML, 4, 3, 15, sleep=False)
    for t in range(8):
        A(f"ds_read_b128 v[{PBF+4*t}:{PBF+4*t+3}], v9 offset:{PL + t*64}")
    if not tailst: g.stamp(3)
    A("s_lshl_b32 s68, s3, 4"); A("v_mov_b32 v113, s68")
    A(f"ds_read_b128 v[116:119], v113 offset:{MX}")
    A(f"ds_read_b128 v[120:123], v113 offset:{LL}")
    A("s_waitcnt lgkmcnt(0)")
    A("v_max3_f32 v114, v116, v117, v118"); A("v_max_f32 v114, v114, v119"); A("v_mul_f32 v114, s78, v114")
    A("v_add_f32 v115, v120, v121"); A("v_add_f32 v116, v122, v123"); A("v_add_f32 v115, v115, v116")
    A("v_min_u32 v114, -2, v114"); A("v_min_u32 v115, -2, v115")
    A("s_lshl_b32 s36, s70, 2"); A("s_add_u32 s36, s36, s3"); A("s_lshl_b32 s36, s36, 8"); A("s_lshl_b32 s68, s71, 3"); A("s_add_u32 s36, s36, s68")
    A(f"s_add_u32 s36, s36, {MLD_OFF}")
    A("s_lshl_b32 s37, s70, 5"); A("s_add_u32 s37, s37, s71"); A("s_lshl_b32 s37, s37, 7"); A("s_lshl_b32 s68, s3, 3"); A("s_add_u32 s37, s37, s68")
    A(f"s_add_u32 s37, s37, {ML_OFF}")
    A("v_and_b32 v100, 7, v2")
    A("v_lshl_add_u32 v101, v6, 2, v124"); A("v_bfe_u32 v109, v101, 1, 2"); A("v_lshlrev_b32 v101, 7, v101")
    A("v_lshl_add_u32 v101, v109, 5, v101"); A("v_lshl_add_u32 v101, v11, 3, v101")
    A("s_and_b32 s68, s3, 1"); A("s_lshl_b32 s69, s68, 13"); A("v_add_u32 v101, s69, v101")
    A("v_xor_b32 v109, 32, v101"); A("v_xor_b32 v110, 64, v101"); A("v_xor_b32 v111, 0x60, v101")
    A("v_lshlrev_b32 v102, 10, v5"); A("v_lshl_add_u32 v102, v6, 4, v102")
    A("s_lshl_b32 s77, s70, 15"); A("s_lshr_b32 s69, s3, 1"); A("s_lshl_b32 s69, s69, 14"); A("s_add_u32 s77, s77, s69")
    A("s_lshl_b32 s68, s68, 9"); A("s_add_u32 s77, s77, s68")
    A("s_lshr_b32 s68, s71, 3"); A("s_lshl_b32 s68, s68, 6"); A("s_add_u32 s77, s77, s68"); A(f"s_add_u32 s77, s77, {O_OFF}")
    A("v_bfe_u32 v103, v2, 3, 1"); A("s_lshl_b32 s68, s3, 1"); A("v_add_u32 v104, s68, v103"); A("v_mul_u32_u24 v104, 2176, v104")
    A("v_mul_u32_u24 v105, 272, v100"); A("v_add_u32 v104, v104, v105"); A("v_lshl_add_u32 v104, v6, 4, v104")
    A("s_and_b32 s69, s3, 2"); A("v_add_u32 v103, s69, v103"); A("v_lshl_add_u32 v103, v103, 4, v5"); A("v_lshlrev_b32 v103, 2, v103")
    A("v_lshl_add_u32 v108, v100, 2, v6"); A("v_lshlrev_b32 v108, 7, v108")
    A("s_lshl_b32 s65, s70, 12"); A("s_lshr_b32 s69, s71, 3"); A("s_lshl_b32 s69, s69, 3"); A("s_add_u32 s65, s65, s69"); A(f"s_add_u32 s65, s65, {ML_OFF}")
    A("v_lshrrev_b32 v105, 5, v2"); A("v_add_u32 v106, s68, v105"); A("v_mul_u32_u24 v106, 272, v106")
    A("v_and_b32 v107, 31, v2"); A("v_lshl_add_u32 v106, v107, 3, v106")
    A("v_lshlrev_b32 v105, 10, v105"); A("v_lshl_add_u32 v105, v107, 2, v105")
    A("s_lshl_b32 s78, s74, 3"); A("s_add_u32 s78, s78, s68"); A("s_lshl_b32 s78, s78, 10")
    A("s_lshl_b32 s69, s75, 7"); A("s_add_u32 s78, s78, s69"); A(f"s_add_u32 s78, s78, {SP_OFF}")
    A(f"s_add_u32 s66, s79, {DUP}"); A(f"s_add_u32 s67, s77, {DUP}"); A("s_lshl_b32 s40, s74, 8"); A(f"s_add_u32 s40, s40, {MLD_OFF}"); A("v_lshrrev_b32 v112, 4, v108")
    A("s_mov_b32 s76, 0")
    A("s_waitcnt lgkmcnt(0)")
    def pv_mfma(t):
        vf = 128 + (t & 3)*8
        for nt in range(2):
            acc = 64 + 4*nt
            cc = "0" if t == 0 else f"v[{acc}:{acc+3}]"
            A(f"v_mfma_f32_16x16x32_bf16 v[{acc}:{acc+3}], v[{vf+4*nt}:{vf+4*nt+3}], v[{PBF+4*t}:{PBF+4*t+3}], {cc}")
    for t in range(8):
        lw = g.newlab("VW"); lr = g.newlab("VR")
        A(f"s_cmp_gt_u32 s76, {t}"); A(f"s_cbranch_scc1 {lr}")
        A("s_mov_b32 s15, 0x400000")
        lab(lw)
        A(f"ds_read_b64 v[{SR}:{SR+1}], v3 offset:{F_V0}")
        A("s_waitcnt lgkmcnt(0)")
        A(f"v_add_u32 v{SR+1}, 7, v{SR+1}")
        A(f"v_min_u32 v{SR}, v{SR}, v{SR+1}")
        A(f"v_readfirstlane_b32 s41, v{SR+1}")
        A("s_sub_u32 s15, s15, 1")
        A(f"v_readfirstlane_b32 s76, v{SR}")
        A("s_cmp_eq_u32 s15, 0"); A(f"s_cbranch_scc1 {lr}")
        A(f"s_cmp_gt_u32 s76, {t}"); A(f"s_cbranch_scc0 {lw}")
        lab(lr)
        vf = 128 + (t & 3)*8
        for nt in range(2):
            A(f"ds_read_b64_tr_b16 v[{vf+4*nt}:{vf+4*nt+1}], v{126+nt} offset:{t*8192}")
            A(f"ds_read_b64_tr_b16 v[{vf+4*nt+2}:{vf+4*nt+3}], v{126+nt} offset:{t*8192 + 1024}")
        if t >= 2:
            A("s_waitcnt lgkmcnt(8)")
            pv_mfma(t - 2)
    A("s_cmp_eq_u32 s41, 8")
    A("s_cselect_b32 s67, s67, s77"); A("s_cselect_b32 s40, s40, s65"); A("s_cselect_b64 s[42:43], -1, 0")
    A("v_cndmask_b32 v112, v108, v112, s[42:43]")
    A("s_waitcnt lgkmcnt(4)")
    pv_mfma(6)
    A("s_waitcnt lgkmcnt(0)")
    pv_mfma(7)
    g.stamp(4)
    exec_mask(0x000F000F)
    nop(5)
    A("v_cvt_pk_bf16_f32 v72, v64, v65"); A("v_cvt_pk_bf16_f32 v73, v66, v67")
    A("v_cvt_pk_bf16_f32 v74, v68, v69"); A("v_cvt_pk_bf16_f32 v75, v70, v71")
    for e in range(4): A(f"v_min_u32 v{72+e}, -2, v{72+e}")
    A("s_cmp_eq_u32 s41, 8"); A("s_cbranch_scc0 L_oglob")
    A("buffer_store_dwordx4 v[72:75], v125, s[52:55], s66 offen")
    if int(mlrep):
        A("s_mov_b64 exec, 1")
        A("buffer_store_dwordx2 v[114:115], v3, s[52:55], s36 offen")
    A("s_branch L_ostored")
    lab("L_oglob")
    A("buffer_store_dwordx4 v[72:75], v125, s[52:55], s79 offen sc1")
    lab("L_ostored")
    A("s_mov_b64 exec, -1")
    g.stamp(5)
    AF = 64
    def oloads(so):
        return [f"buffer_load_dwordx4 v[{AF}:{AF+3}], v102, s[52:55], s{so} offen sc1",
                f"buffer_load_dwordx4 v[{AF+4}:{AF+7}], v102, s[52:55], s{so} offen offset:256 sc1"]
    def mloads(sm):
        return [f"buffer_load_dwordx2 v[76:77], v{112 if sm == 40 else 108}, s[52:55], s{sm} offen sc1"]
    def ensure_store():
        le = g.newlab("ES")
        A(f"s_cmp_lg_u32 s41, 0"); A(f"s_cbranch_scc1 {le}")
        A("s_mov_b32 s41, 1")
        A("s_mov_b64 s[42:43], exec")
        exec_mask(0x000F000F)
        A("buffer_store_dwordx4 v[72:75], v125, s[52:55], s79 offen sc1")
        A("s_mov_b64 exec, s[42:43]")
        lab(le)
    def dualpoll(la, lb_, regs, first_wait):
        l0 = g.newlab("OP"); l1 = g.newlab("OC"); ld = g.newlab("OD"); lb = g.newlab("OB"); l2 = g.newlab("OW")
        A("s_mov_b32 s15, 0x40000")
        A(f"s_waitcnt vmcnt({first_wait})")
        A(f"s_branch {l1}")
        lab(l0)
        A(f"s_and_b32 s14, s15, {int(bmask)}"); A("s_cmp_eq_u32 s14, 0"); A(f"s_cbranch_scc1 {lb}")
        for l_ in la: A(l_)
        A(f"s_branch {l2}")
        lab(lb)
        ensure_store()
        for l_ in lb_: A(l_)
        lab(l2)
        A("s_waitcnt vmcnt(0)")
        lab(l1)
        rs = list(regs)
        if len(rs) == 2:
            A(f"v_max_u32 v10, v{rs[0]}, v{rs[1]}")
        else:
            A(f"v_max3_u32 v10, v{rs[0]}, v{rs[1]}, v{rs[2]}"); A(f"v_max3_u32 v15, v{rs[3]}, v{rs[4]}, v{rs[5]}")
            A(f"v_max3_u32 v10, v10, v{rs[6]}, v{rs[7]}"); A("v_max_u32 v10, v10, v15")
        A("v_cmp_eq_u32 vcc, -1, v10")
        A("s_and_b64 exec, exec, vcc"); A(f"s_cbranch_scc0 {ld}")
        if int(osleep): A(f"s_sleep {int(osleep)}")
        A("s_sub_u32 s15, s15, 1"); A("s_cmp_lg_u32 s15, 0"); A(f"s_cbranch_scc1 {l0}")
        lab(ld)
        A("s_mov_b64 exec, -1")
    g.poll(mloads(40), [76, 77], 10)
    for l_ in oloads(67): A(l_)
    if tailst: g.stamp(1)
    A("v_mov_b32 v78, v76")
    g.xrow("v_max_f32", [78], [79])
    A("v_sub_f32 v76, v76, v78")
    A("v_exp_f32 v76, v76")
    nop(1)
    A("v_mul_f32 v77, v76, v77")
    A("ds_bpermute_b32 v76, v103, v76")
    g.xrow("v_add_f32", [77], [79])
    A("v_rcp_f32 v77, v77")
    A("s_waitcnt lgkmcnt(0)")
    A("v_mul_f32 v76, v76, v77"); A("v_mov_b32 v77, v76")
    g.flag_wait(F_WO, 1, 3, 10, sleep=False)
    if tailst: g.stamp(2)
    BF = 32
    for nt in range(4):
        for t in range(2):
            r = BF + (nt*2 + t)*4
            off = WOT + t*4096
            va = (101, 109, 110, 111)[nt]
            A(f"ds_read_b64_tr_b16 v[{r}:{r+1}], v{va} offset:{off}")
            A(f"ds_read_b64_tr_b16 v[{r+2}:{r+3}], v{va} offset:{off + 2048}")
    g.poll(oloads(67), list(range(AF, AF+8)), 10, preissued=True)
    A("s_waitcnt lgkmcnt(0)")
    if tailst:
        A("s_sub_u32 s86, 0x40000, s15"); A("s_add_u32 s86, s86, s80"); A("s_mov_b32 s87, s81")
    g.stamp(6)
    DW = 80
    for t in range(2):
        for nt in range(4):
            r = BF + (nt*2 + t)*4
            cc = "0" if t == 0 else f"v[{DW+4*nt}:{DW+4*nt+3}]"
            A(f"v_mfma_f32_16x16x32_bf16 v[{DW+4*nt}:{DW+4*nt+3}], v[{r}:{r+3}], v[{AF+4*t}:{AF+4*t+3}], {cc}")
    nop(5)
    for nt in range(4):
        A(f"v_pk_mul_f32 v[{DW+4*nt}:{DW+4*nt+1}], v[{DW+4*nt}:{DW+4*nt+1}], v[76:77]")
        A(f"v_pk_mul_f32 v[{DW+4*nt+2}:{DW+4*nt+3}], v[{DW+4*nt+2}:{DW+4*nt+3}], v[76:77]")
        A(f"ds_write_b128 v104, v[{DW+4*nt}:{DW+4*nt+3}] offset:{RED + nt*64}")
    A("s_waitcnt lgkmcnt(0)")
    A("s_barrier")
    for p in range(8):
        A(f"ds_read_b64 v[{32+2*p}:{33+2*p}], v106 offset:{RED + p*2176}")
    A("s_waitcnt lgkmcnt(4)") if (not stamps or only) else A("s_waitcnt lgkmcnt(0)")
    A("v_pk_add_f32 v[32:33], v[32:33], v[34:35]"); A("v_pk_add_f32 v[36:37], v[36:37], v[38:39]")
    A("v_pk_add_f32 v[32:33], v[32:33], v[36:37]")
    A("s_waitcnt lgkmcnt(0)")
    A("v_pk_add_f32 v[40:41], v[40:41], v[42:43]"); A("v_pk_add_f32 v[44:45], v[44:45], v[46:47]")
    A("v_pk_add_f32 v[40:41], v[40:41], v[44:45]")
    A("v_pk_add_f32 v[32:33], v[32:33], v[40:41]")
    A("v_cvt_pk_bf16_f32 v32, v32, v33")
    A("v_min_u32 v32, -2, v32")
    if int(spx4):
        nop(2)
        A("v_mov_b32_dpp v33, v32 quad_perm:[1,1,1,1] row_mask:0xf bank_mask:0xf")
        A("v_mov_b32_dpp v34, v32 quad_perm:[2,2,2,2] row_mask:0xf bank_mask:0xf")
        A("v_mov_b32_dpp v35, v32 quad_perm:[3,3,3,3] row_mask:0xf bank_mask:0xf")
        exec_mask(0x11111111)
        A("buffer_store_dwordx4 v[32:35], v105, s[52:55], s78 offen sc1")
        A("s_mov_b64 exec, -1")
    else:
        A("buffer_store_dword v32, v105, s[52:55], s78 offen sc1")
    g.stamp(7)
    A("s_cmp_ge_u32 s3, 2"); A("s_cbranch_scc1 L_fin")
    A("s_lshr_b32 s68, s2, 5"); A("s_lshl_b32 s68, s68, 10"); A("s_and_b32 s69, s2, 31"); A("s_lshl_b32 s69, s69, 5")
    A("s_add_u32 s76, s68, s69")
    A("v_lshrrev_b32 v17, 1, v2"); A("v_and_b32 v16, 1, v2")
    A("v_lshlrev_b32 v19, 4, v16"); A("v_mov_b32 v20, 0x3f80"); A("v_lshlrev_b32 v20, v19, v20")
    A("v_bfe_u32 v19, v2, 1, 2")
    for e in range(4):
        A(f"v_cmp_eq_u32 vcc, {e}, v19")
        nop(2)
        A(f"v_cndmask_b32 v{40+e}, 0, v20, vcc")
    A("v_lshlrev_b32 v21, 4, v16"); A("v_lshl_add_u32 v21, v6, 3, v21")
    A("s_cmp_eq_u32 s3, 1"); A("s_cbranch_scc1 L_fg")
    A("v_lshlrev_b32 v17, 13, v17"); A("v_lshl_add_u32 v17, v16, 4, v17")
    A(f"s_add_u32 s77, s76, {SP_OFF}")
    A("buffer_load_dwordx2 v[44:45], v21, s[56:59], s76 offen")
    g.poll(["buffer_load_dwordx4 v[32:35], v17, s[52:55], s77 offen sc1"], [32, 33, 34, 35], 10)
    g.stamp(8)
    def red_final():
        A("v_mfma_f32_16x16x32_bf16 v[36:39], v[40:43], v[32:35], 0")
        nop(8)
        for mod in ("row_ror:2", "row_ror:4", "row_ror:8"):
            for r in range(4):
                A(f"v_add_f32_dpp v{36+r}, v{36+r}, v{36+r} {mod} row_mask:0xf bank_mask:0xf")
    red_final()
    A("s_barrier")
    A("v_lshlrev_b32 v22, 1, v21")
    A(f"ds_read_b128 v[48:51], v22 offset:{GL}")
    A("v_cvt_pk_bf16_f32 v32, v36, v37"); A("v_cvt_pk_bf16_f32 v33, v38, v39")
    unpack(36, [32, 33])
    unpack(52, [44, 45])
    A("s_waitcnt lgkmcnt(0)")
    A("v_pk_mul_f32 v[36:37], v[36:37], v[48:49]"); A("v_pk_mul_f32 v[38:39], v[38:39], v[50:51]")
    A("v_cvt_pk_bf16_f32 v32, v36, v37"); A("v_cvt_pk_bf16_f32 v33, v38, v39")
    unpack(36, [32, 33])
    A("v_pk_add_f32 v[36:37], v[36:37], v[52:53]"); A("v_pk_add_f32 v[38:39], v[38:39], v[54:55]")
    A("v_cvt_pk_bf16_f32 v32, v36, v37"); A("v_cvt_pk_bf16_f32 v33, v38, v39")
    A("s_mov_b64 exec, 0x30003")
    A("buffer_store_dwordx2 v[32:33], v21, s[60:63], s76 offen")
    A("s_mov_b64 exec, -1")
    g.stamp(9)
    if int(dbgspan):
        A("s_memrealtime s[96:97]")
        A("s_mov_b32 s40, s24"); A("s_mov_b32 s41, s25"); A("s_mov_b32 s42, 256"); A("s_mov_b32 s43, 0x00020000")
        A("s_waitcnt lgkmcnt(0)")
        A("s_sub_u32 s98, 0, s98")
        A("v_mov_b32 v40, s98"); A("v_mov_b32 v41, s96")
        A("s_mov_b64 exec, 1")
        A("buffer_atomic_umax v40, v3, s[40:43], 0 offen sc1")
        A("buffer_atomic_umax v41, v3, s[40:43], 0 offen offset:4 sc1")
        A("s_mov_b64 exec, -1")
    A("s_cmp_lg_u32 s2, 0"); A("s_cbranch_scc1 L_fin")
    A(f"ds_read_b32 v32, v3 offset:{F_EP}")
    A(f"s_mov_b32 s68, {EP_OFF}")
    A("s_waitcnt lgkmcnt(0)")
    A("s_mov_b64 exec, 1")
    A("buffer_store_dword v32, v3, s[52:55], s68 offen sc1")
    A("s_mov_b64 exec, -1")
    A("s_branch L_fin")
    lab("L_fg")
    A("v_min_u32 v17, 27, v17")
    A("v_lshlrev_b32 v17, 13, v17"); A("v_lshl_add_u32 v17, v16, 4, v17")
    A(f"s_add_u32 s77, s76, {FP_OFF}")
    g.poll(["buffer_load_dwordx4 v[32:35], v17, s[52:55], s77 offen sc1"], [32, 33, 34, 35], 10)
    g.stamp(8)
    A("v_cmp_gt_u32 vcc, 56, v2")
    nop(2)
    for r in range(4):
        A(f"v_cndmask_b32 v{32+r}, 0, v{32+r}, vcc")
    nop(1)
    red_final()
    rbf([36, 37, 38, 39])
    silu([36, 37, 38, 39], 48)
    rbf([36, 37, 38, 39])
    A("v_lshlrev_b32 v22, 1, v21")
    A("s_mov_b64 exec, 0x30003")
    A(f"ds_write_b128 v22, v[36:39] offset:{GL}")
    A("s_mov_b64 exec, -1")
    A("s_waitcnt lgkmcnt(0)")
    A("s_barrier")
    g.stamp(9)
    A("s_branch L_fin")

    lab("L_H")
    A("s_cmp_eq_u32 s3, 8"); A("s_cbranch_scc1 L_load")
    A("s_setprio 3")
    A("v_lshlrev_b32 v7, 4, v2")
    A("s_sub_u32 s77, s3, 4")
    A("s_cmp_lg_u32 s3, 7"); A("s_cbranch_scc1 L_noinit")
    A("v_lshlrev_b32 v8, 2, v5")
    A("ds_write_b32 v8, v3")
    lab("L_noinit")
    A("v_lshrrev_b32 v8, 3, v2"); A("v_and_b32 v9, 7, v2"); A("v_lshlrev_b32 v9, 4, v9")
    A("s_lshl_b32 s68, s77, 11")
    A(f"s_mov_b32 s69, 0x{EP_OFF:x}")
    A("s_waitcnt lgkmcnt(0)")
    A("s_load_dword s79, s[26:27], s69")
    for d, b in ((32, 8), (44, 12), (48, 20), (52, 26), (56, 4)):
        A(f"s_mov_b32 s{d}, s{b}"); A(f"s_mov_b32 s{d+1}, s{b+1}")
    XR = 16
    for r in range(2):
        A(f"buffer_load_dwordx4 v[{XR+4*r}:{XR+4*r+3}], v7, s[56:59], s68 offen offset:{r*1024}")
    A("s_cmp_ge_u32 s3, 6"); A("s_cbranch_scc1 L_SX0")
    A("s_cmp_eq_u32 s3, 5"); A("s_cbranch_scc1 L_G1")
    A("s_mov_b32 s36, s10"); A("s_mov_b32 s37, s11"); A("s_mov_b32 s38, 4194304")
    A("s_lshl_b32 s76, s70, 3"); A("s_add_u32 s76, s76, s72"); A("s_lshl_b32 s76, s76, 7")
    A("s_movk_i32 s69, 8192")
    A("s_lshl_b32 s78, s73, 17"); A("s_lshl_b32 s68, s76, 4"); A("s_add_u32 s78, s78, s68")
    A(f"s_add_u32 s78, s78, {QP_OFF}")
    A("s_branch L_GJ")
    lab("L_G1")
    A("s_cmp_eq_u32 s70, 7"); A("s_cbranch_scc1 L_LN0")
    A("s_bitcmp1_b32 s71, 2")
    A("s_cselect_b32 s36, s18, s16"); A("s_cselect_b32 s37, s19, s17"); A("s_mov_b32 s38, 1835008")
    A("s_lshl_b32 s76, s74, 7")
    A("s_movk_i32 s69, 3584")
    A("s_and_b32 s78, s71, 7"); A(f"s_mul_i32 s78, s78, {28*2048}"); A("s_lshl_b32 s68, s76, 4"); A("s_add_u32 s78, s78, s68")
    A(f"s_add_u32 s78, s78, {GP_OFF}")
    lab("L_GJ")
    A("v_mul_lo_u32 v10, v8, s69"); A("v_add_u32 v10, v10, v9")
    A("s_lshl_b32 s68, s73, 7"); A("s_mul_i32 s68, s68, s69"); A("s_add_u32 s100, s76, s68")
    A("s_lshl_b32 s101, s69, 3")
    A("s_lshl_b32 s68, s77, 14"); A(f"s_add_u32 s68, s68, {W1T}")
    for i in range(16):
        A("s_mov_b32 m0, s68")
        A("s_add_u32 s68, s68, 1024")
        A(f"buffer_load_dwordx4 v10, s[36:39], s100 offen {g.ntw} lds")
        A("s_add_u32 s100, s100, s101")
    A("s_barrier")
    A("s_waitcnt vmcnt(16)")
    A("s_branch L_LN")
    lab("L_SX0")
    A("s_cmp_eq_u32 s3, 7"); A("s_cbranch_scc1 L_LN0")
    if int(noclr): A("s_branch L_LN0")
    for r in range(4):
        A(f"v_mov_b32 v{24+r}, -1")
    A("s_lshl_b32 s68, s70, 2"); A("s_add_u32 s68, s68, s73"); A("s_lshl_b32 s68, s68, 3"); A("s_add_u32 s68, s68, s72")
    A("s_lshl_b32 s68, s68, 10"); A(f"s_add_u32 s68, s68, {O_OFF}")
    A("buffer_store_dwordx4 v[24:27], v7, s[52:55], s68 offen sc1")
    A(f"s_add_u32 s68, s68, {DUP}")
    A("buffer_store_dwordx4 v[24:27], v7, s[52:55], s68 offen sc1")
    A("v_lshl_add_u32 v10, v8, 10, v9")
    A("s_lshl_b32 s68, s74, 13"); A("s_lshl_b32 s69, s75, 7"); A("s_add_u32 s68, s68, s69")
    A(f"s_add_u32 s69, s68, {SP_OFF}")
    A("buffer_store_dwordx4 v[24:27], v10, s[52:55], s69 offen sc1")
    down_ids(68, 69, "L_nofp")
    A("s_lshl_b32 s68, s68, 13"); A("s_lshl_b32 s69, s69, 7"); A("s_add_u32 s69, s69, s68"); A(f"s_add_u32 s69, s69, {FP_OFF}")
    A("buffer_store_dwordx4 v[24:27], v10, s[52:55], s69 offen sc1")
    if dshift: A("buffer_store_dwordx4 v[24:27], v10, s[52:55], s69 offen offset:128 sc1")
    lab("L_nofp")
    A("s_lshl_b32 s68, s70, 5"); A("s_add_u32 s68, s68, s71"); A("s_lshl_b32 s68, s68, 7"); A(f"s_add_u32 s68, s68, {ML_OFF}")
    A("s_mov_b64 exec, 3")
    A("buffer_store_dwordx4 v[24:27], v7, s[52:55], s68 offen sc1")
    A("s_mov_b64 exec, 15")
    A("v_lshlrev_b32 v10, 8, v2")
    A("s_lshl_b32 s68, s70, 10"); A("s_lshl_b32 s69, s71, 3"); A("s_add_u32 s68, s68, s69"); A(f"s_add_u32 s68, s68, {MLD_OFF}")
    A("buffer_store_dwordx2 v[24:25], v10, s[52:55], s68 offen sc1")
    A("s_mov_b64 exec, -1")
    A("s_barrier")
    A("s_waitcnt vmcnt(5)")
    A("s_cmp_eq_u32 s70, 7"); A("s_cbranch_scc1 L_LN")
    A("s_nop 0")
    A("s_branch L_LN") if False else None
    A("s_waitcnt vmcnt(4)") if False else None
    A("s_branch L_LN")
    lab("L_LN0")
    A("s_barrier")
    A("s_waitcnt vmcnt(0)")
    lab("L_LN")
    if cut == 1:
        g.flag_add(F_W, 3, 4); A("s_branch L_fin")
    XF = 32
    for r in range(2):
        unpack(XF + 8*r, [XR + 4*r + e for e in range(4)])
    SM = 64
    for r in range(2):
        A(f"v_add_f32 v{SM+r}, v{XF+8*r}, v{XF+8*r+1}"); A(f"v_add_f32 v{SM+2+r}, v{XF+8*r+2}, v{XF+8*r+3}")
    for e in range(4, 8, 2):
        for r in range(2):
            A(f"v_add_f32 v{SM+r}, v{SM+r}, v{XF+8*r+e}"); A(f"v_add_f32 v{SM+2+r}, v{SM+2+r}, v{XF+8*r+e+1}")
    for r in range(2):
        A(f"v_add_f32 v{SM+r}, v{SM+r}, v{SM+2+r}")
    g.allreduce64("v_add_f32", [SM, SM+1], [SM+4, SM+5])
    A(f"s_mov_b32 s68, 0x{f32bits(1.0/512):08x}")
    for r in range(2):
        A(f"v_mul_f32 v{SM+r}, s68, v{SM+r}")
    VS = 72
    for e in range(8):
        for r in range(2):
            A(f"v_sub_f32 v{80+2*(e&1)+r}, v{XF+8*r+e}, v{SM+r}")
        for r in range(2):
            t_ = 80+2*(e&1)+r
            if e == 0: A(f"v_mul_f32 v{VS+r}, v{t_}, v{t_}")
            else: A(f"v_fmac_f32 v{VS+r}, v{t_}, v{t_}")
    g.allreduce64("v_add_f32", [VS, VS+1], [VS+4, VS+5])
    for r in range(2):
        A(f"v_mul_f32 v{VS+r}, s68, v{VS+r}")
    rbf([SM, SM+1, VS, VS+1])
    for r in range(2):
        A(f"v_add_f32 v{VS+r}, 0x{f32bits(1e-5):08x}, v{VS+r}")
    rbf([VS, VS+1])
    for r in range(2):
        A(f"v_sqrt_f32 v{VS+r}, v{VS+r}")
    nop(1)
    rbf([VS, VS+1])
    for r in range(2):
        A(f"v_rcp_f32 v{VS+r}, v{VS+r}")
    for r in range(2):
        for e in range(8):
            A(f"v_sub_f32 v{XF+8*r+e}, v{XF+8*r+e}, v{SM+r}")
    for r in range(2):
        for e in range(4):
            A(f"v_cvt_pk_bf16_f32 v{XR+4*r+e}, v{XF+8*r+2*e}, v{XF+8*r+2*e+1}")
    for r in range(2):
        unpack(XF + 8*r, [XR + 4*r + e for e in range(4)])
    for r in range(2):
        for e in range(8):
            A(f"v_mul_f32 v{XF+8*r+e}, v{XF+8*r+e}, v{VS+r}")
    for r in range(2):
        for e in range(4):
            A(f"v_cvt_pk_bf16_f32 v{XR+4*r+e}, v{XF+8*r+2*e}, v{XF+8*r+2*e+1}")
    A(f"s_mul_i32 s68, s77, {2*XNP}"); A("v_lshlrev_b32 v11, 4, v5"); A("v_add_u32 v11, s68, v11")
    A("v_cmp_eq_u32 vcc, s73, v6")
    A("s_and_saveexec_b64 s[68:69], vcc")
    for r in range(2):
        A(f"ds_write_b128 v11, v[{XR+4*r}:{XR+4*r+3}] offset:{XN + r*XNP}")
    g.flag_add(F_XN, 3, 4)
    g.stamp(2)
    A("s_add_u32 s4, s79, 1"); A(f"s_mul_i32 s5, s4, 0x{TAGMUL:x}")
    A("v_lshrrev_b32 v12, 2, v5"); A("v_lshl_add_u32 v12, v6, 3, v12"); A("v_lshlrev_b32 v12, 7, v12")
    A("v_and_b32 v13, 3, v2")
    A("v_and_b32 v14, 7, v2")
    A("s_cmp_ge_u32 s3, 6"); A("s_cbranch_scc1 L_SX1")
    A("s_cmp_lg_u32 s3, 5"); A("s_cbranch_scc1 L_Ggo")
    A("s_cmp_lg_u32 s70, 7"); A("s_cbranch_scc1 L_Ggo")
    g.flag_add(F_W, 3, 4)
    g.flag_add(F_GD, 3, 4)
    A("s_branch L_G1post")
    lab("L_Ggo")
    A(f"v_mul_u32_u24 v11, {XNP}, v14"); A("v_lshl_add_u32 v11, v6, 4, v11")
    A("v_lshl_add_u32 v12, v13, 3, v12")
    A("s_lshl_b32 s68, s77, 14"); A("v_add_u32 v12, s68, v12")
    A("s_cmp_eq_u32 s3, 5"); A("s_cbranch_scc1 L_dstG")
    A("v_lshlrev_b32 v15, 8, v14"); A("v_lshl_add_u32 v15, v6, 4, v15")
    A("s_mov_b32 s8, s78"); A("s_add_u32 s9, s78, 64"); A("s_add_u32 s10, s78, 128"); A("s_add_u32 s11, s78, 192")
    A("s_branch L_dstJ")
    lab("L_dstG")
    A("v_and_b32 v15, 1, v6"); A("v_lshlrev_b32 v15, 10, v15"); A("v_lshrrev_b32 v9, 1, v6"); A("v_lshl_add_u32 v15, v9, 8, v15")
    A("v_lshl_add_u32 v15, v14, 4, v15")
    A("s_mov_b32 s8, s78"); A("s_add_u32 s9, s78, 512"); A("s_add_u32 s10, s78, 128"); A("s_add_u32 s11, s78, 640")
    lab("L_dstJ")
    for nt in range(4):
        A(f"v_mov_b32 v{113+4*nt}, s4"); A(f"v_mov_b32 v{115+4*nt}, s5")
    A(f"s_add_u32 s66, s78, {DUP}")
    g.flag_wait(F_XN, 4, 3, 10)
    XB = 16
    for t in range(4):
        A(f"ds_read_b128 v[{XB+4*t}:{XB+4*t+3}], v11 offset:{XN + t*64}")
    WB = 32
    for t in range(4):
        A(f"s_waitcnt vmcnt({12 - 4*t})")
        if t == 3:
            g.flag_add(F_W, 3, 4)
        for nt in range(4):
            r = WB + (t*4 + nt)*4
            off = W1T + t*4096 + nt*32
            A(f"ds_read_b64_tr_b16 v[{r}:{r+1}], v12 offset:{off}")
            A(f"ds_read_b64_tr_b16 v[{r+2}:{r+3}], v12 offset:{off+512}")
        A("s_waitcnt lgkmcnt(0)")
        for nt in range(4):
            r = WB + (t*4 + nt)*4
            d = 96 + nt*4
            cc = "0" if t == 0 else f"v[{d}:{d+3}]"
            A(f"v_mfma_f32_16x16x32_bf16 v[{d}:{d+3}], v[{r}:{r+3}], v[{XB+4*t}:{XB+4*t+3}], {cc}")
    g.stamp(3)
    g.flag_add(F_GD, 3, 4)
    exec_mask(0x00ff00ff)
    nop(2)
    for nt in range(4):
        A(f"v_cvt_pk_bf16_f32 v{112+4*nt}, v{96+4*nt}, v{97+4*nt}")
        A(f"v_cvt_pk_bf16_f32 v{114+4*nt}, v{98+4*nt}, v{99+4*nt}")
        if int(qdual): A(f"buffer_store_dwordx4 v[{112+4*nt}:{115+4*nt}], v15, s[52:55], s66 offen offset:{nt*512}")
        else: A(f"buffer_store_dwordx4 v[{112+4*nt}:{115+4*nt}], v15, s[52:55], s{8+nt} offen sc1")
    if int(qdual):
      for nt in range(4):
        A(f"buffer_store_dwordx4 v[{112+4*nt}:{115+4*nt}], v15, s[52:55], s78 offen offset:{nt*512} sc1")
    A("s_mov_b64 exec, -1")
    g.stamp(4)
    lab("L_Gpost")
    A("s_cmp_eq_u32 s3, 5"); A("s_cbranch_scc1 L_G1post")
    A(f"s_mov_b32 s6, {FL_OFF}")
    A("s_getreg_b32 s7, hwreg(HW_REG_XCC_ID, 0, 4)")
    A("s_andn2_b32 s8, s5, 15"); A("s_or_b32 s8, s8, s7")
    g.flag_wait(F_K2, 4, 3, 10)
    g.stamp(5)
    A("s_mov_b32 s15, 0x40000")
    lab("L_alpoll")
    A("buffer_load_dwordx4 v[20:23], v7, s[52:55], s6 offen sc1")
    A("buffer_load_dwordx4 v[24:27], v7, s[52:55], s6 offen offset:1024 sc1")
    A("s_waitcnt vmcnt(0)")
    for e in range(4):
        A(f"v_xor_b32 v{28+2*e}, s4, v{20+2*e}"); A(f"v_xor_b32 v{29+2*e}, s8, v{21+2*e}")
    A("v_or3_b32 v36, v29, v31, v33"); A("v_or_b32 v36, v36, v35"); A("v_and_b32 v36, -16, v36")
    A("v_or3_b32 v36, v36, v28, v30"); A("v_or3_b32 v36, v36, v32, v34")
    A("v_cmp_ne_u32 vcc, 0, v36")
    A("s_and_b64 exec, exec, vcc"); A("s_cbranch_scc0 L_aldone")
    A("s_sleep 4")
    A("s_sub_u32 s15, s15, 1"); A("s_cmp_lg_u32 s15, 0"); A("s_cbranch_scc1 L_alpoll")
    lab("L_aldone")
    A("s_mov_b64 exec, -1")
    A("v_or_b32 v29, v29, v33"); A("v_or_b32 v31, v31, v35")
    A("s_bitcmp1_b32 s70, 0"); A("s_cselect_b64 s[8:9], -1, 0")
    A("v_cndmask_b32 v29, v29, v31, s[8:9]")
    A("s_lshr_b32 s8, s70, 1")
    A("v_cmp_eq_u32 vcc, s8, v13")
    A("v_cmp_ne_u32 s[8:9], 0, v29")
    A("s_and_b64 s[8:9], s[8:9], vcc")
    A("s_cselect_b32 s8, 2, 1")
    A("v_mov_b32 v20, s8")
    A(f"ds_write_b32 v3, v20 offset:{F_TOK}")
    g.stamp(6)
    A("s_waitcnt lgkmcnt(0)")
    A("s_branch L_fin")
    lab("L_G1post")
    A("s_waitcnt lgkmcnt(0)")
    A("s_branch L_fin")
    lab("L_load")
    A("s_setprio 2")
    A("v_lshrrev_b32 v8, 3, v2"); A("v_and_b32 v9, 7, v2"); A("v_lshlrev_b32 v9, 4, v9")
    A("v_lshlrev_b32 v16, 1, v6"); A("v_xor_b32 v16, v16, v5"); A("v_xor_b32 v17, 8, v16")
    A("v_lshlrev_b32 v16, 4, v16"); A("v_lshl_add_u32 v16, v6, 8, v16")
    A("v_lshlrev_b32 v17, 4, v17"); A("v_lshl_add_u32 v17, v6, 8, v17")
    A("s_mov_b32 s100, s64")
    A(f"s_mov_b32 s101, {VT}")
    A("v_lshl_add_u32 v18, v8, 10, v9")
    A("v_lshlrev_b32 v21, 5, v6"); A("v_xor_b32 v21, v21, v18")
    A("s_lshl_b32 s76, s74, 17"); A("s_lshl_b32 s68, s75, 7"); A("s_add_u32 s76, s76, s68")
    A(f"s_mov_b32 s77, {WOT}")
    A("s_lshl_b32 s78, s74, 16"); A("s_add_u32 s78, s78, s68")
    A(f"s_mov_b32 s79, {WDT}")
    A("s_waitcnt lgkmcnt(0)")
    for d, b_ in ((32, 8), (44, 12), (48, 20), (52, 26)):
        A(f"s_mov_b32 s{d}, s{b_}"); A(f"s_mov_b32 s{d+1}, s{b_+1}")
    A("s_barrier")
    if cut == 2:
        A("s_branch L_fin")
    if int(touch):
        A("s_mov_b64 exec, 1")
        A(f"buffer_load_dword v30, v3, s[44:47], s76 offen {g.ntw}")
        A(f"buffer_load_dword v31, v3, s[48:51], s78 offen {g.ntw}")
        if not int(vpre): A(f"buffer_load_dword v32, v3, s[32:35], s100 offen {g.ntkv}")
        A("s_mov_b64 exec, -1")
        A("s_waitcnt vmcnt(0)")
    if vdelay and not int(vpre):
        g.flag_wait(F_K2, 4, 3, 10)
    g.stamp(5)
    NV = 64
    dl = int(dlate)
    seq = [("v", i) for i in range(NV)]
    if dl == 1: seq += [("d", i) for i in range(8)]
    seq += [("w", i) for i in range(16)]
    if dl == 2: seq += [("d", i) for i in range(8)]
    NT = len(seq)
    marks = {}
    for k in range(8, NV + 1, 8): marks[k] = ("V", k // 8)
    if dl == 1: marks[NV + 8] = ("F", F_WD)
    if dl == 2: marks[NV + 16] = ("F", F_WO)
    def publish(k):
        if k in marks:
            kind, val = marks.pop(k)
            if kind == "V":
                A(f"v_mov_b32 v20, {val}")
                A(f"ds_write_b32 v3, v20 offset:{F_V0}")
            else:
                A(f"ds_write_b32 v3, v4 offset:{val}")
    for i, (kind, j) in enumerate(seq):
        if int(vpre) and i == int(vpre) and vdelay:
            g.flag_wait(F_K2, 4, 3, 10)
        if i >= vthr:
            A(f"s_waitcnt vmcnt({vthr-1})")
            publish(i - vthr + 1)
        if kind == "v":
            A("s_mov_b32 m0, s101")
            A("s_add_u32 s101, s101, 1024")
            A(f"buffer_load_dwordx4 v{16 + ((j >> 1) & 1)}, s[32:35], s100 offen {g.ntkv} lds")
            A("s_add_u32 s100, s100, 1024")
        elif kind == "w":
            A("s_mov_b32 m0, s77")
            A("s_add_u32 s77, s77, 1024")
            A(f"buffer_load_dwordx4 v21, s[44:47], s76 offen {g.ntw} lds")
            A("s_add_u32 s76, s76, 8192")
        else:
            A("s_mov_b32 m0, s79")
            A("s_add_u32 s79, s79, 1024")
            A(f"buffer_load_dwordx4 v18, s[48:51], s78 offen {g.ntw} lds")
            A("s_add_u32 s78, s78, 8192")
    g.stamp(6)
    for k in sorted(marks):
        A(f"s_waitcnt vmcnt({NT - k})")
        publish(k)
    A("s_waitcnt vmcnt(0)")
    A(f"ds_write_b32 v3, v4 offset:{F_WD if dl == 2 else F_WO}")
    g.stamp(7)
    A("s_waitcnt lgkmcnt(0)")
    A("s_branch L_fin")
    lab("L_SX1")
    A("s_cmp_eq_u32 s3, 7"); A("s_cbranch_scc1 L_X")
    A("s_getreg_b32 s6, hwreg(HW_REG_XCC_ID, 0, 4)")
    A("s_andn2_b32 s7, s5, 15"); A("s_or_b32 s7, s7, s6")
    A("v_mov_b32 v16, s4"); A("v_mov_b32 v17, s7")
    A("s_lshl_b32 s7, s2, 3"); A(f"s_add_u32 s7, s7, {FL_OFF}")
    A("s_waitcnt vmcnt(0)")
    A("s_mov_b64 exec, 1")
    A("buffer_store_dwordx2 v[16:17], v3, s[52:55], s7 offen sc1")
    A(f"ds_write_b32 v3, v16 offset:{F_EP}")
    A("s_mov_b64 exec, -1")
    g.stamp(1)
    if cut in (2, 3):
        A("s_branch L_fin")
    A("v_lshlrev_b32 v9, 11, v6"); A("v_lshl_add_u32 v9, v5, 4, v9")
    A("s_lshl_b32 s16, s70, 14"); A("s_lshl_b32 s69, s72, 8"); A("s_add_u32 s16, s16, s69"); A(f"s_add_u32 s16, s16, {QP_OFF}")
    for k in range(1, 8):
        A(f"s_add_u32 s{16+k}, s16, {(k>>1)*131072 + (k&1)*8192}")
    A("v_lshlrev_b32 v8, 3, v2")
    A("v_bfe_u32 v12, v2, 3, 2"); A("v_lshlrev_b32 v12, 17, v12"); A("v_lshl_add_u32 v12, v14, 11, v12")
    g.flag_wait(F_K, 4, 3, 10)
    g.stamp(7)
    if int(sample):
        tagpoll([f"buffer_load_dwordx4 v[16:19], v12, s[52:55], s16 offen offset:{3*512+48} sc1"], [16], 10, qsleep)
    g.stamp(8)
    tagpoll([f"buffer_load_dwordx4 v[{16+4*k}:{19+4*k}], v9, s[52:55], s{16+k} offen sc1" for k in range(8)],
            [16+4*k for k in range(8)], 10, qsleep, vaddr=9)
    g.stamp(3)
    if stamps and not only:
        A("s_waitcnt lgkmcnt(0)")
        A("s_sub_u32 s88, 0x3ffff, s15"); A("s_mul_i32 s88, s88, 10"); A("s_add_u32 s88, s88, s80"); A("s_mov_b32 s89, s81")
    for k in range(8):
        unpack(48 + 4*k, [16+4*k, 18+4*k])
    for i in range(2):
        for e in range(4):
            A(f"v_add_f32 v{48+4*i+e}, v{48+4*i+e}, v{56+4*i+e}"); A(f"v_add_f32 v{64+4*i+e}, v{64+4*i+e}, v{72+4*i+e}")
    for e in range(8):
        A(f"v_add_f32 v{48+e}, v{48+e}, v{64+e}")
    for e in range(4):
        A(f"v_cvt_pk_bf16_f32 v{16+e}, v{48+2*e}, v{49+2*e}")
    A(f"ds_write_b64 v8, v[16:17] offset:{QL}")
    A(f"ds_write_b64 v8, v[18:19] offset:{QL+512}")
    g.flag_add(F_Q, 3, 4)
    g.stamp(5)
    if cut == 4:
        A("s_branch L_fin")
    A("v_lshlrev_b32 v8, 3, v2"); A("v_lshlrev_b32 v9, 4, v13")
    A("s_lshl_b32 s6, s70, 12"); A(f"s_add_u32 s6, s6, {ML_OFF}")
    A("s_lshl_b32 s68, s71, 7"); A("s_add_u32 s68, s68, s6")
    A(f"s_mov_b32 s78, 0x{f32bits(LOG2E * (128 ** -0.5)):08x}")
    A("v_and_b32 v12, 31, v2"); A("v_lshlrev_b32 v11, 2, v12"); A("v_lshlrev_b32 v12, 7, v12")
    A("s_lshr_b32 s69, s71, 3"); A("s_lshl_b32 s69, s69, 3"); A("s_add_u32 s6, s6, s69")
    g.flag_wait(F_ML, 4, 3, 10)
    A(f"ds_read_b128 v[16:19], v9 offset:{MX}")
    A(f"ds_read_b128 v[20:23], v9 offset:{LL}")
    A("s_waitcnt lgkmcnt(0)")
    A("v_max3_f32 v24, v16, v17, v18"); A("v_max_f32 v24, v24, v19"); A("v_mul_f32 v24, s78, v24")
    A("v_add_f32 v25, v20, v21"); A("v_add_f32 v26, v22, v23"); A("v_add_f32 v25, v25, v26")
    A("v_min_u32 v24, -2, v24"); A("v_min_u32 v25, -2, v25")
    A("s_lshl_b32 s69, s70, 10"); A("s_lshl_b32 s7, s71, 3"); A("s_add_u32 s69, s69, s7"); A(f"s_add_u32 s69, s69, {MLD_OFF}")
    A("v_lshlrev_b32 v10, 8, v2")
    A("s_mov_b64 exec, 15")
    A("buffer_store_dwordx2 v[24:25], v10, s[52:55], s69 offen")
    A("buffer_store_dwordx2 v[24:25], v8, s[52:55], s68 offen sc1")
    A("s_mov_b64 exec, -1")
    g.stamp(6)
    if stamps:
        A("s_waitcnt vmcnt(0)")
        g.stamp(9)
    A("s_branch L_fin")
    lab("L_X")
    if cut in (2, 3, 4):
        A("s_branch L_fin")
    down_ids(6, 7, "L_fin")
    NSUB = 2 if dshift else 1
    A("v_lshl_add_u32 v12, v13, 5, v12")
    A("v_lshl_add_u32 v10, v8, 10, v9")
    A("s_lshl_b32 s100, s6, 16"); A("s_lshl_b32 s69, s7, 7"); A("s_add_u32 s100, s100, s69")
    A("v_mov_b32 v11, v7")
    A("s_lshl_b32 s76, s6, 11"); A(f"s_add_u32 s76, s76, {GP_OFF}")
    A("v_lshlrev_b32 v15, 10, v14"); A("v_lshl_add_u32 v15, v6, 5, v15")
    A("s_lshl_b32 s78, s6, 13"); A("s_add_u32 s78, s78, s69"); A(f"s_add_u32 s78, s78, {FP_OFF}")
    for p in range(8):
        A(f"s_add_u32 s{16+p}, s76, {p*28*2048}")
    if int(xtrig) == 0: g.flag_wait(F_K, 4, 3, 9)
    elif int(xtrig) == 1: g.flag_wait(F_Q, 1, 3, 9)
    else: g.flag_wait(F_K2, 4, 3, 9)
    g.flag_wait(F_GD, 2, 3, 9)
    A(f"s_mov_b32 s68, {WDT}"); A(f"s_mov_b32 s69, {WDT2}"); A("s_add_u32 s101, s100, 128")
    for i in range(8):
        A("s_mov_b32 m0, s68")
        A("s_add_u32 s68, s68, 1024")
        A(f"buffer_load_dwordx4 v10, s[48:51], s100 offen {g.ntw} lds")
        A("s_add_u32 s100, s100, 8192")
        if dshift:
            A("s_mov_b32 m0, s69")
            A("s_add_u32 s69, s69, 1024")
            A(f"buffer_load_dwordx4 v10, s[48:51], s101 offen {g.ntw} lds")
            A("s_add_u32 s101, s101, 8192")
    lds_ = []
    for p in range(8):
        lds_.append(f"buffer_load_dwordx4 v[{16+8*p}:{19+8*p}], v11, s[52:55], s{16+p} offen sc1")
        lds_.append(f"buffer_load_dwordx4 v[{20+8*p}:{23+8*p}], v11, s[52:55], s{16+p} offen offset:1024 sc1")
    tagpoll(lds_, [16+4*k for k in range(16)], 8, qsleep, vaddr=11)
    g.stamp(5)
    if stamps and not only:
        A("s_waitcnt lgkmcnt(0)")
        A("s_sub_u32 s88, 0x3ffff, s15"); A("s_mul_i32 s88, s88, 10"); A("s_add_u32 s88, s88, s80"); A("s_mov_b32 s89, s81")
    WD = 128
    for p in range(8):
        unpack(80 + 8*p, [16+8*p, 18+8*p, 20+8*p, 22+8*p])
    for mat in range(2):
        b0 = 80 + mat*32
        for e in range(8):
            A(f"v_add_f32 v{b0+e}, v{b0+e}, v{b0+8+e}"); A(f"v_add_f32 v{b0+16+e}, v{b0+16+e}, v{b0+24+e}")
        for e in range(8):
            A(f"v_add_f32 v{b0+e}, v{b0+e}, v{b0+16+e}")
    rbf(list(range(80, 88)) + list(range(112, 120)))
    silu(list(range(80, 88)), 88)
    rbf(list(range(80, 88)))
    for e in range(8):
        A(f"v_mul_f32 v{80+e}, v{80+e}, v{112+e}")
    for e in range(4):
        A(f"v_cvt_pk_bf16_f32 v{16+e}, v{80+2*e}, v{81+2*e}")
    g.flag_wait(F_Q, 1, 3, 9)
    for sub in range(NSUB):
        base = (WDT, WDT2)[sub]
        WD = (128, 80)[sub]
        for t in range(2):
            for nt in range(4):
                r = WD + (t*4 + nt)*4
                off = base + t*4096 + nt*8
                A(f"ds_read_b64_tr_b16 v[{r}:{r+1}], v12 offset:{off}")
                A(f"ds_read_b64_tr_b16 v[{r+2}:{r+3}], v12 offset:{off+512}")
    A("s_waitcnt lgkmcnt(0)")
    for sub in range(NSUB):
        WD = (128, 80)[sub]
        for t in range(2):
            for nt in range(4):
                r = WD + (t*4 + nt)*4
                d = 32 + t*16 + nt*4
                A(f"v_mfma_f32_16x16x32_bf16 v[{d}:{d+3}], v[{r}:{r+3}], v[16:19], 0")
        nop(8)
        for e in range(16):
            A(f"v_add_f32_dpp v{32+e}, v{48+e}, v{32+e} row_ror:8 row_mask:0xf bank_mask:0xf")
        o = 64 + 8*sub
        for e in range(8):
            A(f"v_cvt_pk_bf16_f32 v{o+e}, v{32+2*e}, v{33+2*e}")
        for e in range(8):
            A(f"v_min_u32 v{o+e}, -2, v{o+e}")
        exec_mask(0x00ff00ff)
        A(f"buffer_store_dwordx4 v[{o}:{o+3}], v15, s[52:55], s78 offen offset:{128*sub} sc1")
        A(f"buffer_store_dwordx4 v[{o+4}:{o+7}], v15, s[52:55], s78 offen offset:{128*sub+16} sc1")
        A("s_mov_b64 exec, -1")
    g.stamp(6)
    lab("L_fin")
    g.stamp_flush()
    lab("L_end")
    A("s_endpgm")
    tail = ['.section .rodata,"a"', ".p2align 6", f".amdhsa_kernel {KN}",
            "  .amdhsa_next_free_vgpr 168", "  .amdhsa_next_free_sgpr 102", "  .amdhsa_accum_offset 168",
            "  .amdhsa_group_segment_fixed_size 0", "  .amdhsa_kernarg_size 96", "  .amdhsa_user_sgpr_count 2",
            "  .amdhsa_user_sgpr_kernarg_segment_ptr 1", "  .amdhsa_system_sgpr_workgroup_id_x 1",
            "  .amdhsa_float_denorm_mode_32 3",
            ".end_amdhsa_kernel"]
    return "\n".join(hdr + g.L + tail) + "\n"

if __name__ == "__main__":
    out = sys.argv[1] if len(sys.argv) > 1 else "recurrent_scan__sliding_block_cached__swiglu_ffn__decode.s"
    stamps = "--stamps" in sys.argv
    kw = {}
    for a in sys.argv[2:]:
        if "=" in a:
            k, v = a.split("=", 1); kw[k] = v
    open(out, "w").write(build(stamps=stamps, **kw))
```

```python
import sys, struct
from gen import G, f32bits, KN

QP_OFF = 0x00000
GP_OFF = 0x80000
O_OFF = 0xF0000
ML_OFF = 0x1C0000
SP_OFF = 0x132000
FP_OFF = 0x172000
FL_OFF = 0x1B0000
EP_OFF = 0x1B8000
TAGMUL = 0x9E3779B1
MLD_OFF = 0x3E0000
DUP = 0x200000
STAMP_OFF = 0x1000000
F_XN, F_Q, F_W, F_MX, F_ML, F_K, F_V0, F_V1, F_PUB, F_K2, F_WO, F_WT, F_WD, F_EP = 0, 4, 8, 12, 16, 20, 24, 28, 32, 36, 40, 44, 48, 60
F_TOK = F_V1
F_GD = 52
WDT2 = 30720 + 20480
WT = 2432
MX = 64; LL = 128; GL = 192
XN = 256; XNP = 272
QL = 2560
PL = 3584; PLP = 528
WOT = 6144
WDT = 22528
W1T = 30720
RED = W1T
VT = 63488
LDS_BYTES = 129024
LOG2E = 1.4426950408889634

def build(stamps=False, ntkv="nt", ntw="nt", thr=8, vthr=48, kdelay=0, vdelay=1, qsleep=2, cut=0, sample=0, dyn=1, vthr2=40, noclr=0, nost=0, kq=13, kv=16, wolate=0, dbgspan=0, mlchunk=6, xtrig=0, osleep=0, mlsleep=2, only='', bmask=7, qdual=0, dlate=0, tailst=0, olate=1, mlrep=1, dshift=0, spx4=1, vpre=0, touch=0, kearly=0, fmap=1, fchunk=6, fsl=4, fmode=2, wopos=64, wread=7):
    wp = int(wopos); wread = int(wread)
    dshift = int(dshift)
    tailst = int(tailst)
    kq = int(kq); kv = int(kv); wolate = int(wolate)
    g = G(stamps, ntkv, ntw, thr)
    g.nwaves = 9
    g.only = [int(c) for c in only] if only else None
    vthr = int(vthr); kdelay = int(kdelay); vdelay = int(vdelay); qsleep = int(qsleep); cut = int(cut)
    A = g.A; lab = g.lab; nop = g.nop
    hdr = ["; Fused decode block: LN -> (GQA attention over the last 1024 cached keys -> wo) * silu(SwiGLU FFN) + x",
           "; kernarg: x, k_cache, v_cache, wq, wo, B_x(unused), w_gate, w_up, w_down, out, debug, ws (8-byte pointers)",
           "; One persistent launch, 256 workgroups x 9 waves (generated by gen/gen21.py (gen20 lineage)):",
           ";   waves 0-3 attention + wo stage, 4/5 q / gate-up split-K tiles (5: final stage), 6 clears + q gather,",
           ";   7 down projection, 8 V / wo LDS-DMA loader.  Hand-offs go through ws: launch-tagged granules",
           ";   (tag = epoch word + 1) or sentinel words cleared by their producer and confirmed by tagged tokens.",
           f"; @launch grid=(256,1,1) block=(576,1,1) lds={LDS_BYTES}",
           '.amdgcn_target "amdgcn-amd-amdhsa--gfx950"', ".text", f".globl {KN}", ".p2align 8",
           f".type {KN},@function", f"{KN}:"]
    def rbf(regs):
        for r in regs: A(f"v_cvt_pk_bf16_f32 v{r}, v{r}, v{r}")
        for r in regs: A(f"v_and_b32 v{r}, 0xffff0000, v{r}")
    def unpack(dst, srcs):
        for e, sr in enumerate(srcs):
            A(f"v_lshlrev_b32 v{dst+2*e}, 16, v{sr}")
            A(f"v_and_b32 v{dst+2*e+1}, 0xffff0000, v{sr}")
    def silu(regs, tmp):
        A(f"s_mov_b32 s68, 0x{f32bits(-LOG2E):08x}")
        for i, r in enumerate(regs): A(f"v_mul_f32 v{tmp+i}, s68, v{r}")
        for i, r in enumerate(regs): A(f"v_exp_f32 v{tmp+i}, v{tmp+i}")
        nop(1)
        for i, r in enumerate(regs): A(f"v_add_f32 v{tmp+i}, 1.0, v{tmp+i}")
        for i, r in enumerate(regs): A(f"v_rcp_f32 v{tmp+i}, v{tmp+i}")
        nop(1)
        for i, r in enumerate(regs): A(f"v_mul_f32 v{r}, v{r}, v{tmp+i}")
    def exec_mask(m):
        A(f"s_mov_b32 exec_lo, 0x{m:08x}"); A(f"s_mov_b32 exec_hi, 0x{m:08x}")
    def tagpoll(loads, quads, vt, sleep, vaddr=None):
        l = g.newlab("TP"); d = g.newlab("TD")
        A("s_mov_b32 s15, 0x3ffff")
        if vaddr is not None and int(qdual):
            A(f"v_add_u32 v{vaddr}, 0x{DUP:x}, v{vaddr}")
        lab(l)
        for s_ in loads: A(s_)
        if vaddr is not None and int(qdual):
            A("s_and_b32 s14, s15, 3"); A("s_cmp_lt_u32 s14, 2")
            A(f"s_cselect_b32 s14, 0x{DUP:x}, 0")
            A(f"v_xor_b32 v{vaddr}, s14, v{vaddr}")
        A("s_waitcnt vmcnt(0)")
        first = True
        for q in quads:
            if first:
                A(f"v_xor_b32 v{vt}, s4, v{q+1}"); first = False
            else:
                A(f"v_xor_b32 v{vt+1}, s4, v{q+1}"); A(f"v_or_b32 v{vt}, v{vt}, v{vt+1}")
            A(f"v_xor_b32 v{vt+1}, s5, v{q+3}"); A(f"v_or_b32 v{vt}, v{vt}, v{vt+1}")
        A(f"v_cmp_ne_u32 vcc, 0, v{vt}")
        A("s_and_b64 exec, exec, vcc"); A(f"s_cbranch_scc0 {d}")
        if sleep: A(f"s_sleep {sleep}")
        A("s_sub_u32 s15, s15, 1"); A("s_cmp_lg_u32 s15, 0"); A(f"s_cbranch_scc1 {l}")
        lab(d)
        A("s_mov_b64 exec, -1")
    def down_ids(skb, scg, none):
        if dshift:
            A("s_cmp_ge_u32 s70, 4"); A(f"s_cbranch_scc1 {none}")
            A("s_cmp_ge_u32 s71, 28"); A(f"s_cbranch_scc1 {none}")
            A(f"s_mul_i32 s{scg}, s70, 28"); A(f"s_add_u32 s{scg}, s{scg}, s71")
            A(f"s_lshr_b32 s{skb}, s{scg}, 2"); A(f"s_and_b32 s{scg}, s{scg}, 3"); A(f"s_lshl_b32 s{scg}, s{scg}, 1")
        else:
            A("s_cmp_eq_u32 s70, 7"); A(f"s_cbranch_scc1 {none}")
            A(f"s_mov_b32 s{skb}, s74"); A(f"s_mov_b32 s{scg}, s75")
    A("s_cmp_ge_u32 s2, 256"); A("s_cbranch_scc1 L_end")
    A("s_load_dwordx16 s[4:19], s[0:1], 0")
    A("s_load_dwordx8 s[20:27], s[0:1], 64")
    g.stamp(0)
    if int(dbgspan): A("s_memrealtime s[98:99]")
    A("v_lshrrev_b32 v1, 6, v0")
    A("v_and_b32 v2, 63, v0")
    A("v_readfirstlane_b32 s3, v1")
    A("v_mov_b32 v3, 0"); A("v_mov_b32 v4, 1")
    A("v_and_b32 v5, 15, v2"); A("v_lshrrev_b32 v6, 4, v2")
    for d, n in ((28, 67108864), (32, 67108864), (44, 4194304), (48, 1835008), (52, 268435456), (56, 8192), (60, 8192)):
        A(f"s_mov_b32 s{d+2}, {n}"); A(f"s_mov_b32 s{d+3}, 0x00020000")
    A("s_mov_b32 s39, 0x00020000")
    A("s_and_b32 s70, s2, 7")
    A("s_lshr_b32 s71, s2, 3")
    A("s_lshr_b32 s72, s71, 2")
    A("s_and_b32 s73, s71, 3")
    A("s_lshl_b32 s74, s70, 2"); A("s_lshr_b32 s68, s71, 3"); A("s_add_u32 s74, s74, s68")
    A("s_and_b32 s75, s71, 7")
    A("s_lshl_b32 s64, s72, 3"); A("s_add_u32 s64, s64, s70"); A("s_lshl_b32 s64, s64, 20")
    A("s_lshl_b32 s68, s73, 16"); A("s_add_u32 s64, s64, s68"); A(f"s_add_u32 s64, s64, {3072*256}")
    A("s_cmp_ge_u32 s3, 4"); A("s_cbranch_scc1 L_H")

    KR = 16; QF = 80; SR = 96; PP = 112; ACC = 120
    PBF = 16
    VF = 48
    A("s_lshl_b32 s68, s3, 14"); A("s_add_u32 s76, s64, s68")
    for i in range(1, 4):
        A(f"s_add_u32 s{76+i}, s76, {i*4096}")
    A("v_lshlrev_b32 v7, 8, v5"); A("v_lshl_add_u32 v7, v6, 4, v7")
    A("s_waitcnt lgkmcnt(0)")
    for d, b in ((28, 6), (52, 26), (56, 4), (60, 22)):
        A(f"s_mov_b32 s{d}, s{b}"); A(f"s_mov_b32 s{d+1}, s{b+1}")
    if not int(kearly): A("s_barrier")
    if kdelay:
        g.flag_wait(F_W, 2, 3, 10)
    n = 0
    for T in range(4):
        for t in range(4):
            r = KR + (T*4 + t)*4
            if int(kearly) and n == int(kearly): A("s_barrier")
            if g.thr and n >= g.thr: A(f"s_waitcnt vmcnt({g.thr-1})")
            A(f"buffer_load_dwordx4 v[{r}:{r+3}], v7, s[28:31], s{76+T} offen offset:{t*64} {g.ntkv}"); n += 1
            if n == kv: g.flag_add(F_K2, 3, 4)
            if n == kq: g.flag_add(F_K, 3, 4)
    if not tailst: g.stamp(1)
    if cut:
        A("s_waitcnt vmcnt(0)"); g.stamp(2); A("s_branch L_fin")
    A(f"s_mov_b32 s78, 0x{f32bits(LOG2E * (128 ** -0.5)):08x}")
    A("v_and_b32 v11, 3, v2")
    A("v_lshlrev_b32 v12, 8, v11"); A("v_lshl_add_u32 v12, v6, 4, v12")
    A("v_lshlrev_b32 v13, 4, v11")
    A("s_lshl_b32 s68, s3, 2"); A("v_add_u32 v14, s68, v13")
    A(f"v_mul_u32_u24 v8, {PLP}, v11"); A("v_lshl_add_u32 v9, v6, 4, v8")
    A("v_lshl_add_u32 v8, v6, 3, v8"); A("s_lshl_b32 s68, s3, 7"); A("v_add_u32 v8, s68, v8")
    A("v_lshrrev_b32 v124, 2, v5")
    A("v_and_b32 v125, 1, v6"); A("v_lshl_add_u32 v125, v125, 2, v124"); A("v_lshlrev_b32 v125, 1, v125")
    A("v_lshrrev_b32 v126, 1, v11"); A("s_lshl_b32 s68, s3, 2"); A("v_add_u32 v126, s68, v126"); A("v_xor_b32 v126, v126, v125")
    A("v_lshlrev_b32 v126, 4, v126"); A("v_and_b32 v125, 1, v2"); A("v_lshl_add_u32 v126, v125, 3, v126")
    A("v_lshl_add_u32 v125, v6, 3, v124"); A("v_lshl_add_u32 v126, v125, 8, v126")
    A("v_xor_b32 v127, 32, v126")
    A(f"v_add_u32 v126, {VT}, v126"); A(f"v_add_u32 v127, {VT}, v127")
    A("v_lshlrev_b32 v125, 6, v11"); A("v_lshl_add_u32 v125, v6, 4, v125")
    A("s_lshl_b32 s79, s70, 2"); A("s_add_u32 s79, s79, s73"); A("s_lshl_b32 s79, s79, 3"); A("s_add_u32 s79, s79, s72")
    A("s_lshl_b32 s79, s79, 2"); A("s_add_u32 s79, s79, s3"); A("s_lshl_b32 s79, s79, 8"); A(f"s_add_u32 s79, s79, {O_OFF}")
    g.flag_wait(F_Q, 1, 3, 10)
    if not tailst: g.stamp(2)
    for t in range(4):
        A(f"ds_read_b128 v[{QF+4*t}:{QF+4*t+3}], v12 offset:{QL + t*64}")
    A("s_waitcnt lgkmcnt(0)")
    for T in range(4):
        A(f"s_waitcnt vmcnt({12 - 4*T})")
        for t in range(4):
            r = KR + (T*4 + t)*4
            cc = "0" if t == 0 else f"v[{SR+4*T}:{SR+4*T+3}]"
            A(f"v_mfma_f32_16x16x32_bf16 v[{SR+4*T}:{SR+4*T+3}], v[{r}:{r+3}], v[{QF+4*t}:{QF+4*t+3}], {cc}")
    nop(4)
    A(f"v_max3_f32 v10, v{SR}, v{SR+1}, v{SR+2}")
    for i in range(3, 11, 2):
        A(f"v_max3_f32 v10, v10, v{SR+i}, v{SR+i+1}")
    A(f"v_max_f32 v10, v10, v{SR+11}")
    A(f"v_max3_f32 v10, v10, v{SR+12}, v{SR+13}")
    A(f"v_max3_f32 v10, v10, v{SR+14}, v{SR+15}")
    g.xrow("v_max_f32", [10], [15])
    A("s_mov_b64 exec, 15")
    A(f"ds_write_b32 v14, v10 offset:{MX}")
    g.flag_add(F_MX, 3, 4)
    g.flag_wait(F_MX, 4, 3, 15, sleep=False)
    A(f"ds_read_b128 v[{PP}:{PP+3}], v13 offset:{MX}")
    A("s_waitcnt lgkmcnt(0)")
    A(f"v_max3_f32 v10, v{PP}, v{PP+1}, v{PP+2}"); A(f"v_max_f32 v10, v10, v{PP+3}")
    A("v_mul_f32 v10, s78, v10")
    for i in range(16):
        A(f"v_fma_f32 v{SR+i}, v{SR+i}, s78, -v10")
    for i in range(16):
        A(f"v_exp_f32 v{SR+i}, v{SR+i}")
    nop(1)
    for i in range(8):
        A(f"v_cvt_pk_bf16_f32 v{PP+i}, v{SR+2*i}, v{SR+2*i+1}")
    exec_mask(0x000F000F)
    for T in range(4):
        A(f"ds_write_b64 v8, v[{PP+2*T}:{PP+2*T+1}] offset:{PL + T*32}")
    A("s_mov_b64 exec, -1")
    A(f"v_add_f32 v10, v{SR}, v{SR+1}"); A(f"v_add_f32 v15, v{SR+2}, v{SR+3}")
    for i in range(4, 16, 2):
        A(f"v_add_f32 v10, v10, v{SR+i}"); A(f"v_add_f32 v15, v15, v{SR+i+1}")
    A("v_add_f32 v10, v10, v15")
    g.xrow("v_add_f32", [10], [15])
    A("s_mov_b64 exec, 15")
    A(f"ds_write_b32 v14, v10 offset:{LL}")
    g.flag_add(F_ML, 3, 4)
    g.flag_wait(F_ML, 4, 3, 15, sleep=False)
    for t in range(8):
        A(f"ds_read_b128 v[{PBF+4*t}:{PBF+4*t+3}], v9 offset:{PL + t*64}")
    if not tailst: g.stamp(3)
    A("s_lshl_b32 s68, s3, 4"); A("v_mov_b32 v113, s68")
    A(f"ds_read_b128 v[116:119], v113 offset:{MX}")
    A(f"ds_read_b128 v[120:123], v113 offset:{LL}")
    A("s_waitcnt lgkmcnt(0)")
    A("v_max3_f32 v114, v116, v117, v118"); A("v_max_f32 v114, v114, v119"); A("v_mul_f32 v114, s78, v114")
    A("v_add_f32 v115, v120, v121"); A("v_add_f32 v116, v122, v123"); A("v_add_f32 v115, v115, v116")
    A("v_min_u32 v114, -2, v114"); A("v_min_u32 v115, -2, v115")
    A("s_lshl_b32 s36, s70, 2"); A("s_add_u32 s36, s36, s3"); A("s_lshl_b32 s36, s36, 8"); A("s_lshl_b32 s68, s71, 3"); A("s_add_u32 s36, s36, s68")
    A(f"s_add_u32 s36, s36, {MLD_OFF}")
    A("s_lshl_b32 s37, s70, 5"); A("s_add_u32 s37, s37, s71"); A("s_lshl_b32 s37, s37, 7"); A("s_lshl_b32 s68, s3, 3"); A("s_add_u32 s37, s37, s68")
    A(f"s_add_u32 s37, s37, {ML_OFF}")
    A("v_and_b32 v100, 7, v2")
    A("v_lshl_add_u32 v101, v6, 2, v124"); A("v_bfe_u32 v109, v101, 1, 2"); A("v_lshlrev_b32 v101, 7, v101")
    A("v_lshl_add_u32 v101, v109, 5, v101"); A("v_lshl_add_u32 v101, v11, 3, v101")
    A("s_and_b32 s68, s3, 1"); A("s_lshl_b32 s69, s68, 13"); A("v_add_u32 v101, s69, v101")
    A("v_xor_b32 v109, 32, v101"); A("v_xor_b32 v110, 64, v101"); A("v_xor_b32 v111, 0x60, v101")
    A("v_lshlrev_b32 v102, 10, v5"); A("v_lshl_add_u32 v102, v6, 4, v102")
    A("s_lshl_b32 s77, s70, 15"); A("s_lshr_b32 s69, s3, 1"); A("s_lshl_b32 s69, s69, 14"); A("s_add_u32 s77, s77, s69")
    A("s_lshl_b32 s68, s68, 9"); A("s_add_u32 s77, s77, s68")
    A("s_lshr_b32 s68, s71, 3"); A("s_lshl_b32 s68, s68, 6"); A("s_add_u32 s77, s77, s68"); A(f"s_add_u32 s77, s77, {O_OFF}")
    A("v_bfe_u32 v103, v2, 3, 1"); A("s_lshl_b32 s68, s3, 1"); A("v_add_u32 v104, s68, v103"); A("v_mul_u32_u24 v104, 2176, v104")
    A("v_mul_u32_u24 v105, 272, v100"); A("v_add_u32 v104, v104, v105"); A("v_lshl_add_u32 v104, v6, 4, v104")
    A("s_and_b32 s69, s3, 2"); A("v_add_u32 v103, s69, v103"); A("v_lshl_add_u32 v103, v103, 4, v5"); A("v_lshlrev_b32 v103, 2, v103")
    A("v_lshl_add_u32 v108, v100, 2, v6"); A("v_lshlrev_b32 v108, 7, v108")
    A("s_lshl_b32 s65, s70, 12"); A("s_lshr_b32 s69, s71, 3"); A("s_lshl_b32 s69, s69, 3"); A("s_add_u32 s65, s65, s69"); A(f"s_add_u32 s65, s65, {ML_OFF}")
    A("v_lshrrev_b32 v105, 5, v2"); A("v_add_u32 v106, s68, v105"); A("v_mul_u32_u24 v106, 272, v106")
    A("v_and_b32 v107, 31, v2"); A("v_lshl_add_u32 v106, v107, 3, v106")
    A("v_lshlrev_b32 v105, 10, v105"); A("v_lshl_add_u32 v105, v107, 2, v105")
    A("s_lshl_b32 s78, s74, 3"); A("s_add_u32 s78, s78, s68"); A("s_lshl_b32 s78, s78, 10")
    A("s_lshl_b32 s69, s75, 7"); A("s_add_u32 s78, s78, s69"); A(f"s_add_u32 s78, s78, {SP_OFF}")
    A(f"s_add_u32 s66, s79, {DUP}"); A(f"s_add_u32 s67, s77, {DUP}"); A("s_lshl_b32 s40, s74, 8"); A(f"s_add_u32 s40, s40, {MLD_OFF}"); A("v_lshrrev_b32 v112, 4, v108")
    A("s_mov_b32 s76, 0")
    A("s_waitcnt lgkmcnt(0)")
    def pv_mfma(t):
        vf = 128 + (t & 3)*8
        for nt in range(2):
            acc = 64 + 4*nt
            cc = "0" if t == 0 else f"v[{acc}:{acc+3}]"
            A(f"v_mfma_f32_16x16x32_bf16 v[{acc}:{acc+3}], v[{vf+4*nt}:{vf+4*nt+3}], v[{PBF+4*t}:{PBF+4*t+3}], {cc}")
    def bf(nt, t):
        i = nt*2 + t
        return 48 + 4*i if i < 4 else 80 + 4*(i - 4)
    def wo_frags():
        for nt in range(4):
            for t2 in range(2):
                r = bf(nt, t2)
                off = WOT + t2*4096
                va = (101, 109, 110, 111)[nt]
                A(f"ds_read_b64_tr_b16 v[{r}:{r+1}], v{va} offset:{off}")
                A(f"ds_read_b64_tr_b16 v[{r+2}:{r+3}], v{va} offset:{off + 2048}")
    for t in range(8):
        lw = g.newlab("VW"); lr = g.newlab("VR")
        if wp < 64 and t == wread:
            g.flag_wait(F_WO, 1, 3, 10, sleep=False)
            wo_frags()
            A("s_waitcnt lgkmcnt(0)")
        A(f"s_cmp_gt_u32 s76, {t}"); A(f"s_cbranch_scc1 {lr}")
        A("s_mov_b32 s15, 0x400000")
        lab(lw)
        A(f"ds_read_b64 v[{SR}:{SR+1}], v3 offset:{F_V0}")
        A("s_waitcnt lgkmcnt(0)")
        A(f"v_add_u32 v{SR+1}, 7, v{SR+1}")
        A(f"v_min_u32 v{SR}, v{SR}, v{SR+1}")
        A(f"v_readfirstlane_b32 s41, v{SR+1}")
        A("s_sub_u32 s15, s15, 1")
        A(f"v_readfirstlane_b32 s76, v{SR}")
        A("s_cmp_eq_u32 s15, 0"); A(f"s_cbranch_scc1 {lr}")
        A(f"s_cmp_gt_u32 s76, {t}"); A(f"s_cbranch_scc0 {lw}")
        lab(lr)
        vf = 128 + (t & 3)*8
        for nt in range(2):
            A(f"ds_read_b64_tr_b16 v[{vf+4*nt}:{vf+4*nt+1}], v{126+nt} offset:{t*8192}")
            A(f"ds_read_b64_tr_b16 v[{vf+4*nt+2}:{vf+4*nt+3}], v{126+nt} offset:{t*8192 + 1024}")
        if t >= 2:
            A("s_waitcnt lgkmcnt(8)")
            pv_mfma(t - 2)
    A("s_cmp_eq_u32 s41, 8")
    A("s_cselect_b32 s67, s67, s77"); A("s_cselect_b32 s40, s40, s65"); A("s_cselect_b64 s[42:43], -1, 0")
    A("v_cndmask_b32 v112, v108, v112, s[42:43]")
    A("s_waitcnt lgkmcnt(4)")
    pv_mfma(6)
    A("s_waitcnt lgkmcnt(0)")
    pv_mfma(7)
    g.stamp(4)
    exec_mask(0x000F000F)
    nop(5)
    A("v_cvt_pk_bf16_f32 v72, v64, v65"); A("v_cvt_pk_bf16_f32 v73, v66, v67")
    A("v_cvt_pk_bf16_f32 v74, v68, v69"); A("v_cvt_pk_bf16_f32 v75, v70, v71")
    for e in range(4): A(f"v_min_u32 v{72+e}, -2, v{72+e}")
    A("s_cmp_eq_u32 s41, 8"); A("s_cbranch_scc0 L_oglob")
    A("buffer_store_dwordx4 v[72:75], v125, s[52:55], s66 offen")
    if int(mlrep):
        A("s_mov_b64 exec, 1")
        A("buffer_store_dwordx2 v[114:115], v3, s[52:55], s36 offen")
    A("s_branch L_ostored")
    lab("L_oglob")
    A("buffer_store_dwordx4 v[72:75], v125, s[52:55], s79 offen sc1")
    lab("L_ostored")
    A("s_mov_b64 exec, -1")
    g.stamp(5)
    AF = 64
    def oloads(so):
        return [f"buffer_load_dwordx4 v[{AF}:{AF+3}], v102, s[52:55], s{so} offen sc1",
                f"buffer_load_dwordx4 v[{AF+4}:{AF+7}], v102, s[52:55], s{so} offen offset:256 sc1"]
    def mloads(sm):
        return [f"buffer_load_dwordx2 v[76:77], v{112 if sm == 40 else 108}, s[52:55], s{sm} offen sc1"]
    def ensure_store():
        le = g.newlab("ES")
        A(f"s_cmp_lg_u32 s41, 0"); A(f"s_cbranch_scc1 {le}")
        A("s_mov_b32 s41, 1")
        A("s_mov_b64 s[42:43], exec")
        exec_mask(0x000F000F)
        A("buffer_store_dwordx4 v[72:75], v125, s[52:55], s79 offen sc1")
        A("s_mov_b64 exec, s[42:43]")
        lab(le)
    def dualpoll(la, lb_, regs, first_wait):
        l0 = g.newlab("OP"); l1 = g.newlab("OC"); ld = g.newlab("OD"); lb = g.newlab("OB"); l2 = g.newlab("OW")
        A("s_mov_b32 s15, 0x40000")
        A(f"s_waitcnt vmcnt({first_wait})")
        A(f"s_branch {l1}")
        lab(l0)
        A(f"s_and_b32 s14, s15, {int(bmask)}"); A("s_cmp_eq_u32 s14, 0"); A(f"s_cbranch_scc1 {lb}")
        for l_ in la: A(l_)
        A(f"s_branch {l2}")
        lab(lb)
        ensure_store()
        for l_ in lb_: A(l_)
        lab(l2)
        A("s_waitcnt vmcnt(0)")
        lab(l1)
        rs = list(regs)
        if len(rs) == 2:
            A(f"v_max_u32 v10, v{rs[0]}, v{rs[1]}")
        else:
            A(f"v_max3_u32 v10, v{rs[0]}, v{rs[1]}, v{rs[2]}"); A(f"v_max3_u32 v15, v{rs[3]}, v{rs[4]}, v{rs[5]}")
            A(f"v_max3_u32 v10, v10, v{rs[6]}, v{rs[7]}"); A("v_max_u32 v10, v10, v15")
        A("v_cmp_eq_u32 vcc, -1, v10")
        A("s_and_b64 exec, exec, vcc"); A(f"s_cbranch_scc0 {ld}")
        if int(osleep): A(f"s_sleep {int(osleep)}")
        A("s_sub_u32 s15, s15, 1"); A("s_cmp_lg_u32 s15, 0"); A(f"s_cbranch_scc1 {l0}")
        lab(ld)
        A("s_mov_b64 exec, -1")
    if wp == 64:
        g.poll(mloads(40), [76, 77], 10)
        for l_ in oloads(67): A(l_)
    else:
        for l_ in mloads(40) + oloads(67): A(l_)
        g.poll(mloads(40), [76, 77], 10, preissued=True)
    if tailst: g.stamp(1)
    A("v_mov_b32 v78, v76")
    g.xrow("v_max_f32", [78], [79])
    A("v_sub_f32 v76, v76, v78")
    A("v_exp_f32 v76, v76")
    nop(1)
    A("v_mul_f32 v77, v76, v77")
    A("ds_bpermute_b32 v76, v103, v76")
    g.xrow("v_add_f32", [77], [79])
    A("v_rcp_f32 v77, v77")
    A("s_waitcnt lgkmcnt(0)")
    A("v_mul_f32 v76, v76, v77"); A("v_mov_b32 v77, v76")
    if wp == 64:
        g.flag_wait(F_WO, 1, 3, 10, sleep=False)
        wo_frags()
    if tailst: g.stamp(2)
    g.poll(oloads(67), list(range(AF, AF+8)), 10, preissued=True)
    A("s_waitcnt lgkmcnt(0)")
    if tailst:
        A("s_sub_u32 s86, 0x40000, s15"); A("s_add_u32 s86, s86, s80"); A("s_mov_b32 s87, s81")
    g.stamp(6)
    DW = 16
    for t in range(2):
        for nt in range(4):
            r = bf(nt, t)
            cc = "0" if t == 0 else f"v[{DW+4*nt}:{DW+4*nt+3}]"
            A(f"v_mfma_f32_16x16x32_bf16 v[{DW+4*nt}:{DW+4*nt+3}], v[{r}:{r+3}], v[{AF+4*t}:{AF+4*t+3}], {cc}")
    nop(5)
    for nt in range(4):
        A(f"v_pk_mul_f32 v[{DW+4*nt}:{DW+4*nt+1}], v[{DW+4*nt}:{DW+4*nt+1}], v[76:77]")
        A(f"v_pk_mul_f32 v[{DW+4*nt+2}:{DW+4*nt+3}], v[{DW+4*nt+2}:{DW+4*nt+3}], v[76:77]")
        A(f"ds_write_b128 v104, v[{DW+4*nt}:{DW+4*nt+3}] offset:{RED + nt*64}")
    A("s_waitcnt lgkmcnt(0)")
    A("s_barrier")
    for p in range(8):
        A(f"ds_read_b64 v[{32+2*p}:{33+2*p}], v106 offset:{RED + p*2176}")
    A("s_waitcnt lgkmcnt(4)") if (not stamps or only) else A("s_waitcnt lgkmcnt(0)")
    A("v_pk_add_f32 v[32:33], v[32:33], v[34:35]"); A("v_pk_add_f32 v[36:37], v[36:37], v[38:39]")
    A("v_pk_add_f32 v[32:33], v[32:33], v[36:37]")
    A("s_waitcnt lgkmcnt(0)")
    A("v_pk_add_f32 v[40:41], v[40:41], v[42:43]"); A("v_pk_add_f32 v[44:45], v[44:45], v[46:47]")
    A("v_pk_add_f32 v[40:41], v[40:41], v[44:45]")
    A("v_pk_add_f32 v[32:33], v[32:33], v[40:41]")
    A("v_cvt_pk_bf16_f32 v32, v32, v33")
    A("v_min_u32 v32, -2, v32")
    if int(spx4):
        nop(2)
        A("v_mov_b32_dpp v33, v32 quad_perm:[1,1,1,1] row_mask:0xf bank_mask:0xf")
        A("v_mov_b32_dpp v34, v32 quad_perm:[2,2,2,2] row_mask:0xf bank_mask:0xf")
        A("v_mov_b32_dpp v35, v32 quad_perm:[3,3,3,3] row_mask:0xf bank_mask:0xf")
        exec_mask(0x11111111)
        A("buffer_store_dwordx4 v[32:35], v105, s[52:55], s78 offen sc1")
        A("s_mov_b64 exec, -1")
    else:
        A("buffer_store_dword v32, v105, s[52:55], s78 offen sc1")
    g.stamp(7)
    A("s_branch L_fin")

    lab("L_H")
    A("s_cmp_eq_u32 s3, 8"); A("s_cbranch_scc1 L_load")
    A("s_setprio 3")
    A("v_lshlrev_b32 v7, 4, v2")
    A("s_sub_u32 s77, s3, 4")
    A("s_cmp_lg_u32 s3, 7"); A("s_cbranch_scc1 L_noinit")
    A("v_lshlrev_b32 v8, 2, v5")
    A("ds_write_b32 v8, v3")
    lab("L_noinit")
    A("v_lshrrev_b32 v8, 3, v2"); A("v_and_b32 v9, 7, v2"); A("v_lshlrev_b32 v9, 4, v9")
    A("s_lshl_b32 s68, s77, 11")
    A(f"s_mov_b32 s69, 0x{EP_OFF:x}")
    A("s_waitcnt lgkmcnt(0)")
    A("s_load_dword s79, s[26:27], s69")
    for d, b in ((32, 8), (44, 12), (48, 20), (52, 26), (56, 4)):
        A(f"s_mov_b32 s{d}, s{b}"); A(f"s_mov_b32 s{d+1}, s{b+1}")
    XR = 16
    for r in range(2):
        A(f"buffer_load_dwordx4 v[{XR+4*r}:{XR+4*r+3}], v7, s[56:59], s68 offen offset:{r*1024}")
    A("s_cmp_ge_u32 s3, 6"); A("s_cbranch_scc1 L_SX0")
    A("s_cmp_eq_u32 s3, 5"); A("s_cbranch_scc1 L_G1")
    A("s_mov_b32 s36, s10"); A("s_mov_b32 s37, s11"); A("s_mov_b32 s38, 4194304")
    A("s_lshl_b32 s76, s70, 3"); A("s_add_u32 s76, s76, s72"); A("s_lshl_b32 s76, s76, 7")
    A("s_movk_i32 s69, 8192")
    A("s_lshl_b32 s78, s73, 17"); A("s_lshl_b32 s68, s76, 4"); A("s_add_u32 s78, s78, s68")
    A(f"s_add_u32 s78, s78, {QP_OFF}")
    A("s_branch L_GJ")
    lab("L_G1")
    A("s_cmp_eq_u32 s70, 7"); A("s_cbranch_scc1 L_LN0")
    A("s_bitcmp1_b32 s71, 2")
    A("s_cselect_b32 s36, s18, s16"); A("s_cselect_b32 s37, s19, s17"); A("s_mov_b32 s38, 1835008")
    A("s_lshl_b32 s76, s74, 7")
    A("s_movk_i32 s69, 3584")
    A("s_and_b32 s78, s71, 7"); A(f"s_mul_i32 s78, s78, {28*2048}"); A("s_lshl_b32 s68, s76, 4"); A("s_add_u32 s78, s78, s68")
    A(f"s_add_u32 s78, s78, {GP_OFF}")
    lab("L_GJ")
    A("v_mul_lo_u32 v10, v8, s69"); A("v_add_u32 v10, v10, v9")
    A("s_lshl_b32 s68, s73, 7"); A("s_mul_i32 s68, s68, s69"); A("s_add_u32 s100, s76, s68")
    A("s_lshl_b32 s101, s69, 3")
    A("s_lshl_b32 s68, s77, 14"); A(f"s_add_u32 s68, s68, {W1T}")
    for i in range(16):
        A("s_mov_b32 m0, s68")
        A("s_add_u32 s68, s68, 1024")
        A(f"buffer_load_dwordx4 v10, s[36:39], s100 offen {g.ntw} lds")
        A("s_add_u32 s100, s100, s101")
    A("s_barrier")
    A("s_waitcnt vmcnt(16)")
    A("s_branch L_LN")
    lab("L_SX0")
    A("s_cmp_eq_u32 s3, 7"); A("s_cbranch_scc1 L_LN0")
    if int(noclr): A("s_branch L_LN0")
    for r in range(4):
        A(f"v_mov_b32 v{24+r}, -1")
    A("s_lshl_b32 s68, s70, 2"); A("s_add_u32 s68, s68, s73"); A("s_lshl_b32 s68, s68, 3"); A("s_add_u32 s68, s68, s72")
    A("s_lshl_b32 s68, s68, 10"); A(f"s_add_u32 s68, s68, {O_OFF}")
    A("buffer_store_dwordx4 v[24:27], v7, s[52:55], s68 offen sc1")
    A(f"s_add_u32 s68, s68, {DUP}")
    A("buffer_store_dwordx4 v[24:27], v7, s[52:55], s68 offen sc1")
    A("v_lshl_add_u32 v10, v8, 10, v9")
    A("s_lshl_b32 s68, s74, 13"); A("s_lshl_b32 s69, s75, 7"); A("s_add_u32 s68, s68, s69")
    A(f"s_add_u32 s69, s68, {SP_OFF}")
    A("buffer_store_dwordx4 v[24:27], v10, s[52:55], s69 offen sc1")
    down_ids(68, 69, "L_nofp")
    A("s_lshl_b32 s68, s68, 13"); A("s_lshl_b32 s69, s69, 7"); A("s_add_u32 s69, s69, s68"); A(f"s_add_u32 s69, s69, {FP_OFF}")
    A("buffer_store_dwordx4 v[24:27], v10, s[52:55], s69 offen sc1")
    if dshift: A("buffer_store_dwordx4 v[24:27], v10, s[52:55], s69 offen offset:128 sc1")
    lab("L_nofp")
    A("s_lshl_b32 s68, s70, 5"); A("s_add_u32 s68, s68, s71"); A("s_lshl_b32 s68, s68, 7"); A(f"s_add_u32 s68, s68, {ML_OFF}")
    A("s_mov_b64 exec, 3")
    A("buffer_store_dwordx4 v[24:27], v7, s[52:55], s68 offen sc1")
    A("s_mov_b64 exec, 15")
    A("v_lshlrev_b32 v10, 8, v2")
    A("s_lshl_b32 s68, s70, 10"); A("s_lshl_b32 s69, s71, 3"); A("s_add_u32 s68, s68, s69"); A(f"s_add_u32 s68, s68, {MLD_OFF}")
    A("buffer_store_dwordx2 v[24:25], v10, s[52:55], s68 offen sc1")
    A("s_mov_b64 exec, -1")
    A("s_barrier")
    A("s_waitcnt vmcnt(5)")
    A("s_cmp_eq_u32 s70, 7"); A("s_cbranch_scc1 L_LN")
    A("s_nop 0")
    A("s_branch L_LN") if False else None
    A("s_waitcnt vmcnt(4)") if False else None
    A("s_branch L_LN")
    lab("L_LN0")
    A("s_barrier")
    A("s_waitcnt vmcnt(0)")
    lab("L_LN")
    if cut == 1:
        g.flag_add(F_W, 3, 4); A("s_branch L_fin")
    XF = 32
    for r in range(2):
        unpack(XF + 8*r, [XR + 4*r + e for e in range(4)])
    SM = 64
    for r in range(2):
        A(f"v_add_f32 v{SM+r}, v{XF+8*r}, v{XF+8*r+1}"); A(f"v_add_f32 v{SM+2+r}, v{XF+8*r+2}, v{XF+8*r+3}")
    for e in range(4, 8, 2):
        for r in range(2):
            A(f"v_add_f32 v{SM+r}, v{SM+r}, v{XF+8*r+e}"); A(f"v_add_f32 v{SM+2+r}, v{SM+2+r}, v{XF+8*r+e+1}")
    for r in range(2):
        A(f"v_add_f32 v{SM+r}, v{SM+r}, v{SM+2+r}")
    g.allreduce64("v_add_f32", [SM, SM+1], [SM+4, SM+5])
    A(f"s_mov_b32 s68, 0x{f32bits(1.0/512):08x}")
    for r in range(2):
        A(f"v_mul_f32 v{SM+r}, s68, v{SM+r}")
    VS = 72
    for e in range(8):
        for r in range(2):
            A(f"v_sub_f32 v{80+2*(e&1)+r}, v{XF+8*r+e}, v{SM+r}")
        for r in range(2):
            t_ = 80+2*(e&1)+r
            if e == 0: A(f"v_mul_f32 v{VS+r}, v{t_}, v{t_}")
            else: A(f"v_fmac_f32 v{VS+r}, v{t_}, v{t_}")
    g.allreduce64("v_add_f32", [VS, VS+1], [VS+4, VS+5])
    for r in range(2):
        A(f"v_mul_f32 v{VS+r}, s68, v{VS+r}")
    rbf([SM, SM+1, VS, VS+1])
    for r in range(2):
        A(f"v_add_f32 v{VS+r}, 0x{f32bits(1e-5):08x}, v{VS+r}")
    rbf([VS, VS+1])
    for r in range(2):
        A(f"v_sqrt_f32 v{VS+r}, v{VS+r}")
    nop(1)
    rbf([VS, VS+1])
    for r in range(2):
        A(f"v_rcp_f32 v{VS+r}, v{VS+r}")
    for r in range(2):
        for e in range(8):
            A(f"v_sub_f32 v{XF+8*r+e}, v{XF+8*r+e}, v{SM+r}")
    for r in range(2):
        for e in range(4):
            A(f"v_cvt_pk_bf16_f32 v{XR+4*r+e}, v{XF+8*r+2*e}, v{XF+8*r+2*e+1}")
    for r in range(2):
        unpack(XF + 8*r, [XR + 4*r + e for e in range(4)])
    for r in range(2):
        for e in range(8):
            A(f"v_mul_f32 v{XF+8*r+e}, v{XF+8*r+e}, v{VS+r}")
    for r in range(2):
        for e in range(4):
            A(f"v_cvt_pk_bf16_f32 v{XR+4*r+e}, v{XF+8*r+2*e}, v{XF+8*r+2*e+1}")
    A(f"s_mul_i32 s68, s77, {2*XNP}"); A("v_lshlrev_b32 v11, 4, v5"); A("v_add_u32 v11, s68, v11")
    A("v_cmp_eq_u32 vcc, s73, v6")
    A("s_and_saveexec_b64 s[68:69], vcc")
    for r in range(2):
        A(f"ds_write_b128 v11, v[{XR+4*r}:{XR+4*r+3}] offset:{XN + r*XNP}")
    g.flag_add(F_XN, 3, 4)
    g.stamp(2)
    A("s_add_u32 s4, s79, 1"); A(f"s_mul_i32 s5, s4, 0x{TAGMUL:x}")
    A("v_lshrrev_b32 v12, 2, v5"); A("v_lshl_add_u32 v12, v6, 3, v12"); A("v_lshlrev_b32 v12, 7, v12")
    A("v_and_b32 v13, 3, v2")
    A("v_and_b32 v14, 7, v2")
    A("s_cmp_ge_u32 s3, 6"); A("s_cbranch_scc1 L_SX1")
    A("s_cmp_lg_u32 s3, 5"); A("s_cbranch_scc1 L_Ggo")
    A("s_cmp_lg_u32 s70, 7"); A("s_cbranch_scc1 L_Ggo")
    g.flag_add(F_W, 3, 4)
    g.flag_add(F_GD, 3, 4)
    A("s_branch L_G1post")
    lab("L_Ggo")
    A(f"v_mul_u32_u24 v11, {XNP}, v14"); A("v_lshl_add_u32 v11, v6, 4, v11")
    A("v_lshl_add_u32 v12, v13, 3, v12")
    A("s_lshl_b32 s68, s77, 14"); A("v_add_u32 v12, s68, v12")
    A("s_cmp_eq_u32 s3, 5"); A("s_cbranch_scc1 L_dstG")
    A("v_lshlrev_b32 v15, 8, v14"); A("v_lshl_add_u32 v15, v6, 4, v15")
    A("s_mov_b32 s8, s78"); A("s_add_u32 s9, s78, 64"); A("s_add_u32 s10, s78, 128"); A("s_add_u32 s11, s78, 192")
    A("s_branch L_dstJ")
    lab("L_dstG")
    A("v_and_b32 v15, 1, v6"); A("v_lshlrev_b32 v15, 10, v15"); A("v_lshrrev_b32 v9, 1, v6"); A("v_lshl_add_u32 v15, v9, 8, v15")
    A("v_lshl_add_u32 v15, v14, 4, v15")
    A("s_mov_b32 s8, s78"); A("s_add_u32 s9, s78, 512"); A("s_add_u32 s10, s78, 128"); A("s_add_u32 s11, s78, 640")
    lab("L_dstJ")
    for nt in range(4):
        A(f"v_mov_b32 v{113+4*nt}, s4"); A(f"v_mov_b32 v{115+4*nt}, s5")
    A(f"s_add_u32 s66, s78, {DUP}")
    g.flag_wait(F_XN, 4, 3, 10)
    XB = 16
    for t in range(4):
        A(f"ds_read_b128 v[{XB+4*t}:{XB+4*t+3}], v11 offset:{XN + t*64}")
    WB = 32
    for t in range(4):
        A(f"s_waitcnt vmcnt({12 - 4*t})")
        if t == 3:
            g.flag_add(F_W, 3, 4)
        for nt in range(4):
            r = WB + (t*4 + nt)*4
            off = W1T + t*4096 + nt*32
            A(f"ds_read_b64_tr_b16 v[{r}:{r+1}], v12 offset:{off}")
            A(f"ds_read_b64_tr_b16 v[{r+2}:{r+3}], v12 offset:{off+512}")
        A("s_waitcnt lgkmcnt(0)")
        for nt in range(4):
            r = WB + (t*4 + nt)*4
            d = 96 + nt*4
            cc = "0" if t == 0 else f"v[{d}:{d+3}]"
            A(f"v_mfma_f32_16x16x32_bf16 v[{d}:{d+3}], v[{r}:{r+3}], v[{XB+4*t}:{XB+4*t+3}], {cc}")
    g.stamp(3)
    g.flag_add(F_GD, 3, 4)
    exec_mask(0x00ff00ff)
    nop(2)
    for nt in range(4):
        A(f"v_cvt_pk_bf16_f32 v{112+4*nt}, v{96+4*nt}, v{97+4*nt}")
        A(f"v_cvt_pk_bf16_f32 v{114+4*nt}, v{98+4*nt}, v{99+4*nt}")
        if int(qdual): A(f"buffer_store_dwordx4 v[{112+4*nt}:{115+4*nt}], v15, s[52:55], s66 offen offset:{nt*512}")
        else: A(f"buffer_store_dwordx4 v[{112+4*nt}:{115+4*nt}], v15, s[52:55], s{8+nt} offen sc1")
    if int(qdual):
      for nt in range(4):
        A(f"buffer_store_dwordx4 v[{112+4*nt}:{115+4*nt}], v15, s[52:55], s78 offen offset:{nt*512} sc1")
    A("s_mov_b64 exec, -1")
    g.stamp(4)
    lab("L_Gpost")
    A("s_cmp_eq_u32 s3, 5"); A("s_cbranch_scc1 L_G1post")
    A(f"s_mov_b32 s6, {FL_OFF}")
    A("s_getreg_b32 s7, hwreg(HW_REG_XCC_ID, 0, 4)")
    A("s_andn2_b32 s8, s5, 15"); A("s_or_b32 s8, s8, s7")
    g.flag_wait(F_K2, 4, 3, 10)
    g.stamp(5)
    A("s_mov_b32 s15, 0x40000")
    lab("L_alpoll")
    A("buffer_load_dwordx4 v[20:23], v7, s[52:55], s6 offen sc1")
    A("buffer_load_dwordx4 v[24:27], v7, s[52:55], s6 offen offset:1024 sc1")
    A("s_waitcnt vmcnt(0)")
    for e in range(4):
        A(f"v_xor_b32 v{28+2*e}, s4, v{20+2*e}"); A(f"v_xor_b32 v{29+2*e}, s8, v{21+2*e}")
    A("v_or3_b32 v36, v29, v31, v33"); A("v_or_b32 v36, v36, v35"); A("v_and_b32 v36, -16, v36")
    A("v_or3_b32 v36, v36, v28, v30"); A("v_or3_b32 v36, v36, v32, v34")
    A("v_cmp_ne_u32 vcc, 0, v36")
    A("s_and_b64 exec, exec, vcc"); A("s_cbranch_scc0 L_aldone")
    A("s_sleep 4")
    A("s_sub_u32 s15, s15, 1"); A("s_cmp_lg_u32 s15, 0"); A("s_cbranch_scc1 L_alpoll")
    lab("L_aldone")
    A("s_mov_b64 exec, -1")
    A("v_or_b32 v29, v29, v33"); A("v_or_b32 v31, v31, v35")
    A("s_bitcmp1_b32 s70, 0"); A("s_cselect_b64 s[8:9], -1, 0")
    A("v_cndmask_b32 v29, v29, v31, s[8:9]")
    A("s_lshr_b32 s8, s70, 1")
    A("v_cmp_eq_u32 vcc, s8, v13")
    A("v_cmp_ne_u32 s[8:9], 0, v29")
    A("s_and_b64 s[8:9], s[8:9], vcc")
    A("s_cselect_b32 s8, 2, 1")
    A("v_mov_b32 v20, s8")
    A(f"ds_write_b32 v3, v20 offset:{F_TOK}")
    g.stamp(6)
    A("s_waitcnt lgkmcnt(0)")
    A("s_branch L_fin")
    lab("L_G1post")
    if cut:
        A("s_waitcnt lgkmcnt(0)"); A("s_branch L_fin")
    A("s_mov_b32 s60, s22"); A("s_mov_b32 s61, s23")
    A("s_lshl_b32 s68, s72, 10"); A("s_lshl_b32 s69, s70, 7"); A("s_add_u32 s68, s68, s69"); A("s_lshl_b32 s69, s73, 5")
    A("s_add_u32 s76, s68, s69")
    A("v_lshrrev_b32 v17, 1, v2"); A("v_and_b32 v16, 1, v2")
    A("v_lshlrev_b32 v19, 4, v16"); A("v_mov_b32 v20, 0x3f80"); A("v_lshlrev_b32 v20, v19, v20")
    A("v_bfe_u32 v19, v2, 1, 2")
    for e in range(4):
        A(f"v_cmp_eq_u32 vcc, {e}, v19")
        nop(2)
        A(f"v_cndmask_b32 v{40+e}, 0, v20, vcc")
    A("v_lshlrev_b32 v21, 4, v16"); A("v_lshl_add_u32 v21, v6, 3, v21")
    A("v_min_u32 v18, 27, v17")
    A("v_lshlrev_b32 v18, 13, v18"); A("v_lshl_add_u32 v18, v16, 4, v18")
    A("v_lshlrev_b32 v17, 13, v17"); A("v_lshl_add_u32 v17, v16, 4, v17")
    A(f"s_add_u32 s77, s76, {FP_OFF}"); A(f"s_add_u32 s78, s76, {SP_OFF}")
    A("buffer_load_dwordx2 v[44:45], v21, s[56:59], s76 offen")
    fm = int(fmode)
    if fm == 0:
        g.flag_wait(F_TOK, 1, 3, 10)
        g.flag_wait(F_V0, int(fchunk), 3, 10)
    elif fm == 1:
        g.flag_wait(F_TOK, 1, 3, 10)
        g.flag_wait(F_WO, 1, 3, 10)
    else:
        A("s_waitcnt lgkmcnt(0)")
        A("s_barrier")
    g.stamp(5)
    g.poll(["buffer_load_dwordx4 v[32:35], v18, s[52:55], s77 offen sc1"], [32, 33, 34, 35], 10, sleep=int(fsl) if fm == 0 else 0)
    if fm == 2:
        A("buffer_load_dwordx4 v[56:59], v17, s[52:55], s78 offen sc1")
    g.stamp(6)
    def red_final(src=32):
        A(f"v_mfma_f32_16x16x32_bf16 v[36:39], v[40:43], v[{src}:{src+3}], 0")
        nop(8)
        for mod in ("row_ror:2", "row_ror:4", "row_ror:8"):
            for r in range(4):
                A(f"v_add_f32_dpp v{36+r}, v{36+r}, v{36+r} {mod} row_mask:0xf bank_mask:0xf")
    A("v_cmp_gt_u32 vcc, 56, v2")
    nop(2)
    for r in range(4):
        A(f"v_cndmask_b32 v{32+r}, 0, v{32+r}, vcc")
    nop(1)
    red_final()
    rbf([36, 37, 38, 39])
    silu([36, 37, 38, 39], 48)
    rbf([36, 37, 38, 39])
    for r in range(4): A(f"v_mov_b32 v{48+r}, v{36+r}")
    unpack(52, [44, 45])
    g.stamp(7)
    if fm != 2:
        A("s_waitcnt lgkmcnt(0)")
        A("s_barrier")
    g.poll(["buffer_load_dwordx4 v[56:59], v17, s[52:55], s78 offen sc1"], [56, 57, 58, 59], 10, preissued=(fm == 2))
    g.stamp(8)
    red_final(56)
    A("v_cvt_pk_bf16_f32 v32, v36, v37"); A("v_cvt_pk_bf16_f32 v33, v38, v39")
    unpack(36, [32, 33])
    A("v_pk_mul_f32 v[36:37], v[36:37], v[48:49]"); A("v_pk_mul_f32 v[38:39], v[38:39], v[50:51]")
    A("v_cvt_pk_bf16_f32 v32, v36, v37"); A("v_cvt_pk_bf16_f32 v33, v38, v39")
    unpack(36, [32, 33])
    A("v_pk_add_f32 v[36:37], v[36:37], v[52:53]"); A("v_pk_add_f32 v[38:39], v[38:39], v[54:55]")
    A("v_cvt_pk_bf16_f32 v32, v36, v37"); A("v_cvt_pk_bf16_f32 v33, v38, v39")
    A("s_mov_b64 exec, 0x30003")
    A("buffer_store_dwordx2 v[32:33], v21, s[60:63], s76 offen")
    A("s_mov_b64 exec, -1")
    g.stamp(9)
    A("s_cmp_lg_u32 s2, 0"); A("s_cbranch_scc1 L_fin")
    A("v_mov_b32 v32, s4")
    A(f"s_mov_b32 s68, {EP_OFF}")
    A("s_mov_b64 exec, 1")
    A("buffer_store_dword v32, v3, s[52:55], s68 offen sc1")
    A("s_mov_b64 exec, -1")
    A("s_branch L_fin")
    lab("L_load")
    A("s_setprio 2")
    A("v_lshrrev_b32 v8, 3, v2"); A("v_and_b32 v9, 7, v2"); A("v_lshlrev_b32 v9, 4, v9")
    A("v_lshlrev_b32 v16, 1, v6"); A("v_xor_b32 v16, v16, v5"); A("v_xor_b32 v17, 8, v16")
    A("v_lshlrev_b32 v16, 4, v16"); A("v_lshl_add_u32 v16, v6, 8, v16")
    A("v_lshlrev_b32 v17, 4, v17"); A("v_lshl_add_u32 v17, v6, 8, v17")
    A("s_mov_b32 s100, s64")
    A(f"s_mov_b32 s101, {VT}")
    A("v_lshl_add_u32 v18, v8, 10, v9")
    A("v_lshlrev_b32 v21, 5, v6"); A("v_xor_b32 v21, v21, v18")
    A("s_lshl_b32 s76, s74, 17"); A("s_lshl_b32 s68, s75, 7"); A("s_add_u32 s76, s76, s68")
    A(f"s_mov_b32 s77, {WOT}")
    A("s_lshl_b32 s78, s74, 16"); A("s_add_u32 s78, s78, s68")
    A(f"s_mov_b32 s79, {WDT}")
    A("s_waitcnt lgkmcnt(0)")
    for d, b_ in ((32, 8), (44, 12), (48, 20), (52, 26)):
        A(f"s_mov_b32 s{d}, s{b_}"); A(f"s_mov_b32 s{d+1}, s{b_+1}")
    A("s_barrier")
    if cut == 2:
        A("s_branch L_fin")
    if int(touch):
        A("s_mov_b64 exec, 1")
        A(f"buffer_load_dword v30, v3, s[44:47], s76 offen {g.ntw}")
        A(f"buffer_load_dword v31, v3, s[48:51], s78 offen {g.ntw}")
        if not int(vpre): A(f"buffer_load_dword v32, v3, s[32:35], s100 offen {g.ntkv}")
        A("s_mov_b64 exec, -1")
        A("s_waitcnt vmcnt(0)")
    if vdelay and not int(vpre):
        g.flag_wait(F_K2, 4, 3, 10)
    g.stamp(5)
    NV = 64
    dl = int(dlate)
    assert dl == 0
    seq = [("v", i) for i in range(wp)] + [("w", i) for i in range(16)] + [("v", i) for i in range(wp, NV)]
    NT = len(seq)
    marks = {}
    for k in range(8, NV + 1, 8): marks[k if k <= wp else k + 16] = ("V", k // 8)
    marks[wp + 16] = ("F", F_WO)
    def publish(k):
        if k in marks:
            kind, val = marks.pop(k)
            if kind == "V":
                A(f"v_mov_b32 v20, {val}")
                A(f"ds_write_b32 v3, v20 offset:{F_V0}")
            else:
                A(f"ds_write_b32 v3, v4 offset:{val}")
    for i, (kind, j) in enumerate(seq):
        if int(vpre) and i == int(vpre) and vdelay:
            g.flag_wait(F_K2, 4, 3, 10)
        if i >= vthr:
            A(f"s_waitcnt vmcnt({vthr-1})")
            publish(i - vthr + 1)
        if kind == "v":
            A("s_mov_b32 m0, s101")
            A("s_add_u32 s101, s101, 1024")
            A(f"buffer_load_dwordx4 v{16 + ((j >> 1) & 1)}, s[32:35], s100 offen {g.ntkv} lds")
            A("s_add_u32 s100, s100, 1024")
        elif kind == "w":
            A("s_mov_b32 m0, s77")
            A("s_add_u32 s77, s77, 1024")
            A(f"buffer_load_dwordx4 v21, s[44:47], s76 offen {g.ntw} lds")
            A("s_add_u32 s76, s76, 8192")
        else:
            A("s_mov_b32 m0, s79")
            A("s_add_u32 s79, s79, 1024")
            A(f"buffer_load_dwordx4 v18, s[48:51], s78 offen {g.ntw} lds")
            A("s_add_u32 s78, s78, 8192")
    g.stamp(6)
    for k in sorted(marks):
        A(f"s_waitcnt vmcnt({NT - k})")
        publish(k)
    g.stamp(7)
    A("s_waitcnt lgkmcnt(0)")
    A("s_branch L_fin")
    lab("L_SX1")
    A("s_cmp_eq_u32 s3, 7"); A("s_cbranch_scc1 L_X")
    A("s_getreg_b32 s6, hwreg(HW_REG_XCC_ID, 0, 4)")
    A("s_andn2_b32 s7, s5, 15"); A("s_or_b32 s7, s7, s6")
    A("v_mov_b32 v16, s4"); A("v_mov_b32 v17, s7")
    A("s_lshl_b32 s7, s2, 3"); A(f"s_add_u32 s7, s7, {FL_OFF}")
    A("s_waitcnt vmcnt(0)")
    A("s_mov_b64 exec, 1")
    A("buffer_store_dwordx2 v[16:17], v3, s[52:55], s7 offen sc1")
    A(f"ds_write_b32 v3, v16 offset:{F_EP}")
    A("s_mov_b64 exec, -1")
    g.stamp(1)
    if cut in (2, 3):
        A("s_branch L_fin")
    A("v_lshlrev_b32 v9, 11, v6"); A("v_lshl_add_u32 v9, v5, 4, v9")
    A("s_lshl_b32 s16, s70, 14"); A("s_lshl_b32 s69, s72, 8"); A("s_add_u32 s16, s16, s69"); A(f"s_add_u32 s16, s16, {QP_OFF}")
    for k in range(1, 8):
        A(f"s_add_u32 s{16+k}, s16, {(k>>1)*131072 + (k&1)*8192}")
    A("v_lshlrev_b32 v8, 3, v2")
    A("v_bfe_u32 v12, v2, 3, 2"); A("v_lshlrev_b32 v12, 17, v12"); A("v_lshl_add_u32 v12, v14, 11, v12")
    g.flag_wait(F_K, 4, 3, 10)
    g.stamp(7)
    if int(sample):
        tagpoll([f"buffer_load_dwordx4 v[16:19], v12, s[52:55], s16 offen offset:{3*512+48} sc1"], [16], 10, qsleep)
    g.stamp(8)
    tagpoll([f"buffer_load_dwordx4 v[{16+4*k}:{19+4*k}], v9, s[52:55], s{16+k} offen sc1" for k in range(8)],
            [16+4*k for k in range(8)], 10, qsleep, vaddr=9)
    g.stamp(3)
    if stamps and not only:
        A("s_waitcnt lgkmcnt(0)")
        A("s_sub_u32 s88, 0x3ffff, s15"); A("s_mul_i32 s88, s88, 10"); A("s_add_u32 s88, s88, s80"); A("s_mov_b32 s89, s81")
    for k in range(8):
        unpack(48 + 4*k, [16+4*k, 18+4*k])
    for i in range(2):
        for e in range(4):
            A(f"v_add_f32 v{48+4*i+e}, v{48+4*i+e}, v{56+4*i+e}"); A(f"v_add_f32 v{64+4*i+e}, v{64+4*i+e}, v{72+4*i+e}")
    for e in range(8):
        A(f"v_add_f32 v{48+e}, v{48+e}, v{64+e}")
    for e in range(4):
        A(f"v_cvt_pk_bf16_f32 v{16+e}, v{48+2*e}, v{49+2*e}")
    A(f"ds_write_b64 v8, v[16:17] offset:{QL}")
    A(f"ds_write_b64 v8, v[18:19] offset:{QL+512}")
    g.flag_add(F_Q, 3, 4)
    g.stamp(5)
    if cut == 4:
        A("s_branch L_fin")
    A("v_lshlrev_b32 v8, 3, v2"); A("v_lshlrev_b32 v9, 4, v13")
    A("s_lshl_b32 s6, s70, 12"); A(f"s_add_u32 s6, s6, {ML_OFF}")
    A("s_lshl_b32 s68, s71, 7"); A("s_add_u32 s68, s68, s6")
    A(f"s_mov_b32 s78, 0x{f32bits(LOG2E * (128 ** -0.5)):08x}")
    A("v_and_b32 v12, 31, v2"); A("v_lshlrev_b32 v11, 2, v12"); A("v_lshlrev_b32 v12, 7, v12")
    A("s_lshr_b32 s69, s71, 3"); A("s_lshl_b32 s69, s69, 3"); A("s_add_u32 s6, s6, s69")
    g.flag_wait(F_ML, 4, 3, 10)
    A(f"ds_read_b128 v[16:19], v9 offset:{MX}")
    A(f"ds_read_b128 v[20:23], v9 offset:{LL}")
    A("s_waitcnt lgkmcnt(0)")
    A("v_max3_f32 v24, v16, v17, v18"); A("v_max_f32 v24, v24, v19"); A("v_mul_f32 v24, s78, v24")
    A("v_add_f32 v25, v20, v21"); A("v_add_f32 v26, v22, v23"); A("v_add_f32 v25, v25, v26")
    A("v_min_u32 v24, -2, v24"); A("v_min_u32 v25, -2, v25")
    A("s_lshl_b32 s69, s70, 10"); A("s_lshl_b32 s7, s71, 3"); A("s_add_u32 s69, s69, s7"); A(f"s_add_u32 s69, s69, {MLD_OFF}")
    A("v_lshlrev_b32 v10, 8, v2")
    A("s_mov_b64 exec, 15")
    A("buffer_store_dwordx2 v[24:25], v10, s[52:55], s69 offen")
    A("buffer_store_dwordx2 v[24:25], v8, s[52:55], s68 offen sc1")
    A("s_mov_b64 exec, -1")
    g.stamp(6)
    if stamps:
        A("s_waitcnt vmcnt(0)")
        g.stamp(9)
    A("s_branch L_fin")
    lab("L_X")
    if cut in (2, 3, 4):
        A("s_branch L_fin")
    down_ids(6, 7, "L_fin")
    NSUB = 2 if dshift else 1
    A("v_lshl_add_u32 v12, v13, 5, v12")
    A("v_lshl_add_u32 v10, v8, 10, v9")
    A("s_lshl_b32 s100, s6, 16"); A("s_lshl_b32 s69, s7, 7"); A("s_add_u32 s100, s100, s69")
    A("v_mov_b32 v11, v7")
    A("s_lshl_b32 s76, s6, 11"); A(f"s_add_u32 s76, s76, {GP_OFF}")
    A("v_lshlrev_b32 v15, 10, v14"); A("v_lshl_add_u32 v15, v6, 5, v15")
    A("s_lshl_b32 s78, s6, 13"); A("s_add_u32 s78, s78, s69"); A(f"s_add_u32 s78, s78, {FP_OFF}")
    for p in range(8):
        A(f"s_add_u32 s{16+p}, s76, {p*28*2048}")
    if int(xtrig) == 0: g.flag_wait(F_K, 4, 3, 9)
    elif int(xtrig) == 1: g.flag_wait(F_Q, 1, 3, 9)
    else: g.flag_wait(F_K2, 4, 3, 9)
    g.flag_wait(F_GD, 2, 3, 9)
    A(f"s_mov_b32 s68, {WDT}"); A(f"s_mov_b32 s69, {WDT2}"); A("s_add_u32 s101, s100, 128")
    for i in range(8):
        A("s_mov_b32 m0, s68")
        A("s_add_u32 s68, s68, 1024")
        A(f"buffer_load_dwordx4 v10, s[48:51], s100 offen {g.ntw} lds")
        A("s_add_u32 s100, s100, 8192")
        if dshift:
            A("s_mov_b32 m0, s69")
            A("s_add_u32 s69, s69, 1024")
            A(f"buffer_load_dwordx4 v10, s[48:51], s101 offen {g.ntw} lds")
            A("s_add_u32 s101, s101, 8192")
    lds_ = []
    for p in range(8):
        lds_.append(f"buffer_load_dwordx4 v[{16+8*p}:{19+8*p}], v11, s[52:55], s{16+p} offen sc1")
        lds_.append(f"buffer_load_dwordx4 v[{20+8*p}:{23+8*p}], v11, s[52:55], s{16+p} offen offset:1024 sc1")
    tagpoll(lds_, [16+4*k for k in range(16)], 8, qsleep, vaddr=11)
    g.stamp(5)
    if stamps and not only:
        A("s_waitcnt lgkmcnt(0)")
        A("s_sub_u32 s88, 0x3ffff, s15"); A("s_mul_i32 s88, s88, 10"); A("s_add_u32 s88, s88, s80"); A("s_mov_b32 s89, s81")
    WD = 128
    for p in range(8):
        unpack(80 + 8*p, [16+8*p, 18+8*p, 20+8*p, 22+8*p])
    for mat in range(2):
        b0 = 80 + mat*32
        for e in range(8):
            A(f"v_add_f32 v{b0+e}, v{b0+e}, v{b0+8+e}"); A(f"v_add_f32 v{b0+16+e}, v{b0+16+e}, v{b0+24+e}")
        for e in range(8):
            A(f"v_add_f32 v{b0+e}, v{b0+e}, v{b0+16+e}")
    rbf(list(range(80, 88)) + list(range(112, 120)))
    silu(list(range(80, 88)), 88)
    rbf(list(range(80, 88)))
    for e in range(8):
        A(f"v_mul_f32 v{80+e}, v{80+e}, v{112+e}")
    for e in range(4):
        A(f"v_cvt_pk_bf16_f32 v{16+e}, v{80+2*e}, v{81+2*e}")
    g.flag_wait(F_Q, 1, 3, 9)
    for sub in range(NSUB):
        base = (WDT, WDT2)[sub]
        WD = (128, 80)[sub]
        for t in range(2):
            for nt in range(4):
                r = WD + (t*4 + nt)*4
                off = base + t*4096 + nt*8
                A(f"ds_read_b64_tr_b16 v[{r}:{r+1}], v12 offset:{off}")
                A(f"ds_read_b64_tr_b16 v[{r+2}:{r+3}], v12 offset:{off+512}")
    A("s_waitcnt lgkmcnt(0)")
    for sub in range(NSUB):
        WD = (128, 80)[sub]
        for t in range(2):
            for nt in range(4):
                r = WD + (t*4 + nt)*4
                d = 32 + t*16 + nt*4
                A(f"v_mfma_f32_16x16x32_bf16 v[{d}:{d+3}], v[{r}:{r+3}], v[16:19], 0")
        nop(8)
        for e in range(16):
            A(f"v_add_f32_dpp v{32+e}, v{48+e}, v{32+e} row_ror:8 row_mask:0xf bank_mask:0xf")
        o = 64 + 8*sub
        for e in range(8):
            A(f"v_cvt_pk_bf16_f32 v{o+e}, v{32+2*e}, v{33+2*e}")
        for e in range(8):
            A(f"v_min_u32 v{o+e}, -2, v{o+e}")
        exec_mask(0x00ff00ff)
        A(f"buffer_store_dwordx4 v[{o}:{o+3}], v15, s[52:55], s78 offen offset:{128*sub} sc1")
        A(f"buffer_store_dwordx4 v[{o+4}:{o+7}], v15, s[52:55], s78 offen offset:{128*sub+16} sc1")
        A("s_mov_b64 exec, -1")
    g.stamp(6)
    lab("L_fin")
    g.stamp_flush()
    lab("L_end")
    A("s_endpgm")
    tail = ['.section .rodata,"a"', ".p2align 6", f".amdhsa_kernel {KN}",
            "  .amdhsa_next_free_vgpr 168", "  .amdhsa_next_free_sgpr 102", "  .amdhsa_accum_offset 168",
            "  .amdhsa_group_segment_fixed_size 0", "  .amdhsa_kernarg_size 96", "  .amdhsa_user_sgpr_count 2",
            "  .amdhsa_user_sgpr_kernarg_segment_ptr 1", "  .amdhsa_system_sgpr_workgroup_id_x 1",
            "  .amdhsa_float_denorm_mode_32 3",
            ".end_amdhsa_kernel"]
    return "\n".join(hdr + g.L + tail) + "\n"

if __name__ == "__main__":
    out = sys.argv[1] if len(sys.argv) > 1 else "recurrent_scan__sliding_block_cached__swiglu_ffn__decode.s"
    stamps = "--stamps" in sys.argv
    kw = {}
    for a in sys.argv[2:]:
        if "=" in a:
            k, v = a.split("=", 1); kw[k] = v
    open(out, "w").write(build(stamps=stamps, **kw))
```

```python
import sys, struct
from gen import G, f32bits, KN

QP_OFF = 0x00000
GP_OFF = 0x80000
O_OFF = 0xF0000
ML_OFF = 0x1C0000
SP_OFF = 0x132000
FP_OFF = 0x172000
FL_OFF = 0x1B0000
EP_OFF = 0x1B8000
TAGMUL = 0x9E3779B1
MLD_OFF = 0x3E0000
DUP = 0x200000
STAMP_OFF = 0x1000000
F_XN, F_Q, F_W, F_MX, F_ML, F_K, F_V0, F_V1, F_PUB, F_K2, F_WO, F_WT, F_WD, F_EP = 0, 4, 8, 12, 16, 20, 24, 28, 32, 36, 40, 44, 48, 60
F_TOK = F_V1
F_GD = 52
WDT2 = 30720 + 20480
WT = 2432
MX = 64; LL = 128; GL = 192
XN = 256; XNP = 272
QL = 2560
PL = 3584; PLP = 528
WOT = 6144
WDT = 22528
W1T = 30720
RED = W1T
VT = 63488
LDS_BYTES = 129024
LOG2E = 1.4426950408889634

def build(stamps=False, ntkv="nt", ntw="nt", thr=8, vthr=48, kdelay=0, vdelay=1, qsleep=2, cut=0, sample=0, dyn=1, vthr2=40, noclr=0, nost=0, kq=13, kv=16, wolate=0, dbgspan=0, mlchunk=6, xtrig=0, osleep=0, mlsleep=2, only='', bmask=7, qdual=0, dlate=0, tailst=0, olate=1, mlrep=1, dshift=0, spx4=1, vpre=0, touch=0, kearly=0, fmap=1, fchunk=6, fsl=4, fmode=2, wopos=64, wread=7, ssl=0, tchunk=2):
    wp = int(wopos); wread = int(wread)
    dshift = int(dshift)
    tailst = int(tailst)
    kq = int(kq); kv = int(kv); wolate = int(wolate)
    g = G(stamps, ntkv, ntw, thr)
    g.nwaves = 9
    g.only = [int(c) for c in only] if only else None
    vthr = int(vthr); kdelay = int(kdelay); vdelay = int(vdelay); qsleep = int(qsleep); cut = int(cut)
    A = g.A; lab = g.lab; nop = g.nop
    hdr = ["; Fused decode block: LN -> (GQA attention over the last 1024 cached keys -> wo) * silu(SwiGLU FFN) + x",
           "; kernarg: x, k_cache, v_cache, wq, wo, B_x(unused), w_gate, w_up, w_down, out, debug, ws (8-byte pointers)",
           "; One persistent launch, 256 workgroups x 9 waves (generated by gen/gen21.py (gen20 lineage)):",
           ";   waves 0-3 attention + wo stage, 4/5 q / gate-up split-K tiles (5: final stage), 6 clears + q gather,",
           ";   7 down projection, 8 V / wo LDS-DMA loader.  Hand-offs go through ws: launch-tagged granules",
           ";   (tag = epoch word + 1) or sentinel words cleared by their producer and confirmed by tagged tokens.",
           f"; @launch grid=(256,1,1) block=(576,1,1) lds={LDS_BYTES}",
           '.amdgcn_target "amdgcn-amd-amdhsa--gfx950"', ".text", f".globl {KN}", ".p2align 8",
           f".type {KN},@function", f"{KN}:"]
    def rbf(regs):
        for r in regs: A(f"v_cvt_pk_bf16_f32 v{r}, v{r}, v{r}")
        for r in regs: A(f"v_and_b32 v{r}, 0xffff0000, v{r}")
    def unpack(dst, srcs):
        for e, sr in enumerate(srcs):
            A(f"v_lshlrev_b32 v{dst+2*e}, 16, v{sr}")
            A(f"v_and_b32 v{dst+2*e+1}, 0xffff0000, v{sr}")
    def silu(regs, tmp):
        A(f"s_mov_b32 s68, 0x{f32bits(-LOG2E):08x}")
        for i, r in enumerate(regs): A(f"v_mul_f32 v{tmp+i}, s68, v{r}")
        for i, r in enumerate(regs): A(f"v_exp_f32 v{tmp+i}, v{tmp+i}")
        nop(1)
        for i, r in enumerate(regs): A(f"v_add_f32 v{tmp+i}, 1.0, v{tmp+i}")
        for i, r in enumerate(regs): A(f"v_rcp_f32 v{tmp+i}, v{tmp+i}")
        nop(1)
        for i, r in enumerate(regs): A(f"v_mul_f32 v{r}, v{r}, v{tmp+i}")
    def exec_mask(m):
        A(f"s_mov_b32 exec_lo, 0x{m:08x}"); A(f"s_mov_b32 exec_hi, 0x{m:08x}")
    def tagpoll(loads, quads, vt, sleep, vaddr=None):
        l = g.newlab("TP"); d = g.newlab("TD")
        A("s_mov_b32 s15, 0x3ffff")
        if vaddr is not None and int(qdual):
            A(f"v_add_u32 v{vaddr}, 0x{DUP:x}, v{vaddr}")
        lab(l)
        for s_ in loads: A(s_)
        if vaddr is not None and int(qdual):
            A("s_and_b32 s14, s15, 3"); A("s_cmp_lt_u32 s14, 2")
            A(f"s_cselect_b32 s14, 0x{DUP:x}, 0")
            A(f"v_xor_b32 v{vaddr}, s14, v{vaddr}")
        A("s_waitcnt vmcnt(0)")
        first = True
        for q in quads:
            if first:
                A(f"v_xor_b32 v{vt}, s4, v{q+1}"); first = False
            else:
                A(f"v_xor_b32 v{vt+1}, s4, v{q+1}"); A(f"v_or_b32 v{vt}, v{vt}, v{vt+1}")
            A(f"v_xor_b32 v{vt+1}, s5, v{q+3}"); A(f"v_or_b32 v{vt}, v{vt}, v{vt+1}")
        A(f"v_cmp_ne_u32 vcc, 0, v{vt}")
        A("s_and_b64 exec, exec, vcc"); A(f"s_cbranch_scc0 {d}")
        if sleep: A(f"s_sleep {sleep}")
        A("s_sub_u32 s15, s15, 1"); A("s_cmp_lg_u32 s15, 0"); A(f"s_cbranch_scc1 {l}")
        lab(d)
        A("s_mov_b64 exec, -1")
    def down_ids(skb, scg, none):
        if dshift:
            A("s_cmp_ge_u32 s70, 4"); A(f"s_cbranch_scc1 {none}")
            A("s_cmp_ge_u32 s71, 28"); A(f"s_cbranch_scc1 {none}")
            A(f"s_mul_i32 s{scg}, s70, 28"); A(f"s_add_u32 s{scg}, s{scg}, s71")
            A(f"s_lshr_b32 s{skb}, s{scg}, 2"); A(f"s_and_b32 s{scg}, s{scg}, 3"); A(f"s_lshl_b32 s{scg}, s{scg}, 1")
        else:
            A("s_cmp_eq_u32 s70, 7"); A(f"s_cbranch_scc1 {none}")
            A(f"s_mov_b32 s{skb}, s74"); A(f"s_mov_b32 s{scg}, s75")
    A("s_cmp_ge_u32 s2, 256"); A("s_cbranch_scc1 L_end")
    A("s_load_dwordx16 s[4:19], s[0:1], 0")
    A("s_load_dwordx8 s[20:27], s[0:1], 64")
    g.stamp(0)
    if int(dbgspan): A("s_memrealtime s[98:99]")
    A("v_lshrrev_b32 v1, 6, v0")
    A("v_and_b32 v2, 63, v0")
    A("v_readfirstlane_b32 s3, v1")
    A("v_mov_b32 v3, 0"); A("v_mov_b32 v4, 1")
    A("v_and_b32 v5, 15, v2"); A("v_lshrrev_b32 v6, 4, v2")
    for d, n in ((28, 67108864), (32, 67108864), (44, 4194304), (48, 1835008), (52, 268435456), (56, 8192), (60, 8192)):
        A(f"s_mov_b32 s{d+2}, {n}"); A(f"s_mov_b32 s{d+3}, 0x00020000")
    A("s_mov_b32 s39, 0x00020000")
    A("s_and_b32 s70, s2, 7")
    A("s_lshr_b32 s71, s2, 3")
    A("s_lshr_b32 s72, s71, 2")
    A("s_and_b32 s73, s71, 3")
    A("s_lshl_b32 s74, s70, 2"); A("s_lshr_b32 s68, s71, 3"); A("s_add_u32 s74, s74, s68")
    A("s_and_b32 s75, s71, 7")
    A("s_lshl_b32 s64, s72, 3"); A("s_add_u32 s64, s64, s70"); A("s_lshl_b32 s64, s64, 20")
    A("s_lshl_b32 s68, s73, 16"); A("s_add_u32 s64, s64, s68"); A(f"s_add_u32 s64, s64, {3072*256}")
    A("s_cmp_ge_u32 s3, 4"); A("s_cbranch_scc1 L_H")

    KR = 16; QF = 80; SR = 96; PP = 112; ACC = 120
    PBF = 16
    VF = 48
    A("s_lshl_b32 s68, s3, 14"); A("s_add_u32 s76, s64, s68")
    for i in range(1, 4):
        A(f"s_add_u32 s{76+i}, s76, {i*4096}")
    A("v_lshlrev_b32 v7, 8, v5"); A("v_lshl_add_u32 v7, v6, 4, v7")
    A("s_waitcnt lgkmcnt(0)")
    for d, b in ((28, 6), (52, 26), (56, 4), (60, 22)):
        A(f"s_mov_b32 s{d}, s{b}"); A(f"s_mov_b32 s{d+1}, s{b+1}")
    if not int(kearly): A("s_barrier")
    if kdelay:
        g.flag_wait(F_W, 2, 3, 10)
    n = 0
    for T in range(4):
        for t in range(4):
            r = KR + (T*4 + t)*4
            if int(kearly) and n == int(kearly): A("s_barrier")
            if g.thr and n >= g.thr: A(f"s_waitcnt vmcnt({g.thr-1})")
            A(f"buffer_load_dwordx4 v[{r}:{r+3}], v7, s[28:31], s{76+T} offen offset:{t*64} {g.ntkv}"); n += 1
            if n == kv: g.flag_add(F_K2, 3, 4)
            if n == kq: g.flag_add(F_K, 3, 4)
    if not tailst: g.stamp(1)
    if cut:
        A("s_waitcnt vmcnt(0)"); g.stamp(2); A("s_branch L_fin")
    A(f"s_mov_b32 s78, 0x{f32bits(LOG2E * (128 ** -0.5)):08x}")
    A("v_and_b32 v11, 3, v2")
    A("v_lshlrev_b32 v12, 8, v11"); A("v_lshl_add_u32 v12, v6, 4, v12")
    A("v_lshlrev_b32 v13, 4, v11")
    A("s_lshl_b32 s68, s3, 2"); A("v_add_u32 v14, s68, v13")
    A(f"v_mul_u32_u24 v8, {PLP}, v11"); A("v_lshl_add_u32 v9, v6, 4, v8")
    A("v_lshl_add_u32 v8, v6, 3, v8"); A("s_lshl_b32 s68, s3, 7"); A("v_add_u32 v8, s68, v8")
    A("v_lshrrev_b32 v124, 2, v5")
    A("v_and_b32 v125, 1, v6"); A("v_lshl_add_u32 v125, v125, 2, v124"); A("v_lshlrev_b32 v125, 1, v125")
    A("v_lshrrev_b32 v126, 1, v11"); A("s_lshl_b32 s68, s3, 2"); A("v_add_u32 v126, s68, v126"); A("v_xor_b32 v126, v126, v125")
    A("v_lshlrev_b32 v126, 4, v126"); A("v_and_b32 v125, 1, v2"); A("v_lshl_add_u32 v126, v125, 3, v126")
    A("v_lshl_add_u32 v125, v6, 3, v124"); A("v_lshl_add_u32 v126, v125, 8, v126")
    A("v_xor_b32 v127, 32, v126")
    A(f"v_add_u32 v126, {VT}, v126"); A(f"v_add_u32 v127, {VT}, v127")
    A("v_lshlrev_b32 v125, 6, v11"); A("v_lshl_add_u32 v125, v6, 4, v125")
    A("s_lshl_b32 s79, s70, 2"); A("s_add_u32 s79, s79, s73"); A("s_lshl_b32 s79, s79, 3"); A("s_add_u32 s79, s79, s72")
    A("s_lshl_b32 s79, s79, 2"); A("s_add_u32 s79, s79, s3"); A("s_lshl_b32 s79, s79, 8"); A(f"s_add_u32 s79, s79, {O_OFF}")
    g.flag_wait(F_Q, 1, 3, 10)
    if not tailst: g.stamp(2)
    for t in range(4):
        A(f"ds_read_b128 v[{QF+4*t}:{QF+4*t+3}], v12 offset:{QL + t*64}")
    A("s_waitcnt lgkmcnt(0)")
    for T in range(4):
        A(f"s_waitcnt vmcnt({12 - 4*T})")
        for t in range(4):
            r = KR + (T*4 + t)*4
            cc = "0" if t == 0 else f"v[{SR+4*T}:{SR+4*T+3}]"
            A(f"v_mfma_f32_16x16x32_bf16 v[{SR+4*T}:{SR+4*T+3}], v[{r}:{r+3}], v[{QF+4*t}:{QF+4*t+3}], {cc}")
    nop(4)
    A(f"v_max3_f32 v10, v{SR}, v{SR+1}, v{SR+2}")
    for i in range(3, 11, 2):
        A(f"v_max3_f32 v10, v10, v{SR+i}, v{SR+i+1}")
    A(f"v_max_f32 v10, v10, v{SR+11}")
    A(f"v_max3_f32 v10, v10, v{SR+12}, v{SR+13}")
    A(f"v_max3_f32 v10, v10, v{SR+14}, v{SR+15}")
    g.xrow("v_max_f32", [10], [15])
    A("s_mov_b64 exec, 15")
    A(f"ds_write_b32 v14, v10 offset:{MX}")
    g.flag_add(F_MX, 3, 4)
    g.flag_wait(F_MX, 4, 3, 15, sleep=False)
    A(f"ds_read_b128 v[{PP}:{PP+3}], v13 offset:{MX}")
    A("s_waitcnt lgkmcnt(0)")
    A(f"v_max3_f32 v10, v{PP}, v{PP+1}, v{PP+2}"); A(f"v_max_f32 v10, v10, v{PP+3}")
    A("v_mul_f32 v10, s78, v10")
    for i in range(16):
        A(f"v_fma_f32 v{SR+i}, v{SR+i}, s78, -v10")
    for i in range(16):
        A(f"v_exp_f32 v{SR+i}, v{SR+i}")
    nop(1)
    for i in range(8):
        A(f"v_cvt_pk_bf16_f32 v{PP+i}, v{SR+2*i}, v{SR+2*i+1}")
    exec_mask(0x000F000F)
    for T in range(4):
        A(f"ds_write_b64 v8, v[{PP+2*T}:{PP+2*T+1}] offset:{PL + T*32}")
    A("s_mov_b64 exec, -1")
    A(f"v_add_f32 v10, v{SR}, v{SR+1}"); A(f"v_add_f32 v15, v{SR+2}, v{SR+3}")
    for i in range(4, 16, 2):
        A(f"v_add_f32 v10, v10, v{SR+i}"); A(f"v_add_f32 v15, v15, v{SR+i+1}")
    A("v_add_f32 v10, v10, v15")
    g.xrow("v_add_f32", [10], [15])
    A("s_mov_b64 exec, 15")
    A(f"ds_write_b32 v14, v10 offset:{LL}")
    g.flag_add(F_ML, 3, 4)
    g.flag_wait(F_ML, 4, 3, 15, sleep=False)
    for t in range(8):
        A(f"ds_read_b128 v[{PBF+4*t}:{PBF+4*t+3}], v9 offset:{PL + t*64}")
    if not tailst: g.stamp(3)
    A("s_lshl_b32 s68, s3, 4"); A("v_mov_b32 v113, s68")
    A(f"ds_read_b128 v[116:119], v113 offset:{MX}")
    A(f"ds_read_b128 v[120:123], v113 offset:{LL}")
    A("s_waitcnt lgkmcnt(0)")
    A("v_max3_f32 v114, v116, v117, v118"); A("v_max_f32 v114, v114, v119"); A("v_mul_f32 v114, s78, v114")
    A("v_add_f32 v115, v120, v121"); A("v_add_f32 v116, v122, v123"); A("v_add_f32 v115, v115, v116")
    A("v_min_u32 v114, -2, v114"); A("v_min_u32 v115, -2, v115")
    A("s_lshl_b32 s36, s70, 2"); A("s_add_u32 s36, s36, s3"); A("s_lshl_b32 s36, s36, 8"); A("s_lshl_b32 s68, s71, 3"); A("s_add_u32 s36, s36, s68")
    A(f"s_add_u32 s36, s36, {MLD_OFF}")
    A("s_lshl_b32 s37, s70, 5"); A("s_add_u32 s37, s37, s71"); A("s_lshl_b32 s37, s37, 7"); A("s_lshl_b32 s68, s3, 3"); A("s_add_u32 s37, s37, s68")
    A(f"s_add_u32 s37, s37, {ML_OFF}")
    A("v_and_b32 v100, 7, v2")
    A("v_lshl_add_u32 v101, v6, 2, v124"); A("v_bfe_u32 v109, v101, 1, 2"); A("v_lshlrev_b32 v101, 7, v101")
    A("v_lshl_add_u32 v101, v109, 5, v101"); A("v_lshl_add_u32 v101, v11, 3, v101")
    A("s_and_b32 s68, s3, 1"); A("s_lshl_b32 s69, s68, 13"); A("v_add_u32 v101, s69, v101")
    A("v_xor_b32 v109, 32, v101"); A("v_xor_b32 v110, 64, v101"); A("v_xor_b32 v111, 0x60, v101")
    A("v_lshlrev_b32 v102, 10, v5"); A("v_lshl_add_u32 v102, v6, 4, v102")
    A("s_lshl_b32 s77, s70, 15"); A("s_lshr_b32 s69, s3, 1"); A("s_lshl_b32 s69, s69, 14"); A("s_add_u32 s77, s77, s69")
    A("s_lshl_b32 s68, s68, 9"); A("s_add_u32 s77, s77, s68")
    A("s_lshr_b32 s68, s71, 3"); A("s_lshl_b32 s68, s68, 6"); A("s_add_u32 s77, s77, s68"); A(f"s_add_u32 s77, s77, {O_OFF}")
    A("v_bfe_u32 v103, v2, 3, 1"); A("s_lshl_b32 s68, s3, 1"); A("v_add_u32 v104, s68, v103"); A("v_mul_u32_u24 v104, 2176, v104")
    A("v_mul_u32_u24 v105, 272, v100"); A("v_add_u32 v104, v104, v105"); A("v_lshl_add_u32 v104, v6, 4, v104")
    A("s_and_b32 s69, s3, 2"); A("v_add_u32 v103, s69, v103"); A("v_lshl_add_u32 v103, v103, 4, v5"); A("v_lshlrev_b32 v103, 2, v103")
    A("v_lshl_add_u32 v108, v100, 2, v6"); A("v_lshlrev_b32 v108, 7, v108")
    A("s_lshl_b32 s65, s70, 12"); A("s_lshr_b32 s69, s71, 3"); A("s_lshl_b32 s69, s69, 3"); A("s_add_u32 s65, s65, s69"); A(f"s_add_u32 s65, s65, {ML_OFF}")
    A("v_lshrrev_b32 v105, 5, v2"); A("v_add_u32 v106, s68, v105"); A("v_mul_u32_u24 v106, 272, v106")
    A("v_and_b32 v107, 31, v2"); A("v_lshl_add_u32 v106, v107, 3, v106")
    A("v_lshlrev_b32 v105, 10, v105"); A("v_lshl_add_u32 v105, v107, 2, v105")
    A("s_lshl_b32 s78, s74, 3"); A("s_add_u32 s78, s78, s68"); A("s_lshl_b32 s78, s78, 10")
    A("s_lshl_b32 s69, s75, 7"); A("s_add_u32 s78, s78, s69"); A(f"s_add_u32 s78, s78, {SP_OFF}")
    A(f"s_add_u32 s66, s79, {DUP}"); A(f"s_add_u32 s67, s77, {DUP}"); A("s_lshl_b32 s40, s74, 8"); A(f"s_add_u32 s40, s40, {MLD_OFF}"); A("v_lshrrev_b32 v112, 4, v108")
    A("s_mov_b32 s76, 0")
    A("s_waitcnt lgkmcnt(0)")
    def pv_mfma(t):
        vf = 128 + (t & 3)*8
        for nt in range(2):
            acc = 64 + 4*nt
            cc = "0" if t == 0 else f"v[{acc}:{acc+3}]"
            A(f"v_mfma_f32_16x16x32_bf16 v[{acc}:{acc+3}], v[{vf+4*nt}:{vf+4*nt+3}], v[{PBF+4*t}:{PBF+4*t+3}], {cc}")
    def bf(nt, t):
        i = nt*2 + t
        return 48 + 4*i if i < 4 else 80 + 4*(i - 4)
    def wo_frags():
        for nt in range(4):
            for t2 in range(2):
                r = bf(nt, t2)
                off = WOT + t2*4096
                va = (101, 109, 110, 111)[nt]
                A(f"ds_read_b64_tr_b16 v[{r}:{r+1}], v{va} offset:{off}")
                A(f"ds_read_b64_tr_b16 v[{r+2}:{r+3}], v{va} offset:{off + 2048}")
    for t in range(8):
        lw = g.newlab("VW"); lr = g.newlab("VR")
        if wp < 64 and t == wread:
            g.flag_wait(F_WO, 1, 3, 10, sleep=False)
            wo_frags()
            A("s_waitcnt lgkmcnt(0)")
        A(f"s_cmp_gt_u32 s76, {t}"); A(f"s_cbranch_scc1 {lr}")
        A("s_mov_b32 s15, 0x400000")
        lab(lw)
        A(f"ds_read_b64 v[{SR}:{SR+1}], v3 offset:{F_V0}")
        A("s_waitcnt lgkmcnt(0)")
        A(f"v_add_u32 v{SR+1}, 7, v{SR+1}")
        A(f"v_min_u32 v{SR}, v{SR}, v{SR+1}")
        A(f"v_readfirstlane_b32 s41, v{SR+1}")
        A("s_sub_u32 s15, s15, 1")
        A(f"v_readfirstlane_b32 s76, v{SR}")
        A("s_cmp_eq_u32 s15, 0"); A(f"s_cbranch_scc1 {lr}")
        A(f"s_cmp_gt_u32 s76, {t}"); A(f"s_cbranch_scc0 {lw}")
        lab(lr)
        vf = 128 + (t & 3)*8
        for nt in range(2):
            A(f"ds_read_b64_tr_b16 v[{vf+4*nt}:{vf+4*nt+1}], v{126+nt} offset:{t*8192}")
            A(f"ds_read_b64_tr_b16 v[{vf+4*nt+2}:{vf+4*nt+3}], v{126+nt} offset:{t*8192 + 1024}")
        if t >= 2:
            A("s_waitcnt lgkmcnt(8)")
            pv_mfma(t - 2)
    A("s_cmp_eq_u32 s41, 8")
    A("s_cselect_b32 s67, s67, s77"); A("s_cselect_b32 s40, s40, s65"); A("s_cselect_b64 s[42:43], -1, 0")
    A("v_cndmask_b32 v112, v108, v112, s[42:43]")
    A("s_waitcnt lgkmcnt(4)")
    pv_mfma(6)
    A("s_waitcnt lgkmcnt(0)")
    pv_mfma(7)
    g.stamp(4)
    exec_mask(0x000F000F)
    nop(5)
    A("v_cvt_pk_bf16_f32 v72, v64, v65"); A("v_cvt_pk_bf16_f32 v73, v66, v67")
    A("v_cvt_pk_bf16_f32 v74, v68, v69"); A("v_cvt_pk_bf16_f32 v75, v70, v71")
    for e in range(4): A(f"v_min_u32 v{72+e}, -2, v{72+e}")
    A("s_cmp_eq_u32 s41, 8"); A("s_cbranch_scc0 L_oglob")
    A("buffer_store_dwordx4 v[72:75], v125, s[52:55], s66 offen")
    if int(mlrep):
        A("s_mov_b64 exec, 1")
        A("buffer_store_dwordx2 v[114:115], v3, s[52:55], s36 offen")
    A("s_branch L_ostored")
    lab("L_oglob")
    A("buffer_store_dwordx4 v[72:75], v125, s[52:55], s79 offen sc1")
    lab("L_ostored")
    A("s_mov_b64 exec, -1")
    g.stamp(5)
    AF = 64
    def oloads(so):
        return [f"buffer_load_dwordx4 v[{AF}:{AF+3}], v102, s[52:55], s{so} offen sc1",
                f"buffer_load_dwordx4 v[{AF+4}:{AF+7}], v102, s[52:55], s{so} offen offset:256 sc1"]
    def mloads(sm):
        return [f"buffer_load_dwordx2 v[76:77], v{112 if sm == 40 else 108}, s[52:55], s{sm} offen sc1"]
    def ensure_store():
        le = g.newlab("ES")
        A(f"s_cmp_lg_u32 s41, 0"); A(f"s_cbranch_scc1 {le}")
        A("s_mov_b32 s41, 1")
        A("s_mov_b64 s[42:43], exec")
        exec_mask(0x000F000F)
        A("buffer_store_dwordx4 v[72:75], v125, s[52:55], s79 offen sc1")
        A("s_mov_b64 exec, s[42:43]")
        lab(le)
    def dualpoll(la, lb_, regs, first_wait):
        l0 = g.newlab("OP"); l1 = g.newlab("OC"); ld = g.newlab("OD"); lb = g.newlab("OB"); l2 = g.newlab("OW")
        A("s_mov_b32 s15, 0x40000")
        A(f"s_waitcnt vmcnt({first_wait})")
        A(f"s_branch {l1}")
        lab(l0)
        A(f"s_and_b32 s14, s15, {int(bmask)}"); A("s_cmp_eq_u32 s14, 0"); A(f"s_cbranch_scc1 {lb}")
        for l_ in la: A(l_)
        A(f"s_branch {l2}")
        lab(lb)
        ensure_store()
        for l_ in lb_: A(l_)
        lab(l2)
        A("s_waitcnt vmcnt(0)")
        lab(l1)
        rs = list(regs)
        if len(rs) == 2:
            A(f"v_max_u32 v10, v{rs[0]}, v{rs[1]}")
        else:
            A(f"v_max3_u32 v10, v{rs[0]}, v{rs[1]}, v{rs[2]}"); A(f"v_max3_u32 v15, v{rs[3]}, v{rs[4]}, v{rs[5]}")
            A(f"v_max3_u32 v10, v10, v{rs[6]}, v{rs[7]}"); A("v_max_u32 v10, v10, v15")
        A("v_cmp_eq_u32 vcc, -1, v10")
        A("s_and_b64 exec, exec, vcc"); A(f"s_cbranch_scc0 {ld}")
        if int(osleep): A(f"s_sleep {int(osleep)}")
        A("s_sub_u32 s15, s15, 1"); A("s_cmp_lg_u32 s15, 0"); A(f"s_cbranch_scc1 {l0}")
        lab(ld)
        A("s_mov_b64 exec, -1")
    if wp == 64:
        g.poll(mloads(40), [76, 77], 10, sleep=int(osleep))
        for l_ in oloads(67): A(l_)
    else:
        for l_ in mloads(40) + oloads(67): A(l_)
        g.poll(mloads(40), [76, 77], 10, preissued=True)
    if tailst: g.stamp(1)
    A("v_mov_b32 v78, v76")
    g.xrow("v_max_f32", [78], [79])
    A("v_sub_f32 v76, v76, v78")
    A("v_exp_f32 v76, v76")
    nop(1)
    A("v_mul_f32 v77, v76, v77")
    A("ds_bpermute_b32 v76, v103, v76")
    g.xrow("v_add_f32", [77], [79])
    A("v_rcp_f32 v77, v77")
    A("s_waitcnt lgkmcnt(0)")
    A("v_mul_f32 v76, v76, v77"); A("v_mov_b32 v77, v76")
    if wp == 64:
        g.flag_wait(F_WO, 1, 3, 10, sleep=False)
        wo_frags()
    if tailst: g.stamp(2)
    g.poll(oloads(67), list(range(AF, AF+8)), 10, preissued=True, sleep=int(osleep))
    A("s_waitcnt lgkmcnt(0)")
    if tailst:
        A("s_sub_u32 s86, 0x40000, s15"); A("s_add_u32 s86, s86, s80"); A("s_mov_b32 s87, s81")
    g.stamp(6)
    DW = 16
    for t in range(2):
        for nt in range(4):
            r = bf(nt, t)
            cc = "0" if t == 0 else f"v[{DW+4*nt}:{DW+4*nt+3}]"
            A(f"v_mfma_f32_16x16x32_bf16 v[{DW+4*nt}:{DW+4*nt+3}], v[{r}:{r+3}], v[{AF+4*t}:{AF+4*t+3}], {cc}")
    nop(5)
    for nt in range(4):
        A(f"v_pk_mul_f32 v[{DW+4*nt}:{DW+4*nt+1}], v[{DW+4*nt}:{DW+4*nt+1}], v[76:77]")
        A(f"v_pk_mul_f32 v[{DW+4*nt+2}:{DW+4*nt+3}], v[{DW+4*nt+2}:{DW+4*nt+3}], v[76:77]")
        A(f"ds_write_b128 v104, v[{DW+4*nt}:{DW+4*nt+3}] offset:{RED + nt*64}")
    A("s_waitcnt lgkmcnt(0)")
    A("s_barrier")
    for p in range(8):
        A(f"ds_read_b64 v[{32+2*p}:{33+2*p}], v106 offset:{RED + p*2176}")
    A("s_waitcnt lgkmcnt(4)") if (not stamps or only) else A("s_waitcnt lgkmcnt(0)")
    A("v_pk_add_f32 v[32:33], v[32:33], v[34:35]"); A("v_pk_add_f32 v[36:37], v[36:37], v[38:39]")
    A("v_pk_add_f32 v[32:33], v[32:33], v[36:37]")
    A("s_waitcnt lgkmcnt(0)")
    A("v_pk_add_f32 v[40:41], v[40:41], v[42:43]"); A("v_pk_add_f32 v[44:45], v[44:45], v[46:47]")
    A("v_pk_add_f32 v[40:41], v[40:41], v[44:45]")
    A("v_pk_add_f32 v[32:33], v[32:33], v[40:41]")
    A("v_cvt_pk_bf16_f32 v32, v32, v33")
    A("v_min_u32 v32, -2, v32")
    if int(spx4):
        nop(2)
        A("v_mov_b32_dpp v33, v32 quad_perm:[1,1,1,1] row_mask:0xf bank_mask:0xf")
        A("v_mov_b32_dpp v34, v32 quad_perm:[2,2,2,2] row_mask:0xf bank_mask:0xf")
        A("v_mov_b32_dpp v35, v32 quad_perm:[3,3,3,3] row_mask:0xf bank_mask:0xf")
        exec_mask(0x11111111)
        A("buffer_store_dwordx4 v[32:35], v105, s[52:55], s78 offen sc1")
        A("s_mov_b64 exec, -1")
    else:
        A("buffer_store_dword v32, v105, s[52:55], s78 offen sc1")
    g.stamp(7)
    A("s_branch L_fin")

    lab("L_H")
    A("s_cmp_eq_u32 s3, 8"); A("s_cbranch_scc1 L_load")
    A("s_setprio 3")
    A("v_lshlrev_b32 v7, 4, v2")
    A("s_sub_u32 s77, s3, 4")
    A("s_cmp_lg_u32 s3, 7"); A("s_cbranch_scc1 L_noinit")
    A("v_lshlrev_b32 v8, 2, v5")
    A("ds_write_b32 v8, v3")
    lab("L_noinit")
    A("v_lshrrev_b32 v8, 3, v2"); A("v_and_b32 v9, 7, v2"); A("v_lshlrev_b32 v9, 4, v9")
    A("s_lshl_b32 s68, s77, 11")
    A(f"s_mov_b32 s69, 0x{EP_OFF:x}")
    A("s_waitcnt lgkmcnt(0)")
    A("s_load_dword s79, s[26:27], s69")
    for d, b in ((32, 8), (44, 12), (48, 20), (52, 26), (56, 4)):
        A(f"s_mov_b32 s{d}, s{b}"); A(f"s_mov_b32 s{d+1}, s{b+1}")
    XR = 16
    for r in range(2):
        A(f"buffer_load_dwordx4 v[{XR+4*r}:{XR+4*r+3}], v7, s[56:59], s68 offen offset:{r*1024}")
    A("s_cmp_ge_u32 s3, 6"); A("s_cbranch_scc1 L_SX0")
    A("s_cmp_eq_u32 s3, 5"); A("s_cbranch_scc1 L_G1")
    A("s_mov_b32 s36, s10"); A("s_mov_b32 s37, s11"); A("s_mov_b32 s38, 4194304")
    A("s_lshl_b32 s76, s70, 3"); A("s_add_u32 s76, s76, s72"); A("s_lshl_b32 s76, s76, 7")
    A("s_movk_i32 s69, 8192")
    A("s_lshl_b32 s78, s73, 17"); A("s_lshl_b32 s68, s76, 4"); A("s_add_u32 s78, s78, s68")
    A(f"s_add_u32 s78, s78, {QP_OFF}")
    A("s_branch L_GJ")
    lab("L_G1")
    A("s_cmp_eq_u32 s70, 7"); A("s_cbranch_scc1 L_LN0")
    A("s_bitcmp1_b32 s71, 2")
    A("s_cselect_b32 s36, s18, s16"); A("s_cselect_b32 s37, s19, s17"); A("s_mov_b32 s38, 1835008")
    A("s_lshl_b32 s76, s74, 7")
    A("s_movk_i32 s69, 3584")
    A("s_and_b32 s78, s71, 7"); A(f"s_mul_i32 s78, s78, {28*2048}"); A("s_lshl_b32 s68, s76, 4"); A("s_add_u32 s78, s78, s68")
    A(f"s_add_u32 s78, s78, {GP_OFF}")
    lab("L_GJ")
    A("v_mul_lo_u32 v10, v8, s69"); A("v_add_u32 v10, v10, v9")
    A("s_lshl_b32 s68, s73, 7"); A("s_mul_i32 s68, s68, s69"); A("s_add_u32 s100, s76, s68")
    A("s_lshl_b32 s101, s69, 3")
    A("s_lshl_b32 s68, s77, 14"); A(f"s_add_u32 s68, s68, {W1T}")
    for i in range(16):
        A("s_mov_b32 m0, s68")
        A("s_add_u32 s68, s68, 1024")
        A(f"buffer_load_dwordx4 v10, s[36:39], s100 offen {g.ntw} lds")
        A("s_add_u32 s100, s100, s101")
    A("s_barrier")
    A("s_waitcnt vmcnt(16)")
    A("s_branch L_LN")
    lab("L_SX0")
    A("s_cmp_eq_u32 s3, 7"); A("s_cbranch_scc1 L_LN0")
    if int(noclr): A("s_branch L_LN0")
    for r in range(4):
        A(f"v_mov_b32 v{24+r}, -1")
    A("s_lshl_b32 s68, s70, 2"); A("s_add_u32 s68, s68, s73"); A("s_lshl_b32 s68, s68, 3"); A("s_add_u32 s68, s68, s72")
    A("s_lshl_b32 s68, s68, 10"); A(f"s_add_u32 s68, s68, {O_OFF}")
    A("buffer_store_dwordx4 v[24:27], v7, s[52:55], s68 offen sc1")
    A(f"s_add_u32 s68, s68, {DUP}")
    A("buffer_store_dwordx4 v[24:27], v7, s[52:55], s68 offen sc1")
    A("v_lshl_add_u32 v10, v8, 10, v9")
    A("s_lshl_b32 s68, s74, 13"); A("s_lshl_b32 s69, s75, 7"); A("s_add_u32 s68, s68, s69")
    A(f"s_add_u32 s69, s68, {SP_OFF}")
    A("buffer_store_dwordx4 v[24:27], v10, s[52:55], s69 offen sc1")
    down_ids(68, 69, "L_nofp")
    A("s_lshl_b32 s68, s68, 13"); A("s_lshl_b32 s69, s69, 7"); A("s_add_u32 s69, s69, s68"); A(f"s_add_u32 s69, s69, {FP_OFF}")
    A("buffer_store_dwordx4 v[24:27], v10, s[52:55], s69 offen sc1")
    if dshift: A("buffer_store_dwordx4 v[24:27], v10, s[52:55], s69 offen offset:128 sc1")
    lab("L_nofp")
    A("s_lshl_b32 s68, s70, 5"); A("s_add_u32 s68, s68, s71"); A("s_lshl_b32 s68, s68, 7"); A(f"s_add_u32 s68, s68, {ML_OFF}")
    A("s_mov_b64 exec, 3")
    A("buffer_store_dwordx4 v[24:27], v7, s[52:55], s68 offen sc1")
    A("s_mov_b64 exec, 15")
    A("v_lshlrev_b32 v10, 8, v2")
    A("s_lshl_b32 s68, s70, 10"); A("s_lshl_b32 s69, s71, 3"); A("s_add_u32 s68, s68, s69"); A(f"s_add_u32 s68, s68, {MLD_OFF}")
    A("buffer_store_dwordx2 v[24:25], v10, s[52:55], s68 offen sc1")
    A("s_mov_b64 exec, -1")
    A("s_barrier")
    A("s_waitcnt vmcnt(5)")
    A("s_cmp_eq_u32 s70, 7"); A("s_cbranch_scc1 L_LN")
    A("s_nop 0")
    A("s_branch L_LN") if False else None
    A("s_waitcnt vmcnt(4)") if False else None
    A("s_branch L_LN")
    lab("L_LN0")
    A("s_barrier")
    A("s_waitcnt vmcnt(0)")
    lab("L_LN")
    if cut == 1:
        g.flag_add(F_W, 3, 4); A("s_branch L_fin")
    XF = 32
    for r in range(2):
        unpack(XF + 8*r, [XR + 4*r + e for e in range(4)])
    SM = 64
    for r in range(2):
        A(f"v_add_f32 v{SM+r}, v{XF+8*r}, v{XF+8*r+1}"); A(f"v_add_f32 v{SM+2+r}, v{XF+8*r+2}, v{XF+8*r+3}")
    for e in range(4, 8, 2):
        for r in range(2):
            A(f"v_add_f32 v{SM+r}, v{SM+r}, v{XF+8*r+e}"); A(f"v_add_f32 v{SM+2+r}, v{SM+2+r}, v{XF+8*r+e+1}")
    for r in range(2):
        A(f"v_add_f32 v{SM+r}, v{SM+r}, v{SM+2+r}")
    g.allreduce64("v_add_f32", [SM, SM+1], [SM+4, SM+5])
    A(f"s_mov_b32 s68, 0x{f32bits(1.0/512):08x}")
    for r in range(2):
        A(f"v_mul_f32 v{SM+r}, s68, v{SM+r}")
    VS = 72
    for e in range(8):
        for r in range(2):
            A(f"v_sub_f32 v{80+2*(e&1)+r}, v{XF+8*r+e}, v{SM+r}")
        for r in range(2):
            t_ = 80+2*(e&1)+r
            if e == 0: A(f"v_mul_f32 v{VS+r}, v{t_}, v{t_}")
            else: A(f"v_fmac_f32 v{VS+r}, v{t_}, v{t_}")
    g.allreduce64("v_add_f32", [VS, VS+1], [VS+4, VS+5])
    for r in range(2):
        A(f"v_mul_f32 v{VS+r}, s68, v{VS+r}")
    rbf([SM, SM+1, VS, VS+1])
    for r in range(2):
        A(f"v_add_f32 v{VS+r}, 0x{f32bits(1e-5):08x}, v{VS+r}")
    rbf([VS, VS+1])
    for r in range(2):
        A(f"v_sqrt_f32 v{VS+r}, v{VS+r}")
    nop(1)
    rbf([VS, VS+1])
    for r in range(2):
        A(f"v_rcp_f32 v{VS+r}, v{VS+r}")
    for r in range(2):
        for e in range(8):
            A(f"v_sub_f32 v{XF+8*r+e}, v{XF+8*r+e}, v{SM+r}")
    for r in range(2):
        for e in range(4):
            A(f"v_cvt_pk_bf16_f32 v{XR+4*r+e}, v{XF+8*r+2*e}, v{XF+8*r+2*e+1}")
    for r in range(2):
        unpack(XF + 8*r, [XR + 4*r + e for e in range(4)])
    for r in range(2):
        for e in range(8):
            A(f"v_mul_f32 v{XF+8*r+e}, v{XF+8*r+e}, v{VS+r}")
    for r in range(2):
        for e in range(4):
            A(f"v_cvt_pk_bf16_f32 v{XR+4*r+e}, v{XF+8*r+2*e}, v{XF+8*r+2*e+1}")
    A(f"s_mul_i32 s68, s77, {2*XNP}"); A("v_lshlrev_b32 v11, 4, v5"); A("v_add_u32 v11, s68, v11")
    A("v_cmp_eq_u32 vcc, s73, v6")
    A("s_and_saveexec_b64 s[68:69], vcc")
    for r in range(2):
        A(f"ds_write_b128 v11, v[{XR+4*r}:{XR+4*r+3}] offset:{XN + r*XNP}")
    g.flag_add(F_XN, 3, 4)
    g.stamp(2)
    A("s_add_u32 s4, s79, 1"); A(f"s_mul_i32 s5, s4, 0x{TAGMUL:x}")
    A("v_lshrrev_b32 v12, 2, v5"); A("v_lshl_add_u32 v12, v6, 3, v12"); A("v_lshlrev_b32 v12, 7, v12")
    A("v_and_b32 v13, 3, v2")
    A("v_and_b32 v14, 7, v2")
    A("s_cmp_ge_u32 s3, 6"); A("s_cbranch_scc1 L_SX1")
    A("s_cmp_lg_u32 s3, 5"); A("s_cbranch_scc1 L_Ggo")
    A("s_cmp_lg_u32 s70, 7"); A("s_cbranch_scc1 L_Ggo")
    g.flag_add(F_W, 3, 4)
    g.flag_add(F_GD, 3, 4)
    A("s_branch L_G1post")
    lab("L_Ggo")
    A(f"v_mul_u32_u24 v11, {XNP}, v14"); A("v_lshl_add_u32 v11, v6, 4, v11")
    A("v_lshl_add_u32 v12, v13, 3, v12")
    A("s_lshl_b32 s68, s77, 14"); A("v_add_u32 v12, s68, v12")
    A("s_cmp_eq_u32 s3, 5"); A("s_cbranch_scc1 L_dstG")
    A("v_lshlrev_b32 v15, 8, v14"); A("v_lshl_add_u32 v15, v6, 4, v15")
    A("s_mov_b32 s8, s78"); A("s_add_u32 s9, s78, 64"); A("s_add_u32 s10, s78, 128"); A("s_add_u32 s11, s78, 192")
    A("s_branch L_dstJ")
    lab("L_dstG")
    A("v_and_b32 v15, 1, v6"); A("v_lshlrev_b32 v15, 10, v15"); A("v_lshrrev_b32 v9, 1, v6"); A("v_lshl_add_u32 v15, v9, 8, v15")
    A("v_lshl_add_u32 v15, v14, 4, v15")
    A("s_mov_b32 s8, s78"); A("s_add_u32 s9, s78, 512"); A("s_add_u32 s10, s78, 128"); A("s_add_u32 s11, s78, 640")
    lab("L_dstJ")
    for nt in range(4):
        A(f"v_mov_b32 v{113+4*nt}, s4"); A(f"v_mov_b32 v{115+4*nt}, s5")
    A(f"s_add_u32 s66, s78, {DUP}")
    g.flag_wait(F_XN, 4, 3, 10)
    XB = 16
    for t in range(4):
        A(f"ds_read_b128 v[{XB+4*t}:{XB+4*t+3}], v11 offset:{XN + t*64}")
    WB = 32
    for t in range(4):
        A(f"s_waitcnt vmcnt({12 - 4*t})")
        if t == 3:
            g.flag_add(F_W, 3, 4)
        for nt in range(4):
            r = WB + (t*4 + nt)*4
            off = W1T + t*4096 + nt*32
            A(f"ds_read_b64_tr_b16 v[{r}:{r+1}], v12 offset:{off}")
            A(f"ds_read_b64_tr_b16 v[{r+2}:{r+3}], v12 offset:{off+512}")
        A("s_waitcnt lgkmcnt(0)")
        for nt in range(4):
            r = WB + (t*4 + nt)*4
            d = 96 + nt*4
            cc = "0" if t == 0 else f"v[{d}:{d+3}]"
            A(f"v_mfma_f32_16x16x32_bf16 v[{d}:{d+3}], v[{r}:{r+3}], v[{XB+4*t}:{XB+4*t+3}], {cc}")
    g.stamp(3)
    g.flag_add(F_GD, 3, 4)
    exec_mask(0x00ff00ff)
    nop(2)
    for nt in range(4):
        A(f"v_cvt_pk_bf16_f32 v{112+4*nt}, v{96+4*nt}, v{97+4*nt}")
        A(f"v_cvt_pk_bf16_f32 v{114+4*nt}, v{98+4*nt}, v{99+4*nt}")
        if int(qdual): A(f"buffer_store_dwordx4 v[{112+4*nt}:{115+4*nt}], v15, s[52:55], s66 offen offset:{nt*512}")
        else: A(f"buffer_store_dwordx4 v[{112+4*nt}:{115+4*nt}], v15, s[52:55], s{8+nt} offen sc1")
    if int(qdual):
      for nt in range(4):
        A(f"buffer_store_dwordx4 v[{112+4*nt}:{115+4*nt}], v15, s[52:55], s78 offen offset:{nt*512} sc1")
    A("s_mov_b64 exec, -1")
    g.stamp(4)
    lab("L_Gpost")
    A("s_cmp_eq_u32 s3, 5"); A("s_cbranch_scc1 L_G1post")
    A(f"s_mov_b32 s6, {FL_OFF}")
    A("s_getreg_b32 s7, hwreg(HW_REG_XCC_ID, 0, 4)")
    A("s_andn2_b32 s8, s5, 15"); A("s_or_b32 s8, s8, s7")
    if int(tchunk): g.flag_wait(F_V0, int(tchunk), 3, 10)
    else: g.flag_wait(F_K2, 4, 3, 10)
    g.stamp(5)
    A("s_mov_b32 s15, 0x40000")
    lab("L_alpoll")
    A("buffer_load_dwordx4 v[20:23], v7, s[52:55], s6 offen sc1")
    A("buffer_load_dwordx4 v[24:27], v7, s[52:55], s6 offen offset:1024 sc1")
    A("s_waitcnt vmcnt(0)")
    for e in range(4):
        A(f"v_xor_b32 v{28+2*e}, s4, v{20+2*e}"); A(f"v_xor_b32 v{29+2*e}, s8, v{21+2*e}")
    A("v_or3_b32 v36, v29, v31, v33"); A("v_or_b32 v36, v36, v35"); A("v_and_b32 v36, -16, v36")
    A("v_or3_b32 v36, v36, v28, v30"); A("v_or3_b32 v36, v36, v32, v34")
    A("v_cmp_ne_u32 vcc, 0, v36")
    A("s_and_b64 exec, exec, vcc"); A("s_cbranch_scc0 L_aldone")
    A("s_sleep 4")
    A("s_sub_u32 s15, s15, 1"); A("s_cmp_lg_u32 s15, 0"); A("s_cbranch_scc1 L_alpoll")
    lab("L_aldone")
    A("s_mov_b64 exec, -1")
    A("v_or_b32 v29, v29, v33"); A("v_or_b32 v31, v31, v35")
    A("s_bitcmp1_b32 s70, 0"); A("s_cselect_b64 s[8:9], -1, 0")
    A("v_cndmask_b32 v29, v29, v31, s[8:9]")
    A("s_lshr_b32 s8, s70, 1")
    A("v_cmp_eq_u32 vcc, s8, v13")
    A("v_cmp_ne_u32 s[8:9], 0, v29")
    A("s_and_b64 s[8:9], s[8:9], vcc")
    A("s_cselect_b32 s8, 2, 1")
    A("v_mov_b32 v20, s8")
    A(f"ds_write_b32 v3, v20 offset:{F_TOK}")
    g.stamp(6)
    A("s_waitcnt lgkmcnt(0)")
    A("s_branch L_fin")
    lab("L_G1post")
    if cut:
        A("s_waitcnt lgkmcnt(0)"); A("s_branch L_fin")
    A("s_mov_b32 s60, s22"); A("s_mov_b32 s61, s23")
    A("s_lshl_b32 s68, s72, 10"); A("s_lshl_b32 s69, s70, 7"); A("s_add_u32 s68, s68, s69"); A("s_lshl_b32 s69, s73, 5")
    A("s_add_u32 s76, s68, s69")
    A("v_lshrrev_b32 v17, 1, v2"); A("v_and_b32 v16, 1, v2")
    A("v_lshlrev_b32 v19, 4, v16"); A("v_mov_b32 v20, 0x3f80"); A("v_lshlrev_b32 v20, v19, v20")
    A("v_bfe_u32 v19, v2, 1, 2")
    for e in range(4):
        A(f"v_cmp_eq_u32 vcc, {e}, v19")
        nop(2)
        A(f"v_cndmask_b32 v{40+e}, 0, v20, vcc")
    A("v_lshlrev_b32 v21, 4, v16"); A("v_lshl_add_u32 v21, v6, 3, v21")
    A("v_min_u32 v18, 27, v17")
    A("v_lshlrev_b32 v18, 13, v18"); A("v_lshl_add_u32 v18, v16, 4, v18")
    A("v_lshlrev_b32 v17, 13, v17"); A("v_lshl_add_u32 v17, v16, 4, v17")
    A(f"s_add_u32 s77, s76, {FP_OFF}"); A(f"s_add_u32 s78, s76, {SP_OFF}")
    A("buffer_load_dwordx2 v[44:45], v21, s[56:59], s76 offen")
    fm = int(fmode)
    if fm == 0:
        g.flag_wait(F_TOK, 1, 3, 10)
        g.flag_wait(F_V0, int(fchunk), 3, 10)
    elif fm == 1:
        g.flag_wait(F_TOK, 1, 3, 10)
        g.flag_wait(F_WO, 1, 3, 10)
    else:
        A("s_waitcnt lgkmcnt(0)")
        A("s_barrier")
    g.stamp(5)
    g.poll(["buffer_load_dwordx4 v[32:35], v18, s[52:55], s77 offen sc1"], [32, 33, 34, 35], 10, sleep=int(fsl) if fm == 0 else 0)
    if fm == 2:
        A("buffer_load_dwordx4 v[56:59], v17, s[52:55], s78 offen sc1")
    g.stamp(6)
    def red_final(src=32):
        A(f"v_mfma_f32_16x16x32_bf16 v[36:39], v[40:43], v[{src}:{src+3}], 0")
        nop(8)
        for mod in ("row_ror:2", "row_ror:4", "row_ror:8"):
            for r in range(4):
                A(f"v_add_f32_dpp v{36+r}, v{36+r}, v{36+r} {mod} row_mask:0xf bank_mask:0xf")
    A("v_cmp_gt_u32 vcc, 56, v2")
    nop(2)
    for r in range(4):
        A(f"v_cndmask_b32 v{32+r}, 0, v{32+r}, vcc")
    nop(1)
    red_final()
    rbf([36, 37, 38, 39])
    silu([36, 37, 38, 39], 48)
    rbf([36, 37, 38, 39])
    for r in range(4): A(f"v_mov_b32 v{48+r}, v{36+r}")
    unpack(52, [44, 45])
    g.stamp(7)
    if fm != 2:
        A("s_waitcnt lgkmcnt(0)")
        A("s_barrier")
    g.poll(["buffer_load_dwordx4 v[56:59], v17, s[52:55], s78 offen sc1"], [56, 57, 58, 59], 10, preissued=(fm == 2), sleep=int(ssl))
    g.stamp(8)
    red_final(56)
    A("v_cvt_pk_bf16_f32 v32, v36, v37"); A("v_cvt_pk_bf16_f32 v33, v38, v39")
    unpack(36, [32, 33])
    A("v_pk_mul_f32 v[36:37], v[36:37], v[48:49]"); A("v_pk_mul_f32 v[38:39], v[38:39], v[50:51]")
    A("v_cvt_pk_bf16_f32 v32, v36, v37"); A("v_cvt_pk_bf16_f32 v33, v38, v39")
    unpack(36, [32, 33])
    A("v_pk_add_f32 v[36:37], v[36:37], v[52:53]"); A("v_pk_add_f32 v[38:39], v[38:39], v[54:55]")
    A("v_cvt_pk_bf16_f32 v32, v36, v37"); A("v_cvt_pk_bf16_f32 v33, v38, v39")
    A("s_mov_b64 exec, 0x30003")
    A("buffer_store_dwordx2 v[32:33], v21, s[60:63], s76 offen")
    A("s_mov_b64 exec, -1")
    g.stamp(9)
    A("s_cmp_lg_u32 s2, 0"); A("s_cbranch_scc1 L_fin")
    A("v_mov_b32 v32, s4")
    A(f"s_mov_b32 s68, {EP_OFF}")
    A("s_mov_b64 exec, 1")
    A("buffer_store_dword v32, v3, s[52:55], s68 offen sc1")
    A("s_mov_b64 exec, -1")
    A("s_branch L_fin")
    lab("L_load")
    A("s_setprio 2")
    A("v_lshrrev_b32 v8, 3, v2"); A("v_and_b32 v9, 7, v2"); A("v_lshlrev_b32 v9, 4, v9")
    A("v_lshlrev_b32 v16, 1, v6"); A("v_xor_b32 v16, v16, v5"); A("v_xor_b32 v17, 8, v16")
    A("v_lshlrev_b32 v16, 4, v16"); A("v_lshl_add_u32 v16, v6, 8, v16")
    A("v_lshlrev_b32 v17, 4, v17"); A("v_lshl_add_u32 v17, v6, 8, v17")
    A("s_mov_b32 s100, s64")
    A(f"s_mov_b32 s101, {VT}")
    A("v_lshl_add_u32 v18, v8, 10, v9")
    A("v_lshlrev_b32 v21, 5, v6"); A("v_xor_b32 v21, v21, v18")
    A("s_lshl_b32 s76, s74, 17"); A("s_lshl_b32 s68, s75, 7"); A("s_add_u32 s76, s76, s68")
    A(f"s_mov_b32 s77, {WOT}")
    A("s_lshl_b32 s78, s74, 16"); A("s_add_u32 s78, s78, s68")
    A(f"s_mov_b32 s79, {WDT}")
    A("s_waitcnt lgkmcnt(0)")
    for d, b_ in ((32, 8), (44, 12), (48, 20), (52, 26)):
        A(f"s_mov_b32 s{d}, s{b_}"); A(f"s_mov_b32 s{d+1}, s{b_+1}")
    A("s_barrier")
    if cut == 2:
        A("s_branch L_fin")
    if int(touch):
        A("s_mov_b64 exec, 1")
        A(f"buffer_load_dword v30, v3, s[44:47], s76 offen {g.ntw}")
        A(f"buffer_load_dword v31, v3, s[48:51], s78 offen {g.ntw}")
        if not int(vpre): A(f"buffer_load_dword v32, v3, s[32:35], s100 offen {g.ntkv}")
        A("s_mov_b64 exec, -1")
        A("s_waitcnt vmcnt(0)")
    if vdelay and not int(vpre):
        g.flag_wait(F_K2, 4, 3, 10)
    g.stamp(5)
    NV = 64
    dl = int(dlate)
    assert dl == 0
    seq = [("v", i) for i in range(wp)] + [("w", i) for i in range(16)] + [("v", i) for i in range(wp, NV)]
    NT = len(seq)
    marks = {}
    for k in range(8, NV + 1, 8): marks[k if k <= wp else k + 16] = ("V", k // 8)
    marks[wp + 16] = ("F", F_WO)
    def publish(k):
        if k in marks:
            kind, val = marks.pop(k)
            if kind == "V":
                A(f"v_mov_b32 v20, {val}")
                A(f"ds_write_b32 v3, v20 offset:{F_V0}")
            else:
                A(f"ds_write_b32 v3, v4 offset:{val}")
    for i, (kind, j) in enumerate(seq):
        if int(vpre) and i == int(vpre) and vdelay:
            g.flag_wait(F_K2, 4, 3, 10)
        if i >= vthr:
            A(f"s_waitcnt vmcnt({vthr-1})")
            publish(i - vthr + 1)
        if kind == "v":
            A("s_mov_b32 m0, s101")
            A("s_add_u32 s101, s101, 1024")
            A(f"buffer_load_dwordx4 v{16 + ((j >> 1) & 1)}, s[32:35], s100 offen {g.ntkv} lds")
            A("s_add_u32 s100, s100, 1024")
        elif kind == "w":
            A("s_mov_b32 m0, s77")
            A("s_add_u32 s77, s77, 1024")
            A(f"buffer_load_dwordx4 v21, s[44:47], s76 offen {g.ntw} lds")
            A("s_add_u32 s76, s76, 8192")
        else:
            A("s_mov_b32 m0, s79")
            A("s_add_u32 s79, s79, 1024")
            A(f"buffer_load_dwordx4 v18, s[48:51], s78 offen {g.ntw} lds")
            A("s_add_u32 s78, s78, 8192")
    g.stamp(6)
    for k in sorted(marks):
        A(f"s_waitcnt vmcnt({NT - k})")
        publish(k)
    g.stamp(7)
    A("s_waitcnt lgkmcnt(0)")
    A("s_branch L_fin")
    lab("L_SX1")
    A("s_cmp_eq_u32 s3, 7"); A("s_cbranch_scc1 L_X")
    A("s_getreg_b32 s6, hwreg(HW_REG_XCC_ID, 0, 4)")
    A("s_andn2_b32 s7, s5, 15"); A("s_or_b32 s7, s7, s6")
    A("v_mov_b32 v16, s4"); A("v_mov_b32 v17, s7")
    A("s_lshl_b32 s7, s2, 3"); A(f"s_add_u32 s7, s7, {FL_OFF}")
    A("s_waitcnt vmcnt(0)")
    A("s_mov_b64 exec, 1")
    A("buffer_store_dwordx2 v[16:17], v3, s[52:55], s7 offen sc1")
    A(f"ds_write_b32 v3, v16 offset:{F_EP}")
    A("s_mov_b64 exec, -1")
    g.stamp(1)
    if cut in (2, 3):
        A("s_branch L_fin")
    A("v_lshlrev_b32 v9, 11, v6"); A("v_lshl_add_u32 v9, v5, 4, v9")
    A("s_lshl_b32 s16, s70, 14"); A("s_lshl_b32 s69, s72, 8"); A("s_add_u32 s16, s16, s69"); A(f"s_add_u32 s16, s16, {QP_OFF}")
    for k in range(1, 8):
        A(f"s_add_u32 s{16+k}, s16, {(k>>1)*131072 + (k&1)*8192}")
    A("v_lshlrev_b32 v8, 3, v2")
    A("v_bfe_u32 v12, v2, 3, 2"); A("v_lshlrev_b32 v12, 17, v12"); A("v_lshl_add_u32 v12, v14, 11, v12")
    g.flag_wait(F_K, 4, 3, 10)
    g.stamp(7)
    if int(sample):
        tagpoll([f"buffer_load_dwordx4 v[16:19], v12, s[52:55], s16 offen offset:{3*512+48} sc1"], [16], 10, qsleep)
    g.stamp(8)
    tagpoll([f"buffer_load_dwordx4 v[{16+4*k}:{19+4*k}], v9, s[52:55], s{16+k} offen sc1" for k in range(8)],
            [16+4*k for k in range(8)], 10, qsleep, vaddr=9)
    g.stamp(3)
    if stamps and not only:
        A("s_waitcnt lgkmcnt(0)")
        A("s_sub_u32 s88, 0x3ffff, s15"); A("s_mul_i32 s88, s88, 10"); A("s_add_u32 s88, s88, s80"); A("s_mov_b32 s89, s81")
    for k in range(8):
        unpack(48 + 4*k, [16+4*k, 18+4*k])
    for i in range(2):
        for e in range(4):
            A(f"v_add_f32 v{48+4*i+e}, v{48+4*i+e}, v{56+4*i+e}"); A(f"v_add_f32 v{64+4*i+e}, v{64+4*i+e}, v{72+4*i+e}")
    for e in range(8):
        A(f"v_add_f32 v{48+e}, v{48+e}, v{64+e}")
    for e in range(4):
        A(f"v_cvt_pk_bf16_f32 v{16+e}, v{48+2*e}, v{49+2*e}")
    A(f"ds_write_b64 v8, v[16:17] offset:{QL}")
    A(f"ds_write_b64 v8, v[18:19] offset:{QL+512}")
    g.flag_add(F_Q, 3, 4)
    g.stamp(5)
    if cut == 4:
        A("s_branch L_fin")
    A("v_lshlrev_b32 v8, 3, v2"); A("v_lshlrev_b32 v9, 4, v13")
    A("s_lshl_b32 s6, s70, 12"); A(f"s_add_u32 s6, s6, {ML_OFF}")
    A("s_lshl_b32 s68, s71, 7"); A("s_add_u32 s68, s68, s6")
    A(f"s_mov_b32 s78, 0x{f32bits(LOG2E * (128 ** -0.5)):08x}")
    A("v_and_b32 v12, 31, v2"); A("v_lshlrev_b32 v11, 2, v12"); A("v_lshlrev_b32 v12, 7, v12")
    A("s_lshr_b32 s69, s71, 3"); A("s_lshl_b32 s69, s69, 3"); A("s_add_u32 s6, s6, s69")
    g.flag_wait(F_ML, 4, 3, 10)
    A(f"ds_read_b128 v[16:19], v9 offset:{MX}")
    A(f"ds_read_b128 v[20:23], v9 offset:{LL}")
    A("s_waitcnt lgkmcnt(0)")
    A("v_max3_f32 v24, v16, v17, v18"); A("v_max_f32 v24, v24, v19"); A("v_mul_f32 v24, s78, v24")
    A("v_add_f32 v25, v20, v21"); A("v_add_f32 v26, v22, v23"); A("v_add_f32 v25, v25, v26")
    A("v_min_u32 v24, -2, v24"); A("v_min_u32 v25, -2, v25")
    A("s_lshl_b32 s69, s70, 10"); A("s_lshl_b32 s7, s71, 3"); A("s_add_u32 s69, s69, s7"); A(f"s_add_u32 s69, s69, {MLD_OFF}")
    A("v_lshlrev_b32 v10, 8, v2")
    A("s_mov_b64 exec, 15")
    A("buffer_store_dwordx2 v[24:25], v10, s[52:55], s69 offen")
    A("buffer_store_dwordx2 v[24:25], v8, s[52:55], s68 offen sc1")
    A("s_mov_b64 exec, -1")
    g.stamp(6)
    if stamps:
        A("s_waitcnt vmcnt(0)")
        g.stamp(9)
    A("s_branch L_fin")
    lab("L_X")
    if cut in (2, 3, 4):
        A("s_branch L_fin")
    down_ids(6, 7, "L_fin")
    NSUB = 2 if dshift else 1
    A("v_lshl_add_u32 v12, v13, 5, v12")
    A("v_lshl_add_u32 v10, v8, 10, v9")
    A("s_lshl_b32 s100, s6, 16"); A("s_lshl_b32 s69, s7, 7"); A("s_add_u32 s100, s100, s69")
    A("v_mov_b32 v11, v7")
    A("s_lshl_b32 s76, s6, 11"); A(f"s_add_u32 s76, s76, {GP_OFF}")
    A("v_lshlrev_b32 v15, 10, v14"); A("v_lshl_add_u32 v15, v6, 5, v15")
    A("s_lshl_b32 s78, s6, 13"); A("s_add_u32 s78, s78, s69"); A(f"s_add_u32 s78, s78, {FP_OFF}")
    for p in range(8):
        A(f"s_add_u32 s{16+p}, s76, {p*28*2048}")
    if int(xtrig) == 0: g.flag_wait(F_K, 4, 3, 9)
    elif int(xtrig) == 1: g.flag_wait(F_Q, 1, 3, 9)
    else: g.flag_wait(F_K2, 4, 3, 9)
    g.flag_wait(F_GD, 2, 3, 9)
    A(f"s_mov_b32 s68, {WDT}"); A(f"s_mov_b32 s69, {WDT2}"); A("s_add_u32 s101, s100, 128")
    for i in range(8):
        A("s_mov_b32 m0, s68")
        A("s_add_u32 s68, s68, 1024")
        A(f"buffer_load_dwordx4 v10, s[48:51], s100 offen {g.ntw} lds")
        A("s_add_u32 s100, s100, 8192")
        if dshift:
            A("s_mov_b32 m0, s69")
            A("s_add_u32 s69, s69, 1024")
            A(f"buffer_load_dwordx4 v10, s[48:51], s101 offen {g.ntw} lds")
            A("s_add_u32 s101, s101, 8192")
    lds_ = []
    for p in range(8):
        lds_.append(f"buffer_load_dwordx4 v[{16+8*p}:{19+8*p}], v11, s[52:55], s{16+p} offen sc1")
        lds_.append(f"buffer_load_dwordx4 v[{20+8*p}:{23+8*p}], v11, s[52:55], s{16+p} offen offset:1024 sc1")
    tagpoll(lds_, [16+4*k for k in range(16)], 8, qsleep, vaddr=11)
    g.stamp(5)
    if stamps and not only:
        A("s_waitcnt lgkmcnt(0)")
        A("s_sub_u32 s88, 0x3ffff, s15"); A("s_mul_i32 s88, s88, 10"); A("s_add_u32 s88, s88, s80"); A("s_mov_b32 s89, s81")
    WD = 128
    for p in range(8):
        unpack(80 + 8*p, [16+8*p, 18+8*p, 20+8*p, 22+8*p])
    for mat in range(2):
        b0 = 80 + mat*32
        for e in range(8):
            A(f"v_add_f32 v{b0+e}, v{b0+e}, v{b0+8+e}"); A(f"v_add_f32 v{b0+16+e}, v{b0+16+e}, v{b0+24+e}")
        for e in range(8):
            A(f"v_add_f32 v{b0+e}, v{b0+e}, v{b0+16+e}")
    rbf(list(range(80, 88)) + list(range(112, 120)))
    silu(list(range(80, 88)), 88)
    rbf(list(range(80, 88)))
    for e in range(8):
        A(f"v_mul_f32 v{80+e}, v{80+e}, v{112+e}")
    for e in range(4):
        A(f"v_cvt_pk_bf16_f32 v{16+e}, v{80+2*e}, v{81+2*e}")
    g.flag_wait(F_Q, 1, 3, 9)
    for sub in range(NSUB):
        base = (WDT, WDT2)[sub]
        WD = (128, 80)[sub]
        for t in range(2):
            for nt in range(4):
                r = WD + (t*4 + nt)*4
                off = base + t*4096 + nt*8
                A(f"ds_read_b64_tr_b16 v[{r}:{r+1}], v12 offset:{off}")
                A(f"ds_read_b64_tr_b16 v[{r+2}:{r+3}], v12 offset:{off+512}")
    A("s_waitcnt lgkmcnt(0)")
    for sub in range(NSUB):
        WD = (128, 80)[sub]
        for t in range(2):
            for nt in range(4):
                r = WD + (t*4 + nt)*4
                d = 32 + t*16 + nt*4
                A(f"v_mfma_f32_16x16x32_bf16 v[{d}:{d+3}], v[{r}:{r+3}], v[16:19], 0")
        nop(8)
        for e in range(16):
            A(f"v_add_f32_dpp v{32+e}, v{48+e}, v{32+e} row_ror:8 row_mask:0xf bank_mask:0xf")
        o = 64 + 8*sub
        for e in range(8):
            A(f"v_cvt_pk_bf16_f32 v{o+e}, v{32+2*e}, v{33+2*e}")
        for e in range(8):
            A(f"v_min_u32 v{o+e}, -2, v{o+e}")
        exec_mask(0x00ff00ff)
        A(f"buffer_store_dwordx4 v[{o}:{o+3}], v15, s[52:55], s78 offen offset:{128*sub} sc1")
        A(f"buffer_store_dwordx4 v[{o+4}:{o+7}], v15, s[52:55], s78 offen offset:{128*sub+16} sc1")
        A("s_mov_b64 exec, -1")
    g.stamp(6)
    lab("L_fin")
    g.stamp_flush()
    lab("L_end")
    A("s_endpgm")
    tail = ['.section .rodata,"a"', ".p2align 6", f".amdhsa_kernel {KN}",
            "  .amdhsa_next_free_vgpr 168", "  .amdhsa_next_free_sgpr 102", "  .amdhsa_accum_offset 168",
            "  .amdhsa_group_segment_fixed_size 0", "  .amdhsa_kernarg_size 96", "  .amdhsa_user_sgpr_count 2",
            "  .amdhsa_user_sgpr_kernarg_segment_ptr 1", "  .amdhsa_system_sgpr_workgroup_id_x 1",
            "  .amdhsa_float_denorm_mode_32 3",
            ".end_amdhsa_kernel"]
    return "\n".join(hdr + g.L + tail) + "\n"

if __name__ == "__main__":
    out = sys.argv[1] if len(sys.argv) > 1 else "recurrent_scan__sliding_block_cached__swiglu_ffn__decode.s"
    stamps = "--stamps" in sys.argv
    kw = {}
    for a in sys.argv[2:]:
        if "=" in a:
            k, v = a.split("=", 1); kw[k] = v
    open(out, "w").write(build(stamps=stamps, **kw))
```

```python
import sys, struct
from gen import G, f32bits, KN

QP_OFF = 0x00000
GP_OFF = 0x80000
O_OFF = 0xF0000
ML_OFF = 0x1C0000
SP_OFF = 0x132000
FP_OFF = 0x172000
FL_OFF = 0x1B0000
EP_OFF = 0x1B8000
TAGMUL = 0x9E3779B1
MLD_OFF = 0x3E0000
DUP = 0x200000
STAMP_OFF = 0x1000000
F_XN, F_Q, F_W, F_MX, F_ML, F_K, F_V0, F_V1, F_PUB, F_K2, F_WO, F_WT, F_WD, F_EP = 0, 4, 8, 12, 16, 20, 24, 28, 32, 36, 40, 44, 48, 60
F_TOK = F_V1
F_GD = 52
WDT2 = 30720 + 20480
WT = 2432
MX = 64; LL = 128; GL = 192
XN = 256; XNP = 272
QL = 2560
PL = 3584; PLP = 528
WOT = 6144
WDT = 22528
W1T = 30720
RED = W1T
VT = 63488
LDS_BYTES = 129024
LOG2E = 1.4426950408889634

def build(stamps=False, ntkv="nt", ntw="nt", thr=8, vthr=48, kdelay=0, vdelay=1, qsleep=2, cut=0, sample=0, dyn=1, vthr2=40, noclr=0, nost=0, kq=13, kv=16, wolate=0, dbgspan=0, mlchunk=6, xtrig=0, osleep=0, mlsleep=2, only='', bmask=7, qdual=0, dlate=0, tailst=0, olate=1, mlrep=1, dshift=0, spx4=1, vpre=0, touch=0, kearly=0, fmap=1, fchunk=6, fsl=4, fmode=2, wopos=64, wread=7, ssl=0, tchunk=0, t2chunk=3):
    wp = int(wopos); wread = int(wread)
    dshift = int(dshift)
    tailst = int(tailst)
    kq = int(kq); kv = int(kv); wolate = int(wolate)
    g = G(stamps, ntkv, ntw, thr)
    g.nwaves = 9
    g.only = [int(c) for c in only] if only else None
    vthr = int(vthr); kdelay = int(kdelay); vdelay = int(vdelay); qsleep = int(qsleep); cut = int(cut)
    A = g.A; lab = g.lab; nop = g.nop
    hdr = ["; Fused decode block: LN -> (GQA attention over the last 1024 cached keys -> wo) * silu(SwiGLU FFN) + x",
           "; kernarg: x, k_cache, v_cache, wq, wo, B_x(unused), w_gate, w_up, w_down, out, debug, ws (8-byte pointers)",
           "; One persistent launch, 256 workgroups x 9 waves (generated by gen/gen22.py (gen20 lineage)):",
           ";   waves 0-3 attention + wo stage, 4/5 q / gate-up split-K tiles (5: final stage), 6 clears + q gather,",
           ";   7 down projection, 8 V / wo LDS-DMA loader.  Hand-offs go through ws: launch-tagged granules",
           ";   (tag = epoch word + 1) or sentinel words cleared by their producer and confirmed by tagged tokens.",
           f"; @launch grid=(256,1,1) block=(576,1,1) lds={LDS_BYTES}",
           '.amdgcn_target "amdgcn-amd-amdhsa--gfx950"', ".text", f".globl {KN}", ".p2align 8",
           f".type {KN},@function", f"{KN}:"]
    def rbf(regs):
        for r in regs: A(f"v_cvt_pk_bf16_f32 v{r}, v{r}, v{r}")
        for r in regs: A(f"v_and_b32 v{r}, 0xffff0000, v{r}")
    def unpack(dst, srcs):
        for e, sr in enumerate(srcs):
            A(f"v_lshlrev_b32 v{dst+2*e}, 16, v{sr}")
            A(f"v_and_b32 v{dst+2*e+1}, 0xffff0000, v{sr}")
    def silu(regs, tmp):
        A(f"s_mov_b32 s68, 0x{f32bits(-LOG2E):08x}")
        for i, r in enumerate(regs): A(f"v_mul_f32 v{tmp+i}, s68, v{r}")
        for i, r in enumerate(regs): A(f"v_exp_f32 v{tmp+i}, v{tmp+i}")
        nop(1)
        for i, r in enumerate(regs): A(f"v_add_f32 v{tmp+i}, 1.0, v{tmp+i}")
        for i, r in enumerate(regs): A(f"v_rcp_f32 v{tmp+i}, v{tmp+i}")
        nop(1)
        for i, r in enumerate(regs): A(f"v_mul_f32 v{r}, v{r}, v{tmp+i}")
    def exec_mask(m):
        A(f"s_mov_b32 exec_lo, 0x{m:08x}"); A(f"s_mov_b32 exec_hi, 0x{m:08x}")
    def tagpoll(loads, quads, vt, sleep, vaddr=None):
        l = g.newlab("TP"); d = g.newlab("TD")
        A("s_mov_b32 s15, 0x3ffff")
        if vaddr is not None and int(qdual):
            A(f"v_add_u32 v{vaddr}, 0x{DUP:x}, v{vaddr}")
        lab(l)
        for s_ in loads: A(s_)
        if vaddr is not None and int(qdual):
            A("s_and_b32 s14, s15, 3"); A("s_cmp_lt_u32 s14, 2")
            A(f"s_cselect_b32 s14, 0x{DUP:x}, 0")
            A(f"v_xor_b32 v{vaddr}, s14, v{vaddr}")
        A("s_waitcnt vmcnt(0)")
        first = True
        for q in quads:
            if first:
                A(f"v_xor_b32 v{vt}, s4, v{q+1}"); first = False
            else:
                A(f"v_xor_b32 v{vt+1}, s4, v{q+1}"); A(f"v_or_b32 v{vt}, v{vt}, v{vt+1}")
            A(f"v_xor_b32 v{vt+1}, s5, v{q+3}"); A(f"v_or_b32 v{vt}, v{vt}, v{vt+1}")
        A(f"v_cmp_ne_u32 vcc, 0, v{vt}")
        A("s_and_b64 exec, exec, vcc"); A(f"s_cbranch_scc0 {d}")
        if sleep: A(f"s_sleep {sleep}")
        A("s_sub_u32 s15, s15, 1"); A("s_cmp_lg_u32 s15, 0"); A(f"s_cbranch_scc1 {l}")
        lab(d)
        A("s_mov_b64 exec, -1")
    def down_ids(skb, scg, none):
        if dshift:
            A("s_cmp_ge_u32 s70, 4"); A(f"s_cbranch_scc1 {none}")
            A("s_cmp_ge_u32 s71, 28"); A(f"s_cbranch_scc1 {none}")
            A(f"s_mul_i32 s{scg}, s70, 28"); A(f"s_add_u32 s{scg}, s{scg}, s71")
            A(f"s_lshr_b32 s{skb}, s{scg}, 2"); A(f"s_and_b32 s{scg}, s{scg}, 3"); A(f"s_lshl_b32 s{scg}, s{scg}, 1")
        else:
            A("s_cmp_eq_u32 s70, 7"); A(f"s_cbranch_scc1 {none}")
            A(f"s_mov_b32 s{skb}, s74"); A(f"s_mov_b32 s{scg}, s75")
    def tokcheck(va, sb, sw1):
        l = g.newlab("TK"); d = g.newlab("TKD")
        A("s_mov_b32 s15, 0x40000")
        lab(l)
        A(f"buffer_load_dwordx2 v[20:21], v{va}, s[52:55], s{sb} offen sc1")
        A("s_waitcnt vmcnt(0)")
        A("v_xor_b32 v22, s4, v20"); A(f"v_xor_b32 v23, s{sw1}, v21")
        A("v_and_b32 v24, -16, v23"); A("v_or_b32 v24, v24, v22")
        A("v_cmp_ne_u32 vcc, 0, v24")
        A("s_and_b64 exec, exec, vcc"); A(f"s_cbranch_scc0 {d}")
        A("s_sleep 8")
        A("s_sub_u32 s15, s15, 1"); A("s_cmp_lg_u32 s15, 0"); A(f"s_cbranch_scc1 {l}")
        lab(d)
        A("s_mov_b64 exec, -1")
    A("s_cmp_ge_u32 s2, 256"); A("s_cbranch_scc1 L_end")
    A("s_load_dwordx16 s[4:19], s[0:1], 0")
    A("s_load_dwordx8 s[20:27], s[0:1], 64")
    g.stamp(0)
    if int(dbgspan): A("s_memrealtime s[98:99]")
    A("v_lshrrev_b32 v1, 6, v0")
    A("v_and_b32 v2, 63, v0")
    A("v_readfirstlane_b32 s3, v1")
    A("v_mov_b32 v3, 0"); A("v_mov_b32 v4, 1")
    A("v_and_b32 v5, 15, v2"); A("v_lshrrev_b32 v6, 4, v2")
    for d, n in ((28, 67108864), (32, 67108864), (44, 4194304), (48, 1835008), (52, 268435456), (56, 8192), (60, 8192)):
        A(f"s_mov_b32 s{d+2}, {n}"); A(f"s_mov_b32 s{d+3}, 0x00020000")
    A("s_mov_b32 s39, 0x00020000")
    A("s_and_b32 s70, s2, 7")
    A("s_lshr_b32 s71, s2, 3")
    A("s_lshr_b32 s72, s71, 2")
    A("s_and_b32 s73, s71, 3")
    A("s_lshl_b32 s74, s70, 2"); A("s_lshr_b32 s68, s71, 3"); A("s_add_u32 s74, s74, s68")
    A("s_and_b32 s75, s71, 7")
    A("s_lshl_b32 s64, s72, 3"); A("s_add_u32 s64, s64, s70"); A("s_lshl_b32 s64, s64, 20")
    A("s_lshl_b32 s68, s73, 16"); A("s_add_u32 s64, s64, s68"); A(f"s_add_u32 s64, s64, {3072*256}")
    A("s_cmp_ge_u32 s3, 4"); A("s_cbranch_scc1 L_H")

    KR = 16; QF = 80; SR = 96; PP = 112; ACC = 120
    PBF = 16
    VF = 48
    A("s_lshl_b32 s68, s3, 14"); A("s_add_u32 s76, s64, s68")
    for i in range(1, 4):
        A(f"s_add_u32 s{76+i}, s76, {i*4096}")
    A("v_lshlrev_b32 v7, 8, v5"); A("v_lshl_add_u32 v7, v6, 4, v7")
    A("s_waitcnt lgkmcnt(0)")
    for d, b in ((28, 6), (52, 26), (56, 4), (60, 22)):
        A(f"s_mov_b32 s{d}, s{b}"); A(f"s_mov_b32 s{d+1}, s{b+1}")
    if not int(kearly): A("s_barrier")
    if kdelay:
        g.flag_wait(F_W, 2, 3, 10)
    n = 0
    for T in range(4):
        for t in range(4):
            r = KR + (T*4 + t)*4
            if int(kearly) and n == int(kearly): A("s_barrier")
            if g.thr and n >= g.thr: A(f"s_waitcnt vmcnt({g.thr-1})")
            A(f"buffer_load_dwordx4 v[{r}:{r+3}], v7, s[28:31], s{76+T} offen offset:{t*64} {g.ntkv}"); n += 1
            if n == kv: g.flag_add(F_K2, 3, 4)
            if n == kq: g.flag_add(F_K, 3, 4)
    if not tailst: g.stamp(1)
    if cut:
        A("s_waitcnt vmcnt(0)"); g.stamp(2); A("s_branch L_fin")
    A(f"s_mov_b32 s78, 0x{f32bits(LOG2E * (128 ** -0.5)):08x}")
    A("v_and_b32 v11, 3, v2")
    A("v_lshlrev_b32 v12, 8, v11"); A("v_lshl_add_u32 v12, v6, 4, v12")
    A("v_lshlrev_b32 v13, 4, v11")
    A("s_lshl_b32 s68, s3, 2"); A("v_add_u32 v14, s68, v13")
    A(f"v_mul_u32_u24 v8, {PLP}, v11"); A("v_lshl_add_u32 v9, v6, 4, v8")
    A("v_lshl_add_u32 v8, v6, 3, v8"); A("s_lshl_b32 s68, s3, 7"); A("v_add_u32 v8, s68, v8")
    A("v_lshrrev_b32 v124, 2, v5")
    A("v_and_b32 v125, 1, v6"); A("v_lshl_add_u32 v125, v125, 2, v124"); A("v_lshlrev_b32 v125, 1, v125")
    A("v_lshrrev_b32 v126, 1, v11"); A("s_lshl_b32 s68, s3, 2"); A("v_add_u32 v126, s68, v126"); A("v_xor_b32 v126, v126, v125")
    A("v_lshlrev_b32 v126, 4, v126"); A("v_and_b32 v125, 1, v2"); A("v_lshl_add_u32 v126, v125, 3, v126")
    A("v_lshl_add_u32 v125, v6, 3, v124"); A("v_lshl_add_u32 v126, v125, 8, v126")
    A("v_xor_b32 v127, 32, v126")
    A(f"v_add_u32 v126, {VT}, v126"); A(f"v_add_u32 v127, {VT}, v127")
    A("v_lshlrev_b32 v125, 6, v11"); A("v_lshl_add_u32 v125, v6, 4, v125")
    A("s_lshl_b32 s79, s70, 2"); A("s_add_u32 s79, s79, s73"); A("s_lshl_b32 s79, s79, 3"); A("s_add_u32 s79, s79, s72")
    A("s_lshl_b32 s79, s79, 2"); A("s_add_u32 s79, s79, s3"); A("s_lshl_b32 s79, s79, 8"); A(f"s_add_u32 s79, s79, {O_OFF}")
    g.flag_wait(F_Q, 1, 3, 10)
    if not tailst: g.stamp(2)
    for t in range(4):
        A(f"ds_read_b128 v[{QF+4*t}:{QF+4*t+3}], v12 offset:{QL + t*64}")
    A("s_waitcnt lgkmcnt(0)")
    for T in range(4):
        A(f"s_waitcnt vmcnt({12 - 4*T})")
        for t in range(4):
            r = KR + (T*4 + t)*4
            cc = "0" if t == 0 else f"v[{SR+4*T}:{SR+4*T+3}]"
            A(f"v_mfma_f32_16x16x32_bf16 v[{SR+4*T}:{SR+4*T+3}], v[{r}:{r+3}], v[{QF+4*t}:{QF+4*t+3}], {cc}")
    nop(4)
    A(f"v_max3_f32 v10, v{SR}, v{SR+1}, v{SR+2}")
    for i in range(3, 11, 2):
        A(f"v_max3_f32 v10, v10, v{SR+i}, v{SR+i+1}")
    A(f"v_max_f32 v10, v10, v{SR+11}")
    A(f"v_max3_f32 v10, v10, v{SR+12}, v{SR+13}")
    A(f"v_max3_f32 v10, v10, v{SR+14}, v{SR+15}")
    g.xrow("v_max_f32", [10], [15])
    A("s_mov_b64 exec, 15")
    A(f"ds_write_b32 v14, v10 offset:{MX}")
    g.flag_add(F_MX, 3, 4)
    g.flag_wait(F_MX, 4, 3, 15, sleep=False)
    A(f"ds_read_b128 v[{PP}:{PP+3}], v13 offset:{MX}")
    A("s_waitcnt lgkmcnt(0)")
    A(f"v_max3_f32 v10, v{PP}, v{PP+1}, v{PP+2}"); A(f"v_max_f32 v10, v10, v{PP+3}")
    A("v_mul_f32 v10, s78, v10")
    for i in range(16):
        A(f"v_fma_f32 v{SR+i}, v{SR+i}, s78, -v10")
    for i in range(16):
        A(f"v_exp_f32 v{SR+i}, v{SR+i}")
    nop(1)
    for i in range(8):
        A(f"v_cvt_pk_bf16_f32 v{PP+i}, v{SR+2*i}, v{SR+2*i+1}")
    exec_mask(0x000F000F)
    for T in range(4):
        A(f"ds_write_b64 v8, v[{PP+2*T}:{PP+2*T+1}] offset:{PL + T*32}")
    A("s_mov_b64 exec, -1")
    A(f"v_add_f32 v10, v{SR}, v{SR+1}"); A(f"v_add_f32 v15, v{SR+2}, v{SR+3}")
    for i in range(4, 16, 2):
        A(f"v_add_f32 v10, v10, v{SR+i}"); A(f"v_add_f32 v15, v15, v{SR+i+1}")
    A("v_add_f32 v10, v10, v15")
    g.xrow("v_add_f32", [10], [15])
    A("s_mov_b64 exec, 15")
    A(f"ds_write_b32 v14, v10 offset:{LL}")
    g.flag_add(F_ML, 3, 4)
    g.flag_wait(F_ML, 4, 3, 15, sleep=False)
    for t in range(8):
        A(f"ds_read_b128 v[{PBF+4*t}:{PBF+4*t+3}], v9 offset:{PL + t*64}")
    if not tailst: g.stamp(3)
    A("s_lshl_b32 s68, s3, 4"); A("v_mov_b32 v113, s68")
    A(f"ds_read_b128 v[116:119], v113 offset:{MX}")
    A(f"ds_read_b128 v[120:123], v113 offset:{LL}")
    A("s_waitcnt lgkmcnt(0)")
    A("v_max3_f32 v114, v116, v117, v118"); A("v_max_f32 v114, v114, v119"); A("v_mul_f32 v114, s78, v114")
    A("v_add_f32 v115, v120, v121"); A("v_add_f32 v116, v122, v123"); A("v_add_f32 v115, v115, v116")
    A("v_min_u32 v114, -2, v114"); A("v_min_u32 v115, -2, v115")
    A("s_lshl_b32 s36, s70, 2"); A("s_add_u32 s36, s36, s3"); A("s_lshl_b32 s36, s36, 8"); A("s_lshl_b32 s68, s71, 3"); A("s_add_u32 s36, s36, s68")
    A(f"s_add_u32 s36, s36, {MLD_OFF}")
    A("s_lshl_b32 s37, s70, 5"); A("s_add_u32 s37, s37, s71"); A("s_lshl_b32 s37, s37, 7"); A("s_lshl_b32 s68, s3, 3"); A("s_add_u32 s37, s37, s68")
    A(f"s_add_u32 s37, s37, {ML_OFF}")
    A("v_and_b32 v100, 7, v2")
    A("v_lshl_add_u32 v101, v6, 2, v124"); A("v_bfe_u32 v109, v101, 1, 2"); A("v_lshlrev_b32 v101, 7, v101")
    A("v_lshl_add_u32 v101, v109, 5, v101"); A("v_lshl_add_u32 v101, v11, 3, v101")
    A("s_and_b32 s68, s3, 1"); A("s_lshl_b32 s69, s68, 13"); A("v_add_u32 v101, s69, v101")
    A("v_xor_b32 v109, 32, v101"); A("v_xor_b32 v110, 64, v101"); A("v_xor_b32 v111, 0x60, v101")
    A("v_lshlrev_b32 v102, 10, v5"); A("v_lshl_add_u32 v102, v6, 4, v102")
    A("s_lshl_b32 s77, s70, 15"); A("s_lshr_b32 s69, s3, 1"); A("s_lshl_b32 s69, s69, 14"); A("s_add_u32 s77, s77, s69")
    A("s_lshl_b32 s68, s68, 9"); A("s_add_u32 s77, s77, s68")
    A("s_lshr_b32 s68, s71, 3"); A("s_lshl_b32 s68, s68, 6"); A("s_add_u32 s77, s77, s68"); A(f"s_add_u32 s77, s77, {O_OFF}")
    A("v_bfe_u32 v103, v2, 3, 1"); A("s_lshl_b32 s68, s3, 1"); A("v_add_u32 v104, s68, v103"); A("v_mul_u32_u24 v104, 2176, v104")
    A("v_mul_u32_u24 v105, 272, v100"); A("v_add_u32 v104, v104, v105"); A("v_lshl_add_u32 v104, v6, 4, v104")
    A("s_and_b32 s69, s3, 2"); A("v_add_u32 v103, s69, v103"); A("v_lshl_add_u32 v103, v103, 4, v5"); A("v_lshlrev_b32 v103, 2, v103")
    A("v_lshl_add_u32 v108, v100, 2, v6"); A("v_lshlrev_b32 v108, 7, v108")
    A("s_lshl_b32 s65, s70, 12"); A("s_lshr_b32 s69, s71, 3"); A("s_lshl_b32 s69, s69, 3"); A("s_add_u32 s65, s65, s69"); A(f"s_add_u32 s65, s65, {ML_OFF}")
    A("v_lshrrev_b32 v105, 5, v2"); A("v_add_u32 v106, s68, v105"); A("v_mul_u32_u24 v106, 272, v106")
    A("v_and_b32 v107, 31, v2"); A("v_lshl_add_u32 v106, v107, 3, v106")
    A("v_lshlrev_b32 v105, 10, v105"); A("v_lshl_add_u32 v105, v107, 2, v105")
    A("s_lshl_b32 s78, s74, 3"); A("s_add_u32 s78, s78, s68"); A("s_lshl_b32 s78, s78, 10")
    A("s_lshl_b32 s69, s75, 7"); A("s_add_u32 s78, s78, s69"); A(f"s_add_u32 s78, s78, {SP_OFF}")
    A(f"s_add_u32 s66, s79, {DUP}"); A(f"s_add_u32 s67, s77, {DUP}"); A("s_lshl_b32 s40, s74, 8"); A(f"s_add_u32 s40, s40, {MLD_OFF}"); A("v_lshrrev_b32 v112, 4, v108")
    A("s_mov_b32 s76, 0")
    A("s_waitcnt lgkmcnt(0)")
    def pv_mfma(t):
        vf = 128 + (t & 3)*8
        for nt in range(2):
            acc = 64 + 4*nt
            cc = "0" if t == 0 else f"v[{acc}:{acc+3}]"
            A(f"v_mfma_f32_16x16x32_bf16 v[{acc}:{acc+3}], v[{vf+4*nt}:{vf+4*nt+3}], v[{PBF+4*t}:{PBF+4*t+3}], {cc}")
    def bf(nt, t):
        i = nt*2 + t
        return 48 + 4*i if i < 4 else 80 + 4*(i - 4)
    def wo_frags():
        for nt in range(4):
            for t2 in range(2):
                r = bf(nt, t2)
                off = WOT + t2*4096
                va = (101, 109, 110, 111)[nt]
                A(f"ds_read_b64_tr_b16 v[{r}:{r+1}], v{va} offset:{off}")
                A(f"ds_read_b64_tr_b16 v[{r+2}:{r+3}], v{va} offset:{off + 2048}")
    for t in range(8):
        lw = g.newlab("VW"); lr = g.newlab("VR")
        if wp < 64 and t == wread:
            g.flag_wait(F_WO, 1, 3, 10, sleep=False)
            wo_frags()
            A("s_waitcnt lgkmcnt(0)")
        A(f"s_cmp_gt_u32 s76, {t}"); A(f"s_cbranch_scc1 {lr}")
        A("s_mov_b32 s15, 0x400000")
        lab(lw)
        A(f"ds_read_b64 v[{SR}:{SR+1}], v3 offset:{F_V0}")
        A("s_waitcnt lgkmcnt(0)")
        A(f"v_add_u32 v{SR+1}, 7, v{SR+1}")
        A(f"v_min_u32 v{SR}, v{SR}, v{SR+1}")
        A(f"v_readfirstlane_b32 s41, v{SR+1}")
        A("s_sub_u32 s15, s15, 1")
        A(f"v_readfirstlane_b32 s76, v{SR}")
        A("s_cmp_eq_u32 s15, 0"); A(f"s_cbranch_scc1 {lr}")
        A(f"s_cmp_gt_u32 s76, {t}"); A(f"s_cbranch_scc0 {lw}")
        lab(lr)
        vf = 128 + (t & 3)*8
        for nt in range(2):
            A(f"ds_read_b64_tr_b16 v[{vf+4*nt}:{vf+4*nt+1}], v{126+nt} offset:{t*8192}")
            A(f"ds_read_b64_tr_b16 v[{vf+4*nt+2}:{vf+4*nt+3}], v{126+nt} offset:{t*8192 + 1024}")
        if t >= 2:
            A("s_waitcnt lgkmcnt(8)")
            pv_mfma(t - 2)
    A("s_cmp_eq_u32 s41, 8")
    A("s_cselect_b32 s67, s67, s77"); A("s_cselect_b32 s40, s40, s65"); A("s_cselect_b64 s[42:43], -1, 0")
    A("v_cndmask_b32 v112, v108, v112, s[42:43]")
    A("s_waitcnt lgkmcnt(4)")
    pv_mfma(6)
    A("s_waitcnt lgkmcnt(0)")
    pv_mfma(7)
    g.stamp(4)
    exec_mask(0x000F000F)
    nop(5)
    A("v_cvt_pk_bf16_f32 v72, v64, v65"); A("v_cvt_pk_bf16_f32 v73, v66, v67")
    A("v_cvt_pk_bf16_f32 v74, v68, v69"); A("v_cvt_pk_bf16_f32 v75, v70, v71")
    for e in range(4): A(f"v_min_u32 v{72+e}, -2, v{72+e}")
    A("s_cmp_eq_u32 s41, 8"); A("s_cbranch_scc0 L_oglob")
    A("buffer_store_dwordx4 v[72:75], v125, s[52:55], s66 offen")
    if int(mlrep):
        A("s_mov_b64 exec, 1")
        A("buffer_store_dwordx2 v[114:115], v3, s[52:55], s36 offen")
    A("s_branch L_ostored")
    lab("L_oglob")
    A("buffer_store_dwordx4 v[72:75], v125, s[52:55], s79 offen sc1")
    lab("L_ostored")
    A("s_mov_b64 exec, -1")
    g.stamp(5)
    AF = 64
    def oloads(so):
        return [f"buffer_load_dwordx4 v[{AF}:{AF+3}], v102, s[52:55], s{so} offen sc1",
                f"buffer_load_dwordx4 v[{AF+4}:{AF+7}], v102, s[52:55], s{so} offen offset:256 sc1"]
    def mloads(sm):
        return [f"buffer_load_dwordx2 v[76:77], v{112 if sm == 40 else 108}, s[52:55], s{sm} offen sc1"]
    def ensure_store():
        le = g.newlab("ES")
        A(f"s_cmp_lg_u32 s41, 0"); A(f"s_cbranch_scc1 {le}")
        A("s_mov_b32 s41, 1")
        A("s_mov_b64 s[42:43], exec")
        exec_mask(0x000F000F)
        A("buffer_store_dwordx4 v[72:75], v125, s[52:55], s79 offen sc1")
        A("s_mov_b64 exec, s[42:43]")
        lab(le)
    def dualpoll(la, lb_, regs, first_wait):
        l0 = g.newlab("OP"); l1 = g.newlab("OC"); ld = g.newlab("OD"); lb = g.newlab("OB"); l2 = g.newlab("OW")
        A("s_mov_b32 s15, 0x40000")
        A(f"s_waitcnt vmcnt({first_wait})")
        A(f"s_branch {l1}")
        lab(l0)
        A(f"s_and_b32 s14, s15, {int(bmask)}"); A("s_cmp_eq_u32 s14, 0"); A(f"s_cbranch_scc1 {lb}")
        for l_ in la: A(l_)
        A(f"s_branch {l2}")
        lab(lb)
        ensure_store()
        for l_ in lb_: A(l_)
        lab(l2)
        A("s_waitcnt vmcnt(0)")
        lab(l1)
        rs = list(regs)
        if len(rs) == 2:
            A(f"v_max_u32 v10, v{rs[0]}, v{rs[1]}")
        else:
            A(f"v_max3_u32 v10, v{rs[0]}, v{rs[1]}, v{rs[2]}"); A(f"v_max3_u32 v15, v{rs[3]}, v{rs[4]}, v{rs[5]}")
            A(f"v_max3_u32 v10, v10, v{rs[6]}, v{rs[7]}"); A("v_max_u32 v10, v10, v15")
        A("v_cmp_eq_u32 vcc, -1, v10")
        A("s_and_b64 exec, exec, vcc"); A(f"s_cbranch_scc0 {ld}")
        if int(osleep): A(f"s_sleep {int(osleep)}")
        A("s_sub_u32 s15, s15, 1"); A("s_cmp_lg_u32 s15, 0"); A(f"s_cbranch_scc1 {l0}")
        lab(ld)
        A("s_mov_b64 exec, -1")
    if wp == 64:
        g.poll(mloads(40), [76, 77], 10, sleep=int(osleep))
        for l_ in oloads(67): A(l_)
    else:
        for l_ in mloads(40) + oloads(67): A(l_)
        g.poll(mloads(40), [76, 77], 10, preissued=True)
    if tailst: g.stamp(1)
    A("v_mov_b32 v78, v76")
    g.xrow("v_max_f32", [78], [79])
    A("v_sub_f32 v76, v76, v78")
    A("v_exp_f32 v76, v76")
    nop(1)
    A("v_mul_f32 v77, v76, v77")
    A("ds_bpermute_b32 v76, v103, v76")
    g.xrow("v_add_f32", [77], [79])
    A("v_rcp_f32 v77, v77")
    A("s_waitcnt lgkmcnt(0)")
    A("v_mul_f32 v76, v76, v77"); A("v_mov_b32 v77, v76")
    if wp == 64:
        g.flag_wait(F_WO, 1, 3, 10, sleep=False)
        wo_frags()
    if tailst: g.stamp(2)
    g.poll(oloads(67), list(range(AF, AF+8)), 10, preissued=True, sleep=int(osleep))
    A("s_waitcnt lgkmcnt(0)")
    if tailst:
        A("s_sub_u32 s86, 0x40000, s15"); A("s_add_u32 s86, s86, s80"); A("s_mov_b32 s87, s81")
    g.stamp(6)
    DW = 16
    for t in range(2):
        for nt in range(4):
            r = bf(nt, t)
            cc = "0" if t == 0 else f"v[{DW+4*nt}:{DW+4*nt+3}]"
            A(f"v_mfma_f32_16x16x32_bf16 v[{DW+4*nt}:{DW+4*nt+3}], v[{r}:{r+3}], v[{AF+4*t}:{AF+4*t+3}], {cc}")
    nop(5)
    for nt in range(4):
        A(f"v_pk_mul_f32 v[{DW+4*nt}:{DW+4*nt+1}], v[{DW+4*nt}:{DW+4*nt+1}], v[76:77]")
        A(f"v_pk_mul_f32 v[{DW+4*nt+2}:{DW+4*nt+3}], v[{DW+4*nt+2}:{DW+4*nt+3}], v[76:77]")
        A(f"ds_write_b128 v104, v[{DW+4*nt}:{DW+4*nt+3}] offset:{RED + nt*64}")
    A("s_waitcnt lgkmcnt(0)")
    A("s_barrier")
    for p in range(8):
        A(f"ds_read_b64 v[{32+2*p}:{33+2*p}], v106 offset:{RED + p*2176}")
    A("s_waitcnt lgkmcnt(4)") if (not stamps or only) else A("s_waitcnt lgkmcnt(0)")
    A("v_pk_add_f32 v[32:33], v[32:33], v[34:35]"); A("v_pk_add_f32 v[36:37], v[36:37], v[38:39]")
    A("v_pk_add_f32 v[32:33], v[32:33], v[36:37]")
    A("s_waitcnt lgkmcnt(0)")
    A("v_pk_add_f32 v[40:41], v[40:41], v[42:43]"); A("v_pk_add_f32 v[44:45], v[44:45], v[46:47]")
    A("v_pk_add_f32 v[40:41], v[40:41], v[44:45]")
    A("v_pk_add_f32 v[32:33], v[32:33], v[40:41]")
    A("v_cvt_pk_bf16_f32 v32, v32, v33")
    A("v_min_u32 v32, -2, v32")
    if int(spx4):
        nop(2)
        A("v_mov_b32_dpp v33, v32 quad_perm:[1,1,1,1] row_mask:0xf bank_mask:0xf")
        A("v_mov_b32_dpp v34, v32 quad_perm:[2,2,2,2] row_mask:0xf bank_mask:0xf")
        A("v_mov_b32_dpp v35, v32 quad_perm:[3,3,3,3] row_mask:0xf bank_mask:0xf")
        exec_mask(0x11111111)
        A("buffer_store_dwordx4 v[32:35], v105, s[52:55], s78 offen sc1")
        A("s_mov_b64 exec, -1")
    else:
        A("buffer_store_dword v32, v105, s[52:55], s78 offen sc1")
    g.stamp(7)
    A("s_branch L_fin")

    lab("L_H")
    A("s_cmp_eq_u32 s3, 8"); A("s_cbranch_scc1 L_load")
    A("s_setprio 3")
    A("v_lshlrev_b32 v7, 4, v2")
    A("s_sub_u32 s77, s3, 4")
    A("s_cmp_lg_u32 s3, 7"); A("s_cbranch_scc1 L_noinit")
    A("v_lshlrev_b32 v8, 2, v5")
    A("ds_write_b32 v8, v3")
    lab("L_noinit")
    A("v_lshrrev_b32 v8, 3, v2"); A("v_and_b32 v9, 7, v2"); A("v_lshlrev_b32 v9, 4, v9")
    A("s_lshl_b32 s68, s77, 11")
    A(f"s_mov_b32 s69, 0x{EP_OFF:x}")
    A("s_waitcnt lgkmcnt(0)")
    A("s_load_dword s79, s[26:27], s69")
    for d, b in ((32, 8), (44, 12), (48, 20), (52, 26), (56, 4)):
        A(f"s_mov_b32 s{d}, s{b}"); A(f"s_mov_b32 s{d+1}, s{b+1}")
    XR = 16
    for r in range(2):
        A(f"buffer_load_dwordx4 v[{XR+4*r}:{XR+4*r+3}], v7, s[56:59], s68 offen offset:{r*1024}")
    A("s_cmp_ge_u32 s3, 6"); A("s_cbranch_scc1 L_SX0")
    A("s_cmp_eq_u32 s3, 5"); A("s_cbranch_scc1 L_G1")
    A("s_mov_b32 s36, s10"); A("s_mov_b32 s37, s11"); A("s_mov_b32 s38, 4194304")
    A("s_lshl_b32 s76, s70, 3"); A("s_add_u32 s76, s76, s72"); A("s_lshl_b32 s76, s76, 7")
    A("s_movk_i32 s69, 8192")
    A("s_lshl_b32 s78, s73, 17"); A("s_lshl_b32 s68, s76, 4"); A("s_add_u32 s78, s78, s68")
    A(f"s_add_u32 s78, s78, {QP_OFF}")
    A("s_branch L_GJ")
    lab("L_G1")
    A("s_cmp_eq_u32 s70, 7"); A("s_cbranch_scc1 L_LN0")
    A("s_bitcmp1_b32 s71, 2")
    A("s_cselect_b32 s36, s18, s16"); A("s_cselect_b32 s37, s19, s17"); A("s_mov_b32 s38, 1835008")
    A("s_lshl_b32 s76, s74, 7")
    A("s_movk_i32 s69, 3584")
    A("s_and_b32 s78, s71, 7"); A(f"s_mul_i32 s78, s78, {28*2048}"); A("s_lshl_b32 s68, s76, 4"); A("s_add_u32 s78, s78, s68")
    A(f"s_add_u32 s78, s78, {GP_OFF}")
    lab("L_GJ")
    A("v_mul_lo_u32 v10, v8, s69"); A("v_add_u32 v10, v10, v9")
    A("s_lshl_b32 s68, s73, 7"); A("s_mul_i32 s68, s68, s69"); A("s_add_u32 s100, s76, s68")
    A("s_lshl_b32 s101, s69, 3")
    A("s_lshl_b32 s68, s77, 14"); A(f"s_add_u32 s68, s68, {W1T}")
    for i in range(16):
        A("s_mov_b32 m0, s68")
        A("s_add_u32 s68, s68, 1024")
        A(f"buffer_load_dwordx4 v10, s[36:39], s100 offen {g.ntw} lds")
        A("s_add_u32 s100, s100, s101")
    A("s_barrier")
    A("s_waitcnt vmcnt(16)")
    A("s_branch L_LN")
    lab("L_SX0")
    A("s_cmp_eq_u32 s3, 7"); A("s_cbranch_scc1 L_LN0")
    if int(noclr): A("s_branch L_LN0")
    for r in range(4):
        A(f"v_mov_b32 v{24+r}, -1")
    A("s_lshl_b32 s68, s70, 2"); A("s_add_u32 s68, s68, s73"); A("s_lshl_b32 s68, s68, 3"); A("s_add_u32 s68, s68, s72")
    A("s_lshl_b32 s68, s68, 10"); A(f"s_add_u32 s68, s68, {O_OFF}")
    A("buffer_store_dwordx4 v[24:27], v7, s[52:55], s68 offen sc1")
    A(f"s_add_u32 s68, s68, {DUP}")
    A("buffer_store_dwordx4 v[24:27], v7, s[52:55], s68 offen sc1")
    A("v_lshl_add_u32 v10, v8, 10, v9")
    A("s_lshl_b32 s68, s74, 13"); A("s_lshl_b32 s69, s75, 7"); A("s_add_u32 s68, s68, s69")
    A(f"s_add_u32 s69, s68, {SP_OFF}")
    A("buffer_store_dwordx4 v[24:27], v10, s[52:55], s69 offen sc1")
    down_ids(68, 69, "L_nofp")
    A("s_lshl_b32 s68, s68, 13"); A("s_lshl_b32 s69, s69, 7"); A("s_add_u32 s69, s69, s68"); A(f"s_add_u32 s69, s69, {FP_OFF}")
    A("buffer_store_dwordx4 v[24:27], v10, s[52:55], s69 offen sc1")
    if dshift: A("buffer_store_dwordx4 v[24:27], v10, s[52:55], s69 offen offset:128 sc1")
    lab("L_nofp")
    A("s_lshl_b32 s68, s70, 5"); A("s_add_u32 s68, s68, s71"); A("s_lshl_b32 s68, s68, 7"); A(f"s_add_u32 s68, s68, {ML_OFF}")
    A("s_mov_b64 exec, 3")
    A("buffer_store_dwordx4 v[24:27], v7, s[52:55], s68 offen sc1")
    A("s_mov_b64 exec, 15")
    A("v_lshlrev_b32 v10, 8, v2")
    A("s_lshl_b32 s68, s70, 10"); A("s_lshl_b32 s69, s71, 3"); A("s_add_u32 s68, s68, s69"); A(f"s_add_u32 s68, s68, {MLD_OFF}")
    A("buffer_store_dwordx2 v[24:25], v10, s[52:55], s68 offen sc1")
    A("s_mov_b64 exec, -1")
    A("s_barrier")
    A("s_waitcnt vmcnt(5)")
    A("s_cmp_eq_u32 s70, 7"); A("s_cbranch_scc1 L_LN")
    A("s_nop 0")
    A("s_branch L_LN") if False else None
    A("s_waitcnt vmcnt(4)") if False else None
    A("s_branch L_LN")
    lab("L_LN0")
    A("s_barrier")
    A("s_waitcnt vmcnt(0)")
    lab("L_LN")
    if cut == 1:
        g.flag_add(F_W, 3, 4); A("s_branch L_fin")
    XF = 32
    for r in range(2):
        unpack(XF + 8*r, [XR + 4*r + e for e in range(4)])
    SM = 64
    for r in range(2):
        A(f"v_add_f32 v{SM+r}, v{XF+8*r}, v{XF+8*r+1}"); A(f"v_add_f32 v{SM+2+r}, v{XF+8*r+2}, v{XF+8*r+3}")
    for e in range(4, 8, 2):
        for r in range(2):
            A(f"v_add_f32 v{SM+r}, v{SM+r}, v{XF+8*r+e}"); A(f"v_add_f32 v{SM+2+r}, v{SM+2+r}, v{XF+8*r+e+1}")
    for r in range(2):
        A(f"v_add_f32 v{SM+r}, v{SM+r}, v{SM+2+r}")
    g.allreduce64("v_add_f32", [SM, SM+1], [SM+4, SM+5])
    A(f"s_mov_b32 s68, 0x{f32bits(1.0/512):08x}")
    for r in range(2):
        A(f"v_mul_f32 v{SM+r}, s68, v{SM+r}")
    VS = 72
    for e in range(8):
        for r in range(2):
            A(f"v_sub_f32 v{80+2*(e&1)+r}, v{XF+8*r+e}, v{SM+r}")
        for r in range(2):
            t_ = 80+2*(e&1)+r
            if e == 0: A(f"v_mul_f32 v{VS+r}, v{t_}, v{t_}")
            else: A(f"v_fmac_f32 v{VS+r}, v{t_}, v{t_}")
    g.allreduce64("v_add_f32", [VS, VS+1], [VS+4, VS+5])
    for r in range(2):
        A(f"v_mul_f32 v{VS+r}, s68, v{VS+r}")
    rbf([SM, SM+1, VS, VS+1])
    for r in range(2):
        A(f"v_add_f32 v{VS+r}, 0x{f32bits(1e-5):08x}, v{VS+r}")
    rbf([VS, VS+1])
    for r in range(2):
        A(f"v_sqrt_f32 v{VS+r}, v{VS+r}")
    nop(1)
    rbf([VS, VS+1])
    for r in range(2):
        A(f"v_rcp_f32 v{VS+r}, v{VS+r}")
    for r in range(2):
        for e in range(8):
            A(f"v_sub_f32 v{XF+8*r+e}, v{XF+8*r+e}, v{SM+r}")
    for r in range(2):
        for e in range(4):
            A(f"v_cvt_pk_bf16_f32 v{XR+4*r+e}, v{XF+8*r+2*e}, v{XF+8*r+2*e+1}")
    for r in range(2):
        unpack(XF + 8*r, [XR + 4*r + e for e in range(4)])
    for r in range(2):
        for e in range(8):
            A(f"v_mul_f32 v{XF+8*r+e}, v{XF+8*r+e}, v{VS+r}")
    for r in range(2):
        for e in range(4):
            A(f"v_cvt_pk_bf16_f32 v{XR+4*r+e}, v{XF+8*r+2*e}, v{XF+8*r+2*e+1}")
    A(f"s_mul_i32 s68, s77, {2*XNP}"); A("v_lshlrev_b32 v11, 4, v5"); A("v_add_u32 v11, s68, v11")
    A("v_cmp_eq_u32 vcc, s73, v6")
    A("s_and_saveexec_b64 s[68:69], vcc")
    for r in range(2):
        A(f"ds_write_b128 v11, v[{XR+4*r}:{XR+4*r+3}] offset:{XN + r*XNP}")
    g.flag_add(F_XN, 3, 4)
    g.stamp(2)
    A("s_add_u32 s4, s79, 1"); A(f"s_mul_i32 s5, s4, 0x{TAGMUL:x}")
    A("v_lshrrev_b32 v12, 2, v5"); A("v_lshl_add_u32 v12, v6, 3, v12"); A("v_lshlrev_b32 v12, 7, v12")
    A("v_and_b32 v13, 3, v2")
    A("v_and_b32 v14, 7, v2")
    A("s_cmp_ge_u32 s3, 6"); A("s_cbranch_scc1 L_SX1")
    A("s_cmp_lg_u32 s3, 5"); A("s_cbranch_scc1 L_Ggo")
    A("s_cmp_lg_u32 s70, 7"); A("s_cbranch_scc1 L_Ggo")
    g.flag_add(F_W, 3, 4)
    g.flag_add(F_GD, 3, 4)
    A("s_branch L_G1post")
    lab("L_Ggo")
    A(f"v_mul_u32_u24 v11, {XNP}, v14"); A("v_lshl_add_u32 v11, v6, 4, v11")
    A("v_lshl_add_u32 v12, v13, 3, v12")
    A("s_lshl_b32 s68, s77, 14"); A("v_add_u32 v12, s68, v12")
    A("s_cmp_eq_u32 s3, 5"); A("s_cbranch_scc1 L_dstG")
    A("v_lshlrev_b32 v15, 8, v14"); A("v_lshl_add_u32 v15, v6, 4, v15")
    A("s_mov_b32 s8, s78"); A("s_add_u32 s9, s78, 64"); A("s_add_u32 s10, s78, 128"); A("s_add_u32 s11, s78, 192")
    A("s_branch L_dstJ")
    lab("L_dstG")
    A("v_and_b32 v15, 1, v6"); A("v_lshlrev_b32 v15, 10, v15"); A("v_lshrrev_b32 v9, 1, v6"); A("v_lshl_add_u32 v15, v9, 8, v15")
    A("v_lshl_add_u32 v15, v14, 4, v15")
    A("s_mov_b32 s8, s78"); A("s_add_u32 s9, s78, 512"); A("s_add_u32 s10, s78, 128"); A("s_add_u32 s11, s78, 640")
    lab("L_dstJ")
    for nt in range(4):
        A(f"v_mov_b32 v{113+4*nt}, s4"); A(f"v_mov_b32 v{115+4*nt}, s5")
    A(f"s_add_u32 s66, s78, {DUP}")
    g.flag_wait(F_XN, 4, 3, 10)
    XB = 16
    for t in range(4):
        A(f"ds_read_b128 v[{XB+4*t}:{XB+4*t+3}], v11 offset:{XN + t*64}")
    WB = 32
    for t in range(4):
        A(f"s_waitcnt vmcnt({12 - 4*t})")
        if t == 3:
            g.flag_add(F_W, 3, 4)
        for nt in range(4):
            r = WB + (t*4 + nt)*4
            off = W1T + t*4096 + nt*32
            A(f"ds_read_b64_tr_b16 v[{r}:{r+1}], v12 offset:{off}")
            A(f"ds_read_b64_tr_b16 v[{r+2}:{r+3}], v12 offset:{off+512}")
        A("s_waitcnt lgkmcnt(0)")
        for nt in range(4):
            r = WB + (t*4 + nt)*4
            d = 96 + nt*4
            cc = "0" if t == 0 else f"v[{d}:{d+3}]"
            A(f"v_mfma_f32_16x16x32_bf16 v[{d}:{d+3}], v[{r}:{r+3}], v[{XB+4*t}:{XB+4*t+3}], {cc}")
    g.stamp(3)
    g.flag_add(F_GD, 3, 4)
    exec_mask(0x00ff00ff)
    nop(2)
    for nt in range(4):
        A(f"v_cvt_pk_bf16_f32 v{112+4*nt}, v{96+4*nt}, v{97+4*nt}")
        A(f"v_cvt_pk_bf16_f32 v{114+4*nt}, v{98+4*nt}, v{99+4*nt}")
        if int(qdual): A(f"buffer_store_dwordx4 v[{112+4*nt}:{115+4*nt}], v15, s[52:55], s66 offen offset:{nt*512}")
        else: A(f"buffer_store_dwordx4 v[{112+4*nt}:{115+4*nt}], v15, s[52:55], s{8+nt} offen sc1")
    if int(qdual):
      for nt in range(4):
        A(f"buffer_store_dwordx4 v[{112+4*nt}:{115+4*nt}], v15, s[52:55], s78 offen offset:{nt*512} sc1")
    A("s_mov_b64 exec, -1")
    g.stamp(4)
    lab("L_Gpost")
    A("s_cmp_eq_u32 s3, 5"); A("s_cbranch_scc1 L_G1post")
    A("s_lshl_b32 s6, s70, 8"); A(f"s_add_u32 s6, s6, {FL_OFF}")
    A("s_getreg_b32 s7, hwreg(HW_REG_XCC_ID, 0, 4)")
    A("s_andn2_b32 s8, s5, 15"); A("s_or_b32 s8, s8, s7")
    A("v_and_b32 v19, 31, v2"); A("v_lshlrev_b32 v19, 3, v19")
    if int(tchunk): g.flag_wait(F_V0, int(tchunk), 3, 10)
    else: g.flag_wait(F_K2, 4, 3, 10)
    g.stamp(5)
    tokcheck(19, 6, 8)
    A("v_cmp_ne_u32 vcc, 0, v23")
    A("s_cmp_lg_u64 vcc, 0")
    A("s_cselect_b32 s8, 2, 1")
    A("v_mov_b32 v20, s8")
    A(f"ds_write_b32 v3, v20 offset:{F_TOK}")
    g.stamp(6)
    A("s_waitcnt lgkmcnt(0)")
    A("s_branch L_fin")
    lab("L_G1post")
    if cut:
        A("s_waitcnt lgkmcnt(0)"); A("s_branch L_fin")
    A("s_mov_b32 s60, s22"); A("s_mov_b32 s61, s23")
    A("s_lshl_b32 s68, s72, 10"); A("s_lshl_b32 s69, s70, 7"); A("s_add_u32 s68, s68, s69"); A("s_lshl_b32 s69, s73, 5")
    A("s_add_u32 s76, s68, s69")
    A("v_lshrrev_b32 v17, 1, v2"); A("v_and_b32 v16, 1, v2")
    A("v_lshlrev_b32 v19, 4, v16"); A("v_mov_b32 v20, 0x3f80"); A("v_lshlrev_b32 v20, v19, v20")
    A("v_bfe_u32 v19, v2, 1, 2")
    for e in range(4):
        A(f"v_cmp_eq_u32 vcc, {e}, v19")
        nop(2)
        A(f"v_cndmask_b32 v{40+e}, 0, v20, vcc")
    A("v_lshlrev_b32 v21, 4, v16"); A("v_lshl_add_u32 v21, v6, 3, v21")
    A("v_min_u32 v18, 27, v17")
    A("v_lshlrev_b32 v18, 13, v18"); A("v_lshl_add_u32 v18, v16, 4, v18")
    A("v_lshlrev_b32 v17, 13, v17"); A("v_lshl_add_u32 v17, v16, 4, v17")
    A(f"s_add_u32 s77, s76, {FP_OFF}"); A(f"s_add_u32 s78, s76, {SP_OFF}")
    A("buffer_load_dwordx2 v[44:45], v21, s[56:59], s76 offen")
    fm = int(fmode)
    if fm == 0:
        g.flag_wait(F_TOK, 1, 3, 10)
        g.flag_wait(F_V0, int(fchunk), 3, 10)
    elif fm == 1:
        g.flag_wait(F_TOK, 1, 3, 10)
        g.flag_wait(F_WO, 1, 3, 10)
    else:
        A("v_bfe_u32 v26, v2, 2, 3"); A("v_lshlrev_b32 v26, 8, v26"); A("v_and_b32 v27, 3, v2"); A("v_lshl_add_u32 v26, v27, 6, v26")
        A("s_lshl_b32 s6, s70, 3"); A(f"s_add_u32 s6, s6, {FL_OFF}")
        A("v_mov_b32 v28, v21")
        g.flag_wait(F_V0, int(t2chunk), 3, 10)
        tokcheck(26, 6, 5)
        A("v_mov_b32 v21, v28")
        A("s_waitcnt lgkmcnt(0)")
        A("s_barrier")
    g.stamp(5)
    g.poll(["buffer_load_dwordx4 v[32:35], v18, s[52:55], s77 offen sc1"], [32, 33, 34, 35], 10, sleep=int(fsl) if fm == 0 else 0)
    if fm == 2:
        A("buffer_load_dwordx4 v[56:59], v17, s[52:55], s78 offen sc1")
    g.stamp(6)
    def red_final(src=32):
        A(f"v_mfma_f32_16x16x32_bf16 v[36:39], v[40:43], v[{src}:{src+3}], 0")
        nop(8)
        for mod in ("row_ror:2", "row_ror:4", "row_ror:8"):
            for r in range(4):
                A(f"v_add_f32_dpp v{36+r}, v{36+r}, v{36+r} {mod} row_mask:0xf bank_mask:0xf")
    A("v_cmp_gt_u32 vcc, 56, v2")
    nop(2)
    for r in range(4):
        A(f"v_cndmask_b32 v{32+r}, 0, v{32+r}, vcc")
    nop(1)
    red_final()
    rbf([36, 37, 38, 39])
    silu([36, 37, 38, 39], 48)
    rbf([36, 37, 38, 39])
    for r in range(4): A(f"v_mov_b32 v{48+r}, v{36+r}")
    unpack(52, [44, 45])
    g.stamp(7)
    if fm != 2:
        A("s_waitcnt lgkmcnt(0)")
        A("s_barrier")
    g.poll(["buffer_load_dwordx4 v[56:59], v17, s[52:55], s78 offen sc1"], [56, 57, 58, 59], 10, preissued=(fm == 2), sleep=int(ssl))
    g.stamp(8)
    red_final(56)
    A("v_cvt_pk_bf16_f32 v32, v36, v37"); A("v_cvt_pk_bf16_f32 v33, v38, v39")
    unpack(36, [32, 33])
    A("v_pk_mul_f32 v[36:37], v[36:37], v[48:49]"); A("v_pk_mul_f32 v[38:39], v[38:39], v[50:51]")
    A("v_cvt_pk_bf16_f32 v32, v36, v37"); A("v_cvt_pk_bf16_f32 v33, v38, v39")
    unpack(36, [32, 33])
    A("v_pk_add_f32 v[36:37], v[36:37], v[52:53]"); A("v_pk_add_f32 v[38:39], v[38:39], v[54:55]")
    A("v_cvt_pk_bf16_f32 v32, v36, v37"); A("v_cvt_pk_bf16_f32 v33, v38, v39")
    A("s_mov_b64 exec, 0x30003")
    A("buffer_store_dwordx2 v[32:33], v21, s[60:63], s76 offen")
    A("s_mov_b64 exec, -1")
    g.stamp(9)
    A("s_cmp_lg_u32 s2, 0"); A("s_cbranch_scc1 L_fin")
    A("v_mov_b32 v32, s4")
    A(f"s_mov_b32 s68, {EP_OFF}")
    A("s_mov_b64 exec, 1")
    A("buffer_store_dword v32, v3, s[52:55], s68 offen sc1")
    A("s_mov_b64 exec, -1")
    A("s_branch L_fin")
    lab("L_load")
    A("s_setprio 2")
    A("v_lshrrev_b32 v8, 3, v2"); A("v_and_b32 v9, 7, v2"); A("v_lshlrev_b32 v9, 4, v9")
    A("v_lshlrev_b32 v16, 1, v6"); A("v_xor_b32 v16, v16, v5"); A("v_xor_b32 v17, 8, v16")
    A("v_lshlrev_b32 v16, 4, v16"); A("v_lshl_add_u32 v16, v6, 8, v16")
    A("v_lshlrev_b32 v17, 4, v17"); A("v_lshl_add_u32 v17, v6, 8, v17")
    A("s_mov_b32 s100, s64")
    A(f"s_mov_b32 s101, {VT}")
    A("v_lshl_add_u32 v18, v8, 10, v9")
    A("v_lshlrev_b32 v21, 5, v6"); A("v_xor_b32 v21, v21, v18")
    A("s_lshl_b32 s76, s74, 17"); A("s_lshl_b32 s68, s75, 7"); A("s_add_u32 s76, s76, s68")
    A(f"s_mov_b32 s77, {WOT}")
    A("s_lshl_b32 s78, s74, 16"); A("s_add_u32 s78, s78, s68")
    A(f"s_mov_b32 s79, {WDT}")
    A("s_waitcnt lgkmcnt(0)")
    for d, b_ in ((32, 8), (44, 12), (48, 20), (52, 26)):
        A(f"s_mov_b32 s{d}, s{b_}"); A(f"s_mov_b32 s{d+1}, s{b_+1}")
    A("s_barrier")
    if cut == 2:
        A("s_branch L_fin")
    if int(touch):
        A("s_mov_b64 exec, 1")
        A(f"buffer_load_dword v30, v3, s[44:47], s76 offen {g.ntw}")
        A(f"buffer_load_dword v31, v3, s[48:51], s78 offen {g.ntw}")
        if not int(vpre): A(f"buffer_load_dword v32, v3, s[32:35], s100 offen {g.ntkv}")
        A("s_mov_b64 exec, -1")
        A("s_waitcnt vmcnt(0)")
    if vdelay and not int(vpre):
        g.flag_wait(F_K2, 4, 3, 10)
    g.stamp(5)
    NV = 64
    dl = int(dlate)
    assert dl == 0
    seq = [("v", i) for i in range(wp)] + [("w", i) for i in range(16)] + [("v", i) for i in range(wp, NV)]
    NT = len(seq)
    marks = {}
    for k in range(8, NV + 1, 8): marks[k if k <= wp else k + 16] = ("V", k // 8)
    marks[wp + 16] = ("F", F_WO)
    def publish(k):
        if k in marks:
            kind, val = marks.pop(k)
            if kind == "V":
                A(f"v_mov_b32 v20, {val}")
                A(f"ds_write_b32 v3, v20 offset:{F_V0}")
            else:
                A(f"ds_write_b32 v3, v4 offset:{val}")
    for i, (kind, j) in enumerate(seq):
        if int(vpre) and i == int(vpre) and vdelay:
            g.flag_wait(F_K2, 4, 3, 10)
        if i >= vthr:
            A(f"s_waitcnt vmcnt({vthr-1})")
            publish(i - vthr + 1)
        if kind == "v":
            A("s_mov_b32 m0, s101")
            A("s_add_u32 s101, s101, 1024")
            A(f"buffer_load_dwordx4 v{16 + ((j >> 1) & 1)}, s[32:35], s100 offen {g.ntkv} lds")
            A("s_add_u32 s100, s100, 1024")
        elif kind == "w":
            A("s_mov_b32 m0, s77")
            A("s_add_u32 s77, s77, 1024")
            A(f"buffer_load_dwordx4 v21, s[44:47], s76 offen {g.ntw} lds")
            A("s_add_u32 s76, s76, 8192")
        else:
            A("s_mov_b32 m0, s79")
            A("s_add_u32 s79, s79, 1024")
            A(f"buffer_load_dwordx4 v18, s[48:51], s78 offen {g.ntw} lds")
            A("s_add_u32 s78, s78, 8192")
    g.stamp(6)
    for k in sorted(marks):
        A(f"s_waitcnt vmcnt({NT - k})")
        publish(k)
    g.stamp(7)
    A("s_waitcnt lgkmcnt(0)")
    A("s_branch L_fin")
    lab("L_SX1")
    A("s_cmp_eq_u32 s3, 7"); A("s_cbranch_scc1 L_X")
    A("s_getreg_b32 s6, hwreg(HW_REG_XCC_ID, 0, 4)")
    A("s_andn2_b32 s7, s5, 15"); A("s_or_b32 s7, s7, s6")
    A("v_mov_b32 v16, s4"); A("v_mov_b32 v17, s7")
    A("s_lshl_b32 s7, s70, 5"); A("s_add_u32 s7, s7, s71"); A("s_lshl_b32 s7, s7, 3"); A(f"s_add_u32 s7, s7, {FL_OFF}")
    A("s_waitcnt vmcnt(0)")
    A("s_mov_b64 exec, 1")
    A("buffer_store_dwordx2 v[16:17], v3, s[52:55], s7 offen sc1")
    A(f"ds_write_b32 v3, v16 offset:{F_EP}")
    A("s_mov_b64 exec, -1")
    g.stamp(1)
    if cut in (2, 3):
        A("s_branch L_fin")
    A("v_lshlrev_b32 v9, 11, v6"); A("v_lshl_add_u32 v9, v5, 4, v9")
    A("s_lshl_b32 s16, s70, 14"); A("s_lshl_b32 s69, s72, 8"); A("s_add_u32 s16, s16, s69"); A(f"s_add_u32 s16, s16, {QP_OFF}")
    for k in range(1, 8):
        A(f"s_add_u32 s{16+k}, s16, {(k>>1)*131072 + (k&1)*8192}")
    A("v_lshlrev_b32 v8, 3, v2")
    A("v_bfe_u32 v12, v2, 3, 2"); A("v_lshlrev_b32 v12, 17, v12"); A("v_lshl_add_u32 v12, v14, 11, v12")
    g.flag_wait(F_K, 4, 3, 10)
    g.stamp(7)
    if int(sample):
        tagpoll([f"buffer_load_dwordx4 v[16:19], v12, s[52:55], s16 offen offset:{3*512+48} sc1"], [16], 10, qsleep)
    g.stamp(8)
    tagpoll([f"buffer_load_dwordx4 v[{16+4*k}:{19+4*k}], v9, s[52:55], s{16+k} offen sc1" for k in range(8)],
            [16+4*k for k in range(8)], 10, qsleep, vaddr=9)
    g.stamp(3)
    if stamps and not only:
        A("s_waitcnt lgkmcnt(0)")
        A("s_sub_u32 s88, 0x3ffff, s15"); A("s_mul_i32 s88, s88, 10"); A("s_add_u32 s88, s88, s80"); A("s_mov_b32 s89, s81")
    for k in range(8):
        unpack(48 + 4*k, [16+4*k, 18+4*k])
    for i in range(2):
        for e in range(4):
            A(f"v_add_f32 v{48+4*i+e}, v{48+4*i+e}, v{56+4*i+e}"); A(f"v_add_f32 v{64+4*i+e}, v{64+4*i+e}, v{72+4*i+e}")
    for e in range(8):
        A(f"v_add_f32 v{48+e}, v{48+e}, v{64+e}")
    for e in range(4):
        A(f"v_cvt_pk_bf16_f32 v{16+e}, v{48+2*e}, v{49+2*e}")
    A(f"ds_write_b64 v8, v[16:17] offset:{QL}")
    A(f"ds_write_b64 v8, v[18:19] offset:{QL+512}")
    g.flag_add(F_Q, 3, 4)
    g.stamp(5)
    if cut == 4:
        A("s_branch L_fin")
    A("v_lshlrev_b32 v8, 3, v2"); A("v_lshlrev_b32 v9, 4, v13")
    A("s_lshl_b32 s6, s70, 12"); A(f"s_add_u32 s6, s6, {ML_OFF}")
    A("s_lshl_b32 s68, s71, 7"); A("s_add_u32 s68, s68, s6")
    A(f"s_mov_b32 s78, 0x{f32bits(LOG2E * (128 ** -0.5)):08x}")
    A("v_and_b32 v12, 31, v2"); A("v_lshlrev_b32 v11, 2, v12"); A("v_lshlrev_b32 v12, 7, v12")
    A("s_lshr_b32 s69, s71, 3"); A("s_lshl_b32 s69, s69, 3"); A("s_add_u32 s6, s6, s69")
    g.flag_wait(F_ML, 4, 3, 10)
    A(f"ds_read_b128 v[16:19], v9 offset:{MX}")
    A(f"ds_read_b128 v[20:23], v9 offset:{LL}")
    A("s_waitcnt lgkmcnt(0)")
    A("v_max3_f32 v24, v16, v17, v18"); A("v_max_f32 v24, v24, v19"); A("v_mul_f32 v24, s78, v24")
    A("v_add_f32 v25, v20, v21"); A("v_add_f32 v26, v22, v23"); A("v_add_f32 v25, v25, v26")
    A("v_min_u32 v24, -2, v24"); A("v_min_u32 v25, -2, v25")
    A("s_lshl_b32 s69, s70, 10"); A("s_lshl_b32 s7, s71, 3"); A("s_add_u32 s69, s69, s7"); A(f"s_add_u32 s69, s69, {MLD_OFF}")
    A("v_lshlrev_b32 v10, 8, v2")
    A("s_mov_b64 exec, 15")
    A("buffer_store_dwordx2 v[24:25], v10, s[52:55], s69 offen")
    A("buffer_store_dwordx2 v[24:25], v8, s[52:55], s68 offen sc1")
    A("s_mov_b64 exec, -1")
    g.stamp(6)
    if stamps:
        A("s_waitcnt vmcnt(0)")
        g.stamp(9)
    A("s_branch L_fin")
    lab("L_X")
    if cut in (2, 3, 4):
        A("s_branch L_fin")
    down_ids(6, 7, "L_fin")
    NSUB = 2 if dshift else 1
    A("v_lshl_add_u32 v12, v13, 5, v12")
    A("v_lshl_add_u32 v10, v8, 10, v9")
    A("s_lshl_b32 s100, s6, 16"); A("s_lshl_b32 s69, s7, 7"); A("s_add_u32 s100, s100, s69")
    A("v_mov_b32 v11, v7")
    A("s_lshl_b32 s76, s6, 11"); A(f"s_add_u32 s76, s76, {GP_OFF}")
    A("v_lshlrev_b32 v15, 10, v14"); A("v_lshl_add_u32 v15, v6, 5, v15")
    A("s_lshl_b32 s78, s6, 13"); A("s_add_u32 s78, s78, s69"); A(f"s_add_u32 s78, s78, {FP_OFF}")
    for p in range(8):
        A(f"s_add_u32 s{16+p}, s76, {p*28*2048}")
    if int(xtrig) == 0: g.flag_wait(F_K, 4, 3, 9)
    elif int(xtrig) == 1: g.flag_wait(F_Q, 1, 3, 9)
    else: g.flag_wait(F_K2, 4, 3, 9)
    g.flag_wait(F_GD, 2, 3, 9)
    A(f"s_mov_b32 s68, {WDT}"); A(f"s_mov_b32 s69, {WDT2}"); A("s_add_u32 s101, s100, 128")
    for i in range(8):
        A("s_mov_b32 m0, s68")
        A("s_add_u32 s68, s68, 1024")
        A(f"buffer_load_dwordx4 v10, s[48:51], s100 offen {g.ntw} lds")
        A("s_add_u32 s100, s100, 8192")
        if dshift:
            A("s_mov_b32 m0, s69")
            A("s_add_u32 s69, s69, 1024")
            A(f"buffer_load_dwordx4 v10, s[48:51], s101 offen {g.ntw} lds")
            A("s_add_u32 s101, s101, 8192")
    lds_ = []
    for p in range(8):
        lds_.append(f"buffer_load_dwordx4 v[{16+8*p}:{19+8*p}], v11, s[52:55], s{16+p} offen sc1")
        lds_.append(f"buffer_load_dwordx4 v[{20+8*p}:{23+8*p}], v11, s[52:55], s{16+p} offen offset:1024 sc1")
    tagpoll(lds_, [16+4*k for k in range(16)], 8, qsleep, vaddr=11)
    g.stamp(5)
    if stamps and not only:
        A("s_waitcnt lgkmcnt(0)")
        A("s_sub_u32 s88, 0x3ffff, s15"); A("s_mul_i32 s88, s88, 10"); A("s_add_u32 s88, s88, s80"); A("s_mov_b32 s89, s81")
    WD = 128
    for p in range(8):
        unpack(80 + 8*p, [16+8*p, 18+8*p, 20+8*p, 22+8*p])
    for mat in range(2):
        b0 = 80 + mat*32
        for e in range(8):
            A(f"v_add_f32 v{b0+e}, v{b0+e}, v{b0+8+e}"); A(f"v_add_f32 v{b0+16+e}, v{b0+16+e}, v{b0+24+e}")
        for e in range(8):
            A(f"v_add_f32 v{b0+e}, v{b0+e}, v{b0+16+e}")
    rbf(list(range(80, 88)) + list(range(112, 120)))
    silu(list(range(80, 88)), 88)
    rbf(list(range(80, 88)))
    for e in range(8):
        A(f"v_mul_f32 v{80+e}, v{80+e}, v{112+e}")
    for e in range(4):
        A(f"v_cvt_pk_bf16_f32 v{16+e}, v{80+2*e}, v{81+2*e}")
    g.flag_wait(F_Q, 1, 3, 9)
    for sub in range(NSUB):
        base = (WDT, WDT2)[sub]
        WD = (128, 80)[sub]
        for t in range(2):
            for nt in range(4):
                r = WD + (t*4 + nt)*4
                off = base + t*4096 + nt*8
                A(f"ds_read_b64_tr_b16 v[{r}:{r+1}], v12 offset:{off}")
                A(f"ds_read_b64_tr_b16 v[{r+2}:{r+3}], v12 offset:{off+512}")
    A("s_waitcnt lgkmcnt(0)")
    for sub in range(NSUB):
        WD = (128, 80)[sub]
        for t in range(2):
            for nt in range(4):
                r = WD + (t*4 + nt)*4
                d = 32 + t*16 + nt*4
                A(f"v_mfma_f32_16x16x32_bf16 v[{d}:{d+3}], v[{r}:{r+3}], v[16:19], 0")
        nop(8)
        for e in range(16):
            A(f"v_add_f32_dpp v{32+e}, v{48+e}, v{32+e} row_ror:8 row_mask:0xf bank_mask:0xf")
        o = 64 + 8*sub
        for e in range(8):
            A(f"v_cvt_pk_bf16_f32 v{o+e}, v{32+2*e}, v{33+2*e}")
        for e in range(8):
            A(f"v_min_u32 v{o+e}, -2, v{o+e}")
        exec_mask(0x00ff00ff)
        A(f"buffer_store_dwordx4 v[{o}:{o+3}], v15, s[52:55], s78 offen offset:{128*sub} sc1")
        A(f"buffer_store_dwordx4 v[{o+4}:{o+7}], v15, s[52:55], s78 offen offset:{128*sub+16} sc1")
        A("s_mov_b64 exec, -1")
    g.stamp(6)
    lab("L_fin")
    g.stamp_flush()
    lab("L_end")
    A("s_endpgm")
    tail = ['.section .rodata,"a"', ".p2align 6", f".amdhsa_kernel {KN}",
            "  .amdhsa_next_free_vgpr 168", "  .amdhsa_next_free_sgpr 102", "  .amdhsa_accum_offset 168",
            "  .amdhsa_group_segment_fixed_size 0", "  .amdhsa_kernarg_size 96", "  .amdhsa_user_sgpr_count 2",
            "  .amdhsa_user_sgpr_kernarg_segment_ptr 1", "  .amdhsa_system_sgpr_workgroup_id_x 1",
            "  .amdhsa_float_denorm_mode_32 3",
            ".end_amdhsa_kernel"]
    return "\n".join(hdr + g.L + tail) + "\n"

if __name__ == "__main__":
    out = sys.argv[1] if len(sys.argv) > 1 else "recurrent_scan__sliding_block_cached__swiglu_ffn__decode.s"
    stamps = "--stamps" in sys.argv
    kw = {}
    for a in sys.argv[2:]:
        if "=" in a:
            k, v = a.split("=", 1); kw[k] = v
    open(out, "w").write(build(stamps=stamps, **kw))
```

```python
import sys, struct
from gen import G, f32bits, KN

QP_OFF = 0x00000
GP_OFF = 0x80000
O_OFF = 0xF0000
ML_OFF = 0x1C0000
SP_OFF = 0x132000
FP_OFF = 0x172000
FL_OFF = 0x1B0000
EP_OFF = 0x1B8000
TAGMUL = 0x9E3779B1
MLD_OFF = 0x3E0000
DUP = 0x200000
STAMP_OFF = 0x1000000
F_XN, F_Q, F_W, F_MX, F_ML, F_K, F_V0, F_V1, F_PUB, F_K2, F_WO, F_WT, F_WD, F_EP = 0, 4, 8, 12, 16, 20, 24, 28, 32, 36, 40, 44, 48, 60
F_TOK = F_V1
F_GD = 52
WDT2 = 30720 + 20480
WT = 2432
MX = 64; LL = 128; GL = 192
XN = 256; XNP = 272
QL = 2560
PL = 3584; PLP = 528
WOT = 6144
WDT = 22528
W1T = 30720
RED = W1T
VT = 63488
LDS_BYTES = 129024
LOG2E = 1.4426950408889634

def build(stamps=False, ntkv="nt", ntw="nt", thr=8, vthr=48, kdelay=0, vdelay=1, qsleep=2, cut=0, sample=0, dyn=1, vthr2=40, noclr=0, nost=0, kq=13, kv=16, wolate=0, dbgspan=0, mlchunk=6, xtrig=0, osleep=0, mlsleep=2, only='', bmask=7, qdual=0, dlate=0, tailst=0, olate=1, mlrep=1, dshift=0, spx4=1, vpre=0, touch=0, kearly=0, fmap=1, fchunk=6, fsl=4, fmode=2, wopos=64, wread=7, ssl=0, tchunk=0, t2chunk=7, fpfull=1, fsl2=2):
    wp = int(wopos); wread = int(wread)
    dshift = int(dshift)
    tailst = int(tailst)
    kq = int(kq); kv = int(kv); wolate = int(wolate)
    g = G(stamps, ntkv, ntw, thr)
    g.nwaves = 9
    g.only = [int(c) for c in only] if only else None
    vthr = int(vthr); kdelay = int(kdelay); vdelay = int(vdelay); qsleep = int(qsleep); cut = int(cut)
    A = g.A; lab = g.lab; nop = g.nop
    hdr = ["; Fused decode block: LN -> (GQA attention over the last 1024 cached keys -> wo) * silu(SwiGLU FFN) + x",
           "; kernarg: x, k_cache, v_cache, wq, wo, B_x(unused), w_gate, w_up, w_down, out, debug, ws (8-byte pointers)",
           "; One persistent launch, 256 workgroups x 9 waves (generated by gen/gen22.py (gen20 lineage)):",
           ";   waves 0-3 attention + wo stage, 4/5 q / gate-up split-K tiles (5: final stage), 6 clears + q gather,",
           ";   7 down projection, 8 V / wo LDS-DMA loader.  Hand-offs go through ws: launch-tagged granules",
           ";   (tag = epoch word + 1) or sentinel words cleared by their producer and confirmed by tagged tokens.",
           f"; @launch grid=(256,1,1) block=(576,1,1) lds={LDS_BYTES}",
           '.amdgcn_target "amdgcn-amd-amdhsa--gfx950"', ".text", f".globl {KN}", ".p2align 8",
           f".type {KN},@function", f"{KN}:"]
    def rbf(regs):
        for r in regs: A(f"v_cvt_pk_bf16_f32 v{r}, v{r}, v{r}")
        for r in regs: A(f"v_and_b32 v{r}, 0xffff0000, v{r}")
    def unpack(dst, srcs):
        for e, sr in enumerate(srcs):
            A(f"v_lshlrev_b32 v{dst+2*e}, 16, v{sr}")
            A(f"v_and_b32 v{dst+2*e+1}, 0xffff0000, v{sr}")
    def silu(regs, tmp):
        A(f"s_mov_b32 s68, 0x{f32bits(-LOG2E):08x}")
        for i, r in enumerate(regs): A(f"v_mul_f32 v{tmp+i}, s68, v{r}")
        for i, r in enumerate(regs): A(f"v_exp_f32 v{tmp+i}, v{tmp+i}")
        nop(1)
        for i, r in enumerate(regs): A(f"v_add_f32 v{tmp+i}, 1.0, v{tmp+i}")
        for i, r in enumerate(regs): A(f"v_rcp_f32 v{tmp+i}, v{tmp+i}")
        nop(1)
        for i, r in enumerate(regs): A(f"v_mul_f32 v{r}, v{r}, v{tmp+i}")
    def exec_mask(m):
        A(f"s_mov_b32 exec_lo, 0x{m:08x}"); A(f"s_mov_b32 exec_hi, 0x{m:08x}")
    def tagpoll(loads, quads, vt, sleep, vaddr=None):
        l = g.newlab("TP"); d = g.newlab("TD")
        A("s_mov_b32 s15, 0x3ffff")
        if vaddr is not None and int(qdual):
            A(f"v_add_u32 v{vaddr}, 0x{DUP:x}, v{vaddr}")
        lab(l)
        for s_ in loads: A(s_)
        if vaddr is not None and int(qdual):
            A("s_and_b32 s14, s15, 3"); A("s_cmp_lt_u32 s14, 2")
            A(f"s_cselect_b32 s14, 0x{DUP:x}, 0")
            A(f"v_xor_b32 v{vaddr}, s14, v{vaddr}")
        A("s_waitcnt vmcnt(0)")
        first = True
        for q in quads:
            if first:
                A(f"v_xor_b32 v{vt}, s4, v{q+1}"); first = False
            else:
                A(f"v_xor_b32 v{vt+1}, s4, v{q+1}"); A(f"v_or_b32 v{vt}, v{vt}, v{vt+1}")
            A(f"v_xor_b32 v{vt+1}, s5, v{q+3}"); A(f"v_or_b32 v{vt}, v{vt}, v{vt+1}")
        A(f"v_cmp_ne_u32 vcc, 0, v{vt}")
        A("s_and_b64 exec, exec, vcc"); A(f"s_cbranch_scc0 {d}")
        if sleep: A(f"s_sleep {sleep}")
        A("s_sub_u32 s15, s15, 1"); A("s_cmp_lg_u32 s15, 0"); A(f"s_cbranch_scc1 {l}")
        lab(d)
        A("s_mov_b64 exec, -1")
    def down_ids(skb, scg, none):
        if dshift:
            A("s_cmp_ge_u32 s70, 4"); A(f"s_cbranch_scc1 {none}")
            A("s_cmp_ge_u32 s71, 28"); A(f"s_cbranch_scc1 {none}")
            A(f"s_mul_i32 s{scg}, s70, 28"); A(f"s_add_u32 s{scg}, s{scg}, s71")
            A(f"s_lshr_b32 s{skb}, s{scg}, 2"); A(f"s_and_b32 s{scg}, s{scg}, 3"); A(f"s_lshl_b32 s{scg}, s{scg}, 1")
        else:
            A("s_cmp_eq_u32 s70, 7"); A(f"s_cbranch_scc1 {none}")
            A(f"s_mov_b32 s{skb}, s74"); A(f"s_mov_b32 s{scg}, s75")
    def tokcheck(va, sb, sw1):
        l = g.newlab("TK"); d = g.newlab("TKD")
        A("s_mov_b32 s15, 0x40000")
        lab(l)
        A(f"buffer_load_dwordx2 v[20:21], v{va}, s[52:55], s{sb} offen sc1")
        A("s_waitcnt vmcnt(0)")
        A("v_xor_b32 v22, s4, v20"); A(f"v_xor_b32 v23, s{sw1}, v21")
        A("v_and_b32 v24, -16, v23"); A("v_or_b32 v24, v24, v22")
        A("v_cmp_ne_u32 vcc, 0, v24")
        A("s_and_b64 exec, exec, vcc"); A(f"s_cbranch_scc0 {d}")
        A("s_sleep 8")
        A("s_sub_u32 s15, s15, 1"); A("s_cmp_lg_u32 s15, 0"); A(f"s_cbranch_scc1 {l}")
        lab(d)
        A("s_mov_b64 exec, -1")
    A("s_cmp_ge_u32 s2, 256"); A("s_cbranch_scc1 L_end")
    A("s_load_dwordx16 s[4:19], s[0:1], 0")
    A("s_load_dwordx8 s[20:27], s[0:1], 64")
    g.stamp(0)
    if int(dbgspan): A("s_memrealtime s[98:99]")
    A("v_lshrrev_b32 v1, 6, v0")
    A("v_and_b32 v2, 63, v0")
    A("v_readfirstlane_b32 s3, v1")
    A("v_mov_b32 v3, 0"); A("v_mov_b32 v4, 1")
    A("v_and_b32 v5, 15, v2"); A("v_lshrrev_b32 v6, 4, v2")
    for d, n in ((28, 67108864), (32, 67108864), (44, 4194304), (48, 1835008), (52, 268435456), (56, 8192), (60, 8192)):
        A(f"s_mov_b32 s{d+2}, {n}"); A(f"s_mov_b32 s{d+3}, 0x00020000")
    A("s_mov_b32 s39, 0x00020000")
    A("s_and_b32 s70, s2, 7")
    A("s_lshr_b32 s71, s2, 3")
    A("s_lshr_b32 s72, s71, 2")
    A("s_and_b32 s73, s71, 3")
    A("s_lshl_b32 s74, s70, 2"); A("s_lshr_b32 s68, s71, 3"); A("s_add_u32 s74, s74, s68")
    A("s_and_b32 s75, s71, 7")
    A("s_lshl_b32 s64, s72, 3"); A("s_add_u32 s64, s64, s70"); A("s_lshl_b32 s64, s64, 20")
    A("s_lshl_b32 s68, s73, 16"); A("s_add_u32 s64, s64, s68"); A(f"s_add_u32 s64, s64, {3072*256}")
    A("s_cmp_ge_u32 s3, 4"); A("s_cbranch_scc1 L_H")

    KR = 16; QF = 80; SR = 96; PP = 112; ACC = 120
    PBF = 16
    VF = 48
    A("s_lshl_b32 s68, s3, 14"); A("s_add_u32 s76, s64, s68")
    for i in range(1, 4):
        A(f"s_add_u32 s{76+i}, s76, {i*4096}")
    A("v_lshlrev_b32 v7, 8, v5"); A("v_lshl_add_u32 v7, v6, 4, v7")
    A("s_waitcnt lgkmcnt(0)")
    for d, b in ((28, 6), (52, 26), (56, 4), (60, 22)):
        A(f"s_mov_b32 s{d}, s{b}"); A(f"s_mov_b32 s{d+1}, s{b+1}")
    if not int(kearly): A("s_barrier")
    if kdelay:
        g.flag_wait(F_W, 2, 3, 10)
    n = 0
    for T in range(4):
        for t in range(4):
            r = KR + (T*4 + t)*4
            if int(kearly) and n == int(kearly): A("s_barrier")
            if g.thr and n >= g.thr: A(f"s_waitcnt vmcnt({g.thr-1})")
            A(f"buffer_load_dwordx4 v[{r}:{r+3}], v7, s[28:31], s{76+T} offen offset:{t*64} {g.ntkv}"); n += 1
            if n == kv: g.flag_add(F_K2, 3, 4)
            if n == kq: g.flag_add(F_K, 3, 4)
    if not tailst: g.stamp(1)
    if cut:
        A("s_waitcnt vmcnt(0)"); g.stamp(2); A("s_branch L_fin")
    A(f"s_mov_b32 s78, 0x{f32bits(LOG2E * (128 ** -0.5)):08x}")
    A("v_and_b32 v11, 3, v2")
    A("v_lshlrev_b32 v12, 8, v11"); A("v_lshl_add_u32 v12, v6, 4, v12")
    A("v_lshlrev_b32 v13, 4, v11")
    A("s_lshl_b32 s68, s3, 2"); A("v_add_u32 v14, s68, v13")
    A(f"v_mul_u32_u24 v8, {PLP}, v11"); A("v_lshl_add_u32 v9, v6, 4, v8")
    A("v_lshl_add_u32 v8, v6, 3, v8"); A("s_lshl_b32 s68, s3, 7"); A("v_add_u32 v8, s68, v8")
    A("v_lshrrev_b32 v124, 2, v5")
    A("v_and_b32 v125, 1, v6"); A("v_lshl_add_u32 v125, v125, 2, v124"); A("v_lshlrev_b32 v125, 1, v125")
    A("v_lshrrev_b32 v126, 1, v11"); A("s_lshl_b32 s68, s3, 2"); A("v_add_u32 v126, s68, v126"); A("v_xor_b32 v126, v126, v125")
    A("v_lshlrev_b32 v126, 4, v126"); A("v_and_b32 v125, 1, v2"); A("v_lshl_add_u32 v126, v125, 3, v126")
    A("v_lshl_add_u32 v125, v6, 3, v124"); A("v_lshl_add_u32 v126, v125, 8, v126")
    A("v_xor_b32 v127, 32, v126")
    A(f"v_add_u32 v126, {VT}, v126"); A(f"v_add_u32 v127, {VT}, v127")
    A("v_lshlrev_b32 v125, 6, v11"); A("v_lshl_add_u32 v125, v6, 4, v125")
    A("s_lshl_b32 s79, s70, 2"); A("s_add_u32 s79, s79, s73"); A("s_lshl_b32 s79, s79, 3"); A("s_add_u32 s79, s79, s72")
    A("s_lshl_b32 s79, s79, 2"); A("s_add_u32 s79, s79, s3"); A("s_lshl_b32 s79, s79, 8"); A(f"s_add_u32 s79, s79, {O_OFF}")
    g.flag_wait(F_Q, 1, 3, 10)
    if not tailst: g.stamp(2)
    for t in range(4):
        A(f"ds_read_b128 v[{QF+4*t}:{QF+4*t+3}], v12 offset:{QL + t*64}")
    A("s_waitcnt lgkmcnt(0)")
    for T in range(4):
        A(f"s_waitcnt vmcnt({12 - 4*T})")
        for t in range(4):
            r = KR + (T*4 + t)*4
            cc = "0" if t == 0 else f"v[{SR+4*T}:{SR+4*T+3}]"
            A(f"v_mfma_f32_16x16x32_bf16 v[{SR+4*T}:{SR+4*T+3}], v[{r}:{r+3}], v[{QF+4*t}:{QF+4*t+3}], {cc}")
    nop(4)
    A(f"v_max3_f32 v10, v{SR}, v{SR+1}, v{SR+2}")
    for i in range(3, 11, 2):
        A(f"v_max3_f32 v10, v10, v{SR+i}, v{SR+i+1}")
    A(f"v_max_f32 v10, v10, v{SR+11}")
    A(f"v_max3_f32 v10, v10, v{SR+12}, v{SR+13}")
    A(f"v_max3_f32 v10, v10, v{SR+14}, v{SR+15}")
    g.xrow("v_max_f32", [10], [15])
    A("s_mov_b64 exec, 15")
    A(f"ds_write_b32 v14, v10 offset:{MX}")
    g.flag_add(F_MX, 3, 4)
    g.flag_wait(F_MX, 4, 3, 15, sleep=False)
    A(f"ds_read_b128 v[{PP}:{PP+3}], v13 offset:{MX}")
    A("s_waitcnt lgkmcnt(0)")
    A(f"v_max3_f32 v10, v{PP}, v{PP+1}, v{PP+2}"); A(f"v_max_f32 v10, v10, v{PP+3}")
    A("v_mul_f32 v10, s78, v10")
    for i in range(16):
        A(f"v_fma_f32 v{SR+i}, v{SR+i}, s78, -v10")
    for i in range(16):
        A(f"v_exp_f32 v{SR+i}, v{SR+i}")
    nop(1)
    for i in range(8):
        A(f"v_cvt_pk_bf16_f32 v{PP+i}, v{SR+2*i}, v{SR+2*i+1}")
    exec_mask(0x000F000F)
    for T in range(4):
        A(f"ds_write_b64 v8, v[{PP+2*T}:{PP+2*T+1}] offset:{PL + T*32}")
    A("s_mov_b64 exec, -1")
    A(f"v_add_f32 v10, v{SR}, v{SR+1}"); A(f"v_add_f32 v15, v{SR+2}, v{SR+3}")
    for i in range(4, 16, 2):
        A(f"v_add_f32 v10, v10, v{SR+i}"); A(f"v_add_f32 v15, v15, v{SR+i+1}")
    A("v_add_f32 v10, v10, v15")
    g.xrow("v_add_f32", [10], [15])
    A("s_mov_b64 exec, 15")
    A(f"ds_write_b32 v14, v10 offset:{LL}")
    g.flag_add(F_ML, 3, 4)
    g.flag_wait(F_ML, 4, 3, 15, sleep=False)
    for t in range(8):
        A(f"ds_read_b128 v[{PBF+4*t}:{PBF+4*t+3}], v9 offset:{PL + t*64}")
    if not tailst: g.stamp(3)
    A("s_lshl_b32 s68, s3, 4"); A("v_mov_b32 v113, s68")
    A(f"ds_read_b128 v[116:119], v113 offset:{MX}")
    A(f"ds_read_b128 v[120:123], v113 offset:{LL}")
    A("s_waitcnt lgkmcnt(0)")
    A("v_max3_f32 v114, v116, v117, v118"); A("v_max_f32 v114, v114, v119"); A("v_mul_f32 v114, s78, v114")
    A("v_add_f32 v115, v120, v121"); A("v_add_f32 v116, v122, v123"); A("v_add_f32 v115, v115, v116")
    A("v_min_u32 v114, -2, v114"); A("v_min_u32 v115, -2, v115")
    A("s_lshl_b32 s36, s70, 2"); A("s_add_u32 s36, s36, s3"); A("s_lshl_b32 s36, s36, 8"); A("s_lshl_b32 s68, s71, 3"); A("s_add_u32 s36, s36, s68")
    A(f"s_add_u32 s36, s36, {MLD_OFF}")
    A("s_lshl_b32 s37, s70, 5"); A("s_add_u32 s37, s37, s71"); A("s_lshl_b32 s37, s37, 7"); A("s_lshl_b32 s68, s3, 3"); A("s_add_u32 s37, s37, s68")
    A(f"s_add_u32 s37, s37, {ML_OFF}")
    A("v_and_b32 v100, 7, v2")
    A("v_lshl_add_u32 v101, v6, 2, v124"); A("v_bfe_u32 v109, v101, 1, 2"); A("v_lshlrev_b32 v101, 7, v101")
    A("v_lshl_add_u32 v101, v109, 5, v101"); A("v_lshl_add_u32 v101, v11, 3, v101")
    A("s_and_b32 s68, s3, 1"); A("s_lshl_b32 s69, s68, 13"); A("v_add_u32 v101, s69, v101")
    A("v_xor_b32 v109, 32, v101"); A("v_xor_b32 v110, 64, v101"); A("v_xor_b32 v111, 0x60, v101")
    A("v_lshlrev_b32 v102, 10, v5"); A("v_lshl_add_u32 v102, v6, 4, v102")
    A("s_lshl_b32 s77, s70, 15"); A("s_lshr_b32 s69, s3, 1"); A("s_lshl_b32 s69, s69, 14"); A("s_add_u32 s77, s77, s69")
    A("s_lshl_b32 s68, s68, 9"); A("s_add_u32 s77, s77, s68")
    A("s_lshr_b32 s68, s71, 3"); A("s_lshl_b32 s68, s68, 6"); A("s_add_u32 s77, s77, s68"); A(f"s_add_u32 s77, s77, {O_OFF}")
    A("v_bfe_u32 v103, v2, 3, 1"); A("s_lshl_b32 s68, s3, 1"); A("v_add_u32 v104, s68, v103"); A("v_mul_u32_u24 v104, 2176, v104")
    A("v_mul_u32_u24 v105, 272, v100"); A("v_add_u32 v104, v104, v105"); A("v_lshl_add_u32 v104, v6, 4, v104")
    A("s_and_b32 s69, s3, 2"); A("v_add_u32 v103, s69, v103"); A("v_lshl_add_u32 v103, v103, 4, v5"); A("v_lshlrev_b32 v103, 2, v103")
    A("v_lshl_add_u32 v108, v100, 2, v6"); A("v_lshlrev_b32 v108, 7, v108")
    A("s_lshl_b32 s65, s70, 12"); A("s_lshr_b32 s69, s71, 3"); A("s_lshl_b32 s69, s69, 3"); A("s_add_u32 s65, s65, s69"); A(f"s_add_u32 s65, s65, {ML_OFF}")
    A("v_lshrrev_b32 v105, 5, v2"); A("v_add_u32 v106, s68, v105"); A("v_mul_u32_u24 v106, 272, v106")
    A("v_and_b32 v107, 31, v2"); A("v_lshl_add_u32 v106, v107, 3, v106")
    A("v_lshlrev_b32 v105, 10, v105"); A("v_lshl_add_u32 v105, v107, 2, v105")
    A("s_lshl_b32 s78, s74, 3"); A("s_add_u32 s78, s78, s68"); A("s_lshl_b32 s78, s78, 10")
    A("s_lshl_b32 s69, s75, 7"); A("s_add_u32 s78, s78, s69"); A(f"s_add_u32 s78, s78, {SP_OFF}")
    A(f"s_add_u32 s66, s79, {DUP}"); A(f"s_add_u32 s67, s77, {DUP}"); A("s_lshl_b32 s40, s74, 8"); A(f"s_add_u32 s40, s40, {MLD_OFF}"); A("v_lshrrev_b32 v112, 4, v108")
    A("s_mov_b32 s76, 0")
    A("s_waitcnt lgkmcnt(0)")
    def pv_mfma(t):
        vf = 128 + (t & 3)*8
        for nt in range(2):
            acc = 64 + 4*nt
            cc = "0" if t == 0 else f"v[{acc}:{acc+3}]"
            A(f"v_mfma_f32_16x16x32_bf16 v[{acc}:{acc+3}], v[{vf+4*nt}:{vf+4*nt+3}], v[{PBF+4*t}:{PBF+4*t+3}], {cc}")
    def bf(nt, t):
        i = nt*2 + t
        return 48 + 4*i if i < 4 else 80 + 4*(i - 4)
    def wo_frags():
        for nt in range(4):
            for t2 in range(2):
                r = bf(nt, t2)
                off = WOT + t2*4096
                va = (101, 109, 110, 111)[nt]
                A(f"ds_read_b64_tr_b16 v[{r}:{r+1}], v{va} offset:{off}")
                A(f"ds_read_b64_tr_b16 v[{r+2}:{r+3}], v{va} offset:{off + 2048}")
    for t in range(8):
        lw = g.newlab("VW"); lr = g.newlab("VR")
        if wp < 64 and t == wread:
            g.flag_wait(F_WO, 1, 3, 10, sleep=False)
            wo_frags()
            A("s_waitcnt lgkmcnt(0)")
        A(f"s_cmp_gt_u32 s76, {t}"); A(f"s_cbranch_scc1 {lr}")
        A("s_mov_b32 s15, 0x400000")
        lab(lw)
        A(f"ds_read_b64 v[{SR}:{SR+1}], v3 offset:{F_V0}")
        A("s_waitcnt lgkmcnt(0)")
        A(f"v_add_u32 v{SR+1}, 7, v{SR+1}")
        A(f"v_min_u32 v{SR}, v{SR}, v{SR+1}")
        A(f"v_readfirstlane_b32 s41, v{SR+1}")
        A("s_sub_u32 s15, s15, 1")
        A(f"v_readfirstlane_b32 s76, v{SR}")
        A("s_cmp_eq_u32 s15, 0"); A(f"s_cbranch_scc1 {lr}")
        A(f"s_cmp_gt_u32 s76, {t}"); A(f"s_cbranch_scc0 {lw}")
        lab(lr)
        vf = 128 + (t & 3)*8
        for nt in range(2):
            A(f"ds_read_b64_tr_b16 v[{vf+4*nt}:{vf+4*nt+1}], v{126+nt} offset:{t*8192}")
            A(f"ds_read_b64_tr_b16 v[{vf+4*nt+2}:{vf+4*nt+3}], v{126+nt} offset:{t*8192 + 1024}")
        if t >= 2:
            A("s_waitcnt lgkmcnt(8)")
            pv_mfma(t - 2)
    A("s_cmp_eq_u32 s41, 8")
    A("s_cselect_b32 s67, s67, s77"); A("s_cselect_b32 s40, s40, s65"); A("s_cselect_b64 s[42:43], -1, 0")
    A("v_cndmask_b32 v112, v108, v112, s[42:43]")
    A("s_waitcnt lgkmcnt(4)")
    pv_mfma(6)
    A("s_waitcnt lgkmcnt(0)")
    pv_mfma(7)
    g.stamp(4)
    exec_mask(0x000F000F)
    nop(5)
    A("v_cvt_pk_bf16_f32 v72, v64, v65"); A("v_cvt_pk_bf16_f32 v73, v66, v67")
    A("v_cvt_pk_bf16_f32 v74, v68, v69"); A("v_cvt_pk_bf16_f32 v75, v70, v71")
    for e in range(4): A(f"v_min_u32 v{72+e}, -2, v{72+e}")
    A("s_cmp_eq_u32 s41, 8"); A("s_cbranch_scc0 L_oglob")
    A("buffer_store_dwordx4 v[72:75], v125, s[52:55], s66 offen")
    if int(mlrep):
        A("s_mov_b64 exec, 1")
        A("buffer_store_dwordx2 v[114:115], v3, s[52:55], s36 offen")
    A("s_branch L_ostored")
    lab("L_oglob")
    A("buffer_store_dwordx4 v[72:75], v125, s[52:55], s79 offen sc1")
    lab("L_ostored")
    A("s_mov_b64 exec, -1")
    g.stamp(5)
    AF = 64
    def oloads(so):
        return [f"buffer_load_dwordx4 v[{AF}:{AF+3}], v102, s[52:55], s{so} offen sc1",
                f"buffer_load_dwordx4 v[{AF+4}:{AF+7}], v102, s[52:55], s{so} offen offset:256 sc1"]
    def mloads(sm):
        return [f"buffer_load_dwordx2 v[76:77], v{112 if sm == 40 else 108}, s[52:55], s{sm} offen sc1"]
    def ensure_store():
        le = g.newlab("ES")
        A(f"s_cmp_lg_u32 s41, 0"); A(f"s_cbranch_scc1 {le}")
        A("s_mov_b32 s41, 1")
        A("s_mov_b64 s[42:43], exec")
        exec_mask(0x000F000F)
        A("buffer_store_dwordx4 v[72:75], v125, s[52:55], s79 offen sc1")
        A("s_mov_b64 exec, s[42:43]")
        lab(le)
    def dualpoll(la, lb_, regs, first_wait):
        l0 = g.newlab("OP"); l1 = g.newlab("OC"); ld = g.newlab("OD"); lb = g.newlab("OB"); l2 = g.newlab("OW")
        A("s_mov_b32 s15, 0x40000")
        A(f"s_waitcnt vmcnt({first_wait})")
        A(f"s_branch {l1}")
        lab(l0)
        A(f"s_and_b32 s14, s15, {int(bmask)}"); A("s_cmp_eq_u32 s14, 0"); A(f"s_cbranch_scc1 {lb}")
        for l_ in la: A(l_)
        A(f"s_branch {l2}")
        lab(lb)
        ensure_store()
        for l_ in lb_: A(l_)
        lab(l2)
        A("s_waitcnt vmcnt(0)")
        lab(l1)
        rs = list(regs)
        if len(rs) == 2:
            A(f"v_max_u32 v10, v{rs[0]}, v{rs[1]}")
        else:
            A(f"v_max3_u32 v10, v{rs[0]}, v{rs[1]}, v{rs[2]}"); A(f"v_max3_u32 v15, v{rs[3]}, v{rs[4]}, v{rs[5]}")
            A(f"v_max3_u32 v10, v10, v{rs[6]}, v{rs[7]}"); A("v_max_u32 v10, v10, v15")
        A("v_cmp_eq_u32 vcc, -1, v10")
        A("s_and_b64 exec, exec, vcc"); A(f"s_cbranch_scc0 {ld}")
        if int(osleep): A(f"s_sleep {int(osleep)}")
        A("s_sub_u32 s15, s15, 1"); A("s_cmp_lg_u32 s15, 0"); A(f"s_cbranch_scc1 {l0}")
        lab(ld)
        A("s_mov_b64 exec, -1")
    if wp == 64:
        g.poll(mloads(40), [76, 77], 10, sleep=int(osleep))
        for l_ in oloads(67): A(l_)
    else:
        for l_ in mloads(40) + oloads(67): A(l_)
        g.poll(mloads(40), [76, 77], 10, preissued=True)
    if tailst: g.stamp(1)
    A("v_mov_b32 v78, v76")
    g.xrow("v_max_f32", [78], [79])
    A("v_sub_f32 v76, v76, v78")
    A("v_exp_f32 v76, v76")
    nop(1)
    A("v_mul_f32 v77, v76, v77")
    A("ds_bpermute_b32 v76, v103, v76")
    g.xrow("v_add_f32", [77], [79])
    A("v_rcp_f32 v77, v77")
    A("s_waitcnt lgkmcnt(0)")
    A("v_mul_f32 v76, v76, v77"); A("v_mov_b32 v77, v76")
    if wp == 64:
        g.flag_wait(F_WO, 1, 3, 10, sleep=False)
        wo_frags()
    if tailst: g.stamp(2)
    g.poll(oloads(67), list(range(AF, AF+8)), 10, preissued=True, sleep=int(osleep))
    A("s_waitcnt lgkmcnt(0)")
    if tailst:
        A("s_sub_u32 s86, 0x40000, s15"); A("s_add_u32 s86, s86, s80"); A("s_mov_b32 s87, s81")
    g.stamp(6)
    DW = 16
    for t in range(2):
        for nt in range(4):
            r = bf(nt, t)
            cc = "0" if t == 0 else f"v[{DW+4*nt}:{DW+4*nt+3}]"
            A(f"v_mfma_f32_16x16x32_bf16 v[{DW+4*nt}:{DW+4*nt+3}], v[{r}:{r+3}], v[{AF+4*t}:{AF+4*t+3}], {cc}")
    nop(5)
    for nt in range(4):
        A(f"v_pk_mul_f32 v[{DW+4*nt}:{DW+4*nt+1}], v[{DW+4*nt}:{DW+4*nt+1}], v[76:77]")
        A(f"v_pk_mul_f32 v[{DW+4*nt+2}:{DW+4*nt+3}], v[{DW+4*nt+2}:{DW+4*nt+3}], v[76:77]")
        A(f"ds_write_b128 v104, v[{DW+4*nt}:{DW+4*nt+3}] offset:{RED + nt*64}")
    A("s_waitcnt lgkmcnt(0)")
    A("s_barrier")
    for p in range(8):
        A(f"ds_read_b64 v[{32+2*p}:{33+2*p}], v106 offset:{RED + p*2176}")
    A("s_waitcnt lgkmcnt(4)") if (not stamps or only) else A("s_waitcnt lgkmcnt(0)")
    A("v_pk_add_f32 v[32:33], v[32:33], v[34:35]"); A("v_pk_add_f32 v[36:37], v[36:37], v[38:39]")
    A("v_pk_add_f32 v[32:33], v[32:33], v[36:37]")
    A("s_waitcnt lgkmcnt(0)")
    A("v_pk_add_f32 v[40:41], v[40:41], v[42:43]"); A("v_pk_add_f32 v[44:45], v[44:45], v[46:47]")
    A("v_pk_add_f32 v[40:41], v[40:41], v[44:45]")
    A("v_pk_add_f32 v[32:33], v[32:33], v[40:41]")
    A("v_cvt_pk_bf16_f32 v32, v32, v33")
    A("v_min_u32 v32, -2, v32")
    if int(spx4):
        nop(2)
        A("v_mov_b32_dpp v33, v32 quad_perm:[1,1,1,1] row_mask:0xf bank_mask:0xf")
        A("v_mov_b32_dpp v34, v32 quad_perm:[2,2,2,2] row_mask:0xf bank_mask:0xf")
        A("v_mov_b32_dpp v35, v32 quad_perm:[3,3,3,3] row_mask:0xf bank_mask:0xf")
        exec_mask(0x11111111)
        A("buffer_store_dwordx4 v[32:35], v105, s[52:55], s78 offen sc1")
        A("s_mov_b64 exec, -1")
    else:
        A("buffer_store_dword v32, v105, s[52:55], s78 offen sc1")
    g.stamp(7)
    A("s_branch L_fin")

    lab("L_H")
    A("s_cmp_eq_u32 s3, 8"); A("s_cbranch_scc1 L_load")
    A("s_setprio 3")
    A("v_lshlrev_b32 v7, 4, v2")
    A("s_sub_u32 s77, s3, 4")
    A("s_cmp_lg_u32 s3, 7"); A("s_cbranch_scc1 L_noinit")
    A("v_lshlrev_b32 v8, 2, v5")
    A("ds_write_b32 v8, v3")
    lab("L_noinit")
    A("v_lshrrev_b32 v8, 3, v2"); A("v_and_b32 v9, 7, v2"); A("v_lshlrev_b32 v9, 4, v9")
    A("s_lshl_b32 s68, s77, 11")
    A(f"s_mov_b32 s69, 0x{EP_OFF:x}")
    A("s_waitcnt lgkmcnt(0)")
    A("s_load_dword s79, s[26:27], s69")
    for d, b in ((32, 8), (44, 12), (48, 20), (52, 26), (56, 4)):
        A(f"s_mov_b32 s{d}, s{b}"); A(f"s_mov_b32 s{d+1}, s{b+1}")
    XR = 16
    for r in range(2):
        A(f"buffer_load_dwordx4 v[{XR+4*r}:{XR+4*r+3}], v7, s[56:59], s68 offen offset:{r*1024}")
    A("s_cmp_ge_u32 s3, 6"); A("s_cbranch_scc1 L_SX0")
    A("s_cmp_eq_u32 s3, 5"); A("s_cbranch_scc1 L_G1")
    A("s_mov_b32 s36, s10"); A("s_mov_b32 s37, s11"); A("s_mov_b32 s38, 4194304")
    A("s_lshl_b32 s76, s70, 3"); A("s_add_u32 s76, s76, s72"); A("s_lshl_b32 s76, s76, 7")
    A("s_movk_i32 s69, 8192")
    A("s_lshl_b32 s78, s73, 17"); A("s_lshl_b32 s68, s76, 4"); A("s_add_u32 s78, s78, s68")
    A(f"s_add_u32 s78, s78, {QP_OFF}")
    A("s_branch L_GJ")
    lab("L_G1")
    A("s_cmp_eq_u32 s70, 7"); A("s_cbranch_scc1 L_LN0")
    A("s_bitcmp1_b32 s71, 2")
    A("s_cselect_b32 s36, s18, s16"); A("s_cselect_b32 s37, s19, s17"); A("s_mov_b32 s38, 1835008")
    A("s_lshl_b32 s76, s74, 7")
    A("s_movk_i32 s69, 3584")
    A("s_and_b32 s78, s71, 7"); A(f"s_mul_i32 s78, s78, {28*2048}"); A("s_lshl_b32 s68, s76, 4"); A("s_add_u32 s78, s78, s68")
    A(f"s_add_u32 s78, s78, {GP_OFF}")
    lab("L_GJ")
    A("v_mul_lo_u32 v10, v8, s69"); A("v_add_u32 v10, v10, v9")
    A("s_lshl_b32 s68, s73, 7"); A("s_mul_i32 s68, s68, s69"); A("s_add_u32 s100, s76, s68")
    A("s_lshl_b32 s101, s69, 3")
    A("s_lshl_b32 s68, s77, 14"); A(f"s_add_u32 s68, s68, {W1T}")
    for i in range(16):
        A("s_mov_b32 m0, s68")
        A("s_add_u32 s68, s68, 1024")
        A(f"buffer_load_dwordx4 v10, s[36:39], s100 offen {g.ntw} lds")
        A("s_add_u32 s100, s100, s101")
    A("s_barrier")
    A("s_waitcnt vmcnt(16)")
    A("s_branch L_LN")
    lab("L_SX0")
    A("s_cmp_eq_u32 s3, 7"); A("s_cbranch_scc1 L_LN0")
    if int(noclr): A("s_branch L_LN0")
    for r in range(4):
        A(f"v_mov_b32 v{24+r}, -1")
    A("s_lshl_b32 s68, s70, 2"); A("s_add_u32 s68, s68, s73"); A("s_lshl_b32 s68, s68, 3"); A("s_add_u32 s68, s68, s72")
    A("s_lshl_b32 s68, s68, 10"); A(f"s_add_u32 s68, s68, {O_OFF}")
    A("buffer_store_dwordx4 v[24:27], v7, s[52:55], s68 offen sc1")
    A(f"s_add_u32 s68, s68, {DUP}")
    A("buffer_store_dwordx4 v[24:27], v7, s[52:55], s68 offen sc1")
    A("v_lshl_add_u32 v10, v8, 10, v9")
    A("s_lshl_b32 s68, s74, 13"); A("s_lshl_b32 s69, s75, 7"); A("s_add_u32 s68, s68, s69")
    A(f"s_add_u32 s69, s68, {SP_OFF}")
    A("buffer_store_dwordx4 v[24:27], v10, s[52:55], s69 offen sc1")
    down_ids(68, 69, "L_nofp")
    A("s_lshl_b32 s68, s68, 13"); A("s_lshl_b32 s69, s69, 7"); A("s_add_u32 s69, s69, s68"); A(f"s_add_u32 s69, s69, {FP_OFF}")
    A("buffer_store_dwordx4 v[24:27], v10, s[52:55], s69 offen sc1")
    if dshift: A("buffer_store_dwordx4 v[24:27], v10, s[52:55], s69 offen offset:128 sc1")
    lab("L_nofp")
    A("s_lshl_b32 s68, s70, 5"); A("s_add_u32 s68, s68, s71"); A("s_lshl_b32 s68, s68, 7"); A(f"s_add_u32 s68, s68, {ML_OFF}")
    A("s_mov_b64 exec, 3")
    A("buffer_store_dwordx4 v[24:27], v7, s[52:55], s68 offen sc1")
    A("s_mov_b64 exec, 15")
    A("v_lshlrev_b32 v10, 8, v2")
    A("s_lshl_b32 s68, s70, 10"); A("s_lshl_b32 s69, s71, 3"); A("s_add_u32 s68, s68, s69"); A(f"s_add_u32 s68, s68, {MLD_OFF}")
    A("buffer_store_dwordx2 v[24:25], v10, s[52:55], s68 offen sc1")
    A("s_mov_b64 exec, -1")
    A("s_barrier")
    A("s_waitcnt vmcnt(5)")
    A("s_cmp_eq_u32 s70, 7"); A("s_cbranch_scc1 L_LN")
    A("s_nop 0")
    A("s_branch L_LN") if False else None
    A("s_waitcnt vmcnt(4)") if False else None
    A("s_branch L_LN")
    lab("L_LN0")
    A("s_barrier")
    A("s_waitcnt vmcnt(0)")
    lab("L_LN")
    if cut == 1:
        g.flag_add(F_W, 3, 4); A("s_branch L_fin")
    XF = 32
    for r in range(2):
        unpack(XF + 8*r, [XR + 4*r + e for e in range(4)])
    SM = 64
    for r in range(2):
        A(f"v_add_f32 v{SM+r}, v{XF+8*r}, v{XF+8*r+1}"); A(f"v_add_f32 v{SM+2+r}, v{XF+8*r+2}, v{XF+8*r+3}")
    for e in range(4, 8, 2):
        for r in range(2):
            A(f"v_add_f32 v{SM+r}, v{SM+r}, v{XF+8*r+e}"); A(f"v_add_f32 v{SM+2+r}, v{SM+2+r}, v{XF+8*r+e+1}")
    for r in range(2):
        A(f"v_add_f32 v{SM+r}, v{SM+r}, v{SM+2+r}")
    g.allreduce64("v_add_f32", [SM, SM+1], [SM+4, SM+5])
    A(f"s_mov_b32 s68, 0x{f32bits(1.0/512):08x}")
    for r in range(2):
        A(f"v_mul_f32 v{SM+r}, s68, v{SM+r}")
    VS = 72
    for e in range(8):
        for r in range(2):
            A(f"v_sub_f32 v{80+2*(e&1)+r}, v{XF+8*r+e}, v{SM+r}")
        for r in range(2):
            t_ = 80+2*(e&1)+r
            if e == 0: A(f"v_mul_f32 v{VS+r}, v{t_}, v{t_}")
            else: A(f"v_fmac_f32 v{VS+r}, v{t_}, v{t_}")
    g.allreduce64("v_add_f32", [VS, VS+1], [VS+4, VS+5])
    for r in range(2):
        A(f"v_mul_f32 v{VS+r}, s68, v{VS+r}")
    rbf([SM, SM+1, VS, VS+1])
    for r in range(2):
        A(f"v_add_f32 v{VS+r}, 0x{f32bits(1e-5):08x}, v{VS+r}")
    rbf([VS, VS+1])
    for r in range(2):
        A(f"v_sqrt_f32 v{VS+r}, v{VS+r}")
    nop(1)
    rbf([VS, VS+1])
    for r in range(2):
        A(f"v_rcp_f32 v{VS+r}, v{VS+r}")
    for r in range(2):
        for e in range(8):
            A(f"v_sub_f32 v{XF+8*r+e}, v{XF+8*r+e}, v{SM+r}")
    for r in range(2):
        for e in range(4):
            A(f"v_cvt_pk_bf16_f32 v{XR+4*r+e}, v{XF+8*r+2*e}, v{XF+8*r+2*e+1}")
    for r in range(2):
        unpack(XF + 8*r, [XR + 4*r + e for e in range(4)])
    for r in range(2):
        for e in range(8):
            A(f"v_mul_f32 v{XF+8*r+e}, v{XF+8*r+e}, v{VS+r}")
    for r in range(2):
        for e in range(4):
            A(f"v_cvt_pk_bf16_f32 v{XR+4*r+e}, v{XF+8*r+2*e}, v{XF+8*r+2*e+1}")
    A(f"s_mul_i32 s68, s77, {2*XNP}"); A("v_lshlrev_b32 v11, 4, v5"); A("v_add_u32 v11, s68, v11")
    A("v_cmp_eq_u32 vcc, s73, v6")
    A("s_and_saveexec_b64 s[68:69], vcc")
    for r in range(2):
        A(f"ds_write_b128 v11, v[{XR+4*r}:{XR+4*r+3}] offset:{XN + r*XNP}")
    g.flag_add(F_XN, 3, 4)
    g.stamp(2)
    A("s_add_u32 s4, s79, 1"); A(f"s_mul_i32 s5, s4, 0x{TAGMUL:x}")
    A("v_lshrrev_b32 v12, 2, v5"); A("v_lshl_add_u32 v12, v6, 3, v12"); A("v_lshlrev_b32 v12, 7, v12")
    A("v_and_b32 v13, 3, v2")
    A("v_and_b32 v14, 7, v2")
    A("s_cmp_ge_u32 s3, 6"); A("s_cbranch_scc1 L_SX1")
    A("s_cmp_lg_u32 s3, 5"); A("s_cbranch_scc1 L_Ggo")
    A("s_cmp_lg_u32 s70, 7"); A("s_cbranch_scc1 L_Ggo")
    g.flag_add(F_W, 3, 4)
    g.flag_add(F_GD, 3, 4)
    A("s_branch L_G1post")
    lab("L_Ggo")
    A(f"v_mul_u32_u24 v11, {XNP}, v14"); A("v_lshl_add_u32 v11, v6, 4, v11")
    A("v_lshl_add_u32 v12, v13, 3, v12")
    A("s_lshl_b32 s68, s77, 14"); A("v_add_u32 v12, s68, v12")
    A("s_cmp_eq_u32 s3, 5"); A("s_cbranch_scc1 L_dstG")
    A("v_lshlrev_b32 v15, 8, v14"); A("v_lshl_add_u32 v15, v6, 4, v15")
    A("s_mov_b32 s8, s78"); A("s_add_u32 s9, s78, 64"); A("s_add_u32 s10, s78, 128"); A("s_add_u32 s11, s78, 192")
    A("s_branch L_dstJ")
    lab("L_dstG")
    A("v_and_b32 v15, 1, v6"); A("v_lshlrev_b32 v15, 10, v15"); A("v_lshrrev_b32 v9, 1, v6"); A("v_lshl_add_u32 v15, v9, 8, v15")
    A("v_lshl_add_u32 v15, v14, 4, v15")
    A("s_mov_b32 s8, s78"); A("s_add_u32 s9, s78, 512"); A("s_add_u32 s10, s78, 128"); A("s_add_u32 s11, s78, 640")
    lab("L_dstJ")
    for nt in range(4):
        A(f"v_mov_b32 v{113+4*nt}, s4"); A(f"v_mov_b32 v{115+4*nt}, s5")
    A(f"s_add_u32 s66, s78, {DUP}")
    g.flag_wait(F_XN, 4, 3, 10)
    XB = 16
    for t in range(4):
        A(f"ds_read_b128 v[{XB+4*t}:{XB+4*t+3}], v11 offset:{XN + t*64}")
    WB = 32
    for t in range(4):
        A(f"s_waitcnt vmcnt({12 - 4*t})")
        if t == 3:
            g.flag_add(F_W, 3, 4)
        for nt in range(4):
            r = WB + (t*4 + nt)*4
            off = W1T + t*4096 + nt*32
            A(f"ds_read_b64_tr_b16 v[{r}:{r+1}], v12 offset:{off}")
            A(f"ds_read_b64_tr_b16 v[{r+2}:{r+3}], v12 offset:{off+512}")
        A("s_waitcnt lgkmcnt(0)")
        for nt in range(4):
            r = WB + (t*4 + nt)*4
            d = 96 + nt*4
            cc = "0" if t == 0 else f"v[{d}:{d+3}]"
            A(f"v_mfma_f32_16x16x32_bf16 v[{d}:{d+3}], v[{r}:{r+3}], v[{XB+4*t}:{XB+4*t+3}], {cc}")
    g.stamp(3)
    g.flag_add(F_GD, 3, 4)
    exec_mask(0x00ff00ff)
    nop(2)
    for nt in range(4):
        A(f"v_cvt_pk_bf16_f32 v{112+4*nt}, v{96+4*nt}, v{97+4*nt}")
        A(f"v_cvt_pk_bf16_f32 v{114+4*nt}, v{98+4*nt}, v{99+4*nt}")
        if int(qdual): A(f"buffer_store_dwordx4 v[{112+4*nt}:{115+4*nt}], v15, s[52:55], s66 offen offset:{nt*512}")
        else: A(f"buffer_store_dwordx4 v[{112+4*nt}:{115+4*nt}], v15, s[52:55], s{8+nt} offen sc1")
    if int(qdual):
      for nt in range(4):
        A(f"buffer_store_dwordx4 v[{112+4*nt}:{115+4*nt}], v15, s[52:55], s78 offen offset:{nt*512} sc1")
    A("s_mov_b64 exec, -1")
    g.stamp(4)
    lab("L_Gpost")
    A("s_cmp_eq_u32 s3, 5"); A("s_cbranch_scc1 L_G1post")
    A("s_lshl_b32 s6, s70, 8"); A(f"s_add_u32 s6, s6, {FL_OFF}")
    A("s_getreg_b32 s7, hwreg(HW_REG_XCC_ID, 0, 4)")
    A("s_andn2_b32 s8, s5, 15"); A("s_or_b32 s8, s8, s7")
    A("v_and_b32 v19, 31, v2"); A("v_lshlrev_b32 v19, 3, v19")
    if int(tchunk): g.flag_wait(F_V0, int(tchunk), 3, 10)
    else: g.flag_wait(F_K2, 4, 3, 10)
    g.stamp(5)
    tokcheck(19, 6, 8)
    A("v_cmp_ne_u32 vcc, 0, v23")
    A("s_cmp_lg_u64 vcc, 0")
    A("s_cselect_b32 s8, 2, 1")
    A("v_mov_b32 v20, s8")
    A(f"ds_write_b32 v3, v20 offset:{F_TOK}")
    g.stamp(6)
    A("s_waitcnt lgkmcnt(0)")
    A("s_branch L_fin")
    lab("L_G1post")
    if cut:
        A("s_waitcnt lgkmcnt(0)"); A("s_branch L_fin")
    A("s_mov_b32 s60, s22"); A("s_mov_b32 s61, s23")
    A("s_lshl_b32 s68, s72, 10"); A("s_lshl_b32 s69, s70, 7"); A("s_add_u32 s68, s68, s69"); A("s_lshl_b32 s69, s73, 5")
    A("s_add_u32 s76, s68, s69")
    A("v_lshrrev_b32 v17, 1, v2"); A("v_and_b32 v16, 1, v2")
    A("v_lshlrev_b32 v19, 4, v16"); A("v_mov_b32 v20, 0x3f80"); A("v_lshlrev_b32 v20, v19, v20")
    A("v_bfe_u32 v19, v2, 1, 2")
    for e in range(4):
        A(f"v_cmp_eq_u32 vcc, {e}, v19")
        nop(2)
        A(f"v_cndmask_b32 v{40+e}, 0, v20, vcc")
    A("v_lshlrev_b32 v21, 4, v16"); A("v_lshl_add_u32 v21, v6, 3, v21")
    A("v_min_u32 v18, 27, v17")
    A("v_lshlrev_b32 v18, 13, v18"); A("v_lshl_add_u32 v18, v16, 4, v18")
    A("v_lshlrev_b32 v17, 13, v17"); A("v_lshl_add_u32 v17, v16, 4, v17")
    A(f"s_add_u32 s77, s76, {FP_OFF}"); A(f"s_add_u32 s78, s76, {SP_OFF}")
    A("buffer_load_dwordx2 v[44:45], v21, s[56:59], s76 offen")
    fm = int(fmode)
    if fm == 0:
        g.flag_wait(F_TOK, 1, 3, 10)
        g.flag_wait(F_V0, int(fchunk), 3, 10)
    elif fm == 1:
        g.flag_wait(F_TOK, 1, 3, 10)
        g.flag_wait(F_WO, 1, 3, 10)
    else:
        A("v_bfe_u32 v26, v2, 2, 3"); A("v_lshlrev_b32 v26, 8, v26"); A("v_and_b32 v27, 3, v2"); A("v_lshl_add_u32 v26, v27, 6, v26")
        A("s_lshl_b32 s6, s70, 3"); A(f"s_add_u32 s6, s6, {FL_OFF}")
        A("v_mov_b32 v28, v21")
        g.flag_wait(F_V0, int(t2chunk), 3, 10)
        tokcheck(26, 6, 5)
        A("v_mov_b32 v21, v28")
        A("s_waitcnt lgkmcnt(0)")
        A("s_barrier")
    g.stamp(5)
    g.poll(["buffer_load_dwordx4 v[32:35], v18, s[52:55], s77 offen sc1"], [32, 33, 34, 35], 10, sleep=int(fsl) if fm == 0 else int(fsl2))
    if fm == 2:
        A("buffer_load_dwordx4 v[56:59], v17, s[52:55], s78 offen sc1")
    g.stamp(6)
    def red_final(src=32):
        A(f"v_mfma_f32_16x16x32_bf16 v[36:39], v[40:43], v[{src}:{src+3}], 0")
        nop(8)
        for mod in ("row_ror:2", "row_ror:4", "row_ror:8"):
            for r in range(4):
                A(f"v_add_f32_dpp v{36+r}, v{36+r}, v{36+r} {mod} row_mask:0xf bank_mask:0xf")
    A("v_cmp_gt_u32 vcc, 56, v2")
    nop(2)
    for r in range(4):
        A(f"v_cndmask_b32 v{32+r}, 0, v{32+r}, vcc")
    nop(1)
    red_final()
    rbf([36, 37, 38, 39])
    silu([36, 37, 38, 39], 48)
    rbf([36, 37, 38, 39])
    for r in range(4): A(f"v_mov_b32 v{48+r}, v{36+r}")
    unpack(52, [44, 45])
    g.stamp(7)
    if fm != 2:
        A("s_waitcnt lgkmcnt(0)")
        A("s_barrier")
    g.poll(["buffer_load_dwordx4 v[56:59], v17, s[52:55], s78 offen sc1"], [56, 57, 58, 59], 10, preissued=(fm == 2), sleep=int(ssl))
    g.stamp(8)
    red_final(56)
    A("v_cvt_pk_bf16_f32 v32, v36, v37"); A("v_cvt_pk_bf16_f32 v33, v38, v39")
    unpack(36, [32, 33])
    A("v_pk_mul_f32 v[36:37], v[36:37], v[48:49]"); A("v_pk_mul_f32 v[38:39], v[38:39], v[50:51]")
    A("v_cvt_pk_bf16_f32 v32, v36, v37"); A("v_cvt_pk_bf16_f32 v33, v38, v39")
    unpack(36, [32, 33])
    A("v_pk_add_f32 v[36:37], v[36:37], v[52:53]"); A("v_pk_add_f32 v[38:39], v[38:39], v[54:55]")
    A("v_cvt_pk_bf16_f32 v32, v36, v37"); A("v_cvt_pk_bf16_f32 v33, v38, v39")
    A("s_mov_b64 exec, 0x30003")
    A("buffer_store_dwordx2 v[32:33], v21, s[60:63], s76 offen")
    A("s_mov_b64 exec, -1")
    g.stamp(9)
    A("s_cmp_lg_u32 s2, 0"); A("s_cbranch_scc1 L_fin")
    A("v_mov_b32 v32, s4")
    A(f"s_mov_b32 s68, {EP_OFF}")
    A("s_mov_b64 exec, 1")
    A("buffer_store_dword v32, v3, s[52:55], s68 offen sc1")
    A("s_mov_b64 exec, -1")
    A("s_branch L_fin")
    lab("L_load")
    A("s_setprio 2")
    A("v_lshrrev_b32 v8, 3, v2"); A("v_and_b32 v9, 7, v2"); A("v_lshlrev_b32 v9, 4, v9")
    A("v_lshlrev_b32 v16, 1, v6"); A("v_xor_b32 v16, v16, v5"); A("v_xor_b32 v17, 8, v16")
    A("v_lshlrev_b32 v16, 4, v16"); A("v_lshl_add_u32 v16, v6, 8, v16")
    A("v_lshlrev_b32 v17, 4, v17"); A("v_lshl_add_u32 v17, v6, 8, v17")
    A("s_mov_b32 s100, s64")
    A(f"s_mov_b32 s101, {VT}")
    A("v_lshl_add_u32 v18, v8, 10, v9")
    A("v_lshlrev_b32 v21, 5, v6"); A("v_xor_b32 v21, v21, v18")
    A("s_lshl_b32 s76, s74, 17"); A("s_lshl_b32 s68, s75, 7"); A("s_add_u32 s76, s76, s68")
    A(f"s_mov_b32 s77, {WOT}")
    A("s_lshl_b32 s78, s74, 16"); A("s_add_u32 s78, s78, s68")
    A(f"s_mov_b32 s79, {WDT}")
    A("s_waitcnt lgkmcnt(0)")
    for d, b_ in ((32, 8), (44, 12), (48, 20), (52, 26)):
        A(f"s_mov_b32 s{d}, s{b_}"); A(f"s_mov_b32 s{d+1}, s{b_+1}")
    A("s_barrier")
    if cut == 2:
        A("s_branch L_fin")
    if int(touch):
        A("s_mov_b64 exec, 1")
        A(f"buffer_load_dword v30, v3, s[44:47], s76 offen {g.ntw}")
        A(f"buffer_load_dword v31, v3, s[48:51], s78 offen {g.ntw}")
        if not int(vpre): A(f"buffer_load_dword v32, v3, s[32:35], s100 offen {g.ntkv}")
        A("s_mov_b64 exec, -1")
        A("s_waitcnt vmcnt(0)")
    if vdelay and not int(vpre):
        g.flag_wait(F_K2, 4, 3, 10)
    g.stamp(5)
    NV = 64
    dl = int(dlate)
    assert dl == 0
    seq = [("v", i) for i in range(wp)] + [("w", i) for i in range(16)] + [("v", i) for i in range(wp, NV)]
    NT = len(seq)
    marks = {}
    for k in range(8, NV + 1, 8): marks[k if k <= wp else k + 16] = ("V", k // 8)
    marks[wp + 16] = ("F", F_WO)
    def publish(k):
        if k in marks:
            kind, val = marks.pop(k)
            if kind == "V":
                A(f"v_mov_b32 v20, {val}")
                A(f"ds_write_b32 v3, v20 offset:{F_V0}")
            else:
                A(f"ds_write_b32 v3, v4 offset:{val}")
    for i, (kind, j) in enumerate(seq):
        if int(vpre) and i == int(vpre) and vdelay:
            g.flag_wait(F_K2, 4, 3, 10)
        if i >= vthr:
            A(f"s_waitcnt vmcnt({vthr-1})")
            publish(i - vthr + 1)
        if kind == "v":
            A("s_mov_b32 m0, s101")
            A("s_add_u32 s101, s101, 1024")
            A(f"buffer_load_dwordx4 v{16 + ((j >> 1) & 1)}, s[32:35], s100 offen {g.ntkv} lds")
            A("s_add_u32 s100, s100, 1024")
        elif kind == "w":
            A("s_mov_b32 m0, s77")
            A("s_add_u32 s77, s77, 1024")
            A(f"buffer_load_dwordx4 v21, s[44:47], s76 offen {g.ntw} lds")
            A("s_add_u32 s76, s76, 8192")
        else:
            A("s_mov_b32 m0, s79")
            A("s_add_u32 s79, s79, 1024")
            A(f"buffer_load_dwordx4 v18, s[48:51], s78 offen {g.ntw} lds")
            A("s_add_u32 s78, s78, 8192")
    g.stamp(6)
    for k in sorted(marks):
        A(f"s_waitcnt vmcnt({NT - k})")
        publish(k)
    g.stamp(7)
    A("s_waitcnt lgkmcnt(0)")
    A("s_branch L_fin")
    lab("L_SX1")
    A("s_cmp_eq_u32 s3, 7"); A("s_cbranch_scc1 L_X")
    A("s_getreg_b32 s6, hwreg(HW_REG_XCC_ID, 0, 4)")
    A("s_andn2_b32 s7, s5, 15"); A("s_or_b32 s7, s7, s6")
    A("v_mov_b32 v16, s4"); A("v_mov_b32 v17, s7")
    A("s_lshl_b32 s7, s70, 5"); A("s_add_u32 s7, s7, s71"); A("s_lshl_b32 s7, s7, 3"); A(f"s_add_u32 s7, s7, {FL_OFF}")
    A("s_waitcnt vmcnt(0)")
    A("s_mov_b64 exec, 1")
    A("buffer_store_dwordx2 v[16:17], v3, s[52:55], s7 offen sc1")
    A(f"ds_write_b32 v3, v16 offset:{F_EP}")
    A("s_mov_b64 exec, -1")
    g.stamp(1)
    if cut in (2, 3):
        A("s_branch L_fin")
    A("v_lshlrev_b32 v9, 11, v6"); A("v_lshl_add_u32 v9, v5, 4, v9")
    A("s_lshl_b32 s16, s70, 14"); A("s_lshl_b32 s69, s72, 8"); A("s_add_u32 s16, s16, s69"); A(f"s_add_u32 s16, s16, {QP_OFF}")
    for k in range(1, 8):
        A(f"s_add_u32 s{16+k}, s16, {(k>>1)*131072 + (k&1)*8192}")
    A("v_lshlrev_b32 v8, 3, v2")
    A("v_bfe_u32 v12, v2, 3, 2"); A("v_lshlrev_b32 v12, 17, v12"); A("v_lshl_add_u32 v12, v14, 11, v12")
    g.flag_wait(F_K, 4, 3, 10)
    g.stamp(7)
    if int(sample):
        tagpoll([f"buffer_load_dwordx4 v[16:19], v12, s[52:55], s16 offen offset:{3*512+48} sc1"], [16], 10, qsleep)
    g.stamp(8)
    tagpoll([f"buffer_load_dwordx4 v[{16+4*k}:{19+4*k}], v9, s[52:55], s{16+k} offen sc1" for k in range(8)],
            [16+4*k for k in range(8)], 10, qsleep, vaddr=9)
    g.stamp(3)
    if stamps and not only:
        A("s_waitcnt lgkmcnt(0)")
        A("s_sub_u32 s88, 0x3ffff, s15"); A("s_mul_i32 s88, s88, 10"); A("s_add_u32 s88, s88, s80"); A("s_mov_b32 s89, s81")
    for k in range(8):
        unpack(48 + 4*k, [16+4*k, 18+4*k])
    for i in range(2):
        for e in range(4):
            A(f"v_add_f32 v{48+4*i+e}, v{48+4*i+e}, v{56+4*i+e}"); A(f"v_add_f32 v{64+4*i+e}, v{64+4*i+e}, v{72+4*i+e}")
    for e in range(8):
        A(f"v_add_f32 v{48+e}, v{48+e}, v{64+e}")
    for e in range(4):
        A(f"v_cvt_pk_bf16_f32 v{16+e}, v{48+2*e}, v{49+2*e}")
    A(f"ds_write_b64 v8, v[16:17] offset:{QL}")
    A(f"ds_write_b64 v8, v[18:19] offset:{QL+512}")
    g.flag_add(F_Q, 3, 4)
    g.stamp(5)
    if cut == 4:
        A("s_branch L_fin")
    A("v_lshlrev_b32 v8, 3, v2"); A("v_lshlrev_b32 v9, 4, v13")
    A("s_lshl_b32 s6, s70, 12"); A(f"s_add_u32 s6, s6, {ML_OFF}")
    A("s_lshl_b32 s68, s71, 7"); A("s_add_u32 s68, s68, s6")
    A(f"s_mov_b32 s78, 0x{f32bits(LOG2E * (128 ** -0.5)):08x}")
    A("v_and_b32 v12, 31, v2"); A("v_lshlrev_b32 v11, 2, v12"); A("v_lshlrev_b32 v12, 7, v12")
    A("s_lshr_b32 s69, s71, 3"); A("s_lshl_b32 s69, s69, 3"); A("s_add_u32 s6, s6, s69")
    g.flag_wait(F_ML, 4, 3, 10)
    A(f"ds_read_b128 v[16:19], v9 offset:{MX}")
    A(f"ds_read_b128 v[20:23], v9 offset:{LL}")
    A("s_waitcnt lgkmcnt(0)")
    A("v_max3_f32 v24, v16, v17, v18"); A("v_max_f32 v24, v24, v19"); A("v_mul_f32 v24, s78, v24")
    A("v_add_f32 v25, v20, v21"); A("v_add_f32 v26, v22, v23"); A("v_add_f32 v25, v25, v26")
    A("v_min_u32 v24, -2, v24"); A("v_min_u32 v25, -2, v25")
    A("s_lshl_b32 s69, s70, 10"); A("s_lshl_b32 s7, s71, 3"); A("s_add_u32 s69, s69, s7"); A(f"s_add_u32 s69, s69, {MLD_OFF}")
    A("v_lshlrev_b32 v10, 8, v2")
    A("s_mov_b64 exec, 15")
    A("buffer_store_dwordx2 v[24:25], v10, s[52:55], s69 offen")
    A("buffer_store_dwordx2 v[24:25], v8, s[52:55], s68 offen sc1")
    A("s_mov_b64 exec, -1")
    g.stamp(6)
    if stamps:
        A("s_waitcnt vmcnt(0)")
        g.stamp(9)
    A("s_branch L_fin")
    lab("L_X")
    if cut in (2, 3, 4):
        A("s_branch L_fin")
    down_ids(6, 7, "L_fin")
    NSUB = 2 if dshift else 1
    assert not (dshift and int(fpfull))
    A(f"v_lshl_add_u32 v12, v13, {4 if int(fpfull) else 5}, v12")
    A("v_lshl_add_u32 v10, v8, 10, v9")
    A("s_lshl_b32 s100, s6, 16"); A("s_lshl_b32 s69, s7, 7"); A("s_add_u32 s100, s100, s69")
    A("v_mov_b32 v11, v7")
    A("s_lshl_b32 s76, s6, 11"); A(f"s_add_u32 s76, s76, {GP_OFF}")
    if int(fpfull):
        A("v_lshlrev_b32 v15, 10, v14"); A("v_lshl_add_u32 v15, v6, 4, v15"); A("v_bfe_u32 v9, v2, 3, 1"); A("v_lshl_add_u32 v15, v9, 6, v15")
    else:
        A("v_lshlrev_b32 v15, 10, v14"); A("v_lshl_add_u32 v15, v6, 5, v15")
    A("s_lshl_b32 s78, s6, 13"); A("s_add_u32 s78, s78, s69"); A(f"s_add_u32 s78, s78, {FP_OFF}")
    for p in range(8):
        A(f"s_add_u32 s{16+p}, s76, {p*28*2048}")
    if int(xtrig) == 0: g.flag_wait(F_K, 4, 3, 9)
    elif int(xtrig) == 1: g.flag_wait(F_Q, 1, 3, 9)
    else: g.flag_wait(F_K2, 4, 3, 9)
    g.flag_wait(F_GD, 2, 3, 9)
    A(f"s_mov_b32 s68, {WDT}"); A(f"s_mov_b32 s69, {WDT2}"); A("s_add_u32 s101, s100, 128")
    for i in range(8):
        A("s_mov_b32 m0, s68")
        A("s_add_u32 s68, s68, 1024")
        A(f"buffer_load_dwordx4 v10, s[48:51], s100 offen {g.ntw} lds")
        A("s_add_u32 s100, s100, 8192")
        if dshift:
            A("s_mov_b32 m0, s69")
            A("s_add_u32 s69, s69, 1024")
            A(f"buffer_load_dwordx4 v10, s[48:51], s101 offen {g.ntw} lds")
            A("s_add_u32 s101, s101, 8192")
    lds_ = []
    for p in range(8):
        lds_.append(f"buffer_load_dwordx4 v[{16+8*p}:{19+8*p}], v11, s[52:55], s{16+p} offen sc1")
        lds_.append(f"buffer_load_dwordx4 v[{20+8*p}:{23+8*p}], v11, s[52:55], s{16+p} offen offset:1024 sc1")
    tagpoll(lds_, [16+4*k for k in range(16)], 8, qsleep, vaddr=11)
    g.stamp(5)
    if stamps and not only:
        A("s_waitcnt lgkmcnt(0)")
        A("s_sub_u32 s88, 0x3ffff, s15"); A("s_mul_i32 s88, s88, 10"); A("s_add_u32 s88, s88, s80"); A("s_mov_b32 s89, s81")
    WD = 128
    for p in range(8):
        unpack(80 + 8*p, [16+8*p, 18+8*p, 20+8*p, 22+8*p])
    for mat in range(2):
        b0 = 80 + mat*32
        for e in range(8):
            A(f"v_add_f32 v{b0+e}, v{b0+e}, v{b0+8+e}"); A(f"v_add_f32 v{b0+16+e}, v{b0+16+e}, v{b0+24+e}")
        for e in range(8):
            A(f"v_add_f32 v{b0+e}, v{b0+e}, v{b0+16+e}")
    rbf(list(range(80, 88)) + list(range(112, 120)))
    silu(list(range(80, 88)), 88)
    rbf(list(range(80, 88)))
    for e in range(8):
        A(f"v_mul_f32 v{80+e}, v{80+e}, v{112+e}")
    for e in range(4):
        A(f"v_cvt_pk_bf16_f32 v{16+e}, v{80+2*e}, v{81+2*e}")
    g.flag_wait(F_Q, 1, 3, 9)
    for sub in range(NSUB):
        base = (WDT, WDT2)[sub]
        WD = (128, 80)[sub]
        for t in range(2):
            for nt in range(4):
                r = WD + (t*4 + nt)*4
                off = base + t*4096 + (((nt & 1)*8 + (nt >> 1)*64) if int(fpfull) else nt*8)
                A(f"ds_read_b64_tr_b16 v[{r}:{r+1}], v12 offset:{off}")
                A(f"ds_read_b64_tr_b16 v[{r+2}:{r+3}], v12 offset:{off+512}")
    A("s_waitcnt lgkmcnt(0)")
    for sub in range(NSUB):
        WD = (128, 80)[sub]
        for t in range(2):
            for nt in range(4):
                r = WD + (t*4 + nt)*4
                d = 32 + t*16 + nt*4
                A(f"v_mfma_f32_16x16x32_bf16 v[{d}:{d+3}], v[{r}:{r+3}], v[16:19], 0")
        nop(8)
        if int(fpfull):
            for e in range(8):
                A(f"v_add_f32_dpp v{64+e}, v{48+e}, v{32+e} row_ror:8 row_mask:0xf bank_mask:0x3")
                A(f"v_add_f32_dpp v{64+e}, v{40+e}, v{56+e} row_ror:8 row_mask:0xf bank_mask:0xc")
            for e in range(4):
                A(f"v_cvt_pk_bf16_f32 v{72+e}, v{64+2*e}, v{65+2*e}")
            for e in range(4):
                A(f"v_min_u32 v{72+e}, -2, v{72+e}")
            A("buffer_store_dwordx4 v[72:75], v15, s[52:55], s78 offen sc1")
            continue
        for e in range(16):
            A(f"v_add_f32_dpp v{32+e}, v{48+e}, v{32+e} row_ror:8 row_mask:0xf bank_mask:0xf")
        o = 64 + 8*sub
        for e in range(8):
            A(f"v_cvt_pk_bf16_f32 v{o+e}, v{32+2*e}, v{33+2*e}")
        for e in range(8):
            A(f"v_min_u32 v{o+e}, -2, v{o+e}")
        exec_mask(0x00ff00ff)
        A(f"buffer_store_dwordx4 v[{o}:{o+3}], v15, s[52:55], s78 offen offset:{128*sub} sc1")
        A(f"buffer_store_dwordx4 v[{o+4}:{o+7}], v15, s[52:55], s78 offen offset:{128*sub+16} sc1")
        A("s_mov_b64 exec, -1")
    g.stamp(6)
    lab("L_fin")
    g.stamp_flush()
    lab("L_end")
    A("s_endpgm")
    tail = ['.section .rodata,"a"', ".p2align 6", f".amdhsa_kernel {KN}",
            "  .amdhsa_next_free_vgpr 168", "  .amdhsa_next_free_sgpr 102", "  .amdhsa_accum_offset 168",
            "  .amdhsa_group_segment_fixed_size 0", "  .amdhsa_kernarg_size 96", "  .amdhsa_user_sgpr_count 2",
            "  .amdhsa_user_sgpr_kernarg_segment_ptr 1", "  .amdhsa_system_sgpr_workgroup_id_x 1",
            "  .amdhsa_float_denorm_mode_32 3",
            ".end_amdhsa_kernel"]
    return "\n".join(hdr + g.L + tail) + "\n"

if __name__ == "__main__":
    out = sys.argv[1] if len(sys.argv) > 1 else "recurrent_scan__sliding_block_cached__swiglu_ffn__decode.s"
    stamps = "--stamps" in sys.argv
    kw = {}
    for a in sys.argv[2:]:
        if "=" in a:
            k, v = a.split("=", 1); kw[k] = v
    open(out, "w").write(build(stamps=stamps, **kw))
```

```python
import sys, struct
from gen import G, f32bits, KN

QP_OFF = 0x00000
GP_OFF = 0x80000
O_OFF = 0xF0000
ML_OFF = 0x1C0000
SP_OFF = 0x132000
FP_OFF = 0x172000
FL_OFF = 0x1B0000
EP_OFF = 0x1B8000
TAGMUL = 0x9E3779B1
MLD_OFF = 0x3E0000
DUP = 0x200000
STAMP_OFF = 0x1000000
F_XN, F_Q, F_W, F_MX, F_ML, F_K, F_V0, F_V1, F_PUB, F_K2, F_WO, F_WT, F_WD, F_EP = 0, 4, 8, 12, 16, 20, 24, 28, 32, 36, 40, 44, 48, 60
F_TOK = F_V1
F_GD = 52
WDT2 = 30720 + 20480
WT = 2432
MX = 64; LL = 128; GL = 192
XN = 256; XNP = 272
QL = 2560
PL = 3584; PLP = 528
WOT = 6144
WDT = 22528
W1T = 30720
RED = W1T
VT = 63488
LDS_BYTES = 129024
LOG2E = 1.4426950408889634

def build(stamps=False, ntkv="nt", ntw="nt", thr=8, vthr=48, kdelay=0, vdelay=1, qsleep=2, cut=0, sample=0, dyn=1, vthr2=40, noclr=0, nost=0, kq=13, kv=16, wolate=0, dbgspan=0, mlchunk=6, xtrig=0, osleep=0, mlsleep=2, only='', bmask=7, qdual=0, dlate=0, tailst=0, olate=1, mlrep=1, dshift=0, spx4=1, vpre=0, touch=0, kearly=0, fmap=1, fchunk=6, fsl=4, fmode=2, wopos=64, wread=7, ssl=0, tchunk=0, t2chunk=7, fpfull=1, fsl2=2, gfull=1, mlfull=1):
    wp = int(wopos); wread = int(wread)
    dshift = int(dshift)
    tailst = int(tailst)
    kq = int(kq); kv = int(kv); wolate = int(wolate)
    g = G(stamps, ntkv, ntw, thr)
    g.nwaves = 9
    g.only = [int(c) for c in only] if only else None
    vthr = int(vthr); kdelay = int(kdelay); vdelay = int(vdelay); qsleep = int(qsleep); cut = int(cut)
    A = g.A; lab = g.lab; nop = g.nop
    hdr = ["; Fused decode block: LN -> (GQA attention over the last 1024 cached keys -> wo) * silu(SwiGLU FFN) + x",
           "; kernarg: x, k_cache, v_cache, wq, wo, B_x(unused), w_gate, w_up, w_down, out, debug, ws (8-byte pointers)",
           "; One persistent launch, 256 workgroups x 9 waves (generated by gen/gen23.py (gen20 lineage)):",
           ";   waves 0-3 attention + wo stage, 4/5 q / gate-up split-K tiles (5: final stage), 6 clears + q gather,",
           ";   7 down projection, 8 V / wo LDS-DMA loader.  Hand-offs go through ws: launch-tagged granules",
           ";   (tag = epoch word + 1) or sentinel words cleared by their producer and confirmed by tagged tokens.",
           f"; @launch grid=(256,1,1) block=(576,1,1) lds={LDS_BYTES}",
           '.amdgcn_target "amdgcn-amd-amdhsa--gfx950"', ".text", f".globl {KN}", ".p2align 8",
           f".type {KN},@function", f"{KN}:"]
    def rbf(regs):
        for r in regs: A(f"v_cvt_pk_bf16_f32 v{r}, v{r}, v{r}")
        for r in regs: A(f"v_and_b32 v{r}, 0xffff0000, v{r}")
    def unpack(dst, srcs):
        for e, sr in enumerate(srcs):
            A(f"v_lshlrev_b32 v{dst+2*e}, 16, v{sr}")
            A(f"v_and_b32 v{dst+2*e+1}, 0xffff0000, v{sr}")
    def silu(regs, tmp):
        A(f"s_mov_b32 s68, 0x{f32bits(-LOG2E):08x}")
        for i, r in enumerate(regs): A(f"v_mul_f32 v{tmp+i}, s68, v{r}")
        for i, r in enumerate(regs): A(f"v_exp_f32 v{tmp+i}, v{tmp+i}")
        nop(1)
        for i, r in enumerate(regs): A(f"v_add_f32 v{tmp+i}, 1.0, v{tmp+i}")
        for i, r in enumerate(regs): A(f"v_rcp_f32 v{tmp+i}, v{tmp+i}")
        nop(1)
        for i, r in enumerate(regs): A(f"v_mul_f32 v{r}, v{r}, v{tmp+i}")
    def exec_mask(m):
        A(f"s_mov_b32 exec_lo, 0x{m:08x}"); A(f"s_mov_b32 exec_hi, 0x{m:08x}")
    def tagpoll(loads, quads, vt, sleep, vaddr=None):
        l = g.newlab("TP"); d = g.newlab("TD")
        A("s_mov_b32 s15, 0x3ffff")
        if vaddr is not None and int(qdual):
            A(f"v_add_u32 v{vaddr}, 0x{DUP:x}, v{vaddr}")
        lab(l)
        for s_ in loads: A(s_)
        if vaddr is not None and int(qdual):
            A("s_and_b32 s14, s15, 3"); A("s_cmp_lt_u32 s14, 2")
            A(f"s_cselect_b32 s14, 0x{DUP:x}, 0")
            A(f"v_xor_b32 v{vaddr}, s14, v{vaddr}")
        A("s_waitcnt vmcnt(0)")
        first = True
        for q in quads:
            if first:
                A(f"v_xor_b32 v{vt}, s4, v{q+1}"); first = False
            else:
                A(f"v_xor_b32 v{vt+1}, s4, v{q+1}"); A(f"v_or_b32 v{vt}, v{vt}, v{vt+1}")
            A(f"v_xor_b32 v{vt+1}, s5, v{q+3}"); A(f"v_or_b32 v{vt}, v{vt}, v{vt+1}")
        A(f"v_cmp_ne_u32 vcc, 0, v{vt}")
        A("s_and_b64 exec, exec, vcc"); A(f"s_cbranch_scc0 {d}")
        if sleep: A(f"s_sleep {sleep}")
        A("s_sub_u32 s15, s15, 1"); A("s_cmp_lg_u32 s15, 0"); A(f"s_cbranch_scc1 {l}")
        lab(d)
        A("s_mov_b64 exec, -1")
    def down_ids(skb, scg, none):
        if dshift:
            A("s_cmp_ge_u32 s70, 4"); A(f"s_cbranch_scc1 {none}")
            A("s_cmp_ge_u32 s71, 28"); A(f"s_cbranch_scc1 {none}")
            A(f"s_mul_i32 s{scg}, s70, 28"); A(f"s_add_u32 s{scg}, s{scg}, s71")
            A(f"s_lshr_b32 s{skb}, s{scg}, 2"); A(f"s_and_b32 s{scg}, s{scg}, 3"); A(f"s_lshl_b32 s{scg}, s{scg}, 1")
        else:
            A("s_cmp_eq_u32 s70, 7"); A(f"s_cbranch_scc1 {none}")
            A(f"s_mov_b32 s{skb}, s74"); A(f"s_mov_b32 s{scg}, s75")
    def tokcheck(va, sb, sw1):
        l = g.newlab("TK"); d = g.newlab("TKD")
        A("s_mov_b32 s15, 0x40000")
        lab(l)
        A(f"buffer_load_dwordx2 v[20:21], v{va}, s[52:55], s{sb} offen sc1")
        A("s_waitcnt vmcnt(0)")
        A("v_xor_b32 v22, s4, v20"); A(f"v_xor_b32 v23, s{sw1}, v21")
        A("v_and_b32 v24, -16, v23"); A("v_or_b32 v24, v24, v22")
        A("v_cmp_ne_u32 vcc, 0, v24")
        A("s_and_b64 exec, exec, vcc"); A(f"s_cbranch_scc0 {d}")
        A("s_sleep 8")
        A("s_sub_u32 s15, s15, 1"); A("s_cmp_lg_u32 s15, 0"); A(f"s_cbranch_scc1 {l}")
        lab(d)
        A("s_mov_b64 exec, -1")
    A("s_cmp_ge_u32 s2, 256"); A("s_cbranch_scc1 L_end")
    A("s_load_dwordx16 s[4:19], s[0:1], 0")
    A("s_load_dwordx8 s[20:27], s[0:1], 64")
    g.stamp(0)
    if int(dbgspan): A("s_memrealtime s[98:99]")
    A("v_lshrrev_b32 v1, 6, v0")
    A("v_and_b32 v2, 63, v0")
    A("v_readfirstlane_b32 s3, v1")
    A("v_mov_b32 v3, 0"); A("v_mov_b32 v4, 1")
    A("v_and_b32 v5, 15, v2"); A("v_lshrrev_b32 v6, 4, v2")
    for d, n in ((28, 67108864), (32, 67108864), (44, 4194304), (48, 1835008), (52, 268435456), (56, 8192), (60, 8192)):
        A(f"s_mov_b32 s{d+2}, {n}"); A(f"s_mov_b32 s{d+3}, 0x00020000")
    A("s_mov_b32 s39, 0x00020000")
    A("s_and_b32 s70, s2, 7")
    A("s_lshr_b32 s71, s2, 3")
    A("s_lshr_b32 s72, s71, 2")
    A("s_and_b32 s73, s71, 3")
    A("s_lshl_b32 s74, s70, 2"); A("s_lshr_b32 s68, s71, 3"); A("s_add_u32 s74, s74, s68")
    A("s_and_b32 s75, s71, 7")
    A("s_lshl_b32 s64, s72, 3"); A("s_add_u32 s64, s64, s70"); A("s_lshl_b32 s64, s64, 20")
    A("s_lshl_b32 s68, s73, 16"); A("s_add_u32 s64, s64, s68"); A(f"s_add_u32 s64, s64, {3072*256}")
    A("s_cmp_ge_u32 s3, 4"); A("s_cbranch_scc1 L_H")

    KR = 16; QF = 80; SR = 96; PP = 112; ACC = 120
    PBF = 16
    VF = 48
    A("s_lshl_b32 s68, s3, 14"); A("s_add_u32 s76, s64, s68")
    for i in range(1, 4):
        A(f"s_add_u32 s{76+i}, s76, {i*4096}")
    A("v_lshlrev_b32 v7, 8, v5"); A("v_lshl_add_u32 v7, v6, 4, v7")
    A("s_waitcnt lgkmcnt(0)")
    for d, b in ((28, 6), (52, 26), (56, 4), (60, 22)):
        A(f"s_mov_b32 s{d}, s{b}"); A(f"s_mov_b32 s{d+1}, s{b+1}")
    if not int(kearly): A("s_barrier")
    if kdelay:
        g.flag_wait(F_W, 2, 3, 10)
    n = 0
    for T in range(4):
        for t in range(4):
            r = KR + (T*4 + t)*4
            if int(kearly) and n == int(kearly): A("s_barrier")
            if g.thr and n >= g.thr: A(f"s_waitcnt vmcnt({g.thr-1})")
            A(f"buffer_load_dwordx4 v[{r}:{r+3}], v7, s[28:31], s{76+T} offen offset:{t*64} {g.ntkv}"); n += 1
            if n == kv: g.flag_add(F_K2, 3, 4)
            if n == kq: g.flag_add(F_K, 3, 4)
    if not tailst: g.stamp(1)
    if cut:
        A("s_waitcnt vmcnt(0)"); g.stamp(2); A("s_branch L_fin")
    A(f"s_mov_b32 s78, 0x{f32bits(LOG2E * (128 ** -0.5)):08x}")
    A("v_and_b32 v11, 3, v2")
    A("v_lshlrev_b32 v12, 8, v11"); A("v_lshl_add_u32 v12, v6, 4, v12")
    A("v_lshlrev_b32 v13, 4, v11")
    A("s_lshl_b32 s68, s3, 2"); A("v_add_u32 v14, s68, v13")
    A(f"v_mul_u32_u24 v8, {PLP}, v11"); A("v_lshl_add_u32 v9, v6, 4, v8")
    A("v_lshl_add_u32 v8, v6, 3, v8"); A("s_lshl_b32 s68, s3, 7"); A("v_add_u32 v8, s68, v8")
    A("v_lshrrev_b32 v124, 2, v5")
    A("v_and_b32 v125, 1, v6"); A("v_lshl_add_u32 v125, v125, 2, v124"); A("v_lshlrev_b32 v125, 1, v125")
    A("v_lshrrev_b32 v126, 1, v11"); A("s_lshl_b32 s68, s3, 2"); A("v_add_u32 v126, s68, v126"); A("v_xor_b32 v126, v126, v125")
    A("v_lshlrev_b32 v126, 4, v126"); A("v_and_b32 v125, 1, v2"); A("v_lshl_add_u32 v126, v125, 3, v126")
    A("v_lshl_add_u32 v125, v6, 3, v124"); A("v_lshl_add_u32 v126, v125, 8, v126")
    A("v_xor_b32 v127, 32, v126")
    A(f"v_add_u32 v126, {VT}, v126"); A(f"v_add_u32 v127, {VT}, v127")
    A("v_lshlrev_b32 v125, 6, v11"); A("v_lshl_add_u32 v125, v6, 4, v125")
    A("s_lshl_b32 s79, s70, 2"); A("s_add_u32 s79, s79, s73"); A("s_lshl_b32 s79, s79, 3"); A("s_add_u32 s79, s79, s72")
    A("s_lshl_b32 s79, s79, 2"); A("s_add_u32 s79, s79, s3"); A("s_lshl_b32 s79, s79, 8"); A(f"s_add_u32 s79, s79, {O_OFF}")
    g.flag_wait(F_Q, 1, 3, 10)
    if not tailst: g.stamp(2)
    for t in range(4):
        A(f"ds_read_b128 v[{QF+4*t}:{QF+4*t+3}], v12 offset:{QL + t*64}")
    A("s_waitcnt lgkmcnt(0)")
    for T in range(4):
        A(f"s_waitcnt vmcnt({12 - 4*T})")
        for t in range(4):
            r = KR + (T*4 + t)*4
            cc = "0" if t == 0 else f"v[{SR+4*T}:{SR+4*T+3}]"
            A(f"v_mfma_f32_16x16x32_bf16 v[{SR+4*T}:{SR+4*T+3}], v[{r}:{r+3}], v[{QF+4*t}:{QF+4*t+3}], {cc}")
    nop(4)
    A(f"v_max3_f32 v10, v{SR}, v{SR+1}, v{SR+2}")
    for i in range(3, 11, 2):
        A(f"v_max3_f32 v10, v10, v{SR+i}, v{SR+i+1}")
    A(f"v_max_f32 v10, v10, v{SR+11}")
    A(f"v_max3_f32 v10, v10, v{SR+12}, v{SR+13}")
    A(f"v_max3_f32 v10, v10, v{SR+14}, v{SR+15}")
    g.xrow("v_max_f32", [10], [15])
    A("s_mov_b64 exec, 15")
    A(f"ds_write_b32 v14, v10 offset:{MX}")
    g.flag_add(F_MX, 3, 4)
    g.flag_wait(F_MX, 4, 3, 15, sleep=False)
    A(f"ds_read_b128 v[{PP}:{PP+3}], v13 offset:{MX}")
    A("s_waitcnt lgkmcnt(0)")
    A(f"v_max3_f32 v10, v{PP}, v{PP+1}, v{PP+2}"); A(f"v_max_f32 v10, v10, v{PP+3}")
    A("v_mul_f32 v10, s78, v10")
    for i in range(16):
        A(f"v_fma_f32 v{SR+i}, v{SR+i}, s78, -v10")
    for i in range(16):
        A(f"v_exp_f32 v{SR+i}, v{SR+i}")
    nop(1)
    for i in range(8):
        A(f"v_cvt_pk_bf16_f32 v{PP+i}, v{SR+2*i}, v{SR+2*i+1}")
    exec_mask(0x000F000F)
    for T in range(4):
        A(f"ds_write_b64 v8, v[{PP+2*T}:{PP+2*T+1}] offset:{PL + T*32}")
    A("s_mov_b64 exec, -1")
    A(f"v_add_f32 v10, v{SR}, v{SR+1}"); A(f"v_add_f32 v15, v{SR+2}, v{SR+3}")
    for i in range(4, 16, 2):
        A(f"v_add_f32 v10, v10, v{SR+i}"); A(f"v_add_f32 v15, v15, v{SR+i+1}")
    A("v_add_f32 v10, v10, v15")
    g.xrow("v_add_f32", [10], [15])
    A("s_mov_b64 exec, 15")
    A(f"ds_write_b32 v14, v10 offset:{LL}")
    g.flag_add(F_ML, 3, 4)
    g.flag_wait(F_ML, 4, 3, 15, sleep=False)
    for t in range(8):
        A(f"ds_read_b128 v[{PBF+4*t}:{PBF+4*t+3}], v9 offset:{PL + t*64}")
    if not tailst: g.stamp(3)
    A("s_lshl_b32 s68, s3, 4"); A("v_mov_b32 v113, s68")
    A(f"ds_read_b128 v[116:119], v113 offset:{MX}")
    A(f"ds_read_b128 v[120:123], v113 offset:{LL}")
    A("s_waitcnt lgkmcnt(0)")
    A("v_max3_f32 v114, v116, v117, v118"); A("v_max_f32 v114, v114, v119"); A("v_mul_f32 v114, s78, v114")
    A("v_add_f32 v115, v120, v121"); A("v_add_f32 v116, v122, v123"); A("v_add_f32 v115, v115, v116")
    A("v_min_u32 v114, -2, v114"); A("v_min_u32 v115, -2, v115")
    A("s_lshl_b32 s36, s70, 2"); A("s_add_u32 s36, s36, s3"); A("s_lshl_b32 s36, s36, 8"); A("s_lshl_b32 s68, s71, 3"); A("s_add_u32 s36, s36, s68")
    A(f"s_add_u32 s36, s36, {MLD_OFF}")
    A("s_lshl_b32 s37, s70, 5"); A("s_add_u32 s37, s37, s71"); A("s_lshl_b32 s37, s37, 7"); A("s_lshl_b32 s68, s3, 3"); A("s_add_u32 s37, s37, s68")
    A(f"s_add_u32 s37, s37, {ML_OFF}")
    A("v_and_b32 v100, 7, v2")
    A("v_lshl_add_u32 v101, v6, 2, v124"); A("v_bfe_u32 v109, v101, 1, 2"); A("v_lshlrev_b32 v101, 7, v101")
    A("v_lshl_add_u32 v101, v109, 5, v101"); A("v_lshl_add_u32 v101, v11, 3, v101")
    A("s_and_b32 s68, s3, 1"); A("s_lshl_b32 s69, s68, 13"); A("v_add_u32 v101, s69, v101")
    A("v_xor_b32 v109, 32, v101"); A("v_xor_b32 v110, 64, v101"); A("v_xor_b32 v111, 0x60, v101")
    A("v_lshlrev_b32 v102, 10, v5"); A("v_lshl_add_u32 v102, v6, 4, v102")
    A("s_lshl_b32 s77, s70, 15"); A("s_lshr_b32 s69, s3, 1"); A("s_lshl_b32 s69, s69, 14"); A("s_add_u32 s77, s77, s69")
    A("s_lshl_b32 s68, s68, 9"); A("s_add_u32 s77, s77, s68")
    A("s_lshr_b32 s68, s71, 3"); A("s_lshl_b32 s68, s68, 6"); A("s_add_u32 s77, s77, s68"); A(f"s_add_u32 s77, s77, {O_OFF}")
    A("v_bfe_u32 v103, v2, 3, 1"); A("s_lshl_b32 s68, s3, 1"); A("v_add_u32 v104, s68, v103"); A("v_mul_u32_u24 v104, 2176, v104")
    A("v_mul_u32_u24 v105, 272, v100"); A("v_add_u32 v104, v104, v105"); A("v_lshl_add_u32 v104, v6, 4, v104")
    A("s_and_b32 s69, s3, 2"); A("v_add_u32 v103, s69, v103"); A("v_lshl_add_u32 v103, v103, 4, v5"); A("v_lshlrev_b32 v103, 2, v103")
    A("v_lshl_add_u32 v108, v100, 2, v6"); A("v_lshlrev_b32 v108, 7, v108")
    A("s_lshl_b32 s65, s70, 12"); A("s_lshr_b32 s69, s71, 3"); A("s_lshl_b32 s69, s69, 3"); A("s_add_u32 s65, s65, s69"); A(f"s_add_u32 s65, s65, {ML_OFF}")
    A("v_lshrrev_b32 v105, 5, v2"); A("v_add_u32 v106, s68, v105"); A("v_mul_u32_u24 v106, 272, v106")
    A("v_and_b32 v107, 31, v2"); A("v_lshl_add_u32 v106, v107, 3, v106")
    A("v_lshlrev_b32 v105, 10, v105"); A("v_lshl_add_u32 v105, v107, 2, v105")
    A("s_lshl_b32 s78, s74, 3"); A("s_add_u32 s78, s78, s68"); A("s_lshl_b32 s78, s78, 10")
    A("s_lshl_b32 s69, s75, 7"); A("s_add_u32 s78, s78, s69"); A(f"s_add_u32 s78, s78, {SP_OFF}")
    A(f"s_add_u32 s66, s79, {DUP}"); A(f"s_add_u32 s67, s77, {DUP}"); A("s_lshl_b32 s40, s74, 8"); A(f"s_add_u32 s40, s40, {MLD_OFF}"); A("v_lshrrev_b32 v112, 4, v108")
    A("s_mov_b32 s76, 0")
    A("s_waitcnt lgkmcnt(0)")
    def pv_mfma(t):
        vf = 128 + (t & 3)*8
        for nt in range(2):
            acc = 64 + 4*nt
            cc = "0" if t == 0 else f"v[{acc}:{acc+3}]"
            A(f"v_mfma_f32_16x16x32_bf16 v[{acc}:{acc+3}], v[{vf+4*nt}:{vf+4*nt+3}], v[{PBF+4*t}:{PBF+4*t+3}], {cc}")
    def bf(nt, t):
        i = nt*2 + t
        return 48 + 4*i if i < 4 else 80 + 4*(i - 4)
    def wo_frags():
        for nt in range(4):
            for t2 in range(2):
                r = bf(nt, t2)
                off = WOT + t2*4096
                va = (101, 109, 110, 111)[nt]
                A(f"ds_read_b64_tr_b16 v[{r}:{r+1}], v{va} offset:{off}")
                A(f"ds_read_b64_tr_b16 v[{r+2}:{r+3}], v{va} offset:{off + 2048}")
    for t in range(8):
        lw = g.newlab("VW"); lr = g.newlab("VR")
        if wp < 64 and t == wread:
            g.flag_wait(F_WO, 1, 3, 10, sleep=False)
            wo_frags()
            A("s_waitcnt lgkmcnt(0)")
        A(f"s_cmp_gt_u32 s76, {t}"); A(f"s_cbranch_scc1 {lr}")
        A("s_mov_b32 s15, 0x400000")
        lab(lw)
        A(f"ds_read_b64 v[{SR}:{SR+1}], v3 offset:{F_V0}")
        A("s_waitcnt lgkmcnt(0)")
        A(f"v_add_u32 v{SR+1}, 7, v{SR+1}")
        A(f"v_min_u32 v{SR}, v{SR}, v{SR+1}")
        A(f"v_readfirstlane_b32 s41, v{SR+1}")
        A("s_sub_u32 s15, s15, 1")
        A(f"v_readfirstlane_b32 s76, v{SR}")
        A("s_cmp_eq_u32 s15, 0"); A(f"s_cbranch_scc1 {lr}")
        A(f"s_cmp_gt_u32 s76, {t}"); A(f"s_cbranch_scc0 {lw}")
        lab(lr)
        vf = 128 + (t & 3)*8
        for nt in range(2):
            A(f"ds_read_b64_tr_b16 v[{vf+4*nt}:{vf+4*nt+1}], v{126+nt} offset:{t*8192}")
            A(f"ds_read_b64_tr_b16 v[{vf+4*nt+2}:{vf+4*nt+3}], v{126+nt} offset:{t*8192 + 1024}")
        if t >= 2:
            A("s_waitcnt lgkmcnt(8)")
            pv_mfma(t - 2)
    A("s_cmp_eq_u32 s41, 8")
    A("s_cselect_b32 s67, s67, s77"); A("s_cselect_b32 s40, s40, s65"); A("s_cselect_b64 s[42:43], -1, 0")
    A("v_cndmask_b32 v112, v108, v112, s[42:43]")
    A("s_waitcnt lgkmcnt(4)")
    pv_mfma(6)
    A("s_waitcnt lgkmcnt(0)")
    pv_mfma(7)
    g.stamp(4)
    exec_mask(0x000F000F)
    nop(5)
    A("v_cvt_pk_bf16_f32 v72, v64, v65"); A("v_cvt_pk_bf16_f32 v73, v66, v67")
    A("v_cvt_pk_bf16_f32 v74, v68, v69"); A("v_cvt_pk_bf16_f32 v75, v70, v71")
    for e in range(4): A(f"v_min_u32 v{72+e}, -2, v{72+e}")
    A("s_cmp_eq_u32 s41, 8"); A("s_cbranch_scc0 L_oglob")
    A("buffer_store_dwordx4 v[72:75], v125, s[52:55], s66 offen")
    if int(mlrep):
        A("s_mov_b64 exec, 1")
        A("buffer_store_dwordx2 v[114:115], v3, s[52:55], s36 offen")
    A("s_branch L_ostored")
    lab("L_oglob")
    A("buffer_store_dwordx4 v[72:75], v125, s[52:55], s79 offen sc1")
    lab("L_ostored")
    A("s_mov_b64 exec, -1")
    g.stamp(5)
    AF = 64
    def oloads(so):
        return [f"buffer_load_dwordx4 v[{AF}:{AF+3}], v102, s[52:55], s{so} offen sc1",
                f"buffer_load_dwordx4 v[{AF+4}:{AF+7}], v102, s[52:55], s{so} offen offset:256 sc1"]
    def mloads(sm):
        return [f"buffer_load_dwordx2 v[76:77], v{112 if sm == 40 else 108}, s[52:55], s{sm} offen sc1"]
    def ensure_store():
        le = g.newlab("ES")
        A(f"s_cmp_lg_u32 s41, 0"); A(f"s_cbranch_scc1 {le}")
        A("s_mov_b32 s41, 1")
        A("s_mov_b64 s[42:43], exec")
        exec_mask(0x000F000F)
        A("buffer_store_dwordx4 v[72:75], v125, s[52:55], s79 offen sc1")
        A("s_mov_b64 exec, s[42:43]")
        lab(le)
    def dualpoll(la, lb_, regs, first_wait):
        l0 = g.newlab("OP"); l1 = g.newlab("OC"); ld = g.newlab("OD"); lb = g.newlab("OB"); l2 = g.newlab("OW")
        A("s_mov_b32 s15, 0x40000")
        A(f"s_waitcnt vmcnt({first_wait})")
        A(f"s_branch {l1}")
        lab(l0)
        A(f"s_and_b32 s14, s15, {int(bmask)}"); A("s_cmp_eq_u32 s14, 0"); A(f"s_cbranch_scc1 {lb}")
        for l_ in la: A(l_)
        A(f"s_branch {l2}")
        lab(lb)
        ensure_store()
        for l_ in lb_: A(l_)
        lab(l2)
        A("s_waitcnt vmcnt(0)")
        lab(l1)
        rs = list(regs)
        if len(rs) == 2:
            A(f"v_max_u32 v10, v{rs[0]}, v{rs[1]}")
        else:
            A(f"v_max3_u32 v10, v{rs[0]}, v{rs[1]}, v{rs[2]}"); A(f"v_max3_u32 v15, v{rs[3]}, v{rs[4]}, v{rs[5]}")
            A(f"v_max3_u32 v10, v10, v{rs[6]}, v{rs[7]}"); A("v_max_u32 v10, v10, v15")
        A("v_cmp_eq_u32 vcc, -1, v10")
        A("s_and_b64 exec, exec, vcc"); A(f"s_cbranch_scc0 {ld}")
        if int(osleep): A(f"s_sleep {int(osleep)}")
        A("s_sub_u32 s15, s15, 1"); A("s_cmp_lg_u32 s15, 0"); A(f"s_cbranch_scc1 {l0}")
        lab(ld)
        A("s_mov_b64 exec, -1")
    if wp == 64:
        g.poll(mloads(40), [76, 77], 10, sleep=int(osleep))
        for l_ in oloads(67): A(l_)
    else:
        for l_ in mloads(40) + oloads(67): A(l_)
        g.poll(mloads(40), [76, 77], 10, preissued=True)
    if tailst: g.stamp(1)
    A("v_mov_b32 v78, v76")
    g.xrow("v_max_f32", [78], [79])
    A("v_sub_f32 v76, v76, v78")
    A("v_exp_f32 v76, v76")
    nop(1)
    A("v_mul_f32 v77, v76, v77")
    A("ds_bpermute_b32 v76, v103, v76")
    g.xrow("v_add_f32", [77], [79])
    A("v_rcp_f32 v77, v77")
    A("s_waitcnt lgkmcnt(0)")
    A("v_mul_f32 v76, v76, v77"); A("v_mov_b32 v77, v76")
    if wp == 64:
        g.flag_wait(F_WO, 1, 3, 10, sleep=False)
        wo_frags()
    if tailst: g.stamp(2)
    g.poll(oloads(67), list(range(AF, AF+8)), 10, preissued=True, sleep=int(osleep))
    A("s_waitcnt lgkmcnt(0)")
    if tailst:
        A("s_sub_u32 s86, 0x40000, s15"); A("s_add_u32 s86, s86, s80"); A("s_mov_b32 s87, s81")
    g.stamp(6)
    DW = 16
    for t in range(2):
        for nt in range(4):
            r = bf(nt, t)
            cc = "0" if t == 0 else f"v[{DW+4*nt}:{DW+4*nt+3}]"
            A(f"v_mfma_f32_16x16x32_bf16 v[{DW+4*nt}:{DW+4*nt+3}], v[{r}:{r+3}], v[{AF+4*t}:{AF+4*t+3}], {cc}")
    nop(5)
    for nt in range(4):
        A(f"v_pk_mul_f32 v[{DW+4*nt}:{DW+4*nt+1}], v[{DW+4*nt}:{DW+4*nt+1}], v[76:77]")
        A(f"v_pk_mul_f32 v[{DW+4*nt+2}:{DW+4*nt+3}], v[{DW+4*nt+2}:{DW+4*nt+3}], v[76:77]")
        A(f"ds_write_b128 v104, v[{DW+4*nt}:{DW+4*nt+3}] offset:{RED + nt*64}")
    A("s_waitcnt lgkmcnt(0)")
    A("s_barrier")
    for p in range(8):
        A(f"ds_read_b64 v[{32+2*p}:{33+2*p}], v106 offset:{RED + p*2176}")
    A("s_waitcnt lgkmcnt(4)") if (not stamps or only) else A("s_waitcnt lgkmcnt(0)")
    A("v_pk_add_f32 v[32:33], v[32:33], v[34:35]"); A("v_pk_add_f32 v[36:37], v[36:37], v[38:39]")
    A("v_pk_add_f32 v[32:33], v[32:33], v[36:37]")
    A("s_waitcnt lgkmcnt(0)")
    A("v_pk_add_f32 v[40:41], v[40:41], v[42:43]"); A("v_pk_add_f32 v[44:45], v[44:45], v[46:47]")
    A("v_pk_add_f32 v[40:41], v[40:41], v[44:45]")
    A("v_pk_add_f32 v[32:33], v[32:33], v[40:41]")
    A("v_cvt_pk_bf16_f32 v32, v32, v33")
    A("v_min_u32 v32, -2, v32")
    if int(spx4):
        nop(2)
        A("v_mov_b32_dpp v33, v32 quad_perm:[1,1,1,1] row_mask:0xf bank_mask:0xf")
        A("v_mov_b32_dpp v34, v32 quad_perm:[2,2,2,2] row_mask:0xf bank_mask:0xf")
        A("v_mov_b32_dpp v35, v32 quad_perm:[3,3,3,3] row_mask:0xf bank_mask:0xf")
        exec_mask(0x11111111)
        A("buffer_store_dwordx4 v[32:35], v105, s[52:55], s78 offen sc1")
        A("s_mov_b64 exec, -1")
    else:
        A("buffer_store_dword v32, v105, s[52:55], s78 offen sc1")
    g.stamp(7)
    A("s_branch L_fin")

    lab("L_H")
    A("s_cmp_eq_u32 s3, 8"); A("s_cbranch_scc1 L_load")
    A("s_setprio 3")
    A("v_lshlrev_b32 v7, 4, v2")
    A("s_sub_u32 s77, s3, 4")
    A("s_cmp_lg_u32 s3, 7"); A("s_cbranch_scc1 L_noinit")
    A("v_lshlrev_b32 v8, 2, v5")
    A("ds_write_b32 v8, v3")
    lab("L_noinit")
    A("v_lshrrev_b32 v8, 3, v2"); A("v_and_b32 v9, 7, v2"); A("v_lshlrev_b32 v9, 4, v9")
    A("s_lshl_b32 s68, s77, 11")
    A(f"s_mov_b32 s69, 0x{EP_OFF:x}")
    A("s_waitcnt lgkmcnt(0)")
    A("s_load_dword s79, s[26:27], s69")
    for d, b in ((32, 8), (44, 12), (48, 20), (52, 26), (56, 4)):
        A(f"s_mov_b32 s{d}, s{b}"); A(f"s_mov_b32 s{d+1}, s{b+1}")
    XR = 16
    for r in range(2):
        A(f"buffer_load_dwordx4 v[{XR+4*r}:{XR+4*r+3}], v7, s[56:59], s68 offen offset:{r*1024}")
    A("s_cmp_ge_u32 s3, 6"); A("s_cbranch_scc1 L_SX0")
    A("s_cmp_eq_u32 s3, 5"); A("s_cbranch_scc1 L_G1")
    A("s_mov_b32 s36, s10"); A("s_mov_b32 s37, s11"); A("s_mov_b32 s38, 4194304")
    A("s_lshl_b32 s76, s70, 3"); A("s_add_u32 s76, s76, s72"); A("s_lshl_b32 s76, s76, 7")
    A("s_movk_i32 s69, 8192")
    A("s_lshl_b32 s78, s73, 17"); A("s_lshl_b32 s68, s76, 4"); A("s_add_u32 s78, s78, s68")
    A(f"s_add_u32 s78, s78, {QP_OFF}")
    A("s_branch L_GJ")
    lab("L_G1")
    A("s_cmp_eq_u32 s70, 7"); A("s_cbranch_scc1 L_LN0")
    A("s_bitcmp1_b32 s71, 2")
    A("s_cselect_b32 s36, s18, s16"); A("s_cselect_b32 s37, s19, s17"); A("s_mov_b32 s38, 1835008")
    A("s_lshl_b32 s76, s74, 7")
    A("s_movk_i32 s69, 3584")
    A("s_and_b32 s78, s71, 7"); A(f"s_mul_i32 s78, s78, {28*2048}"); A("s_lshl_b32 s68, s76, 4"); A("s_add_u32 s78, s78, s68")
    A(f"s_add_u32 s78, s78, {GP_OFF}")
    lab("L_GJ")
    A("v_mul_lo_u32 v10, v8, s69"); A("v_add_u32 v10, v10, v9")
    A("s_lshl_b32 s68, s73, 7"); A("s_mul_i32 s68, s68, s69"); A("s_add_u32 s100, s76, s68")
    A("s_lshl_b32 s101, s69, 3")
    A("s_lshl_b32 s68, s77, 14"); A(f"s_add_u32 s68, s68, {W1T}")
    for i in range(16):
        A("s_mov_b32 m0, s68")
        A("s_add_u32 s68, s68, 1024")
        A(f"buffer_load_dwordx4 v10, s[36:39], s100 offen {g.ntw} lds")
        A("s_add_u32 s100, s100, s101")
    A("s_barrier")
    A("s_waitcnt vmcnt(16)")
    A("s_branch L_LN")
    lab("L_SX0")
    A("s_cmp_eq_u32 s3, 7"); A("s_cbranch_scc1 L_LN0")
    if int(noclr): A("s_branch L_LN0")
    for r in range(4):
        A(f"v_mov_b32 v{24+r}, -1")
    A("s_lshl_b32 s68, s70, 2"); A("s_add_u32 s68, s68, s73"); A("s_lshl_b32 s68, s68, 3"); A("s_add_u32 s68, s68, s72")
    A("s_lshl_b32 s68, s68, 10"); A(f"s_add_u32 s68, s68, {O_OFF}")
    A("buffer_store_dwordx4 v[24:27], v7, s[52:55], s68 offen sc1")
    A(f"s_add_u32 s68, s68, {DUP}")
    A("buffer_store_dwordx4 v[24:27], v7, s[52:55], s68 offen sc1")
    A("v_lshl_add_u32 v10, v8, 10, v9")
    A("s_lshl_b32 s68, s74, 13"); A("s_lshl_b32 s69, s75, 7"); A("s_add_u32 s68, s68, s69")
    A(f"s_add_u32 s69, s68, {SP_OFF}")
    A("buffer_store_dwordx4 v[24:27], v10, s[52:55], s69 offen sc1")
    down_ids(68, 69, "L_nofp")
    A("s_lshl_b32 s68, s68, 13"); A("s_lshl_b32 s69, s69, 7"); A("s_add_u32 s69, s69, s68"); A(f"s_add_u32 s69, s69, {FP_OFF}")
    A("buffer_store_dwordx4 v[24:27], v10, s[52:55], s69 offen sc1")
    if dshift: A("buffer_store_dwordx4 v[24:27], v10, s[52:55], s69 offen offset:128 sc1")
    lab("L_nofp")
    A("s_lshl_b32 s68, s70, 5"); A("s_add_u32 s68, s68, s71"); A("s_lshl_b32 s68, s68, 7"); A(f"s_add_u32 s68, s68, {ML_OFF}")
    if int(mlfull):
        A("s_mov_b64 exec, 0xff")
        A("buffer_store_dwordx4 v[24:27], v7, s[52:55], s68 offen sc1")
        A("s_mov_b64 exec, -1")
        A("s_cmp_lg_u32 s71, 0"); A("s_cbranch_scc1 L_nomld")
        A("s_lshl_b32 s68, s70, 10"); A(f"s_add_u32 s68, s68, {MLD_OFF}")
        A("buffer_store_dwordx4 v[24:27], v7, s[52:55], s68 offen sc1")
        lab("L_nomld")
    else:
        A("s_mov_b64 exec, 3")
        A("buffer_store_dwordx4 v[24:27], v7, s[52:55], s68 offen sc1")
        A("s_mov_b64 exec, 15")
        A("v_lshlrev_b32 v10, 8, v2")
        A("s_lshl_b32 s68, s70, 10"); A("s_lshl_b32 s69, s71, 3"); A("s_add_u32 s68, s68, s69"); A(f"s_add_u32 s68, s68, {MLD_OFF}")
        A("buffer_store_dwordx2 v[24:25], v10, s[52:55], s68 offen sc1")
        A("s_mov_b64 exec, -1")
    A("s_barrier")
    A(f"s_waitcnt vmcnt({4 if int(mlfull) else 5})")
    A("s_cmp_eq_u32 s70, 7"); A("s_cbranch_scc1 L_LN")
    A("s_nop 0")
    A("s_branch L_LN") if False else None
    A("s_waitcnt vmcnt(4)") if False else None
    A("s_branch L_LN")
    lab("L_LN0")
    A("s_barrier")
    A("s_waitcnt vmcnt(0)")
    lab("L_LN")
    if cut == 1:
        g.flag_add(F_W, 3, 4); A("s_branch L_fin")
    XF = 32
    for r in range(2):
        unpack(XF + 8*r, [XR + 4*r + e for e in range(4)])
    SM = 64
    for r in range(2):
        A(f"v_add_f32 v{SM+r}, v{XF+8*r}, v{XF+8*r+1}"); A(f"v_add_f32 v{SM+2+r}, v{XF+8*r+2}, v{XF+8*r+3}")
    for e in range(4, 8, 2):
        for r in range(2):
            A(f"v_add_f32 v{SM+r}, v{SM+r}, v{XF+8*r+e}"); A(f"v_add_f32 v{SM+2+r}, v{SM+2+r}, v{XF+8*r+e+1}")
    for r in range(2):
        A(f"v_add_f32 v{SM+r}, v{SM+r}, v{SM+2+r}")
    g.allreduce64("v_add_f32", [SM, SM+1], [SM+4, SM+5])
    A(f"s_mov_b32 s68, 0x{f32bits(1.0/512):08x}")
    for r in range(2):
        A(f"v_mul_f32 v{SM+r}, s68, v{SM+r}")
    VS = 72
    for e in range(8):
        for r in range(2):
            A(f"v_sub_f32 v{80+2*(e&1)+r}, v{XF+8*r+e}, v{SM+r}")
        for r in range(2):
            t_ = 80+2*(e&1)+r
            if e == 0: A(f"v_mul_f32 v{VS+r}, v{t_}, v{t_}")
            else: A(f"v_fmac_f32 v{VS+r}, v{t_}, v{t_}")
    g.allreduce64("v_add_f32", [VS, VS+1], [VS+4, VS+5])
    for r in range(2):
        A(f"v_mul_f32 v{VS+r}, s68, v{VS+r}")
    rbf([SM, SM+1, VS, VS+1])
    for r in range(2):
        A(f"v_add_f32 v{VS+r}, 0x{f32bits(1e-5):08x}, v{VS+r}")
    rbf([VS, VS+1])
    for r in range(2):
        A(f"v_sqrt_f32 v{VS+r}, v{VS+r}")
    nop(1)
    rbf([VS, VS+1])
    for r in range(2):
        A(f"v_rcp_f32 v{VS+r}, v{VS+r}")
    for r in range(2):
        for e in range(8):
            A(f"v_sub_f32 v{XF+8*r+e}, v{XF+8*r+e}, v{SM+r}")
    for r in range(2):
        for e in range(4):
            A(f"v_cvt_pk_bf16_f32 v{XR+4*r+e}, v{XF+8*r+2*e}, v{XF+8*r+2*e+1}")
    for r in range(2):
        unpack(XF + 8*r, [XR + 4*r + e for e in range(4)])
    for r in range(2):
        for e in range(8):
            A(f"v_mul_f32 v{XF+8*r+e}, v{XF+8*r+e}, v{VS+r}")
    for r in range(2):
        for e in range(4):
            A(f"v_cvt_pk_bf16_f32 v{XR+4*r+e}, v{XF+8*r+2*e}, v{XF+8*r+2*e+1}")
    A(f"s_mul_i32 s68, s77, {2*XNP}"); A("v_lshlrev_b32 v11, 4, v5"); A("v_add_u32 v11, s68, v11")
    A("v_cmp_eq_u32 vcc, s73, v6")
    A("s_and_saveexec_b64 s[68:69], vcc")
    for r in range(2):
        A(f"ds_write_b128 v11, v[{XR+4*r}:{XR+4*r+3}] offset:{XN + r*XNP}")
    g.flag_add(F_XN, 3, 4)
    g.stamp(2)
    A("s_add_u32 s4, s79, 1"); A(f"s_mul_i32 s5, s4, 0x{TAGMUL:x}")
    A("v_lshrrev_b32 v12, 2, v5"); A("v_lshl_add_u32 v12, v6, 3, v12"); A("v_lshlrev_b32 v12, 7, v12")
    A("v_and_b32 v13, 3, v2")
    A("v_and_b32 v14, 7, v2")
    A("s_cmp_ge_u32 s3, 6"); A("s_cbranch_scc1 L_SX1")
    A("s_cmp_lg_u32 s3, 5"); A("s_cbranch_scc1 L_Ggo")
    A("s_cmp_lg_u32 s70, 7"); A("s_cbranch_scc1 L_Ggo")
    g.flag_add(F_W, 3, 4)
    g.flag_add(F_GD, 3, 4)
    A("s_branch L_G1post")
    lab("L_Ggo")
    A(f"v_mul_u32_u24 v11, {XNP}, v14"); A("v_lshl_add_u32 v11, v6, 4, v11")
    A("v_lshl_add_u32 v12, v13, 3, v12")
    A("s_lshl_b32 s68, s77, 14"); A("v_add_u32 v12, s68, v12")
    A("s_cmp_eq_u32 s3, 5"); A("s_cbranch_scc1 L_dstG")
    A("v_lshlrev_b32 v15, 8, v14"); A("v_lshl_add_u32 v15, v6, 4, v15")
    A("s_mov_b32 s8, s78"); A("s_add_u32 s9, s78, 64"); A("s_add_u32 s10, s78, 128"); A("s_add_u32 s11, s78, 192")
    if int(gfull): A("v_bfe_u32 v9, v2, 3, 1"); A("v_lshl_add_u32 v15, v9, 6, v15")
    A("s_branch L_dstJ")
    lab("L_dstG")
    A("v_and_b32 v15, 1, v6"); A("v_lshlrev_b32 v15, 10, v15"); A("v_lshrrev_b32 v9, 1, v6"); A("v_lshl_add_u32 v15, v9, 8, v15")
    A("v_lshl_add_u32 v15, v14, 4, v15")
    A("s_mov_b32 s8, s78"); A("s_add_u32 s9, s78, 512"); A("s_add_u32 s10, s78, 128"); A("s_add_u32 s11, s78, 640")
    if int(gfull): A("v_bfe_u32 v9, v2, 3, 1"); A("v_lshl_add_u32 v15, v9, 9, v15")
    lab("L_dstJ")
    for nt in range(4):
        A(f"v_mov_b32 v{113+4*nt}, s4"); A(f"v_mov_b32 v{115+4*nt}, s5")
    A(f"s_add_u32 s66, s78, {DUP}")
    g.flag_wait(F_XN, 4, 3, 10)
    XB = 16
    for t in range(4):
        A(f"ds_read_b128 v[{XB+4*t}:{XB+4*t+3}], v11 offset:{XN + t*64}")
    WB = 32
    for t in range(4):
        A(f"s_waitcnt vmcnt({12 - 4*t})")
        if t == 3:
            g.flag_add(F_W, 3, 4)
        for nt in range(4):
            r = WB + (t*4 + nt)*4
            off = W1T + t*4096 + nt*32
            A(f"ds_read_b64_tr_b16 v[{r}:{r+1}], v12 offset:{off}")
            A(f"ds_read_b64_tr_b16 v[{r+2}:{r+3}], v12 offset:{off+512}")
        A("s_waitcnt lgkmcnt(0)")
        for nt in range(4):
            r = WB + (t*4 + nt)*4
            d = 96 + nt*4
            cc = "0" if t == 0 else f"v[{d}:{d+3}]"
            A(f"v_mfma_f32_16x16x32_bf16 v[{d}:{d+3}], v[{r}:{r+3}], v[{XB+4*t}:{XB+4*t+3}], {cc}")
    g.stamp(3)
    g.flag_add(F_GD, 3, 4)
    exec_mask(0x00ff00ff)
    nop(2)
    if int(gfull):
        for pr in range(2):
            A(f"v_cvt_pk_bf16_f32 v{112+4*pr}, v{96+8*pr}, v{97+8*pr}"); A(f"v_cvt_pk_bf16_f32 v{114+4*pr}, v{98+8*pr}, v{99+8*pr}")
        exec_mask(0xff00ff00)
        for pr in range(2):
            A(f"v_cvt_pk_bf16_f32 v{112+4*pr}, v{100+8*pr}, v{101+8*pr}"); A(f"v_cvt_pk_bf16_f32 v{114+4*pr}, v{102+8*pr}, v{103+8*pr}")
        A("s_mov_b64 exec, -1")
        A("buffer_store_dwordx4 v[112:115], v15, s[52:55], s78 offen sc1")
        A("buffer_store_dwordx4 v[116:119], v15, s[52:55], s78 offen offset:128 sc1")
    for nt in range(4 if not int(gfull) else 0):
        A(f"v_cvt_pk_bf16_f32 v{112+4*nt}, v{96+4*nt}, v{97+4*nt}")
        A(f"v_cvt_pk_bf16_f32 v{114+4*nt}, v{98+4*nt}, v{99+4*nt}")
        if int(qdual): A(f"buffer_store_dwordx4 v[{112+4*nt}:{115+4*nt}], v15, s[52:55], s66 offen offset:{nt*512}")
        else: A(f"buffer_store_dwordx4 v[{112+4*nt}:{115+4*nt}], v15, s[52:55], s{8+nt} offen sc1")
    if int(qdual):
      for nt in range(4):
        A(f"buffer_store_dwordx4 v[{112+4*nt}:{115+4*nt}], v15, s[52:55], s78 offen offset:{nt*512} sc1")
    A("s_mov_b64 exec, -1")
    g.stamp(4)
    lab("L_Gpost")
    A("s_cmp_eq_u32 s3, 5"); A("s_cbranch_scc1 L_G1post")
    A("s_lshl_b32 s6, s70, 8"); A(f"s_add_u32 s6, s6, {FL_OFF}")
    A("s_getreg_b32 s7, hwreg(HW_REG_XCC_ID, 0, 4)")
    A("s_andn2_b32 s8, s5, 15"); A("s_or_b32 s8, s8, s7")
    A("v_and_b32 v19, 31, v2"); A("v_lshlrev_b32 v19, 3, v19")
    if int(tchunk): g.flag_wait(F_V0, int(tchunk), 3, 10)
    else: g.flag_wait(F_K2, 4, 3, 10)
    g.stamp(5)
    tokcheck(19, 6, 8)
    A("v_cmp_ne_u32 vcc, 0, v23")
    A("s_cmp_lg_u64 vcc, 0")
    A("s_cselect_b32 s8, 2, 1")
    A("v_mov_b32 v20, s8")
    A(f"ds_write_b32 v3, v20 offset:{F_TOK}")
    g.stamp(6)
    A("s_waitcnt lgkmcnt(0)")
    A("s_branch L_fin")
    lab("L_G1post")
    if cut:
        A("s_waitcnt lgkmcnt(0)"); A("s_branch L_fin")
    A("s_mov_b32 s60, s22"); A("s_mov_b32 s61, s23")
    A("s_lshl_b32 s68, s72, 10"); A("s_lshl_b32 s69, s70, 7"); A("s_add_u32 s68, s68, s69"); A("s_lshl_b32 s69, s73, 5")
    A("s_add_u32 s76, s68, s69")
    A("v_lshrrev_b32 v17, 1, v2"); A("v_and_b32 v16, 1, v2")
    A("v_lshlrev_b32 v19, 4, v16"); A("v_mov_b32 v20, 0x3f80"); A("v_lshlrev_b32 v20, v19, v20")
    A("v_bfe_u32 v19, v2, 1, 2")
    for e in range(4):
        A(f"v_cmp_eq_u32 vcc, {e}, v19")
        nop(2)
        A(f"v_cndmask_b32 v{40+e}, 0, v20, vcc")
    A("v_lshlrev_b32 v21, 4, v16"); A("v_lshl_add_u32 v21, v6, 3, v21")
    A("v_min_u32 v18, 27, v17")
    A("v_lshlrev_b32 v18, 13, v18"); A("v_lshl_add_u32 v18, v16, 4, v18")
    A("v_lshlrev_b32 v17, 13, v17"); A("v_lshl_add_u32 v17, v16, 4, v17")
    A(f"s_add_u32 s77, s76, {FP_OFF}"); A(f"s_add_u32 s78, s76, {SP_OFF}")
    A("buffer_load_dwordx2 v[44:45], v21, s[56:59], s76 offen")
    fm = int(fmode)
    if fm == 0:
        g.flag_wait(F_TOK, 1, 3, 10)
        g.flag_wait(F_V0, int(fchunk), 3, 10)
    elif fm == 1:
        g.flag_wait(F_TOK, 1, 3, 10)
        g.flag_wait(F_WO, 1, 3, 10)
    else:
        A("v_bfe_u32 v26, v2, 2, 3"); A("v_lshlrev_b32 v26, 8, v26"); A("v_and_b32 v27, 3, v2"); A("v_lshl_add_u32 v26, v27, 6, v26")
        A("s_lshl_b32 s6, s70, 3"); A(f"s_add_u32 s6, s6, {FL_OFF}")
        A("v_mov_b32 v28, v21")
        g.flag_wait(F_V0, int(t2chunk), 3, 10)
        tokcheck(26, 6, 5)
        A("v_mov_b32 v21, v28")
        A("s_waitcnt lgkmcnt(0)")
        A("s_barrier")
    g.stamp(5)
    g.poll(["buffer_load_dwordx4 v[32:35], v18, s[52:55], s77 offen sc1"], [32, 33, 34, 35], 10, sleep=int(fsl) if fm == 0 else int(fsl2))
    if fm == 2:
        A("buffer_load_dwordx4 v[56:59], v17, s[52:55], s78 offen sc1")
    g.stamp(6)
    def red_final(src=32):
        A(f"v_mfma_f32_16x16x32_bf16 v[36:39], v[40:43], v[{src}:{src+3}], 0")
        nop(8)
        for mod in ("row_ror:2", "row_ror:4", "row_ror:8"):
            for r in range(4):
                A(f"v_add_f32_dpp v{36+r}, v{36+r}, v{36+r} {mod} row_mask:0xf bank_mask:0xf")
    A("v_cmp_gt_u32 vcc, 56, v2")
    nop(2)
    for r in range(4):
        A(f"v_cndmask_b32 v{32+r}, 0, v{32+r}, vcc")
    nop(1)
    red_final()
    rbf([36, 37, 38, 39])
    silu([36, 37, 38, 39], 48)
    rbf([36, 37, 38, 39])
    for r in range(4): A(f"v_mov_b32 v{48+r}, v{36+r}")
    unpack(52, [44, 45])
    g.stamp(7)
    if fm != 2:
        A("s_waitcnt lgkmcnt(0)")
        A("s_barrier")
    g.poll(["buffer_load_dwordx4 v[56:59], v17, s[52:55], s78 offen sc1"], [56, 57, 58, 59], 10, preissued=(fm == 2), sleep=int(ssl))
    g.stamp(8)
    red_final(56)
    A("v_cvt_pk_bf16_f32 v32, v36, v37"); A("v_cvt_pk_bf16_f32 v33, v38, v39")
    unpack(36, [32, 33])
    A("v_pk_mul_f32 v[36:37], v[36:37], v[48:49]"); A("v_pk_mul_f32 v[38:39], v[38:39], v[50:51]")
    A("v_cvt_pk_bf16_f32 v32, v36, v37"); A("v_cvt_pk_bf16_f32 v33, v38, v39")
    unpack(36, [32, 33])
    A("v_pk_add_f32 v[36:37], v[36:37], v[52:53]"); A("v_pk_add_f32 v[38:39], v[38:39], v[54:55]")
    A("v_cvt_pk_bf16_f32 v32, v36, v37"); A("v_cvt_pk_bf16_f32 v33, v38, v39")
    A("s_mov_b64 exec, 0x30003")
    A("buffer_store_dwordx2 v[32:33], v21, s[60:63], s76 offen")
    A("s_mov_b64 exec, -1")
    g.stamp(9)
    A("s_cmp_lg_u32 s2, 0"); A("s_cbranch_scc1 L_fin")
    A("v_mov_b32 v32, s4")
    A(f"s_mov_b32 s68, {EP_OFF}")
    A("s_mov_b64 exec, 1")
    A("buffer_store_dword v32, v3, s[52:55], s68 offen sc1")
    A("s_mov_b64 exec, -1")
    A("s_branch L_fin")
    lab("L_load")
    A("s_setprio 2")
    A("v_lshrrev_b32 v8, 3, v2"); A("v_and_b32 v9, 7, v2"); A("v_lshlrev_b32 v9, 4, v9")
    A("v_lshlrev_b32 v16, 1, v6"); A("v_xor_b32 v16, v16, v5"); A("v_xor_b32 v17, 8, v16")
    A("v_lshlrev_b32 v16, 4, v16"); A("v_lshl_add_u32 v16, v6, 8, v16")
    A("v_lshlrev_b32 v17, 4, v17"); A("v_lshl_add_u32 v17, v6, 8, v17")
    A("s_mov_b32 s100, s64")
    A(f"s_mov_b32 s101, {VT}")
    A("v_lshl_add_u32 v18, v8, 10, v9")
    A("v_lshlrev_b32 v21, 5, v6"); A("v_xor_b32 v21, v21, v18")
    A("s_lshl_b32 s76, s74, 17"); A("s_lshl_b32 s68, s75, 7"); A("s_add_u32 s76, s76, s68")
    A(f"s_mov_b32 s77, {WOT}")
    A("s_lshl_b32 s78, s74, 16"); A("s_add_u32 s78, s78, s68")
    A(f"s_mov_b32 s79, {WDT}")
    A("s_waitcnt lgkmcnt(0)")
    for d, b_ in ((32, 8), (44, 12), (48, 20), (52, 26)):
        A(f"s_mov_b32 s{d}, s{b_}"); A(f"s_mov_b32 s{d+1}, s{b_+1}")
    A("s_barrier")
    if cut == 2:
        A("s_branch L_fin")
    if int(touch):
        A("s_mov_b64 exec, 1")
        A(f"buffer_load_dword v30, v3, s[44:47], s76 offen {g.ntw}")
        A(f"buffer_load_dword v31, v3, s[48:51], s78 offen {g.ntw}")
        if not int(vpre): A(f"buffer_load_dword v32, v3, s[32:35], s100 offen {g.ntkv}")
        A("s_mov_b64 exec, -1")
        A("s_waitcnt vmcnt(0)")
    if vdelay and not int(vpre):
        g.flag_wait(F_K2, 4, 3, 10)
    g.stamp(5)
    NV = 64
    dl = int(dlate)
    assert dl == 0
    seq = [("v", i) for i in range(wp)] + [("w", i) for i in range(16)] + [("v", i) for i in range(wp, NV)]
    NT = len(seq)
    marks = {}
    for k in range(8, NV + 1, 8): marks[k if k <= wp else k + 16] = ("V", k // 8)
    marks[wp + 16] = ("F", F_WO)
    def publish(k):
        if k in marks:
            kind, val = marks.pop(k)
            if kind == "V":
                A(f"v_mov_b32 v20, {val}")
                A(f"ds_write_b32 v3, v20 offset:{F_V0}")
            else:
                A(f"ds_write_b32 v3, v4 offset:{val}")
    for i, (kind, j) in enumerate(seq):
        if int(vpre) and i == int(vpre) and vdelay:
            g.flag_wait(F_K2, 4, 3, 10)
        if i >= vthr:
            A(f"s_waitcnt vmcnt({vthr-1})")
            publish(i - vthr + 1)
        if kind == "v":
            A("s_mov_b32 m0, s101")
            A("s_add_u32 s101, s101, 1024")
            A(f"buffer_load_dwordx4 v{16 + ((j >> 1) & 1)}, s[32:35], s100 offen {g.ntkv} lds")
            A("s_add_u32 s100, s100, 1024")
        elif kind == "w":
            A("s_mov_b32 m0, s77")
            A("s_add_u32 s77, s77, 1024")
            A(f"buffer_load_dwordx4 v21, s[44:47], s76 offen {g.ntw} lds")
            A("s_add_u32 s76, s76, 8192")
        else:
            A("s_mov_b32 m0, s79")
            A("s_add_u32 s79, s79, 1024")
            A(f"buffer_load_dwordx4 v18, s[48:51], s78 offen {g.ntw} lds")
            A("s_add_u32 s78, s78, 8192")
    g.stamp(6)
    for k in sorted(marks):
        A(f"s_waitcnt vmcnt({NT - k})")
        publish(k)
    g.stamp(7)
    A("s_waitcnt lgkmcnt(0)")
    A("s_branch L_fin")
    lab("L_SX1")
    A("s_cmp_eq_u32 s3, 7"); A("s_cbranch_scc1 L_X")
    A("s_getreg_b32 s6, hwreg(HW_REG_XCC_ID, 0, 4)")
    A("s_andn2_b32 s7, s5, 15"); A("s_or_b32 s7, s7, s6")
    A("v_mov_b32 v16, s4"); A("v_mov_b32 v17, s7")
    A("s_lshl_b32 s7, s70, 5"); A("s_add_u32 s7, s7, s71"); A("s_lshl_b32 s7, s7, 3"); A(f"s_add_u32 s7, s7, {FL_OFF}")
    A("s_waitcnt vmcnt(0)")
    A("s_mov_b64 exec, 1")
    A("buffer_store_dwordx2 v[16:17], v3, s[52:55], s7 offen sc1")
    A(f"ds_write_b32 v3, v16 offset:{F_EP}")
    A("s_mov_b64 exec, -1")
    g.stamp(1)
    if cut in (2, 3):
        A("s_branch L_fin")
    A("v_lshlrev_b32 v9, 11, v6"); A("v_lshl_add_u32 v9, v5, 4, v9")
    A("s_lshl_b32 s16, s70, 14"); A("s_lshl_b32 s69, s72, 8"); A("s_add_u32 s16, s16, s69"); A(f"s_add_u32 s16, s16, {QP_OFF}")
    for k in range(1, 8):
        A(f"s_add_u32 s{16+k}, s16, {(k>>1)*131072 + (k&1)*8192}")
    A("v_lshlrev_b32 v8, 3, v2")
    A("v_bfe_u32 v12, v2, 3, 2"); A("v_lshlrev_b32 v12, 17, v12"); A("v_lshl_add_u32 v12, v14, 11, v12")
    g.flag_wait(F_K, 4, 3, 10)
    g.stamp(7)
    if int(sample):
        tagpoll([f"buffer_load_dwordx4 v[16:19], v12, s[52:55], s16 offen offset:{3*512+48} sc1"], [16], 10, qsleep)
    g.stamp(8)
    tagpoll([f"buffer_load_dwordx4 v[{16+4*k}:{19+4*k}], v9, s[52:55], s{16+k} offen sc1" for k in range(8)],
            [16+4*k for k in range(8)], 10, qsleep, vaddr=9)
    g.stamp(3)
    if stamps and not only:
        A("s_waitcnt lgkmcnt(0)")
        A("s_sub_u32 s88, 0x3ffff, s15"); A("s_mul_i32 s88, s88, 10"); A("s_add_u32 s88, s88, s80"); A("s_mov_b32 s89, s81")
    for k in range(8):
        unpack(48 + 4*k, [16+4*k, 18+4*k])
    for i in range(2):
        for e in range(4):
            A(f"v_add_f32 v{48+4*i+e}, v{48+4*i+e}, v{56+4*i+e}"); A(f"v_add_f32 v{64+4*i+e}, v{64+4*i+e}, v{72+4*i+e}")
    for e in range(8):
        A(f"v_add_f32 v{48+e}, v{48+e}, v{64+e}")
    for e in range(4):
        A(f"v_cvt_pk_bf16_f32 v{16+e}, v{48+2*e}, v{49+2*e}")
    A(f"ds_write_b64 v8, v[16:17] offset:{QL}")
    A(f"ds_write_b64 v8, v[18:19] offset:{QL+512}")
    g.flag_add(F_Q, 3, 4)
    g.stamp(5)
    if cut == 4:
        A("s_branch L_fin")
    A("v_lshlrev_b32 v8, 3, v2"); A("v_lshlrev_b32 v9, 4, v13")
    A("s_lshl_b32 s6, s70, 12"); A(f"s_add_u32 s6, s6, {ML_OFF}")
    A("s_lshl_b32 s68, s71, 7"); A("s_add_u32 s68, s68, s6")
    A(f"s_mov_b32 s78, 0x{f32bits(LOG2E * (128 ** -0.5)):08x}")
    A("v_and_b32 v12, 31, v2"); A("v_lshlrev_b32 v11, 2, v12"); A("v_lshlrev_b32 v12, 7, v12")
    A("s_lshr_b32 s69, s71, 3"); A("s_lshl_b32 s69, s69, 3"); A("s_add_u32 s6, s6, s69")
    g.flag_wait(F_ML, 4, 3, 10)
    A(f"ds_read_b128 v[16:19], v9 offset:{MX}")
    A(f"ds_read_b128 v[20:23], v9 offset:{LL}")
    A("s_waitcnt lgkmcnt(0)")
    A("v_max3_f32 v24, v16, v17, v18"); A("v_max_f32 v24, v24, v19"); A("v_mul_f32 v24, s78, v24")
    A("v_add_f32 v25, v20, v21"); A("v_add_f32 v26, v22, v23"); A("v_add_f32 v25, v25, v26")
    A("v_min_u32 v24, -2, v24"); A("v_min_u32 v25, -2, v25")
    A("s_lshl_b32 s69, s70, 10"); A("s_lshl_b32 s7, s71, 3"); A("s_add_u32 s69, s69, s7"); A(f"s_add_u32 s69, s69, {MLD_OFF}")
    if int(mlfull):
        g.flag_wait(F_TOK, 1, 3, 10)
        A("v_lshlrev_b32 v10, 8, v2")
        A("s_cmp_eq_u32 s14, 1"); A("s_cbranch_scc0 L_mlglob")
        A("s_mov_b64 exec, 15")
        A("buffer_store_dwordx2 v[24:25], v10, s[52:55], s69 offen")
        A("s_branch L_mldone")
        lab("L_mlglob")
        A("s_mov_b64 exec, 0xffff")
        A("buffer_store_dwordx2 v[24:25], v8, s[52:55], s68 offen sc1")
        lab("L_mldone")
        A("s_mov_b64 exec, -1")
    else:
        A("v_lshlrev_b32 v10, 8, v2")
        A("s_mov_b64 exec, 15")
        A("buffer_store_dwordx2 v[24:25], v10, s[52:55], s69 offen")
        A("buffer_store_dwordx2 v[24:25], v8, s[52:55], s68 offen sc1")
        A("s_mov_b64 exec, -1")
    g.stamp(6)
    if stamps:
        A("s_waitcnt vmcnt(0)")
        g.stamp(9)
    A("s_branch L_fin")
    lab("L_X")
    if cut in (2, 3, 4):
        A("s_branch L_fin")
    down_ids(6, 7, "L_fin")
    NSUB = 2 if dshift else 1
    assert not (dshift and int(fpfull))
    A(f"v_lshl_add_u32 v12, v13, {4 if int(fpfull) else 5}, v12")
    A("v_lshl_add_u32 v10, v8, 10, v9")
    A("s_lshl_b32 s100, s6, 16"); A("s_lshl_b32 s69, s7, 7"); A("s_add_u32 s100, s100, s69")
    A("v_mov_b32 v11, v7")
    A("s_lshl_b32 s76, s6, 11"); A(f"s_add_u32 s76, s76, {GP_OFF}")
    if int(fpfull):
        A("v_lshlrev_b32 v15, 10, v14"); A("v_lshl_add_u32 v15, v6, 4, v15"); A("v_bfe_u32 v9, v2, 3, 1"); A("v_lshl_add_u32 v15, v9, 6, v15")
    else:
        A("v_lshlrev_b32 v15, 10, v14"); A("v_lshl_add_u32 v15, v6, 5, v15")
    A("s_lshl_b32 s78, s6, 13"); A("s_add_u32 s78, s78, s69"); A(f"s_add_u32 s78, s78, {FP_OFF}")
    for p in range(8):
        A(f"s_add_u32 s{16+p}, s76, {p*28*2048}")
    if int(xtrig) == 0: g.flag_wait(F_K, 4, 3, 9)
    elif int(xtrig) == 1: g.flag_wait(F_Q, 1, 3, 9)
    else: g.flag_wait(F_K2, 4, 3, 9)
    g.flag_wait(F_GD, 2, 3, 9)
    A(f"s_mov_b32 s68, {WDT}"); A(f"s_mov_b32 s69, {WDT2}"); A("s_add_u32 s101, s100, 128")
    for i in range(8):
        A("s_mov_b32 m0, s68")
        A("s_add_u32 s68, s68, 1024")
        A(f"buffer_load_dwordx4 v10, s[48:51], s100 offen {g.ntw} lds")
        A("s_add_u32 s100, s100, 8192")
        if dshift:
            A("s_mov_b32 m0, s69")
            A("s_add_u32 s69, s69, 1024")
            A(f"buffer_load_dwordx4 v10, s[48:51], s101 offen {g.ntw} lds")
            A("s_add_u32 s101, s101, 8192")
    lds_ = []
    for p in range(8):
        lds_.append(f"buffer_load_dwordx4 v[{16+8*p}:{19+8*p}], v11, s[52:55], s{16+p} offen sc1")
        lds_.append(f"buffer_load_dwordx4 v[{20+8*p}:{23+8*p}], v11, s[52:55], s{16+p} offen offset:1024 sc1")
    tagpoll(lds_, [16+4*k for k in range(16)], 8, qsleep, vaddr=11)
    g.stamp(5)
    if stamps and not only:
        A("s_waitcnt lgkmcnt(0)")
        A("s_sub_u32 s88, 0x3ffff, s15"); A("s_mul_i32 s88, s88, 10"); A("s_add_u32 s88, s88, s80"); A("s_mov_b32 s89, s81")
    WD = 128
    for p in range(8):
        unpack(80 + 8*p, [16+8*p, 18+8*p, 20+8*p, 22+8*p])
    for mat in range(2):
        b0 = 80 + mat*32
        for e in range(8):
            A(f"v_add_f32 v{b0+e}, v{b0+e}, v{b0+8+e}"); A(f"v_add_f32 v{b0+16+e}, v{b0+16+e}, v{b0+24+e}")
        for e in range(8):
            A(f"v_add_f32 v{b0+e}, v{b0+e}, v{b0+16+e}")
    rbf(list(range(80, 88)) + list(range(112, 120)))
    silu(list(range(80, 88)), 88)
    rbf(list(range(80, 88)))
    for e in range(8):
        A(f"v_mul_f32 v{80+e}, v{80+e}, v{112+e}")
    for e in range(4):
        A(f"v_cvt_pk_bf16_f32 v{16+e}, v{80+2*e}, v{81+2*e}")
    g.flag_wait(F_Q, 1, 3, 9)
    for sub in range(NSUB):
        base = (WDT, WDT2)[sub]
        WD = (128, 80)[sub]
        for t in range(2):
            for nt in range(4):
                r = WD + (t*4 + nt)*4
                off = base + t*4096 + (((nt & 1)*8 + (nt >> 1)*64) if int(fpfull) else nt*8)
                A(f"ds_read_b64_tr_b16 v[{r}:{r+1}], v12 offset:{off}")
                A(f"ds_read_b64_tr_b16 v[{r+2}:{r+3}], v12 offset:{off+512}")
    A("s_waitcnt lgkmcnt(0)")
    for sub in range(NSUB):
        WD = (128, 80)[sub]
        for t in range(2):
            for nt in range(4):
                r = WD + (t*4 + nt)*4
                d = 32 + t*16 + nt*4
                A(f"v_mfma_f32_16x16x32_bf16 v[{d}:{d+3}], v[{r}:{r+3}], v[16:19], 0")
        nop(8)
        if int(fpfull):
            for e in range(8):
                A(f"v_add_f32_dpp v{64+e}, v{48+e}, v{32+e} row_ror:8 row_mask:0xf bank_mask:0x3")
                A(f"v_add_f32_dpp v{64+e}, v{40+e}, v{56+e} row_ror:8 row_mask:0xf bank_mask:0xc")
            for e in range(4):
                A(f"v_cvt_pk_bf16_f32 v{72+e}, v{64+2*e}, v{65+2*e}")
            for e in range(4):
                A(f"v_min_u32 v{72+e}, -2, v{72+e}")
            A("buffer_store_dwordx4 v[72:75], v15, s[52:55], s78 offen sc1")
            continue
        for e in range(16):
            A(f"v_add_f32_dpp v{32+e}, v{48+e}, v{32+e} row_ror:8 row_mask:0xf bank_mask:0xf")
        o = 64 + 8*sub
        for e in range(8):
            A(f"v_cvt_pk_bf16_f32 v{o+e}, v{32+2*e}, v{33+2*e}")
        for e in range(8):
            A(f"v_min_u32 v{o+e}, -2, v{o+e}")
        exec_mask(0x00ff00ff)
        A(f"buffer_store_dwordx4 v[{o}:{o+3}], v15, s[52:55], s78 offen offset:{128*sub} sc1")
        A(f"buffer_store_dwordx4 v[{o+4}:{o+7}], v15, s[52:55], s78 offen offset:{128*sub+16} sc1")
        A("s_mov_b64 exec, -1")
    g.stamp(6)
    lab("L_fin")
    g.stamp_flush()
    lab("L_end")
    A("s_endpgm")
    tail = ['.section .rodata,"a"', ".p2align 6", f".amdhsa_kernel {KN}",
            "  .amdhsa_next_free_vgpr 168", "  .amdhsa_next_free_sgpr 102", "  .amdhsa_accum_offset 168",
            "  .amdhsa_group_segment_fixed_size 0", "  .amdhsa_kernarg_size 96", "  .amdhsa_user_sgpr_count 2",
            "  .amdhsa_user_sgpr_kernarg_segment_ptr 1", "  .amdhsa_system_sgpr_workgroup_id_x 1",
            "  .amdhsa_float_denorm_mode_32 3",
            ".end_amdhsa_kernel"]
    return "\n".join(hdr + g.L + tail) + "\n"

if __name__ == "__main__":
    out = sys.argv[1] if len(sys.argv) > 1 else "recurrent_scan__sliding_block_cached__swiglu_ffn__decode.s"
    stamps = "--stamps" in sys.argv
    kw = {}
    for a in sys.argv[2:]:
        if "=" in a:
            k, v = a.split("=", 1); kw[k] = v
    open(out, "w").write(build(stamps=stamps, **kw))
```

```python
import sys, struct
from gen import G, f32bits, KN

QP_OFF = 0x00000
GP_OFF = 0x80000
O_OFF = 0xF0000
ML_OFF = 0x1C0000
SP_OFF = 0x132000
FP_OFF = 0x172000
FL_OFF = 0x1B0000
EP_OFF = 0x1B8000
TAGMUL = 0x9E3779B1
MLD_OFF = 0x3E0000
DUP = 0x200000
STAMP_OFF = 0x1000000
F_XN, F_Q, F_W, F_MX, F_ML, F_K, F_V0, F_V1, F_PUB, F_K2, F_WO, F_WT, F_WD, F_EP = 0, 4, 8, 12, 16, 20, 24, 28, 32, 36, 40, 44, 48, 60
F_TOK = F_V1
F_GD = 52
WDT2 = 30720 + 20480
WT = 2432
MX = 64; LL = 128; GL = 192
XN = 256; XNP = 272
QL = 2560
PL = 3584; PLP = 528
WOT = 6144
WDT = 22528
W1T = 30720
RED = W1T
VT = 63488
KA = 129024
LDS_BYTES = 161792
LOG2E = 1.4426950408889634

def build(stamps=False, ntkv="nt", ntw="nt", thr=5, vthr=48, kdelay=0, vdelay=1, qsleep=2, cut=0, sample=0, dyn=1, vthr2=40, noclr=0, nost=0, kq=10, kv=16, wolate=0, dbgspan=0, mlchunk=6, xtrig=0, osleep=0, mlsleep=2, only='', bmask=7, qdual=0, dlate=0, tailst=0, olate=1, mlrep=1, dshift=0, spx4=1, vpre=0, touch=0, kearly=0, fmap=1, fchunk=6, fsl=4, fmode=2, wopos=64, wread=7, ssl=0, tchunk=0, t2chunk=7, fpfull=1, fsl2=2, gfull=1, mlfull=0, pubw=1, kvw=-1):
    wp = int(wopos); wread = int(wread)
    dshift = int(dshift)
    tailst = int(tailst)
    kq = int(kq); kv = int(kv); wolate = int(wolate)
    g = G(stamps, ntkv, ntw, thr)
    g.nwaves = 9
    g.only = [int(c) for c in only] if only else None
    vthr = int(vthr); kdelay = int(kdelay); vdelay = int(vdelay); qsleep = int(qsleep); cut = int(cut)
    A = g.A; lab = g.lab; nop = g.nop
    hdr = ["; Fused decode block: LN -> (GQA attention over the last 1024 cached keys -> wo) * silu(SwiGLU FFN) + x",
           "; kernarg: x, k_cache, v_cache, wq, wo, B_x(unused), w_gate, w_up, w_down, out, debug, ws (8-byte pointers)",
           "; One persistent launch, 256 workgroups x 9 waves (generated by gen/gen24.py (gen20 lineage)):",
           ";   waves 0-3 attention + wo stage, 4/5 q / gate-up split-K tiles (5: final stage), 6 clears + q gather,",
           ";   7 down projection, 8 V / wo LDS-DMA loader.  Hand-offs go through ws: launch-tagged granules",
           ";   (tag = epoch word + 1) or sentinel words cleared by their producer and confirmed by tagged tokens.",
           f"; @launch grid=(256,1,1) block=(576,1,1) lds={LDS_BYTES}",
           '.amdgcn_target "amdgcn-amd-amdhsa--gfx950"', ".text", f".globl {KN}", ".p2align 8",
           f".type {KN},@function", f"{KN}:"]
    def rbf(regs):
        for r in regs: A(f"v_cvt_pk_bf16_f32 v{r}, v{r}, v{r}")
        for r in regs: A(f"v_and_b32 v{r}, 0xffff0000, v{r}")
    def unpack(dst, srcs):
        for e, sr in enumerate(srcs):
            A(f"v_lshlrev_b32 v{dst+2*e}, 16, v{sr}")
            A(f"v_and_b32 v{dst+2*e+1}, 0xffff0000, v{sr}")
    def silu(regs, tmp):
        A(f"s_mov_b32 s68, 0x{f32bits(-LOG2E):08x}")
        for i, r in enumerate(regs): A(f"v_mul_f32 v{tmp+i}, s68, v{r}")
        for i, r in enumerate(regs): A(f"v_exp_f32 v{tmp+i}, v{tmp+i}")
        nop(1)
        for i, r in enumerate(regs): A(f"v_add_f32 v{tmp+i}, 1.0, v{tmp+i}")
        for i, r in enumerate(regs): A(f"v_rcp_f32 v{tmp+i}, v{tmp+i}")
        nop(1)
        for i, r in enumerate(regs): A(f"v_mul_f32 v{r}, v{r}, v{tmp+i}")
    def exec_mask(m):
        A(f"s_mov_b32 exec_lo, 0x{m:08x}"); A(f"s_mov_b32 exec_hi, 0x{m:08x}")
    def tagpoll(loads, quads, vt, sleep, vaddr=None):
        l = g.newlab("TP"); d = g.newlab("TD")
        A("s_mov_b32 s15, 0x3ffff")
        if vaddr is not None and int(qdual):
            A(f"v_add_u32 v{vaddr}, 0x{DUP:x}, v{vaddr}")
        lab(l)
        for s_ in loads: A(s_)
        if vaddr is not None and int(qdual):
            A("s_and_b32 s14, s15, 3"); A("s_cmp_lt_u32 s14, 2")
            A(f"s_cselect_b32 s14, 0x{DUP:x}, 0")
            A(f"v_xor_b32 v{vaddr}, s14, v{vaddr}")
        A("s_waitcnt vmcnt(0)")
        first = True
        for q in quads:
            if first:
                A(f"v_xor_b32 v{vt}, s4, v{q+1}"); first = False
            else:
                A(f"v_xor_b32 v{vt+1}, s4, v{q+1}"); A(f"v_or_b32 v{vt}, v{vt}, v{vt+1}")
            A(f"v_xor_b32 v{vt+1}, s5, v{q+3}"); A(f"v_or_b32 v{vt}, v{vt}, v{vt+1}")
        A(f"v_cmp_ne_u32 vcc, 0, v{vt}")
        A("s_and_b64 exec, exec, vcc"); A(f"s_cbranch_scc0 {d}")
        if sleep: A(f"s_sleep {sleep}")
        A("s_sub_u32 s15, s15, 1"); A("s_cmp_lg_u32 s15, 0"); A(f"s_cbranch_scc1 {l}")
        lab(d)
        A("s_mov_b64 exec, -1")
    def down_ids(skb, scg, none):
        if dshift:
            A("s_cmp_ge_u32 s70, 4"); A(f"s_cbranch_scc1 {none}")
            A("s_cmp_ge_u32 s71, 28"); A(f"s_cbranch_scc1 {none}")
            A(f"s_mul_i32 s{scg}, s70, 28"); A(f"s_add_u32 s{scg}, s{scg}, s71")
            A(f"s_lshr_b32 s{skb}, s{scg}, 2"); A(f"s_and_b32 s{scg}, s{scg}, 3"); A(f"s_lshl_b32 s{scg}, s{scg}, 1")
        else:
            A("s_cmp_eq_u32 s70, 7"); A(f"s_cbranch_scc1 {none}")
            A(f"s_mov_b32 s{skb}, s74"); A(f"s_mov_b32 s{scg}, s75")
    def tokcheck(va, sb, sw1):
        l = g.newlab("TK"); d = g.newlab("TKD")
        A("s_mov_b32 s15, 0x40000")
        lab(l)
        A(f"buffer_load_dwordx2 v[20:21], v{va}, s[52:55], s{sb} offen sc1")
        A("s_waitcnt vmcnt(0)")
        A("v_xor_b32 v22, s4, v20"); A(f"v_xor_b32 v23, s{sw1}, v21")
        A("v_and_b32 v24, -16, v23"); A("v_or_b32 v24, v24, v22")
        A("v_cmp_ne_u32 vcc, 0, v24")
        A("s_and_b64 exec, exec, vcc"); A(f"s_cbranch_scc0 {d}")
        A("s_sleep 8")
        A("s_sub_u32 s15, s15, 1"); A("s_cmp_lg_u32 s15, 0"); A(f"s_cbranch_scc1 {l}")
        lab(d)
        A("s_mov_b64 exec, -1")
    A("s_cmp_ge_u32 s2, 256"); A("s_cbranch_scc1 L_end")
    A("s_load_dwordx16 s[4:19], s[0:1], 0")
    A("s_load_dwordx8 s[20:27], s[0:1], 64")
    g.stamp(0)
    if int(dbgspan): A("s_memrealtime s[98:99]")
    A("v_lshrrev_b32 v1, 6, v0")
    A("v_and_b32 v2, 63, v0")
    A("v_readfirstlane_b32 s3, v1")
    A("v_mov_b32 v3, 0"); A("v_mov_b32 v4, 1")
    A("v_and_b32 v5, 15, v2"); A("v_lshrrev_b32 v6, 4, v2")
    for d, n in ((28, 67108864), (32, 67108864), (44, 4194304), (48, 1835008), (52, 268435456), (56, 8192), (60, 8192)):
        A(f"s_mov_b32 s{d+2}, {n}"); A(f"s_mov_b32 s{d+3}, 0x00020000")
    A("s_mov_b32 s39, 0x00020000")
    A("s_and_b32 s70, s2, 7")
    A("s_lshr_b32 s71, s2, 3")
    A("s_lshr_b32 s72, s71, 2")
    A("s_and_b32 s73, s71, 3")
    A("s_lshl_b32 s74, s70, 2"); A("s_lshr_b32 s68, s71, 3"); A("s_add_u32 s74, s74, s68")
    A("s_and_b32 s75, s71, 7")
    A("s_lshl_b32 s64, s72, 3"); A("s_add_u32 s64, s64, s70"); A("s_lshl_b32 s64, s64, 20")
    A("s_lshl_b32 s68, s73, 16"); A("s_add_u32 s64, s64, s68"); A(f"s_add_u32 s64, s64, {3072*256}")
    A("s_cmp_ge_u32 s3, 4"); A("s_cbranch_scc1 L_H")

    KR = 16; QF = 80; SR = 96; PP = 112; ACC = 120
    PBF = 16
    VF = 48
    A("s_lshl_b32 s68, s3, 14"); A("s_add_u32 s76, s64, s68")
    A("v_xor_b32 v7, v5, v6"); A("v_lshlrev_b32 v7, 4, v7")
    A("v_lshl_add_u32 v128, v6, 8, v7")
    for j in range(1, 4): A(f"v_xor_b32 v{128+j}, {j*64}, v128")
    A("v_lshl_add_u32 v132, v5, 8, v7"); A("s_lshl_b32 s68, s3, 13"); A("v_add_u32 v132, s68, v132")
    for t in range(1, 4): A(f"v_xor_b32 v{132+t}, {t*64}, v132")
    for t in range(4): A(f"v_add_u32 v{136+t}, 0x{KA:x}, v{132+t}")
    A(f"s_add_u32 s77, s68, {KA}"); A(f"s_add_u32 s78, s68, {W1T}")
    A("s_waitcnt lgkmcnt(0)")
    for d, b in ((28, 6), (52, 26)):
        A(f"s_mov_b32 s{d}, s{b}"); A(f"s_mov_b32 s{d+1}, s{b+1}")
    A("s_barrier")
    for n in range(16):
        if n == 8:
            g.flag_wait(F_GD, 2, 3, 10)
        if g.thr and n >= g.thr: A(f"s_waitcnt vmcnt({g.thr-1})")
        sm = 77 if n < 8 else 78
        A(f"s_mov_b32 m0, s{sm}")
        A(f"s_add_u32 s{sm}, s{sm}, 1024")
        A(f"buffer_load_dwordx4 v{128 + (n & 3)}, s[28:31], s76 offen {g.ntkv} lds")
        A("s_add_u32 s76, s76, 1024")
        if n + 1 == kv:
            if int(kvw) >= 0: A(f"s_waitcnt vmcnt({int(kvw)})")
            g.flag_add(F_K2, 3, 4)
        if n + 1 == kq: g.flag_add(F_K, 3, 4)
    if not tailst: g.stamp(1)
    if cut:
        A("s_waitcnt vmcnt(0)"); g.stamp(2); A("s_branch L_fin")
    A(f"s_mov_b32 s78, 0x{f32bits(LOG2E * (128 ** -0.5)):08x}")
    A("v_and_b32 v11, 3, v2")
    A("v_lshlrev_b32 v12, 8, v11"); A("v_lshl_add_u32 v12, v6, 4, v12")
    A("v_lshlrev_b32 v13, 4, v11")
    A("s_lshl_b32 s68, s3, 2"); A("v_add_u32 v14, s68, v13")
    A(f"v_mul_u32_u24 v8, {PLP}, v11"); A("v_lshl_add_u32 v9, v6, 4, v8")
    A("v_lshl_add_u32 v8, v6, 3, v8"); A("s_lshl_b32 s68, s3, 7"); A("v_add_u32 v8, s68, v8")
    A("v_lshrrev_b32 v124, 2, v5")
    A("v_and_b32 v125, 1, v6"); A("v_lshl_add_u32 v125, v125, 2, v124"); A("v_lshlrev_b32 v125, 1, v125")
    A("v_lshrrev_b32 v126, 1, v11"); A("s_lshl_b32 s68, s3, 2"); A("v_add_u32 v126, s68, v126"); A("v_xor_b32 v126, v126, v125")
    A("v_lshlrev_b32 v126, 4, v126"); A("v_and_b32 v125, 1, v2"); A("v_lshl_add_u32 v126, v125, 3, v126")
    A("v_lshl_add_u32 v125, v6, 3, v124"); A("v_lshl_add_u32 v126, v125, 8, v126")
    A("v_xor_b32 v127, 32, v126")
    A(f"v_add_u32 v126, {VT}, v126"); A(f"v_add_u32 v127, {VT}, v127")
    A("v_lshlrev_b32 v125, 6, v11"); A("v_lshl_add_u32 v125, v6, 4, v125")
    A("s_lshl_b32 s79, s70, 2"); A("s_add_u32 s79, s79, s73"); A("s_lshl_b32 s79, s79, 3"); A("s_add_u32 s79, s79, s72")
    A("s_lshl_b32 s79, s79, 2"); A("s_add_u32 s79, s79, s3"); A("s_lshl_b32 s79, s79, 8"); A(f"s_add_u32 s79, s79, {O_OFF}")
    for T in range(4):
        A(f"s_waitcnt vmcnt({12 - 4*T})")
        for t in range(4):
            r = KR + (T*4 + t)*4
            if T < 2: A(f"ds_read_b128 v[{r}:{r+3}], v{136+t} offset:{T*4096}")
            else: A(f"ds_read_b128 v[{r}:{r+3}], v{132+t} offset:{W1T + (T-2)*4096}")
    g.flag_wait(F_Q, 1, 3, 10)
    if not tailst: g.stamp(2)
    for t in range(4):
        A(f"ds_read_b128 v[{QF+4*t}:{QF+4*t+3}], v12 offset:{QL + t*64}")
    A("s_waitcnt lgkmcnt(0)")
    for T in range(4):
        for t in range(4):
            r = KR + (T*4 + t)*4
            cc = "0" if t == 0 else f"v[{SR+4*T}:{SR+4*T+3}]"
            A(f"v_mfma_f32_16x16x32_bf16 v[{SR+4*T}:{SR+4*T+3}], v[{r}:{r+3}], v[{QF+4*t}:{QF+4*t+3}], {cc}")
    nop(4)
    A(f"v_max3_f32 v10, v{SR}, v{SR+1}, v{SR+2}")
    for i in range(3, 11, 2):
        A(f"v_max3_f32 v10, v10, v{SR+i}, v{SR+i+1}")
    A(f"v_max_f32 v10, v10, v{SR+11}")
    A(f"v_max3_f32 v10, v10, v{SR+12}, v{SR+13}")
    A(f"v_max3_f32 v10, v10, v{SR+14}, v{SR+15}")
    g.xrow("v_max_f32", [10], [15])
    A("s_mov_b64 exec, 15")
    A(f"ds_write_b32 v14, v10 offset:{MX}")
    g.flag_add(F_MX, 3, 4)
    g.flag_wait(F_MX, 4, 3, 15, sleep=False)
    A(f"ds_read_b128 v[{PP}:{PP+3}], v13 offset:{MX}")
    A("s_waitcnt lgkmcnt(0)")
    A(f"v_max3_f32 v10, v{PP}, v{PP+1}, v{PP+2}"); A(f"v_max_f32 v10, v10, v{PP+3}")
    A("v_mul_f32 v10, s78, v10")
    for i in range(16):
        A(f"v_fma_f32 v{SR+i}, v{SR+i}, s78, -v10")
    for i in range(16):
        A(f"v_exp_f32 v{SR+i}, v{SR+i}")
    nop(1)
    for i in range(8):
        A(f"v_cvt_pk_bf16_f32 v{PP+i}, v{SR+2*i}, v{SR+2*i+1}")
    exec_mask(0x000F000F)
    for T in range(4):
        A(f"ds_write_b64 v8, v[{PP+2*T}:{PP+2*T+1}] offset:{PL + T*32}")
    A("s_mov_b64 exec, -1")
    A(f"v_add_f32 v10, v{SR}, v{SR+1}"); A(f"v_add_f32 v15, v{SR+2}, v{SR+3}")
    for i in range(4, 16, 2):
        A(f"v_add_f32 v10, v10, v{SR+i}"); A(f"v_add_f32 v15, v15, v{SR+i+1}")
    A("v_add_f32 v10, v10, v15")
    g.xrow("v_add_f32", [10], [15])
    A("s_mov_b64 exec, 15")
    A(f"ds_write_b32 v14, v10 offset:{LL}")
    g.flag_add(F_ML, 3, 4)
    g.flag_wait(F_ML, 4, 3, 15, sleep=False)
    for t in range(8):
        A(f"ds_read_b128 v[{PBF+4*t}:{PBF+4*t+3}], v9 offset:{PL + t*64}")
    if not tailst: g.stamp(3)
    A("s_lshl_b32 s68, s3, 4"); A("v_mov_b32 v113, s68")
    A(f"ds_read_b128 v[116:119], v113 offset:{MX}")
    A(f"ds_read_b128 v[120:123], v113 offset:{LL}")
    A("s_waitcnt lgkmcnt(0)")
    A("v_max3_f32 v114, v116, v117, v118"); A("v_max_f32 v114, v114, v119"); A("v_mul_f32 v114, s78, v114")
    A("v_add_f32 v115, v120, v121"); A("v_add_f32 v116, v122, v123"); A("v_add_f32 v115, v115, v116")
    A("v_min_u32 v114, -2, v114"); A("v_min_u32 v115, -2, v115")
    A("s_lshl_b32 s36, s70, 2"); A("s_add_u32 s36, s36, s3"); A("s_lshl_b32 s36, s36, 8"); A("s_lshl_b32 s68, s71, 3"); A("s_add_u32 s36, s36, s68")
    A(f"s_add_u32 s36, s36, {MLD_OFF}")
    A("s_lshl_b32 s37, s70, 5"); A("s_add_u32 s37, s37, s71"); A("s_lshl_b32 s37, s37, 7"); A("s_lshl_b32 s68, s3, 3"); A("s_add_u32 s37, s37, s68")
    A(f"s_add_u32 s37, s37, {ML_OFF}")
    A("v_and_b32 v100, 7, v2")
    A("v_lshl_add_u32 v101, v6, 2, v124"); A("v_bfe_u32 v109, v101, 1, 2"); A("v_lshlrev_b32 v101, 7, v101")
    A("v_lshl_add_u32 v101, v109, 5, v101"); A("v_lshl_add_u32 v101, v11, 3, v101")
    A("s_and_b32 s68, s3, 1"); A("s_lshl_b32 s69, s68, 13"); A("v_add_u32 v101, s69, v101")
    A("v_xor_b32 v109, 32, v101"); A("v_xor_b32 v110, 64, v101"); A("v_xor_b32 v111, 0x60, v101")
    A("v_lshlrev_b32 v102, 10, v5"); A("v_lshl_add_u32 v102, v6, 4, v102")
    A("s_lshl_b32 s77, s70, 15"); A("s_lshr_b32 s69, s3, 1"); A("s_lshl_b32 s69, s69, 14"); A("s_add_u32 s77, s77, s69")
    A("s_lshl_b32 s68, s68, 9"); A("s_add_u32 s77, s77, s68")
    A("s_lshr_b32 s68, s71, 3"); A("s_lshl_b32 s68, s68, 6"); A("s_add_u32 s77, s77, s68"); A(f"s_add_u32 s77, s77, {O_OFF}")
    A("v_bfe_u32 v103, v2, 3, 1"); A("s_lshl_b32 s68, s3, 1"); A("v_add_u32 v104, s68, v103"); A("v_mul_u32_u24 v104, 2176, v104")
    A("v_mul_u32_u24 v105, 272, v100"); A("v_add_u32 v104, v104, v105"); A("v_lshl_add_u32 v104, v6, 4, v104")
    A("s_and_b32 s69, s3, 2"); A("v_add_u32 v103, s69, v103"); A("v_lshl_add_u32 v103, v103, 4, v5"); A("v_lshlrev_b32 v103, 2, v103")
    A("v_lshl_add_u32 v108, v100, 2, v6"); A("v_lshlrev_b32 v108, 7, v108")
    A("s_lshl_b32 s65, s70, 12"); A("s_lshr_b32 s69, s71, 3"); A("s_lshl_b32 s69, s69, 3"); A("s_add_u32 s65, s65, s69"); A(f"s_add_u32 s65, s65, {ML_OFF}")
    A("v_lshrrev_b32 v105, 5, v2"); A("v_add_u32 v106, s68, v105"); A("v_mul_u32_u24 v106, 272, v106")
    A("v_and_b32 v107, 31, v2"); A("v_lshl_add_u32 v106, v107, 3, v106")
    A("v_lshlrev_b32 v105, 10, v105"); A("v_lshl_add_u32 v105, v107, 2, v105")
    A("s_lshl_b32 s78, s74, 3"); A("s_add_u32 s78, s78, s68"); A("s_lshl_b32 s78, s78, 10")
    A("s_lshl_b32 s69, s75, 7"); A("s_add_u32 s78, s78, s69"); A(f"s_add_u32 s78, s78, {SP_OFF}")
    A(f"s_add_u32 s66, s79, {DUP}"); A(f"s_add_u32 s67, s77, {DUP}"); A("s_lshl_b32 s40, s74, 8"); A(f"s_add_u32 s40, s40, {MLD_OFF}"); A("v_lshrrev_b32 v112, 4, v108")
    A("s_mov_b32 s76, 0")
    A("s_waitcnt lgkmcnt(0)")
    def pv_mfma(t):
        vf = 128 + (t & 3)*8
        for nt in range(2):
            acc = 64 + 4*nt
            cc = "0" if t == 0 else f"v[{acc}:{acc+3}]"
            A(f"v_mfma_f32_16x16x32_bf16 v[{acc}:{acc+3}], v[{vf+4*nt}:{vf+4*nt+3}], v[{PBF+4*t}:{PBF+4*t+3}], {cc}")
    def bf(nt, t):
        i = nt*2 + t
        return 48 + 4*i if i < 4 else 80 + 4*(i - 4)
    def wo_frags():
        for nt in range(4):
            for t2 in range(2):
                r = bf(nt, t2)
                off = WOT + t2*4096
                va = (101, 109, 110, 111)[nt]
                A(f"ds_read_b64_tr_b16 v[{r}:{r+1}], v{va} offset:{off}")
                A(f"ds_read_b64_tr_b16 v[{r+2}:{r+3}], v{va} offset:{off + 2048}")
    for t in range(8):
        lw = g.newlab("VW"); lr = g.newlab("VR")
        if wp < 64 and t == wread:
            g.flag_wait(F_WO, 1, 3, 10, sleep=False)
            wo_frags()
            A("s_waitcnt lgkmcnt(0)")
        A(f"s_cmp_gt_u32 s76, {t}"); A(f"s_cbranch_scc1 {lr}")
        A("s_mov_b32 s15, 0x400000")
        lab(lw)
        A(f"ds_read_b64 v[{SR}:{SR+1}], v3 offset:{F_V0}")
        A("s_waitcnt lgkmcnt(0)")
        A(f"v_add_u32 v{SR+1}, 7, v{SR+1}")
        A(f"v_min_u32 v{SR}, v{SR}, v{SR+1}")
        A(f"v_readfirstlane_b32 s41, v{SR+1}")
        A("s_sub_u32 s15, s15, 1")
        A(f"v_readfirstlane_b32 s76, v{SR}")
        A("s_cmp_eq_u32 s15, 0"); A(f"s_cbranch_scc1 {lr}")
        A(f"s_cmp_gt_u32 s76, {t}"); A(f"s_cbranch_scc0 {lw}")
        lab(lr)
        vf = 128 + (t & 3)*8
        for nt in range(2):
            A(f"ds_read_b64_tr_b16 v[{vf+4*nt}:{vf+4*nt+1}], v{126+nt} offset:{t*8192}")
            A(f"ds_read_b64_tr_b16 v[{vf+4*nt+2}:{vf+4*nt+3}], v{126+nt} offset:{t*8192 + 1024}")
        if t >= 2:
            A("s_waitcnt lgkmcnt(8)")
            pv_mfma(t - 2)
    A("s_cmp_eq_u32 s41, 8")
    A("s_cselect_b32 s67, s67, s77"); A("s_cselect_b32 s40, s40, s65"); A("s_cselect_b64 s[42:43], -1, 0")
    A("v_cndmask_b32 v112, v108, v112, s[42:43]")
    A("s_waitcnt lgkmcnt(4)")
    pv_mfma(6)
    A("s_waitcnt lgkmcnt(0)")
    pv_mfma(7)
    g.stamp(4)
    exec_mask(0x000F000F)
    nop(5)
    A("v_cvt_pk_bf16_f32 v72, v64, v65"); A("v_cvt_pk_bf16_f32 v73, v66, v67")
    A("v_cvt_pk_bf16_f32 v74, v68, v69"); A("v_cvt_pk_bf16_f32 v75, v70, v71")
    for e in range(4): A(f"v_min_u32 v{72+e}, -2, v{72+e}")
    A("s_cmp_eq_u32 s41, 8"); A("s_cbranch_scc0 L_oglob")
    A("buffer_store_dwordx4 v[72:75], v125, s[52:55], s66 offen")
    if int(mlrep):
        A("s_mov_b64 exec, 1")
        A("buffer_store_dwordx2 v[114:115], v3, s[52:55], s36 offen")
    A("s_branch L_ostored")
    lab("L_oglob")
    A("buffer_store_dwordx4 v[72:75], v125, s[52:55], s79 offen sc1")
    lab("L_ostored")
    A("s_mov_b64 exec, -1")
    g.stamp(5)
    AF = 64
    def oloads(so):
        return [f"buffer_load_dwordx4 v[{AF}:{AF+3}], v102, s[52:55], s{so} offen sc1",
                f"buffer_load_dwordx4 v[{AF+4}:{AF+7}], v102, s[52:55], s{so} offen offset:256 sc1"]
    def mloads(sm):
        return [f"buffer_load_dwordx2 v[76:77], v{112 if sm == 40 else 108}, s[52:55], s{sm} offen sc1"]
    def ensure_store():
        le = g.newlab("ES")
        A(f"s_cmp_lg_u32 s41, 0"); A(f"s_cbranch_scc1 {le}")
        A("s_mov_b32 s41, 1")
        A("s_mov_b64 s[42:43], exec")
        exec_mask(0x000F000F)
        A("buffer_store_dwordx4 v[72:75], v125, s[52:55], s79 offen sc1")
        A("s_mov_b64 exec, s[42:43]")
        lab(le)
    def dualpoll(la, lb_, regs, first_wait):
        l0 = g.newlab("OP"); l1 = g.newlab("OC"); ld = g.newlab("OD"); lb = g.newlab("OB"); l2 = g.newlab("OW")
        A("s_mov_b32 s15, 0x40000")
        A(f"s_waitcnt vmcnt({first_wait})")
        A(f"s_branch {l1}")
        lab(l0)
        A(f"s_and_b32 s14, s15, {int(bmask)}"); A("s_cmp_eq_u32 s14, 0"); A(f"s_cbranch_scc1 {lb}")
        for l_ in la: A(l_)
        A(f"s_branch {l2}")
        lab(lb)
        ensure_store()
        for l_ in lb_: A(l_)
        lab(l2)
        A("s_waitcnt vmcnt(0)")
        lab(l1)
        rs = list(regs)
        if len(rs) == 2:
            A(f"v_max_u32 v10, v{rs[0]}, v{rs[1]}")
        else:
            A(f"v_max3_u32 v10, v{rs[0]}, v{rs[1]}, v{rs[2]}"); A(f"v_max3_u32 v15, v{rs[3]}, v{rs[4]}, v{rs[5]}")
            A(f"v_max3_u32 v10, v10, v{rs[6]}, v{rs[7]}"); A("v_max_u32 v10, v10, v15")
        A("v_cmp_eq_u32 vcc, -1, v10")
        A("s_and_b64 exec, exec, vcc"); A(f"s_cbranch_scc0 {ld}")
        if int(osleep): A(f"s_sleep {int(osleep)}")
        A("s_sub_u32 s15, s15, 1"); A("s_cmp_lg_u32 s15, 0"); A(f"s_cbranch_scc1 {l0}")
        lab(ld)
        A("s_mov_b64 exec, -1")
    if wp == 64:
        g.poll(mloads(40), [76, 77], 10, sleep=int(osleep))
        for l_ in oloads(67): A(l_)
    else:
        for l_ in mloads(40) + oloads(67): A(l_)
        g.poll(mloads(40), [76, 77], 10, preissued=True)
    if tailst: g.stamp(1)
    A("v_mov_b32 v78, v76")
    g.xrow("v_max_f32", [78], [79])
    A("v_sub_f32 v76, v76, v78")
    A("v_exp_f32 v76, v76")
    nop(1)
    A("v_mul_f32 v77, v76, v77")
    A("ds_bpermute_b32 v76, v103, v76")
    g.xrow("v_add_f32", [77], [79])
    A("v_rcp_f32 v77, v77")
    A("s_waitcnt lgkmcnt(0)")
    A("v_mul_f32 v76, v76, v77"); A("v_mov_b32 v77, v76")
    if wp == 64:
        g.flag_wait(F_WO, 1, 3, 10, sleep=False)
        wo_frags()
    if tailst: g.stamp(2)
    g.poll(oloads(67), list(range(AF, AF+8)), 10, preissued=True, sleep=int(osleep))
    A("s_waitcnt lgkmcnt(0)")
    if tailst:
        A("s_sub_u32 s86, 0x40000, s15"); A("s_add_u32 s86, s86, s80"); A("s_mov_b32 s87, s81")
    g.stamp(6)
    DW = 16
    for t in range(2):
        for nt in range(4):
            r = bf(nt, t)
            cc = "0" if t == 0 else f"v[{DW+4*nt}:{DW+4*nt+3}]"
            A(f"v_mfma_f32_16x16x32_bf16 v[{DW+4*nt}:{DW+4*nt+3}], v[{r}:{r+3}], v[{AF+4*t}:{AF+4*t+3}], {cc}")
    nop(5)
    for nt in range(4):
        A(f"v_pk_mul_f32 v[{DW+4*nt}:{DW+4*nt+1}], v[{DW+4*nt}:{DW+4*nt+1}], v[76:77]")
        A(f"v_pk_mul_f32 v[{DW+4*nt+2}:{DW+4*nt+3}], v[{DW+4*nt+2}:{DW+4*nt+3}], v[76:77]")
        A(f"ds_write_b128 v104, v[{DW+4*nt}:{DW+4*nt+3}] offset:{RED + nt*64}")
    A("s_waitcnt lgkmcnt(0)")
    A("s_barrier")
    for p in range(8):
        A(f"ds_read_b64 v[{32+2*p}:{33+2*p}], v106 offset:{RED + p*2176}")
    A("s_waitcnt lgkmcnt(4)") if (not stamps or only) else A("s_waitcnt lgkmcnt(0)")
    A("v_pk_add_f32 v[32:33], v[32:33], v[34:35]"); A("v_pk_add_f32 v[36:37], v[36:37], v[38:39]")
    A("v_pk_add_f32 v[32:33], v[32:33], v[36:37]")
    A("s_waitcnt lgkmcnt(0)")
    A("v_pk_add_f32 v[40:41], v[40:41], v[42:43]"); A("v_pk_add_f32 v[44:45], v[44:45], v[46:47]")
    A("v_pk_add_f32 v[40:41], v[40:41], v[44:45]")
    A("v_pk_add_f32 v[32:33], v[32:33], v[40:41]")
    A("v_cvt_pk_bf16_f32 v32, v32, v33")
    A("v_min_u32 v32, -2, v32")
    if int(spx4):
        nop(2)
        A("v_mov_b32_dpp v33, v32 quad_perm:[1,1,1,1] row_mask:0xf bank_mask:0xf")
        A("v_mov_b32_dpp v34, v32 quad_perm:[2,2,2,2] row_mask:0xf bank_mask:0xf")
        A("v_mov_b32_dpp v35, v32 quad_perm:[3,3,3,3] row_mask:0xf bank_mask:0xf")
        exec_mask(0x11111111)
        A("buffer_store_dwordx4 v[32:35], v105, s[52:55], s78 offen sc1")
        A("s_mov_b64 exec, -1")
    else:
        A("buffer_store_dword v32, v105, s[52:55], s78 offen sc1")
    g.stamp(7)
    A("s_branch L_fin")

    lab("L_H")
    A("s_cmp_eq_u32 s3, 8"); A("s_cbranch_scc1 L_load")
    A("s_setprio 3")
    A("v_lshlrev_b32 v7, 4, v2")
    A("s_sub_u32 s77, s3, 4")
    A("s_cmp_lg_u32 s3, 7"); A("s_cbranch_scc1 L_noinit")
    A("v_lshlrev_b32 v8, 2, v5")
    A("ds_write_b32 v8, v3")
    lab("L_noinit")
    A("v_lshrrev_b32 v8, 3, v2"); A("v_and_b32 v9, 7, v2"); A("v_lshlrev_b32 v9, 4, v9")
    A("s_lshl_b32 s68, s77, 11")
    A(f"s_mov_b32 s69, 0x{EP_OFF:x}")
    A("s_waitcnt lgkmcnt(0)")
    A("s_load_dword s79, s[26:27], s69")
    for d, b in ((32, 8), (44, 12), (48, 20), (52, 26), (56, 4)):
        A(f"s_mov_b32 s{d}, s{b}"); A(f"s_mov_b32 s{d+1}, s{b+1}")
    XR = 16
    for r in range(2):
        A(f"buffer_load_dwordx4 v[{XR+4*r}:{XR+4*r+3}], v7, s[56:59], s68 offen offset:{r*1024}")
    A("s_cmp_ge_u32 s3, 6"); A("s_cbranch_scc1 L_SX0")
    A("s_cmp_eq_u32 s3, 5"); A("s_cbranch_scc1 L_G1")
    A("s_mov_b32 s36, s10"); A("s_mov_b32 s37, s11"); A("s_mov_b32 s38, 4194304")
    A("s_lshl_b32 s76, s70, 3"); A("s_add_u32 s76, s76, s72"); A("s_lshl_b32 s76, s76, 7")
    A("s_movk_i32 s69, 8192")
    A("s_lshl_b32 s78, s73, 17"); A("s_lshl_b32 s68, s76, 4"); A("s_add_u32 s78, s78, s68")
    A(f"s_add_u32 s78, s78, {QP_OFF}")
    A("s_branch L_GJ")
    lab("L_G1")
    A("s_cmp_eq_u32 s70, 7"); A("s_cbranch_scc1 L_LN0")
    A("s_bitcmp1_b32 s71, 2")
    A("s_cselect_b32 s36, s18, s16"); A("s_cselect_b32 s37, s19, s17"); A("s_mov_b32 s38, 1835008")
    A("s_lshl_b32 s76, s74, 7")
    A("s_movk_i32 s69, 3584")
    A("s_and_b32 s78, s71, 7"); A(f"s_mul_i32 s78, s78, {28*2048}"); A("s_lshl_b32 s68, s76, 4"); A("s_add_u32 s78, s78, s68")
    A(f"s_add_u32 s78, s78, {GP_OFF}")
    lab("L_GJ")
    A("v_mul_lo_u32 v10, v8, s69"); A("v_add_u32 v10, v10, v9")
    A("s_lshl_b32 s68, s73, 7"); A("s_mul_i32 s68, s68, s69"); A("s_add_u32 s100, s76, s68")
    A("s_lshl_b32 s101, s69, 3")
    A("s_lshl_b32 s68, s77, 14"); A(f"s_add_u32 s68, s68, {W1T}")
    for i in range(16):
        A("s_mov_b32 m0, s68")
        A("s_add_u32 s68, s68, 1024")
        A(f"buffer_load_dwordx4 v10, s[36:39], s100 offen {g.ntw} lds")
        A("s_add_u32 s100, s100, s101")
    A("s_barrier")
    A("s_waitcnt vmcnt(16)")
    A("s_branch L_LN")
    lab("L_SX0")
    A("s_cmp_eq_u32 s3, 7"); A("s_cbranch_scc1 L_LN0")
    if int(noclr): A("s_branch L_LN0")
    for r in range(4):
        A(f"v_mov_b32 v{24+r}, -1")
    A("s_lshl_b32 s68, s70, 2"); A("s_add_u32 s68, s68, s73"); A("s_lshl_b32 s68, s68, 3"); A("s_add_u32 s68, s68, s72")
    A("s_lshl_b32 s68, s68, 10"); A(f"s_add_u32 s68, s68, {O_OFF}")
    A("buffer_store_dwordx4 v[24:27], v7, s[52:55], s68 offen sc1")
    A(f"s_add_u32 s68, s68, {DUP}")
    A("buffer_store_dwordx4 v[24:27], v7, s[52:55], s68 offen sc1")
    A("v_lshl_add_u32 v10, v8, 10, v9")
    A("s_lshl_b32 s68, s74, 13"); A("s_lshl_b32 s69, s75, 7"); A("s_add_u32 s68, s68, s69")
    A(f"s_add_u32 s69, s68, {SP_OFF}")
    A("buffer_store_dwordx4 v[24:27], v10, s[52:55], s69 offen sc1")
    down_ids(68, 69, "L_nofp")
    A("s_lshl_b32 s68, s68, 13"); A("s_lshl_b32 s69, s69, 7"); A("s_add_u32 s69, s69, s68"); A(f"s_add_u32 s69, s69, {FP_OFF}")
    A("buffer_store_dwordx4 v[24:27], v10, s[52:55], s69 offen sc1")
    if dshift: A("buffer_store_dwordx4 v[24:27], v10, s[52:55], s69 offen offset:128 sc1")
    lab("L_nofp")
    A("s_lshl_b32 s68, s70, 5"); A("s_add_u32 s68, s68, s71"); A("s_lshl_b32 s68, s68, 7"); A(f"s_add_u32 s68, s68, {ML_OFF}")
    if int(mlfull):
        A("s_mov_b64 exec, 0xff")
        A("buffer_store_dwordx4 v[24:27], v7, s[52:55], s68 offen sc1")
        A("s_mov_b64 exec, -1")
        A("s_cmp_lg_u32 s71, 0"); A("s_cbranch_scc1 L_nomld")
        A("s_lshl_b32 s68, s70, 10"); A(f"s_add_u32 s68, s68, {MLD_OFF}")
        A("buffer_store_dwordx4 v[24:27], v7, s[52:55], s68 offen sc1")
        lab("L_nomld")
    else:
        A("s_mov_b64 exec, 3")
        A("buffer_store_dwordx4 v[24:27], v7, s[52:55], s68 offen sc1")
        A("s_mov_b64 exec, 15")
        A("v_lshlrev_b32 v10, 8, v2")
        A("s_lshl_b32 s68, s70, 10"); A("s_lshl_b32 s69, s71, 3"); A("s_add_u32 s68, s68, s69"); A(f"s_add_u32 s68, s68, {MLD_OFF}")
        A("buffer_store_dwordx2 v[24:25], v10, s[52:55], s68 offen sc1")
        A("s_mov_b64 exec, -1")
    A("s_barrier")
    A(f"s_waitcnt vmcnt({4 if int(mlfull) else 5})")
    A("s_cmp_eq_u32 s70, 7"); A("s_cbranch_scc1 L_LN")
    A("s_nop 0")
    A("s_branch L_LN") if False else None
    A("s_waitcnt vmcnt(4)") if False else None
    A("s_branch L_LN")
    lab("L_LN0")
    A("s_barrier")
    A("s_waitcnt vmcnt(0)")
    lab("L_LN")
    if cut == 1:
        g.flag_add(F_W, 3, 4); A("s_branch L_fin")
    XF = 32
    for r in range(2):
        unpack(XF + 8*r, [XR + 4*r + e for e in range(4)])
    SM = 64
    for r in range(2):
        A(f"v_add_f32 v{SM+r}, v{XF+8*r}, v{XF+8*r+1}"); A(f"v_add_f32 v{SM+2+r}, v{XF+8*r+2}, v{XF+8*r+3}")
    for e in range(4, 8, 2):
        for r in range(2):
            A(f"v_add_f32 v{SM+r}, v{SM+r}, v{XF+8*r+e}"); A(f"v_add_f32 v{SM+2+r}, v{SM+2+r}, v{XF+8*r+e+1}")
    for r in range(2):
        A(f"v_add_f32 v{SM+r}, v{SM+r}, v{SM+2+r}")
    g.allreduce64("v_add_f32", [SM, SM+1], [SM+4, SM+5])
    A(f"s_mov_b32 s68, 0x{f32bits(1.0/512):08x}")
    for r in range(2):
        A(f"v_mul_f32 v{SM+r}, s68, v{SM+r}")
    VS = 72
    for e in range(8):
        for r in range(2):
            A(f"v_sub_f32 v{80+2*(e&1)+r}, v{XF+8*r+e}, v{SM+r}")
        for r in range(2):
            t_ = 80+2*(e&1)+r
            if e == 0: A(f"v_mul_f32 v{VS+r}, v{t_}, v{t_}")
            else: A(f"v_fmac_f32 v{VS+r}, v{t_}, v{t_}")
    g.allreduce64("v_add_f32", [VS, VS+1], [VS+4, VS+5])
    for r in range(2):
        A(f"v_mul_f32 v{VS+r}, s68, v{VS+r}")
    rbf([SM, SM+1, VS, VS+1])
    for r in range(2):
        A(f"v_add_f32 v{VS+r}, 0x{f32bits(1e-5):08x}, v{VS+r}")
    rbf([VS, VS+1])
    for r in range(2):
        A(f"v_sqrt_f32 v{VS+r}, v{VS+r}")
    nop(1)
    rbf([VS, VS+1])
    for r in range(2):
        A(f"v_rcp_f32 v{VS+r}, v{VS+r}")
    for r in range(2):
        for e in range(8):
            A(f"v_sub_f32 v{XF+8*r+e}, v{XF+8*r+e}, v{SM+r}")
    for r in range(2):
        for e in range(4):
            A(f"v_cvt_pk_bf16_f32 v{XR+4*r+e}, v{XF+8*r+2*e}, v{XF+8*r+2*e+1}")
    for r in range(2):
        unpack(XF + 8*r, [XR + 4*r + e for e in range(4)])
    for r in range(2):
        for e in range(8):
            A(f"v_mul_f32 v{XF+8*r+e}, v{XF+8*r+e}, v{VS+r}")
    for r in range(2):
        for e in range(4):
            A(f"v_cvt_pk_bf16_f32 v{XR+4*r+e}, v{XF+8*r+2*e}, v{XF+8*r+2*e+1}")
    A(f"s_mul_i32 s68, s77, {2*XNP}"); A("v_lshlrev_b32 v11, 4, v5"); A("v_add_u32 v11, s68, v11")
    A("v_cmp_eq_u32 vcc, s73, v6")
    A("s_and_saveexec_b64 s[68:69], vcc")
    for r in range(2):
        A(f"ds_write_b128 v11, v[{XR+4*r}:{XR+4*r+3}] offset:{XN + r*XNP}")
    g.flag_add(F_XN, 3, 4)
    g.stamp(2)
    A("s_add_u32 s4, s79, 1"); A(f"s_mul_i32 s5, s4, 0x{TAGMUL:x}")
    A("v_lshrrev_b32 v12, 2, v5"); A("v_lshl_add_u32 v12, v6, 3, v12"); A("v_lshlrev_b32 v12, 7, v12")
    A("v_and_b32 v13, 3, v2")
    A("v_and_b32 v14, 7, v2")
    A("s_cmp_ge_u32 s3, 6"); A("s_cbranch_scc1 L_SX1")
    A("s_cmp_lg_u32 s3, 5"); A("s_cbranch_scc1 L_Ggo")
    A("s_cmp_lg_u32 s70, 7"); A("s_cbranch_scc1 L_Ggo")
    g.flag_add(F_W, 3, 4)
    g.flag_add(F_GD, 3, 4)
    if int(pubw): g.flag_add(F_PUB, 3, 4)
    A("s_branch L_G1post")
    lab("L_Ggo")
    A(f"v_mul_u32_u24 v11, {XNP}, v14"); A("v_lshl_add_u32 v11, v6, 4, v11")
    A("v_lshl_add_u32 v12, v13, 3, v12")
    A("s_lshl_b32 s68, s77, 14"); A("v_add_u32 v12, s68, v12")
    A("s_cmp_eq_u32 s3, 5"); A("s_cbranch_scc1 L_dstG")
    A("v_lshlrev_b32 v15, 8, v14"); A("v_lshl_add_u32 v15, v6, 4, v15")
    A("s_mov_b32 s8, s78"); A("s_add_u32 s9, s78, 64"); A("s_add_u32 s10, s78, 128"); A("s_add_u32 s11, s78, 192")
    if int(gfull): A("v_bfe_u32 v9, v2, 3, 1"); A("v_lshl_add_u32 v15, v9, 6, v15")
    A("s_branch L_dstJ")
    lab("L_dstG")
    A("v_and_b32 v15, 1, v6"); A("v_lshlrev_b32 v15, 10, v15"); A("v_lshrrev_b32 v9, 1, v6"); A("v_lshl_add_u32 v15, v9, 8, v15")
    A("v_lshl_add_u32 v15, v14, 4, v15")
    A("s_mov_b32 s8, s78"); A("s_add_u32 s9, s78, 512"); A("s_add_u32 s10, s78, 128"); A("s_add_u32 s11, s78, 640")
    if int(gfull): A("v_bfe_u32 v9, v2, 3, 1"); A("v_lshl_add_u32 v15, v9, 9, v15")
    lab("L_dstJ")
    for nt in range(4):
        A(f"v_mov_b32 v{113+4*nt}, s4"); A(f"v_mov_b32 v{115+4*nt}, s5")
    A(f"s_add_u32 s66, s78, {DUP}")
    g.flag_wait(F_XN, 4, 3, 10)
    XB = 16
    for t in range(4):
        A(f"ds_read_b128 v[{XB+4*t}:{XB+4*t+3}], v11 offset:{XN + t*64}")
    WB = 32
    for t in range(4):
        A(f"s_waitcnt vmcnt({12 - 4*t})")
        if t == 3:
            g.flag_add(F_W, 3, 4)
        for nt in range(4):
            r = WB + (t*4 + nt)*4
            off = W1T + t*4096 + nt*32
            A(f"ds_read_b64_tr_b16 v[{r}:{r+1}], v12 offset:{off}")
            A(f"ds_read_b64_tr_b16 v[{r+2}:{r+3}], v12 offset:{off+512}")
        A("s_waitcnt lgkmcnt(0)")
        for nt in range(4):
            r = WB + (t*4 + nt)*4
            d = 96 + nt*4
            cc = "0" if t == 0 else f"v[{d}:{d+3}]"
            A(f"v_mfma_f32_16x16x32_bf16 v[{d}:{d+3}], v[{r}:{r+3}], v[{XB+4*t}:{XB+4*t+3}], {cc}")
    g.stamp(3)
    g.flag_add(F_GD, 3, 4)
    exec_mask(0x00ff00ff)
    nop(2)
    if int(gfull):
        for pr in range(2):
            A(f"v_cvt_pk_bf16_f32 v{112+4*pr}, v{96+8*pr}, v{97+8*pr}"); A(f"v_cvt_pk_bf16_f32 v{114+4*pr}, v{98+8*pr}, v{99+8*pr}")
        exec_mask(0xff00ff00)
        for pr in range(2):
            A(f"v_cvt_pk_bf16_f32 v{112+4*pr}, v{100+8*pr}, v{101+8*pr}"); A(f"v_cvt_pk_bf16_f32 v{114+4*pr}, v{102+8*pr}, v{103+8*pr}")
        A("s_mov_b64 exec, -1")
        A("buffer_store_dwordx4 v[112:115], v15, s[52:55], s78 offen sc1")
        A("buffer_store_dwordx4 v[116:119], v15, s[52:55], s78 offen offset:128 sc1")
    for nt in range(4 if not int(gfull) else 0):
        A(f"v_cvt_pk_bf16_f32 v{112+4*nt}, v{96+4*nt}, v{97+4*nt}")
        A(f"v_cvt_pk_bf16_f32 v{114+4*nt}, v{98+4*nt}, v{99+4*nt}")
        if int(qdual): A(f"buffer_store_dwordx4 v[{112+4*nt}:{115+4*nt}], v15, s[52:55], s66 offen offset:{nt*512}")
        else: A(f"buffer_store_dwordx4 v[{112+4*nt}:{115+4*nt}], v15, s[52:55], s{8+nt} offen sc1")
    if int(qdual):
      for nt in range(4):
        A(f"buffer_store_dwordx4 v[{112+4*nt}:{115+4*nt}], v15, s[52:55], s78 offen offset:{nt*512} sc1")
    A("s_mov_b64 exec, -1")
    g.stamp(4)
    if int(pubw):
        A("s_waitcnt vmcnt(0)")
        g.flag_add(F_PUB, 3, 4)
    lab("L_Gpost")
    A("s_cmp_eq_u32 s3, 5"); A("s_cbranch_scc1 L_G1post")
    A("s_lshl_b32 s6, s70, 8"); A(f"s_add_u32 s6, s6, {FL_OFF}")
    A("s_getreg_b32 s7, hwreg(HW_REG_XCC_ID, 0, 4)")
    A("s_andn2_b32 s8, s5, 15"); A("s_or_b32 s8, s8, s7")
    A("v_and_b32 v19, 31, v2"); A("v_lshlrev_b32 v19, 3, v19")
    if int(tchunk): g.flag_wait(F_V0, int(tchunk), 3, 10)
    else: g.flag_wait(F_K2, 4, 3, 10)
    g.stamp(5)
    tokcheck(19, 6, 8)
    A("v_cmp_ne_u32 vcc, 0, v23")
    A("s_cmp_lg_u64 vcc, 0")
    A("s_cselect_b32 s8, 2, 1")
    A("v_mov_b32 v20, s8")
    A(f"ds_write_b32 v3, v20 offset:{F_TOK}")
    g.stamp(6)
    A("s_waitcnt lgkmcnt(0)")
    A("s_branch L_fin")
    lab("L_G1post")
    if cut:
        A("s_waitcnt lgkmcnt(0)"); A("s_branch L_fin")
    A("s_mov_b32 s60, s22"); A("s_mov_b32 s61, s23")
    A("s_lshl_b32 s68, s72, 10"); A("s_lshl_b32 s69, s70, 7"); A("s_add_u32 s68, s68, s69"); A("s_lshl_b32 s69, s73, 5")
    A("s_add_u32 s76, s68, s69")
    A("v_lshrrev_b32 v17, 1, v2"); A("v_and_b32 v16, 1, v2")
    A("v_lshlrev_b32 v19, 4, v16"); A("v_mov_b32 v20, 0x3f80"); A("v_lshlrev_b32 v20, v19, v20")
    A("v_bfe_u32 v19, v2, 1, 2")
    for e in range(4):
        A(f"v_cmp_eq_u32 vcc, {e}, v19")
        nop(2)
        A(f"v_cndmask_b32 v{40+e}, 0, v20, vcc")
    A("v_lshlrev_b32 v21, 4, v16"); A("v_lshl_add_u32 v21, v6, 3, v21")
    A("v_min_u32 v18, 27, v17")
    A("v_lshlrev_b32 v18, 13, v18"); A("v_lshl_add_u32 v18, v16, 4, v18")
    A("v_lshlrev_b32 v17, 13, v17"); A("v_lshl_add_u32 v17, v16, 4, v17")
    A(f"s_add_u32 s77, s76, {FP_OFF}"); A(f"s_add_u32 s78, s76, {SP_OFF}")
    A("buffer_load_dwordx2 v[44:45], v21, s[56:59], s76 offen")
    fm = int(fmode)
    if fm == 0:
        g.flag_wait(F_TOK, 1, 3, 10)
        g.flag_wait(F_V0, int(fchunk), 3, 10)
    elif fm == 1:
        g.flag_wait(F_TOK, 1, 3, 10)
        g.flag_wait(F_WO, 1, 3, 10)
    else:
        A("v_bfe_u32 v26, v2, 2, 3"); A("v_lshlrev_b32 v26, 8, v26"); A("v_and_b32 v27, 3, v2"); A("v_lshl_add_u32 v26, v27, 6, v26")
        A("s_lshl_b32 s6, s70, 3"); A(f"s_add_u32 s6, s6, {FL_OFF}")
        A("v_mov_b32 v28, v21")
        g.flag_wait(F_V0, int(t2chunk), 3, 10)
        tokcheck(26, 6, 5)
        A("v_mov_b32 v21, v28")
        A("s_waitcnt lgkmcnt(0)")
        A("s_barrier")
    g.stamp(5)
    g.poll(["buffer_load_dwordx4 v[32:35], v18, s[52:55], s77 offen sc1"], [32, 33, 34, 35], 10, sleep=int(fsl) if fm == 0 else int(fsl2))
    if fm == 2:
        A("buffer_load_dwordx4 v[56:59], v17, s[52:55], s78 offen sc1")
    g.stamp(6)
    def red_final(src=32):
        A(f"v_mfma_f32_16x16x32_bf16 v[36:39], v[40:43], v[{src}:{src+3}], 0")
        nop(8)
        for mod in ("row_ror:2", "row_ror:4", "row_ror:8"):
            for r in range(4):
                A(f"v_add_f32_dpp v{36+r}, v{36+r}, v{36+r} {mod} row_mask:0xf bank_mask:0xf")
    A("v_cmp_gt_u32 vcc, 56, v2")
    nop(2)
    for r in range(4):
        A(f"v_cndmask_b32 v{32+r}, 0, v{32+r}, vcc")
    nop(2)
    red_final()
    rbf([36, 37, 38, 39])
    silu([36, 37, 38, 39], 48)
    rbf([36, 37, 38, 39])
    for r in range(4): A(f"v_mov_b32 v{48+r}, v{36+r}")
    unpack(52, [44, 45])
    g.stamp(7)
    if fm != 2:
        A("s_waitcnt lgkmcnt(0)")
        A("s_barrier")
    g.poll(["buffer_load_dwordx4 v[56:59], v17, s[52:55], s78 offen sc1"], [56, 57, 58, 59], 10, preissued=(fm == 2), sleep=int(ssl))
    g.stamp(8)
    red_final(56)
    A("v_cvt_pk_bf16_f32 v32, v36, v37"); A("v_cvt_pk_bf16_f32 v33, v38, v39")
    unpack(36, [32, 33])
    A("v_pk_mul_f32 v[36:37], v[36:37], v[48:49]"); A("v_pk_mul_f32 v[38:39], v[38:39], v[50:51]")
    A("v_cvt_pk_bf16_f32 v32, v36, v37"); A("v_cvt_pk_bf16_f32 v33, v38, v39")
    unpack(36, [32, 33])
    A("v_pk_add_f32 v[36:37], v[36:37], v[52:53]"); A("v_pk_add_f32 v[38:39], v[38:39], v[54:55]")
    A("v_cvt_pk_bf16_f32 v32, v36, v37"); A("v_cvt_pk_bf16_f32 v33, v38, v39")
    A("s_mov_b64 exec, 0x30003")
    A("buffer_store_dwordx2 v[32:33], v21, s[60:63], s76 offen")
    A("s_mov_b64 exec, -1")
    g.stamp(9)
    A("s_cmp_lg_u32 s2, 0"); A("s_cbranch_scc1 L_fin")
    A("v_mov_b32 v32, s4")
    A(f"s_mov_b32 s68, {EP_OFF}")
    A("s_mov_b64 exec, 1")
    A("buffer_store_dword v32, v3, s[52:55], s68 offen sc1")
    A("s_mov_b64 exec, -1")
    A("s_branch L_fin")
    lab("L_load")
    A("s_setprio 2")
    A("v_lshrrev_b32 v8, 3, v2"); A("v_and_b32 v9, 7, v2"); A("v_lshlrev_b32 v9, 4, v9")
    A("v_lshlrev_b32 v16, 1, v6"); A("v_xor_b32 v16, v16, v5"); A("v_xor_b32 v17, 8, v16")
    A("v_lshlrev_b32 v16, 4, v16"); A("v_lshl_add_u32 v16, v6, 8, v16")
    A("v_lshlrev_b32 v17, 4, v17"); A("v_lshl_add_u32 v17, v6, 8, v17")
    A("s_mov_b32 s100, s64")
    A(f"s_mov_b32 s101, {VT}")
    A("v_lshl_add_u32 v18, v8, 10, v9")
    A("v_lshlrev_b32 v21, 5, v6"); A("v_xor_b32 v21, v21, v18")
    A("s_lshl_b32 s76, s74, 17"); A("s_lshl_b32 s68, s75, 7"); A("s_add_u32 s76, s76, s68")
    A(f"s_mov_b32 s77, {WOT}")
    A("s_lshl_b32 s78, s74, 16"); A("s_add_u32 s78, s78, s68")
    A(f"s_mov_b32 s79, {WDT}")
    A("s_waitcnt lgkmcnt(0)")
    for d, b_ in ((32, 8), (44, 12), (48, 20), (52, 26)):
        A(f"s_mov_b32 s{d}, s{b_}"); A(f"s_mov_b32 s{d+1}, s{b_+1}")
    A("s_barrier")
    if cut == 2:
        A("s_branch L_fin")
    if int(touch):
        A("s_mov_b64 exec, 1")
        A(f"buffer_load_dword v30, v3, s[44:47], s76 offen {g.ntw}")
        A(f"buffer_load_dword v31, v3, s[48:51], s78 offen {g.ntw}")
        if not int(vpre): A(f"buffer_load_dword v32, v3, s[32:35], s100 offen {g.ntkv}")
        A("s_mov_b64 exec, -1")
        A("s_waitcnt vmcnt(0)")
    if vdelay and not int(vpre):
        g.flag_wait(F_K2, 4, 3, 10)
    g.stamp(5)
    NV = 64
    dl = int(dlate)
    assert dl == 0
    seq = [("v", i) for i in range(wp)] + [("w", i) for i in range(16)] + [("v", i) for i in range(wp, NV)]
    NT = len(seq)
    marks = {}
    for k in range(8, NV + 1, 8): marks[k if k <= wp else k + 16] = ("V", k // 8)
    marks[wp + 16] = ("F", F_WO)
    def publish(k):
        if k in marks:
            kind, val = marks.pop(k)
            if kind == "V":
                A(f"v_mov_b32 v20, {val}")
                A(f"ds_write_b32 v3, v20 offset:{F_V0}")
            else:
                A(f"ds_write_b32 v3, v4 offset:{val}")
    for i, (kind, j) in enumerate(seq):
        if int(vpre) and i == int(vpre) and vdelay:
            g.flag_wait(F_K2, 4, 3, 10)
        if i >= vthr:
            A(f"s_waitcnt vmcnt({vthr-1})")
            publish(i - vthr + 1)
        if kind == "v":
            A("s_mov_b32 m0, s101")
            A("s_add_u32 s101, s101, 1024")
            A(f"buffer_load_dwordx4 v{16 + ((j >> 1) & 1)}, s[32:35], s100 offen {g.ntkv} lds")
            A("s_add_u32 s100, s100, 1024")
        elif kind == "w":
            A("s_mov_b32 m0, s77")
            A("s_add_u32 s77, s77, 1024")
            A(f"buffer_load_dwordx4 v21, s[44:47], s76 offen {g.ntw} lds")
            A("s_add_u32 s76, s76, 8192")
        else:
            A("s_mov_b32 m0, s79")
            A("s_add_u32 s79, s79, 1024")
            A(f"buffer_load_dwordx4 v18, s[48:51], s78 offen {g.ntw} lds")
            A("s_add_u32 s78, s78, 8192")
    g.stamp(6)
    for k in sorted(marks):
        A(f"s_waitcnt vmcnt({NT - k})")
        publish(k)
    g.stamp(7)
    A("s_waitcnt lgkmcnt(0)")
    A("s_branch L_fin")
    lab("L_SX1")
    A("s_cmp_eq_u32 s3, 7"); A("s_cbranch_scc1 L_X")
    A("s_getreg_b32 s6, hwreg(HW_REG_XCC_ID, 0, 4)")
    A("s_andn2_b32 s7, s5, 15"); A("s_or_b32 s7, s7, s6")
    A("v_mov_b32 v16, s4"); A("v_mov_b32 v17, s7")
    A("s_lshl_b32 s7, s70, 5"); A("s_add_u32 s7, s7, s71"); A("s_lshl_b32 s7, s7, 3"); A(f"s_add_u32 s7, s7, {FL_OFF}")
    A("s_waitcnt vmcnt(0)")
    A("s_mov_b64 exec, 1")
    A("buffer_store_dwordx2 v[16:17], v3, s[52:55], s7 offen sc1")
    A(f"ds_write_b32 v3, v16 offset:{F_EP}")
    A("s_mov_b64 exec, -1")
    g.stamp(1)
    if cut in (2, 3):
        A("s_branch L_fin")
    A("v_lshlrev_b32 v9, 11, v6"); A("v_lshl_add_u32 v9, v5, 4, v9")
    A("s_lshl_b32 s16, s70, 14"); A("s_lshl_b32 s69, s72, 8"); A("s_add_u32 s16, s16, s69"); A(f"s_add_u32 s16, s16, {QP_OFF}")
    for k in range(1, 8):
        A(f"s_add_u32 s{16+k}, s16, {(k>>1)*131072 + (k&1)*8192}")
    A("v_lshlrev_b32 v8, 3, v2")
    A("v_bfe_u32 v12, v2, 3, 2"); A("v_lshlrev_b32 v12, 17, v12"); A("v_lshl_add_u32 v12, v14, 11, v12")
    g.flag_wait(F_K, 4, 3, 10)
    if int(pubw): g.flag_wait(F_PUB, 2, 3, 10)
    g.stamp(7)
    if int(sample):
        tagpoll([f"buffer_load_dwordx4 v[16:19], v12, s[52:55], s16 offen offset:{3*512+48} sc1"], [16], 10, qsleep)
    g.stamp(8)
    tagpoll([f"buffer_load_dwordx4 v[{16+4*k}:{19+4*k}], v9, s[52:55], s{16+k} offen sc1" for k in range(8)],
            [16+4*k for k in range(8)], 10, qsleep, vaddr=9)
    g.stamp(3)
    if stamps and not only:
        A("s_waitcnt lgkmcnt(0)")
        A("s_sub_u32 s88, 0x3ffff, s15"); A("s_mul_i32 s88, s88, 10"); A("s_add_u32 s88, s88, s80"); A("s_mov_b32 s89, s81")
    for k in range(8):
        unpack(48 + 4*k, [16+4*k, 18+4*k])
    for i in range(2):
        for e in range(4):
            A(f"v_add_f32 v{48+4*i+e}, v{48+4*i+e}, v{56+4*i+e}"); A(f"v_add_f32 v{64+4*i+e}, v{64+4*i+e}, v{72+4*i+e}")
    for e in range(8):
        A(f"v_add_f32 v{48+e}, v{48+e}, v{64+e}")
    for e in range(4):
        A(f"v_cvt_pk_bf16_f32 v{16+e}, v{48+2*e}, v{49+2*e}")
    A(f"ds_write_b64 v8, v[16:17] offset:{QL}")
    A(f"ds_write_b64 v8, v[18:19] offset:{QL+512}")
    g.flag_add(F_Q, 3, 4)
    g.stamp(5)
    if cut == 4:
        A("s_branch L_fin")
    A("v_lshlrev_b32 v8, 3, v2"); A("v_lshlrev_b32 v9, 4, v13")
    A("s_lshl_b32 s6, s70, 12"); A(f"s_add_u32 s6, s6, {ML_OFF}")
    A("s_lshl_b32 s68, s71, 7"); A("s_add_u32 s68, s68, s6")
    A(f"s_mov_b32 s78, 0x{f32bits(LOG2E * (128 ** -0.5)):08x}")
    A("v_and_b32 v12, 31, v2"); A("v_lshlrev_b32 v11, 2, v12"); A("v_lshlrev_b32 v12, 7, v12")
    A("s_lshr_b32 s69, s71, 3"); A("s_lshl_b32 s69, s69, 3"); A("s_add_u32 s6, s6, s69")
    g.flag_wait(F_ML, 4, 3, 10)
    A(f"ds_read_b128 v[16:19], v9 offset:{MX}")
    A(f"ds_read_b128 v[20:23], v9 offset:{LL}")
    A("s_waitcnt lgkmcnt(0)")
    A("v_max3_f32 v24, v16, v17, v18"); A("v_max_f32 v24, v24, v19"); A("v_mul_f32 v24, s78, v24")
    A("v_add_f32 v25, v20, v21"); A("v_add_f32 v26, v22, v23"); A("v_add_f32 v25, v25, v26")
    A("v_min_u32 v24, -2, v24"); A("v_min_u32 v25, -2, v25")
    A("s_lshl_b32 s69, s70, 10"); A("s_lshl_b32 s7, s71, 3"); A("s_add_u32 s69, s69, s7"); A(f"s_add_u32 s69, s69, {MLD_OFF}")
    if int(mlfull):
        g.flag_wait(F_TOK, 1, 3, 10)
        A("v_lshlrev_b32 v10, 8, v2")
        A("s_cmp_eq_u32 s14, 1"); A("s_cbranch_scc0 L_mlglob")
        A("s_mov_b64 exec, 15")
        A("buffer_store_dwordx2 v[24:25], v10, s[52:55], s69 offen")
        A("s_branch L_mldone")
        lab("L_mlglob")
        A("s_mov_b64 exec, 0xffff")
        A("buffer_store_dwordx2 v[24:25], v8, s[52:55], s68 offen sc1")
        lab("L_mldone")
        A("s_mov_b64 exec, -1")
    else:
        A("v_lshlrev_b32 v10, 8, v2")
        A("s_mov_b64 exec, 15")
        A("buffer_store_dwordx2 v[24:25], v10, s[52:55], s69 offen")
        A("buffer_store_dwordx2 v[24:25], v8, s[52:55], s68 offen sc1")
        A("s_mov_b64 exec, -1")
    g.stamp(6)
    if stamps:
        A("s_waitcnt vmcnt(0)")
        g.stamp(9)
    A("s_branch L_fin")
    lab("L_X")
    if cut in (2, 3, 4):
        A("s_branch L_fin")
    down_ids(6, 7, "L_fin")
    NSUB = 2 if dshift else 1
    assert not (dshift and int(fpfull))
    A(f"v_lshl_add_u32 v12, v13, {4 if int(fpfull) else 5}, v12")
    A("v_lshl_add_u32 v10, v8, 10, v9")
    A("s_lshl_b32 s100, s6, 16"); A("s_lshl_b32 s69, s7, 7"); A("s_add_u32 s100, s100, s69")
    A("v_mov_b32 v11, v7")
    A("s_lshl_b32 s76, s6, 11"); A(f"s_add_u32 s76, s76, {GP_OFF}")
    if int(fpfull):
        A("v_lshlrev_b32 v15, 10, v14"); A("v_lshl_add_u32 v15, v6, 4, v15"); A("v_bfe_u32 v9, v2, 3, 1"); A("v_lshl_add_u32 v15, v9, 6, v15")
    else:
        A("v_lshlrev_b32 v15, 10, v14"); A("v_lshl_add_u32 v15, v6, 5, v15")
    A("s_lshl_b32 s78, s6, 13"); A("s_add_u32 s78, s78, s69"); A(f"s_add_u32 s78, s78, {FP_OFF}")
    for p in range(8):
        A(f"s_add_u32 s{16+p}, s76, {p*28*2048}")
    if int(xtrig) == 0: g.flag_wait(F_K, 4, 3, 9)
    elif int(xtrig) == 1: g.flag_wait(F_Q, 1, 3, 9)
    else: g.flag_wait(F_K2, 4, 3, 9)
    g.flag_wait(F_PUB if int(pubw) else F_GD, 2, 3, 9)
    A(f"s_mov_b32 s68, {WDT}"); A(f"s_mov_b32 s69, {WDT2}"); A("s_add_u32 s101, s100, 128")
    for i in range(8):
        A("s_mov_b32 m0, s68")
        A("s_add_u32 s68, s68, 1024")
        A(f"buffer_load_dwordx4 v10, s[48:51], s100 offen {g.ntw} lds")
        A("s_add_u32 s100, s100, 8192")
        if dshift:
            A("s_mov_b32 m0, s69")
            A("s_add_u32 s69, s69, 1024")
            A(f"buffer_load_dwordx4 v10, s[48:51], s101 offen {g.ntw} lds")
            A("s_add_u32 s101, s101, 8192")
    lds_ = []
    for p in range(8):
        lds_.append(f"buffer_load_dwordx4 v[{16+8*p}:{19+8*p}], v11, s[52:55], s{16+p} offen sc1")
        lds_.append(f"buffer_load_dwordx4 v[{20+8*p}:{23+8*p}], v11, s[52:55], s{16+p} offen offset:1024 sc1")
    tagpoll(lds_, [16+4*k for k in range(16)], 8, qsleep, vaddr=11)
    g.stamp(5)
    if stamps and not only:
        A("s_waitcnt lgkmcnt(0)")
        A("s_sub_u32 s88, 0x3ffff, s15"); A("s_mul_i32 s88, s88, 10"); A("s_add_u32 s88, s88, s80"); A("s_mov_b32 s89, s81")
    WD = 128
    for p in range(8):
        unpack(80 + 8*p, [16+8*p, 18+8*p, 20+8*p, 22+8*p])
    for mat in range(2):
        b0 = 80 + mat*32
        for e in range(8):
            A(f"v_add_f32 v{b0+e}, v{b0+e}, v{b0+8+e}"); A(f"v_add_f32 v{b0+16+e}, v{b0+16+e}, v{b0+24+e}")
        for e in range(8):
            A(f"v_add_f32 v{b0+e}, v{b0+e}, v{b0+16+e}")
    rbf(list(range(80, 88)) + list(range(112, 120)))
    silu(list(range(80, 88)), 88)
    rbf(list(range(80, 88)))
    for e in range(8):
        A(f"v_mul_f32 v{80+e}, v{80+e}, v{112+e}")
    for e in range(4):
        A(f"v_cvt_pk_bf16_f32 v{16+e}, v{80+2*e}, v{81+2*e}")
    g.flag_wait(F_Q, 1, 3, 9)
    for sub in range(NSUB):
        base = (WDT, WDT2)[sub]
        WD = (128, 80)[sub]
        for t in range(2):
            for nt in range(4):
                r = WD + (t*4 + nt)*4
                off = base + t*4096 + (((nt & 1)*8 + (nt >> 1)*64) if int(fpfull) else nt*8)
                A(f"ds_read_b64_tr_b16 v[{r}:{r+1}], v12 offset:{off}")
                A(f"ds_read_b64_tr_b16 v[{r+2}:{r+3}], v12 offset:{off+512}")
    A("s_waitcnt lgkmcnt(0)")
    for sub in range(NSUB):
        WD = (128, 80)[sub]
        for t in range(2):
            for nt in range(4):
                r = WD + (t*4 + nt)*4
                d = 32 + t*16 + nt*4
                A(f"v_mfma_f32_16x16x32_bf16 v[{d}:{d+3}], v[{r}:{r+3}], v[16:19], 0")
        nop(8)
        if int(fpfull):
            for e in range(8):
                A(f"v_add_f32_dpp v{64+e}, v{48+e}, v{32+e} row_ror:8 row_mask:0xf bank_mask:0x3")
                A(f"v_add_f32_dpp v{64+e}, v{40+e}, v{56+e} row_ror:8 row_mask:0xf bank_mask:0xc")
            for e in range(4):
                A(f"v_cvt_pk_bf16_f32 v{72+e}, v{64+2*e}, v{65+2*e}")
            for e in range(4):
                A(f"v_min_u32 v{72+e}, -2, v{72+e}")
            A("buffer_store_dwordx4 v[72:75], v15, s[52:55], s78 offen sc1")
            continue
        for e in range(16):
            A(f"v_add_f32_dpp v{32+e}, v{48+e}, v{32+e} row_ror:8 row_mask:0xf bank_mask:0xf")
        o = 64 + 8*sub
        for e in range(8):
            A(f"v_cvt_pk_bf16_f32 v{o+e}, v{32+2*e}, v{33+2*e}")
        for e in range(8):
            A(f"v_min_u32 v{o+e}, -2, v{o+e}")
        exec_mask(0x00ff00ff)
        A(f"buffer_store_dwordx4 v[{o}:{o+3}], v15, s[52:55], s78 offen offset:{128*sub} sc1")
        A(f"buffer_store_dwordx4 v[{o+4}:{o+7}], v15, s[52:55], s78 offen offset:{128*sub+16} sc1")
        A("s_mov_b64 exec, -1")
    g.stamp(6)
    lab("L_fin")
    g.stamp_flush()
    lab("L_end")
    A("s_endpgm")
    tail = ['.section .rodata,"a"', ".p2align 6", f".amdhsa_kernel {KN}",
            "  .amdhsa_next_free_vgpr 168", "  .amdhsa_next_free_sgpr 102", "  .amdhsa_accum_offset 168",
            "  .amdhsa_group_segment_fixed_size 0", "  .amdhsa_kernarg_size 96", "  .amdhsa_user_sgpr_count 2",
            "  .amdhsa_user_sgpr_kernarg_segment_ptr 1", "  .amdhsa_system_sgpr_workgroup_id_x 1",
            "  .amdhsa_float_denorm_mode_32 3",
            ".end_amdhsa_kernel"]
    return "\n".join(hdr + g.L + tail) + "\n"

if __name__ == "__main__":
    out = sys.argv[1] if len(sys.argv) > 1 else "recurrent_scan__sliding_block_cached__swiglu_ffn__decode.s"
    stamps = "--stamps" in sys.argv
    kw = {}
    for a in sys.argv[2:]:
        if "=" in a:
            k, v = a.split("=", 1); kw[k] = v
    open(out, "w").write(build(stamps=stamps, **kw))
```

```python
import sys, struct
from gen import G, f32bits, KN

QP_OFF = 0x00000
GP_OFF = 0x80000
O_OFF = 0xF0000
ML_OFF = 0x1C0000
SP_OFF = 0x132000
FP_OFF = 0x172000
FL_OFF = 0x1B0000
EP_OFF = 0x1B8000
TAGMUL = 0x9E3779B1
MLD_OFF = 0x3E0000
DUP = 0x200000
STAMP_OFF = 0x1000000
F_XN, F_Q, F_W, F_MX, F_ML, F_K, F_V0, F_V1, F_PUB, F_K2, F_WO, F_WT, F_WD, F_EP = 0, 4, 8, 12, 16, 20, 24, 28, 32, 36, 40, 44, 48, 60
F_TOK = F_V1
F_GD = 52
WDT2 = 30720 + 20480
WT = 2432
MX = 64; LL = 128; GL = 192
XN = 256; XNP = 272
QL = 2560
PL = 3584; PLP = 528
WOT = 6144
WDT = 22528
W1T = 30720
RED = W1T
VT = 63488
KA = 129024
LDS_BYTES = 161792
LOG2E = 1.4426950408889634

def build(stamps=False, ntkv="nt", ntw="nt", thr=5, vthr=48, kdelay=0, vdelay=1, qsleep=2, cut=0, sample=0, dyn=1, vthr2=40, noclr=0, nost=0, kq=10, kv=16, wolate=0, dbgspan=0, mlchunk=6, xtrig=0, osleep=0, mlsleep=2, only='', bmask=7, qdual=0, dlate=0, tailst=0, olate=1, mlrep=1, dshift=0, spx4=1, vpre=0, touch=0, kearly=0, fmap=1, fchunk=6, fsl=4, fmode=2, wopos=64, wread=7, ssl=0, tchunk=0, t2chunk=7, fpfull=1, fsl2=2, gfull=1, mlfull=0, pubw=1, kvw=-1, clrlate=0):
    wp = int(wopos); wread = int(wread)
    dshift = int(dshift)
    tailst = int(tailst)
    kq = int(kq); kv = int(kv); wolate = int(wolate)
    g = G(stamps, ntkv, ntw, thr)
    g.nwaves = 9
    g.only = [int(c) for c in only] if only else None
    vthr = int(vthr); kdelay = int(kdelay); vdelay = int(vdelay); qsleep = int(qsleep); cut = int(cut)
    A = g.A; lab = g.lab; nop = g.nop
    hdr = ["; Fused decode block: LN -> (GQA attention over the last 1024 cached keys -> wo) * silu(SwiGLU FFN) + x",
           "; kernarg: x, k_cache, v_cache, wq, wo, B_x(unused), w_gate, w_up, w_down, out, debug, ws (8-byte pointers)",
           "; One persistent launch, 256 workgroups x 9 waves (generated by gen/gen24.py (gen20 lineage)):",
           ";   waves 0-3 attention + wo stage, 4/5 q / gate-up split-K tiles (5: final stage), 6 clears + q gather,",
           ";   7 down projection, 8 V / wo LDS-DMA loader.  Hand-offs go through ws: launch-tagged granules",
           ";   (tag = epoch word + 1) or sentinel words cleared by their producer and confirmed by tagged tokens.",
           f"; @launch grid=(256,1,1) block=(576,1,1) lds={LDS_BYTES}",
           '.amdgcn_target "amdgcn-amd-amdhsa--gfx950"', ".text", f".globl {KN}", ".p2align 8",
           f".type {KN},@function", f"{KN}:"]
    def rbf(regs):
        for r in regs: A(f"v_cvt_pk_bf16_f32 v{r}, v{r}, v{r}")
        for r in regs: A(f"v_and_b32 v{r}, 0xffff0000, v{r}")
    def unpack(dst, srcs):
        for e, sr in enumerate(srcs):
            A(f"v_lshlrev_b32 v{dst+2*e}, 16, v{sr}")
            A(f"v_and_b32 v{dst+2*e+1}, 0xffff0000, v{sr}")
    def silu(regs, tmp):
        A(f"s_mov_b32 s68, 0x{f32bits(-LOG2E):08x}")
        for i, r in enumerate(regs): A(f"v_mul_f32 v{tmp+i}, s68, v{r}")
        for i, r in enumerate(regs): A(f"v_exp_f32 v{tmp+i}, v{tmp+i}")
        nop(1)
        for i, r in enumerate(regs): A(f"v_add_f32 v{tmp+i}, 1.0, v{tmp+i}")
        for i, r in enumerate(regs): A(f"v_rcp_f32 v{tmp+i}, v{tmp+i}")
        nop(1)
        for i, r in enumerate(regs): A(f"v_mul_f32 v{r}, v{r}, v{tmp+i}")
    def exec_mask(m):
        A(f"s_mov_b32 exec_lo, 0x{m:08x}"); A(f"s_mov_b32 exec_hi, 0x{m:08x}")
    def tagpoll(loads, quads, vt, sleep, vaddr=None):
        l = g.newlab("TP"); d = g.newlab("TD")
        A("s_mov_b32 s15, 0x3ffff")
        if vaddr is not None and int(qdual):
            A(f"v_add_u32 v{vaddr}, 0x{DUP:x}, v{vaddr}")
        lab(l)
        for s_ in loads: A(s_)
        if vaddr is not None and int(qdual):
            A("s_and_b32 s14, s15, 3"); A("s_cmp_lt_u32 s14, 2")
            A(f"s_cselect_b32 s14, 0x{DUP:x}, 0")
            A(f"v_xor_b32 v{vaddr}, s14, v{vaddr}")
        A("s_waitcnt vmcnt(0)")
        first = True
        for q in quads:
            if first:
                A(f"v_xor_b32 v{vt}, s4, v{q+1}"); first = False
            else:
                A(f"v_xor_b32 v{vt+1}, s4, v{q+1}"); A(f"v_or_b32 v{vt}, v{vt}, v{vt+1}")
            A(f"v_xor_b32 v{vt+1}, s5, v{q+3}"); A(f"v_or_b32 v{vt}, v{vt}, v{vt+1}")
        A(f"v_cmp_ne_u32 vcc, 0, v{vt}")
        A("s_and_b64 exec, exec, vcc"); A(f"s_cbranch_scc0 {d}")
        if sleep: A(f"s_sleep {sleep}")
        A("s_sub_u32 s15, s15, 1"); A("s_cmp_lg_u32 s15, 0"); A(f"s_cbranch_scc1 {l}")
        lab(d)
        A("s_mov_b64 exec, -1")
    def down_ids(skb, scg, none):
        if dshift:
            A("s_cmp_ge_u32 s70, 4"); A(f"s_cbranch_scc1 {none}")
            A("s_cmp_ge_u32 s71, 28"); A(f"s_cbranch_scc1 {none}")
            A(f"s_mul_i32 s{scg}, s70, 28"); A(f"s_add_u32 s{scg}, s{scg}, s71")
            A(f"s_lshr_b32 s{skb}, s{scg}, 2"); A(f"s_and_b32 s{scg}, s{scg}, 3"); A(f"s_lshl_b32 s{scg}, s{scg}, 1")
        else:
            A("s_cmp_eq_u32 s70, 7"); A(f"s_cbranch_scc1 {none}")
            A(f"s_mov_b32 s{skb}, s74"); A(f"s_mov_b32 s{scg}, s75")
    def tokcheck(va, sb, sw1):
        l = g.newlab("TK"); d = g.newlab("TKD")
        A("s_mov_b32 s15, 0x40000")
        lab(l)
        A(f"buffer_load_dwordx2 v[20:21], v{va}, s[52:55], s{sb} offen sc1")
        A("s_waitcnt vmcnt(0)")
        A("v_xor_b32 v22, s4, v20"); A(f"v_xor_b32 v23, s{sw1}, v21")
        A("v_and_b32 v24, -16, v23"); A("v_or_b32 v24, v24, v22")
        A("v_cmp_ne_u32 vcc, 0, v24")
        A("s_and_b64 exec, exec, vcc"); A(f"s_cbranch_scc0 {d}")
        A("s_sleep 8")
        A("s_sub_u32 s15, s15, 1"); A("s_cmp_lg_u32 s15, 0"); A(f"s_cbranch_scc1 {l}")
        lab(d)
        A("s_mov_b64 exec, -1")
    A("s_cmp_ge_u32 s2, 256"); A("s_cbranch_scc1 L_end")
    A("s_load_dwordx16 s[4:19], s[0:1], 0")
    A("s_load_dwordx8 s[20:27], s[0:1], 64")
    g.stamp(0)
    if int(dbgspan): A("s_memrealtime s[98:99]")
    A("v_lshrrev_b32 v1, 6, v0")
    A("v_and_b32 v2, 63, v0")
    A("v_readfirstlane_b32 s3, v1")
    A("v_mov_b32 v3, 0"); A("v_mov_b32 v4, 1")
    A("v_and_b32 v5, 15, v2"); A("v_lshrrev_b32 v6, 4, v2")
    for d, n in ((28, 67108864), (32, 67108864), (44, 4194304), (48, 1835008), (52, 268435456), (56, 8192), (60, 8192)):
        A(f"s_mov_b32 s{d+2}, {n}"); A(f"s_mov_b32 s{d+3}, 0x00020000")
    A("s_mov_b32 s39, 0x00020000")
    A("s_and_b32 s70, s2, 7")
    A("s_lshr_b32 s71, s2, 3")
    A("s_lshr_b32 s72, s71, 2")
    A("s_and_b32 s73, s71, 3")
    A("s_lshl_b32 s74, s70, 2"); A("s_lshr_b32 s68, s71, 3"); A("s_add_u32 s74, s74, s68")
    A("s_and_b32 s75, s71, 7")
    A("s_lshl_b32 s64, s72, 3"); A("s_add_u32 s64, s64, s70"); A("s_lshl_b32 s64, s64, 20")
    A("s_lshl_b32 s68, s73, 16"); A("s_add_u32 s64, s64, s68"); A(f"s_add_u32 s64, s64, {3072*256}")
    A("s_cmp_ge_u32 s3, 4"); A("s_cbranch_scc1 L_H")

    KR = 16; QF = 80; SR = 96; PP = 112; ACC = 120
    PBF = 16
    VF = 48
    A("s_lshl_b32 s68, s3, 14"); A("s_add_u32 s76, s64, s68")
    A("v_xor_b32 v7, v5, v6"); A("v_lshlrev_b32 v7, 4, v7")
    A("v_lshl_add_u32 v128, v6, 8, v7")
    for j in range(1, 4): A(f"v_xor_b32 v{128+j}, {j*64}, v128")
    A("v_lshl_add_u32 v132, v5, 8, v7"); A("s_lshl_b32 s68, s3, 13"); A("v_add_u32 v132, s68, v132")
    for t in range(1, 4): A(f"v_xor_b32 v{132+t}, {t*64}, v132")
    for t in range(4): A(f"v_add_u32 v{136+t}, 0x{KA:x}, v{132+t}")
    A(f"s_add_u32 s77, s68, {KA}"); A(f"s_add_u32 s78, s68, {W1T}")
    A("s_waitcnt lgkmcnt(0)")
    for d, b in ((28, 6), (52, 26)):
        A(f"s_mov_b32 s{d}, s{b}"); A(f"s_mov_b32 s{d+1}, s{b+1}")
    A("s_barrier")
    for n in range(16):
        if n == 8:
            g.flag_wait(F_GD, 2, 3, 10)
        if g.thr and n >= g.thr: A(f"s_waitcnt vmcnt({g.thr-1})")
        sm = 77 if n < 8 else 78
        A(f"s_mov_b32 m0, s{sm}")
        A(f"s_add_u32 s{sm}, s{sm}, 1024")
        A(f"buffer_load_dwordx4 v{128 + (n & 3)}, s[28:31], s76 offen {g.ntkv} lds")
        A("s_add_u32 s76, s76, 1024")
        if n + 1 == kv:
            if int(kvw) >= 0: A(f"s_waitcnt vmcnt({int(kvw)})")
            g.flag_add(F_K2, 3, 4)
        if n + 1 == kq: g.flag_add(F_K, 3, 4)
    if not tailst: g.stamp(1)
    if cut:
        A("s_waitcnt vmcnt(0)"); g.stamp(2); A("s_branch L_fin")
    A(f"s_mov_b32 s78, 0x{f32bits(LOG2E * (128 ** -0.5)):08x}")
    A("v_and_b32 v11, 3, v2")
    A("v_lshlrev_b32 v12, 8, v11"); A("v_lshl_add_u32 v12, v6, 4, v12")
    A("v_lshlrev_b32 v13, 4, v11")
    A("s_lshl_b32 s68, s3, 2"); A("v_add_u32 v14, s68, v13")
    A(f"v_mul_u32_u24 v8, {PLP}, v11"); A("v_lshl_add_u32 v9, v6, 4, v8")
    A("v_lshl_add_u32 v8, v6, 3, v8"); A("s_lshl_b32 s68, s3, 7"); A("v_add_u32 v8, s68, v8")
    A("v_lshrrev_b32 v124, 2, v5")
    A("v_and_b32 v125, 1, v6"); A("v_lshl_add_u32 v125, v125, 2, v124"); A("v_lshlrev_b32 v125, 1, v125")
    A("v_lshrrev_b32 v126, 1, v11"); A("s_lshl_b32 s68, s3, 2"); A("v_add_u32 v126, s68, v126"); A("v_xor_b32 v126, v126, v125")
    A("v_lshlrev_b32 v126, 4, v126"); A("v_and_b32 v125, 1, v2"); A("v_lshl_add_u32 v126, v125, 3, v126")
    A("v_lshl_add_u32 v125, v6, 3, v124"); A("v_lshl_add_u32 v126, v125, 8, v126")
    A("v_xor_b32 v127, 32, v126")
    A(f"v_add_u32 v126, {VT}, v126"); A(f"v_add_u32 v127, {VT}, v127")
    A("v_lshlrev_b32 v125, 6, v11"); A("v_lshl_add_u32 v125, v6, 4, v125")
    A("s_lshl_b32 s79, s70, 2"); A("s_add_u32 s79, s79, s73"); A("s_lshl_b32 s79, s79, 3"); A("s_add_u32 s79, s79, s72")
    A("s_lshl_b32 s79, s79, 2"); A("s_add_u32 s79, s79, s3"); A("s_lshl_b32 s79, s79, 8"); A(f"s_add_u32 s79, s79, {O_OFF}")
    for T in range(4):
        A(f"s_waitcnt vmcnt({12 - 4*T})")
        for t in range(4):
            r = KR + (T*4 + t)*4
            if T < 2: A(f"ds_read_b128 v[{r}:{r+3}], v{136+t} offset:{T*4096}")
            else: A(f"ds_read_b128 v[{r}:{r+3}], v{132+t} offset:{W1T + (T-2)*4096}")
    g.flag_wait(F_Q, 1, 3, 10)
    if not tailst: g.stamp(2)
    for t in range(4):
        A(f"ds_read_b128 v[{QF+4*t}:{QF+4*t+3}], v12 offset:{QL + t*64}")
    A("s_waitcnt lgkmcnt(0)")
    for T in range(4):
        for t in range(4):
            r = KR + (T*4 + t)*4
            cc = "0" if t == 0 else f"v[{SR+4*T}:{SR+4*T+3}]"
            A(f"v_mfma_f32_16x16x32_bf16 v[{SR+4*T}:{SR+4*T+3}], v[{r}:{r+3}], v[{QF+4*t}:{QF+4*t+3}], {cc}")
    nop(4)
    A(f"v_max3_f32 v10, v{SR}, v{SR+1}, v{SR+2}")
    for i in range(3, 11, 2):
        A(f"v_max3_f32 v10, v10, v{SR+i}, v{SR+i+1}")
    A(f"v_max_f32 v10, v10, v{SR+11}")
    A(f"v_max3_f32 v10, v10, v{SR+12}, v{SR+13}")
    A(f"v_max3_f32 v10, v10, v{SR+14}, v{SR+15}")
    g.xrow("v_max_f32", [10], [15])
    A("s_mov_b64 exec, 15")
    A(f"ds_write_b32 v14, v10 offset:{MX}")
    g.flag_add(F_MX, 3, 4)
    g.flag_wait(F_MX, 4, 3, 15, sleep=False)
    A(f"ds_read_b128 v[{PP}:{PP+3}], v13 offset:{MX}")
    A("s_waitcnt lgkmcnt(0)")
    A(f"v_max3_f32 v10, v{PP}, v{PP+1}, v{PP+2}"); A(f"v_max_f32 v10, v10, v{PP+3}")
    A("v_mul_f32 v10, s78, v10")
    for i in range(16):
        A(f"v_fma_f32 v{SR+i}, v{SR+i}, s78, -v10")
    for i in range(16):
        A(f"v_exp_f32 v{SR+i}, v{SR+i}")
    nop(1)
    for i in range(8):
        A(f"v_cvt_pk_bf16_f32 v{PP+i}, v{SR+2*i}, v{SR+2*i+1}")
    exec_mask(0x000F000F)
    for T in range(4):
        A(f"ds_write_b64 v8, v[{PP+2*T}:{PP+2*T+1}] offset:{PL + T*32}")
    A("s_mov_b64 exec, -1")
    A(f"v_add_f32 v10, v{SR}, v{SR+1}"); A(f"v_add_f32 v15, v{SR+2}, v{SR+3}")
    for i in range(4, 16, 2):
        A(f"v_add_f32 v10, v10, v{SR+i}"); A(f"v_add_f32 v15, v15, v{SR+i+1}")
    A("v_add_f32 v10, v10, v15")
    g.xrow("v_add_f32", [10], [15])
    A("s_mov_b64 exec, 15")
    A(f"ds_write_b32 v14, v10 offset:{LL}")
    g.flag_add(F_ML, 3, 4)
    g.flag_wait(F_ML, 4, 3, 15, sleep=False)
    for t in range(8):
        A(f"ds_read_b128 v[{PBF+4*t}:{PBF+4*t+3}], v9 offset:{PL + t*64}")
    if not tailst: g.stamp(3)
    A("s_lshl_b32 s68, s3, 4"); A("v_mov_b32 v113, s68")
    A(f"ds_read_b128 v[116:119], v113 offset:{MX}")
    A(f"ds_read_b128 v[120:123], v113 offset:{LL}")
    A("s_waitcnt lgkmcnt(0)")
    A("v_max3_f32 v114, v116, v117, v118"); A("v_max_f32 v114, v114, v119"); A("v_mul_f32 v114, s78, v114")
    A("v_add_f32 v115, v120, v121"); A("v_add_f32 v116, v122, v123"); A("v_add_f32 v115, v115, v116")
    A("v_min_u32 v114, -2, v114"); A("v_min_u32 v115, -2, v115")
    A("s_lshl_b32 s36, s70, 2"); A("s_add_u32 s36, s36, s3"); A("s_lshl_b32 s36, s36, 8"); A("s_lshl_b32 s68, s71, 3"); A("s_add_u32 s36, s36, s68")
    A(f"s_add_u32 s36, s36, {MLD_OFF}")
    A("s_lshl_b32 s37, s70, 5"); A("s_add_u32 s37, s37, s71"); A("s_lshl_b32 s37, s37, 7"); A("s_lshl_b32 s68, s3, 3"); A("s_add_u32 s37, s37, s68")
    A(f"s_add_u32 s37, s37, {ML_OFF}")
    A("v_and_b32 v100, 7, v2")
    A("v_lshl_add_u32 v101, v6, 2, v124"); A("v_bfe_u32 v109, v101, 1, 2"); A("v_lshlrev_b32 v101, 7, v101")
    A("v_lshl_add_u32 v101, v109, 5, v101"); A("v_lshl_add_u32 v101, v11, 3, v101")
    A("s_and_b32 s68, s3, 1"); A("s_lshl_b32 s69, s68, 13"); A("v_add_u32 v101, s69, v101")
    A("v_xor_b32 v109, 32, v101"); A("v_xor_b32 v110, 64, v101"); A("v_xor_b32 v111, 0x60, v101")
    A("v_lshlrev_b32 v102, 10, v5"); A("v_lshl_add_u32 v102, v6, 4, v102")
    A("s_lshl_b32 s77, s70, 15"); A("s_lshr_b32 s69, s3, 1"); A("s_lshl_b32 s69, s69, 14"); A("s_add_u32 s77, s77, s69")
    A("s_lshl_b32 s68, s68, 9"); A("s_add_u32 s77, s77, s68")
    A("s_lshr_b32 s68, s71, 3"); A("s_lshl_b32 s68, s68, 6"); A("s_add_u32 s77, s77, s68"); A(f"s_add_u32 s77, s77, {O_OFF}")
    A("v_bfe_u32 v103, v2, 3, 1"); A("s_lshl_b32 s68, s3, 1"); A("v_add_u32 v104, s68, v103"); A("v_mul_u32_u24 v104, 2176, v104")
    A("v_mul_u32_u24 v105, 272, v100"); A("v_add_u32 v104, v104, v105"); A("v_lshl_add_u32 v104, v6, 4, v104")
    A("s_and_b32 s69, s3, 2"); A("v_add_u32 v103, s69, v103"); A("v_lshl_add_u32 v103, v103, 4, v5"); A("v_lshlrev_b32 v103, 2, v103")
    A("v_lshl_add_u32 v108, v100, 2, v6"); A("v_lshlrev_b32 v108, 7, v108")
    A("s_lshl_b32 s65, s70, 12"); A("s_lshr_b32 s69, s71, 3"); A("s_lshl_b32 s69, s69, 3"); A("s_add_u32 s65, s65, s69"); A(f"s_add_u32 s65, s65, {ML_OFF}")
    A("v_lshrrev_b32 v105, 5, v2"); A("v_add_u32 v106, s68, v105"); A("v_mul_u32_u24 v106, 272, v106")
    A("v_and_b32 v107, 31, v2"); A("v_lshl_add_u32 v106, v107, 3, v106")
    A("v_lshlrev_b32 v105, 10, v105"); A("v_lshl_add_u32 v105, v107, 2, v105")
    A("s_lshl_b32 s78, s74, 3"); A("s_add_u32 s78, s78, s68"); A("s_lshl_b32 s78, s78, 10")
    A("s_lshl_b32 s69, s75, 7"); A("s_add_u32 s78, s78, s69"); A(f"s_add_u32 s78, s78, {SP_OFF}")
    A(f"s_add_u32 s66, s79, {DUP}"); A(f"s_add_u32 s67, s77, {DUP}"); A("s_lshl_b32 s40, s74, 8"); A(f"s_add_u32 s40, s40, {MLD_OFF}"); A("v_lshrrev_b32 v112, 4, v108")
    A("s_mov_b32 s76, 0")
    A("s_waitcnt lgkmcnt(0)")
    def pv_mfma(t):
        vf = 128 + (t & 3)*8
        for nt in range(2):
            acc = 64 + 4*nt
            cc = "0" if t == 0 else f"v[{acc}:{acc+3}]"
            A(f"v_mfma_f32_16x16x32_bf16 v[{acc}:{acc+3}], v[{vf+4*nt}:{vf+4*nt+3}], v[{PBF+4*t}:{PBF+4*t+3}], {cc}")
    def bf(nt, t):
        i = nt*2 + t
        return 48 + 4*i if i < 4 else 80 + 4*(i - 4)
    def wo_frags():
        for nt in range(4):
            for t2 in range(2):
                r = bf(nt, t2)
                off = WOT + t2*4096
                va = (101, 109, 110, 111)[nt]
                A(f"ds_read_b64_tr_b16 v[{r}:{r+1}], v{va} offset:{off}")
                A(f"ds_read_b64_tr_b16 v[{r+2}:{r+3}], v{va} offset:{off + 2048}")
    for t in range(8):
        lw = g.newlab("VW"); lr = g.newlab("VR")
        if wp < 64 and t == wread:
            g.flag_wait(F_WO, 1, 3, 10, sleep=False)
            wo_frags()
            A("s_waitcnt lgkmcnt(0)")
        A(f"s_cmp_gt_u32 s76, {t}"); A(f"s_cbranch_scc1 {lr}")
        A("s_mov_b32 s15, 0x400000")
        lab(lw)
        A(f"ds_read_b64 v[{SR}:{SR+1}], v3 offset:{F_V0}")
        A("s_waitcnt lgkmcnt(0)")
        A(f"v_add_u32 v{SR+1}, 7, v{SR+1}")
        A(f"v_min_u32 v{SR}, v{SR}, v{SR+1}")
        A(f"v_readfirstlane_b32 s41, v{SR+1}")
        A("s_sub_u32 s15, s15, 1")
        A(f"v_readfirstlane_b32 s76, v{SR}")
        A("s_cmp_eq_u32 s15, 0"); A(f"s_cbranch_scc1 {lr}")
        A(f"s_cmp_gt_u32 s76, {t}"); A(f"s_cbranch_scc0 {lw}")
        lab(lr)
        vf = 128 + (t & 3)*8
        for nt in range(2):
            A(f"ds_read_b64_tr_b16 v[{vf+4*nt}:{vf+4*nt+1}], v{126+nt} offset:{t*8192}")
            A(f"ds_read_b64_tr_b16 v[{vf+4*nt+2}:{vf+4*nt+3}], v{126+nt} offset:{t*8192 + 1024}")
        if t >= 2:
            A("s_waitcnt lgkmcnt(8)")
            pv_mfma(t - 2)
    A("s_cmp_eq_u32 s41, 8")
    A("s_cselect_b32 s67, s67, s77"); A("s_cselect_b32 s40, s40, s65"); A("s_cselect_b64 s[42:43], -1, 0")
    A("v_cndmask_b32 v112, v108, v112, s[42:43]")
    A("s_waitcnt lgkmcnt(4)")
    pv_mfma(6)
    A("s_waitcnt lgkmcnt(0)")
    pv_mfma(7)
    g.stamp(4)
    exec_mask(0x000F000F)
    nop(5)
    A("v_cvt_pk_bf16_f32 v72, v64, v65"); A("v_cvt_pk_bf16_f32 v73, v66, v67")
    A("v_cvt_pk_bf16_f32 v74, v68, v69"); A("v_cvt_pk_bf16_f32 v75, v70, v71")
    for e in range(4): A(f"v_min_u32 v{72+e}, -2, v{72+e}")
    A("s_cmp_eq_u32 s41, 8"); A("s_cbranch_scc0 L_oglob")
    A("buffer_store_dwordx4 v[72:75], v125, s[52:55], s66 offen")
    if int(mlrep):
        A("s_mov_b64 exec, 1")
        A("buffer_store_dwordx2 v[114:115], v3, s[52:55], s36 offen")
    A("s_branch L_ostored")
    lab("L_oglob")
    A("buffer_store_dwordx4 v[72:75], v125, s[52:55], s79 offen sc1")
    lab("L_ostored")
    A("s_mov_b64 exec, -1")
    g.stamp(5)
    AF = 64
    def oloads(so):
        return [f"buffer_load_dwordx4 v[{AF}:{AF+3}], v102, s[52:55], s{so} offen sc1",
                f"buffer_load_dwordx4 v[{AF+4}:{AF+7}], v102, s[52:55], s{so} offen offset:256 sc1"]
    def mloads(sm):
        return [f"buffer_load_dwordx2 v[76:77], v{112 if sm == 40 else 108}, s[52:55], s{sm} offen sc1"]
    def ensure_store():
        le = g.newlab("ES")
        A(f"s_cmp_lg_u32 s41, 0"); A(f"s_cbranch_scc1 {le}")
        A("s_mov_b32 s41, 1")
        A("s_mov_b64 s[42:43], exec")
        exec_mask(0x000F000F)
        A("buffer_store_dwordx4 v[72:75], v125, s[52:55], s79 offen sc1")
        A("s_mov_b64 exec, s[42:43]")
        lab(le)
    def dualpoll(la, lb_, regs, first_wait):
        l0 = g.newlab("OP"); l1 = g.newlab("OC"); ld = g.newlab("OD"); lb = g.newlab("OB"); l2 = g.newlab("OW")
        A("s_mov_b32 s15, 0x40000")
        A(f"s_waitcnt vmcnt({first_wait})")
        A(f"s_branch {l1}")
        lab(l0)
        A(f"s_and_b32 s14, s15, {int(bmask)}"); A("s_cmp_eq_u32 s14, 0"); A(f"s_cbranch_scc1 {lb}")
        for l_ in la: A(l_)
        A(f"s_branch {l2}")
        lab(lb)
        ensure_store()
        for l_ in lb_: A(l_)
        lab(l2)
        A("s_waitcnt vmcnt(0)")
        lab(l1)
        rs = list(regs)
        if len(rs) == 2:
            A(f"v_max_u32 v10, v{rs[0]}, v{rs[1]}")
        else:
            A(f"v_max3_u32 v10, v{rs[0]}, v{rs[1]}, v{rs[2]}"); A(f"v_max3_u32 v15, v{rs[3]}, v{rs[4]}, v{rs[5]}")
            A(f"v_max3_u32 v10, v10, v{rs[6]}, v{rs[7]}"); A("v_max_u32 v10, v10, v15")
        A("v_cmp_eq_u32 vcc, -1, v10")
        A("s_and_b64 exec, exec, vcc"); A(f"s_cbranch_scc0 {ld}")
        if int(osleep): A(f"s_sleep {int(osleep)}")
        A("s_sub_u32 s15, s15, 1"); A("s_cmp_lg_u32 s15, 0"); A(f"s_cbranch_scc1 {l0}")
        lab(ld)
        A("s_mov_b64 exec, -1")
    if wp == 64:
        g.poll(mloads(40), [76, 77], 10, sleep=int(osleep))
        for l_ in oloads(67): A(l_)
    else:
        for l_ in mloads(40) + oloads(67): A(l_)
        g.poll(mloads(40), [76, 77], 10, preissued=True)
    if tailst: g.stamp(1)
    A("v_mov_b32 v78, v76")
    g.xrow("v_max_f32", [78], [79])
    A("v_sub_f32 v76, v76, v78")
    A("v_exp_f32 v76, v76")
    nop(1)
    A("v_mul_f32 v77, v76, v77")
    A("ds_bpermute_b32 v76, v103, v76")
    g.xrow("v_add_f32", [77], [79])
    A("v_rcp_f32 v77, v77")
    A("s_waitcnt lgkmcnt(0)")
    A("v_mul_f32 v76, v76, v77"); A("v_mov_b32 v77, v76")
    if wp == 64:
        g.flag_wait(F_WO, 1, 3, 10, sleep=False)
        wo_frags()
    if tailst: g.stamp(2)
    g.poll(oloads(67), list(range(AF, AF+8)), 10, preissued=True, sleep=int(osleep))
    A("s_waitcnt lgkmcnt(0)")
    if tailst:
        A("s_sub_u32 s86, 0x40000, s15"); A("s_add_u32 s86, s86, s80"); A("s_mov_b32 s87, s81")
    g.stamp(6)
    DW = 16
    for t in range(2):
        for nt in range(4):
            r = bf(nt, t)
            cc = "0" if t == 0 else f"v[{DW+4*nt}:{DW+4*nt+3}]"
            A(f"v_mfma_f32_16x16x32_bf16 v[{DW+4*nt}:{DW+4*nt+3}], v[{r}:{r+3}], v[{AF+4*t}:{AF+4*t+3}], {cc}")
    nop(5)
    for nt in range(4):
        A(f"v_pk_mul_f32 v[{DW+4*nt}:{DW+4*nt+1}], v[{DW+4*nt}:{DW+4*nt+1}], v[76:77]")
        A(f"v_pk_mul_f32 v[{DW+4*nt+2}:{DW+4*nt+3}], v[{DW+4*nt+2}:{DW+4*nt+3}], v[76:77]")
        A(f"ds_write_b128 v104, v[{DW+4*nt}:{DW+4*nt+3}] offset:{RED + nt*64}")
    A("s_waitcnt lgkmcnt(0)")
    A("s_barrier")
    for p in range(8):
        A(f"ds_read_b64 v[{32+2*p}:{33+2*p}], v106 offset:{RED + p*2176}")
    A("s_waitcnt lgkmcnt(4)") if (not stamps or only) else A("s_waitcnt lgkmcnt(0)")
    A("v_pk_add_f32 v[32:33], v[32:33], v[34:35]"); A("v_pk_add_f32 v[36:37], v[36:37], v[38:39]")
    A("v_pk_add_f32 v[32:33], v[32:33], v[36:37]")
    A("s_waitcnt lgkmcnt(0)")
    A("v_pk_add_f32 v[40:41], v[40:41], v[42:43]"); A("v_pk_add_f32 v[44:45], v[44:45], v[46:47]")
    A("v_pk_add_f32 v[40:41], v[40:41], v[44:45]")
    A("v_pk_add_f32 v[32:33], v[32:33], v[40:41]")
    A("v_cvt_pk_bf16_f32 v32, v32, v33")
    A("v_min_u32 v32, -2, v32")
    if int(spx4):
        nop(2)
        A("v_mov_b32_dpp v33, v32 quad_perm:[1,1,1,1] row_mask:0xf bank_mask:0xf")
        A("v_mov_b32_dpp v34, v32 quad_perm:[2,2,2,2] row_mask:0xf bank_mask:0xf")
        A("v_mov_b32_dpp v35, v32 quad_perm:[3,3,3,3] row_mask:0xf bank_mask:0xf")
        exec_mask(0x11111111)
        A("buffer_store_dwordx4 v[32:35], v105, s[52:55], s78 offen sc1")
        A("s_mov_b64 exec, -1")
    else:
        A("buffer_store_dword v32, v105, s[52:55], s78 offen sc1")
    g.stamp(7)
    A("s_branch L_fin")

    lab("L_H")
    A("s_cmp_eq_u32 s3, 8"); A("s_cbranch_scc1 L_load")
    A("s_setprio 3")
    A("v_lshlrev_b32 v7, 4, v2")
    A("s_sub_u32 s77, s3, 4")
    A("s_cmp_lg_u32 s3, 7"); A("s_cbranch_scc1 L_noinit")
    A("v_lshlrev_b32 v8, 2, v5")
    A("ds_write_b32 v8, v3")
    lab("L_noinit")
    A("v_lshrrev_b32 v8, 3, v2"); A("v_and_b32 v9, 7, v2"); A("v_lshlrev_b32 v9, 4, v9")
    A("s_lshl_b32 s68, s77, 11")
    A(f"s_mov_b32 s69, 0x{EP_OFF:x}")
    A("s_waitcnt lgkmcnt(0)")
    A("s_load_dword s79, s[26:27], s69")
    for d, b in ((32, 8), (44, 12), (48, 20), (52, 26), (56, 4)):
        A(f"s_mov_b32 s{d}, s{b}"); A(f"s_mov_b32 s{d+1}, s{b+1}")
    XR = 16
    for r in range(2):
        A(f"buffer_load_dwordx4 v[{XR+4*r}:{XR+4*r+3}], v7, s[56:59], s68 offen offset:{r*1024}")
    A("s_cmp_ge_u32 s3, 6"); A("s_cbranch_scc1 L_SX0")
    A("s_cmp_eq_u32 s3, 5"); A("s_cbranch_scc1 L_G1")
    A("s_mov_b32 s36, s10"); A("s_mov_b32 s37, s11"); A("s_mov_b32 s38, 4194304")
    A("s_lshl_b32 s76, s70, 3"); A("s_add_u32 s76, s76, s72"); A("s_lshl_b32 s76, s76, 7")
    A("s_movk_i32 s69, 8192")
    A("s_lshl_b32 s78, s73, 17"); A("s_lshl_b32 s68, s76, 4"); A("s_add_u32 s78, s78, s68")
    A(f"s_add_u32 s78, s78, {QP_OFF}")
    A("s_branch L_GJ")
    lab("L_G1")
    A("s_cmp_eq_u32 s70, 7"); A("s_cbranch_scc1 L_LN0")
    A("s_bitcmp1_b32 s71, 2")
    A("s_cselect_b32 s36, s18, s16"); A("s_cselect_b32 s37, s19, s17"); A("s_mov_b32 s38, 1835008")
    A("s_lshl_b32 s76, s74, 7")
    A("s_movk_i32 s69, 3584")
    A("s_and_b32 s78, s71, 7"); A(f"s_mul_i32 s78, s78, {28*2048}"); A("s_lshl_b32 s68, s76, 4"); A("s_add_u32 s78, s78, s68")
    A(f"s_add_u32 s78, s78, {GP_OFF}")
    lab("L_GJ")
    A("v_mul_lo_u32 v10, v8, s69"); A("v_add_u32 v10, v10, v9")
    A("s_lshl_b32 s68, s73, 7"); A("s_mul_i32 s68, s68, s69"); A("s_add_u32 s100, s76, s68")
    A("s_lshl_b32 s101, s69, 3")
    A("s_lshl_b32 s68, s77, 14"); A(f"s_add_u32 s68, s68, {W1T}")
    for i in range(16):
        A("s_mov_b32 m0, s68")
        A("s_add_u32 s68, s68, 1024")
        A(f"buffer_load_dwordx4 v10, s[36:39], s100 offen {g.ntw} lds")
        A("s_add_u32 s100, s100, s101")
    A("s_barrier")
    A("s_waitcnt vmcnt(16)")
    A("s_branch L_LN")
    lab("L_SX0")
    A("s_cmp_eq_u32 s3, 7"); A("s_cbranch_scc1 L_LN0")
    def s_clears():
        if int(noclr): A("s_branch L_LN0")
        for r in range(4):
            A(f"v_mov_b32 v{24+r}, -1")
        A("s_lshl_b32 s68, s70, 2"); A("s_add_u32 s68, s68, s73"); A("s_lshl_b32 s68, s68, 3"); A("s_add_u32 s68, s68, s72")
        A("s_lshl_b32 s68, s68, 10"); A(f"s_add_u32 s68, s68, {O_OFF}")
        A("buffer_store_dwordx4 v[24:27], v7, s[52:55], s68 offen sc1")
        A(f"s_add_u32 s68, s68, {DUP}")
        A("buffer_store_dwordx4 v[24:27], v7, s[52:55], s68 offen sc1")
        A("v_lshl_add_u32 v10, v8, 10, v9")
        A("s_lshl_b32 s68, s74, 13"); A("s_lshl_b32 s69, s75, 7"); A("s_add_u32 s68, s68, s69")
        A(f"s_add_u32 s69, s68, {SP_OFF}")
        A("buffer_store_dwordx4 v[24:27], v10, s[52:55], s69 offen sc1")
        down_ids(68, 69, "L_nofp")
        A("s_lshl_b32 s68, s68, 13"); A("s_lshl_b32 s69, s69, 7"); A("s_add_u32 s69, s69, s68"); A(f"s_add_u32 s69, s69, {FP_OFF}")
        A("buffer_store_dwordx4 v[24:27], v10, s[52:55], s69 offen sc1")
        if dshift: A("buffer_store_dwordx4 v[24:27], v10, s[52:55], s69 offen offset:128 sc1")
        lab("L_nofp")
        A("s_lshl_b32 s68, s70, 5"); A("s_add_u32 s68, s68, s71"); A("s_lshl_b32 s68, s68, 7"); A(f"s_add_u32 s68, s68, {ML_OFF}")
        if int(mlfull):
            A("s_mov_b64 exec, 0xff")
            A("buffer_store_dwordx4 v[24:27], v7, s[52:55], s68 offen sc1")
            A("s_mov_b64 exec, -1")
            A("s_cmp_lg_u32 s71, 0"); A("s_cbranch_scc1 L_nomld")
            A("s_lshl_b32 s68, s70, 10"); A(f"s_add_u32 s68, s68, {MLD_OFF}")
            A("buffer_store_dwordx4 v[24:27], v7, s[52:55], s68 offen sc1")
            lab("L_nomld")
        else:
            A("s_mov_b64 exec, 3")
            A("buffer_store_dwordx4 v[24:27], v7, s[52:55], s68 offen sc1")
            A("s_mov_b64 exec, 15")
            A("v_lshlrev_b32 v10, 8, v2")
            A("s_lshl_b32 s68, s70, 10"); A("s_lshl_b32 s69, s71, 3"); A("s_add_u32 s68, s68, s69"); A(f"s_add_u32 s68, s68, {MLD_OFF}")
            A("buffer_store_dwordx2 v[24:25], v10, s[52:55], s68 offen sc1")
            A("s_mov_b64 exec, -1")
    if not int(clrlate):
        s_clears()
        A("s_barrier")
        A(f"s_waitcnt vmcnt({4 if int(mlfull) else 5})")
        A("s_cmp_eq_u32 s70, 7"); A("s_cbranch_scc1 L_LN")
        A("s_nop 0")
        A("s_branch L_LN") if False else None
        A("s_waitcnt vmcnt(4)") if False else None
        A("s_branch L_LN")
    lab("L_LN0")
    A("s_barrier")
    A("s_waitcnt vmcnt(0)")
    lab("L_LN")
    if cut == 1:
        g.flag_add(F_W, 3, 4); A("s_branch L_fin")
    XF = 32
    for r in range(2):
        unpack(XF + 8*r, [XR + 4*r + e for e in range(4)])
    SM = 64
    for r in range(2):
        A(f"v_add_f32 v{SM+r}, v{XF+8*r}, v{XF+8*r+1}"); A(f"v_add_f32 v{SM+2+r}, v{XF+8*r+2}, v{XF+8*r+3}")
    for e in range(4, 8, 2):
        for r in range(2):
            A(f"v_add_f32 v{SM+r}, v{SM+r}, v{XF+8*r+e}"); A(f"v_add_f32 v{SM+2+r}, v{SM+2+r}, v{XF+8*r+e+1}")
    for r in range(2):
        A(f"v_add_f32 v{SM+r}, v{SM+r}, v{SM+2+r}")
    g.allreduce64("v_add_f32", [SM, SM+1], [SM+4, SM+5])
    A(f"s_mov_b32 s68, 0x{f32bits(1.0/512):08x}")
    for r in range(2):
        A(f"v_mul_f32 v{SM+r}, s68, v{SM+r}")
    VS = 72
    for e in range(8):
        for r in range(2):
            A(f"v_sub_f32 v{80+2*(e&1)+r}, v{XF+8*r+e}, v{SM+r}")
        for r in range(2):
            t_ = 80+2*(e&1)+r
            if e == 0: A(f"v_mul_f32 v{VS+r}, v{t_}, v{t_}")
            else: A(f"v_fmac_f32 v{VS+r}, v{t_}, v{t_}")
    g.allreduce64("v_add_f32", [VS, VS+1], [VS+4, VS+5])
    for r in range(2):
        A(f"v_mul_f32 v{VS+r}, s68, v{VS+r}")
    rbf([SM, SM+1, VS, VS+1])
    for r in range(2):
        A(f"v_add_f32 v{VS+r}, 0x{f32bits(1e-5):08x}, v{VS+r}")
    rbf([VS, VS+1])
    for r in range(2):
        A(f"v_sqrt_f32 v{VS+r}, v{VS+r}")
    nop(1)
    rbf([VS, VS+1])
    for r in range(2):
        A(f"v_rcp_f32 v{VS+r}, v{VS+r}")
    for r in range(2):
        for e in range(8):
            A(f"v_sub_f32 v{XF+8*r+e}, v{XF+8*r+e}, v{SM+r}")
    for r in range(2):
        for e in range(4):
            A(f"v_cvt_pk_bf16_f32 v{XR+4*r+e}, v{XF+8*r+2*e}, v{XF+8*r+2*e+1}")
    for r in range(2):
        unpack(XF + 8*r, [XR + 4*r + e for e in range(4)])
    for r in range(2):
        for e in range(8):
            A(f"v_mul_f32 v{XF+8*r+e}, v{XF+8*r+e}, v{VS+r}")
    for r in range(2):
        for e in range(4):
            A(f"v_cvt_pk_bf16_f32 v{XR+4*r+e}, v{XF+8*r+2*e}, v{XF+8*r+2*e+1}")
    A(f"s_mul_i32 s68, s77, {2*XNP}"); A("v_lshlrev_b32 v11, 4, v5"); A("v_add_u32 v11, s68, v11")
    A("v_cmp_eq_u32 vcc, s73, v6")
    A("s_and_saveexec_b64 s[68:69], vcc")
    for r in range(2):
        A(f"ds_write_b128 v11, v[{XR+4*r}:{XR+4*r+3}] offset:{XN + r*XNP}")
    g.flag_add(F_XN, 3, 4)
    g.stamp(2)
    A("s_add_u32 s4, s79, 1"); A(f"s_mul_i32 s5, s4, 0x{TAGMUL:x}")
    A("v_lshrrev_b32 v12, 2, v5"); A("v_lshl_add_u32 v12, v6, 3, v12"); A("v_lshlrev_b32 v12, 7, v12")
    A("v_and_b32 v13, 3, v2")
    A("v_and_b32 v14, 7, v2")
    A("s_cmp_ge_u32 s3, 6"); A("s_cbranch_scc1 L_SX1")
    A("s_cmp_lg_u32 s3, 5"); A("s_cbranch_scc1 L_Ggo")
    A("s_cmp_lg_u32 s70, 7"); A("s_cbranch_scc1 L_Ggo")
    g.flag_add(F_W, 3, 4)
    g.flag_add(F_GD, 3, 4)
    if int(pubw): g.flag_add(F_PUB, 3, 4)
    A("s_branch L_G1post")
    lab("L_Ggo")
    A(f"v_mul_u32_u24 v11, {XNP}, v14"); A("v_lshl_add_u32 v11, v6, 4, v11")
    A("v_lshl_add_u32 v12, v13, 3, v12")
    A("s_lshl_b32 s68, s77, 14"); A("v_add_u32 v12, s68, v12")
    A("s_cmp_eq_u32 s3, 5"); A("s_cbranch_scc1 L_dstG")
    A("v_lshlrev_b32 v15, 8, v14"); A("v_lshl_add_u32 v15, v6, 4, v15")
    A("s_mov_b32 s8, s78"); A("s_add_u32 s9, s78, 64"); A("s_add_u32 s10, s78, 128"); A("s_add_u32 s11, s78, 192")
    if int(gfull): A("v_bfe_u32 v9, v2, 3, 1"); A("v_lshl_add_u32 v15, v9, 6, v15")
    A("s_branch L_dstJ")
    lab("L_dstG")
    A("v_and_b32 v15, 1, v6"); A("v_lshlrev_b32 v15, 10, v15"); A("v_lshrrev_b32 v9, 1, v6"); A("v_lshl_add_u32 v15, v9, 8, v15")
    A("v_lshl_add_u32 v15, v14, 4, v15")
    A("s_mov_b32 s8, s78"); A("s_add_u32 s9, s78, 512"); A("s_add_u32 s10, s78, 128"); A("s_add_u32 s11, s78, 640")
    if int(gfull): A("v_bfe_u32 v9, v2, 3, 1"); A("v_lshl_add_u32 v15, v9, 9, v15")
    lab("L_dstJ")
    for nt in range(4):
        A(f"v_mov_b32 v{113+4*nt}, s4"); A(f"v_mov_b32 v{115+4*nt}, s5")
    A(f"s_add_u32 s66, s78, {DUP}")
    g.flag_wait(F_XN, 4, 3, 10)
    XB = 16
    for t in range(4):
        A(f"ds_read_b128 v[{XB+4*t}:{XB+4*t+3}], v11 offset:{XN + t*64}")
    WB = 32
    for t in range(4):
        A(f"s_waitcnt vmcnt({12 - 4*t})")
        if t == 3:
            g.flag_add(F_W, 3, 4)
        for nt in range(4):
            r = WB + (t*4 + nt)*4
            off = W1T + t*4096 + nt*32
            A(f"ds_read_b64_tr_b16 v[{r}:{r+1}], v12 offset:{off}")
            A(f"ds_read_b64_tr_b16 v[{r+2}:{r+3}], v12 offset:{off+512}")
        A("s_waitcnt lgkmcnt(0)")
        for nt in range(4):
            r = WB + (t*4 + nt)*4
            d = 96 + nt*4
            cc = "0" if t == 0 else f"v[{d}:{d+3}]"
            A(f"v_mfma_f32_16x16x32_bf16 v[{d}:{d+3}], v[{r}:{r+3}], v[{XB+4*t}:{XB+4*t+3}], {cc}")
    g.stamp(3)
    g.flag_add(F_GD, 3, 4)
    exec_mask(0x00ff00ff)
    nop(2)
    if int(gfull):
        for pr in range(2):
            A(f"v_cvt_pk_bf16_f32 v{112+4*pr}, v{96+8*pr}, v{97+8*pr}"); A(f"v_cvt_pk_bf16_f32 v{114+4*pr}, v{98+8*pr}, v{99+8*pr}")
        exec_mask(0xff00ff00)
        for pr in range(2):
            A(f"v_cvt_pk_bf16_f32 v{112+4*pr}, v{100+8*pr}, v{101+8*pr}"); A(f"v_cvt_pk_bf16_f32 v{114+4*pr}, v{102+8*pr}, v{103+8*pr}")
        A("s_mov_b64 exec, -1")
        A("buffer_store_dwordx4 v[112:115], v15, s[52:55], s78 offen sc1")
        A("buffer_store_dwordx4 v[116:119], v15, s[52:55], s78 offen offset:128 sc1")
    for nt in range(4 if not int(gfull) else 0):
        A(f"v_cvt_pk_bf16_f32 v{112+4*nt}, v{96+4*nt}, v{97+4*nt}")
        A(f"v_cvt_pk_bf16_f32 v{114+4*nt}, v{98+4*nt}, v{99+4*nt}")
        if int(qdual): A(f"buffer_store_dwordx4 v[{112+4*nt}:{115+4*nt}], v15, s[52:55], s66 offen offset:{nt*512}")
        else: A(f"buffer_store_dwordx4 v[{112+4*nt}:{115+4*nt}], v15, s[52:55], s{8+nt} offen sc1")
    if int(qdual):
      for nt in range(4):
        A(f"buffer_store_dwordx4 v[{112+4*nt}:{115+4*nt}], v15, s[52:55], s78 offen offset:{nt*512} sc1")
    A("s_mov_b64 exec, -1")
    g.stamp(4)
    if int(pubw):
        A("s_waitcnt vmcnt(0)")
        g.flag_add(F_PUB, 3, 4)
    lab("L_Gpost")
    A("s_cmp_eq_u32 s3, 5"); A("s_cbranch_scc1 L_G1post")
    A("s_lshl_b32 s6, s70, 8"); A(f"s_add_u32 s6, s6, {FL_OFF}")
    A("s_getreg_b32 s7, hwreg(HW_REG_XCC_ID, 0, 4)")
    A("s_andn2_b32 s8, s5, 15"); A("s_or_b32 s8, s8, s7")
    A("v_and_b32 v19, 31, v2"); A("v_lshlrev_b32 v19, 3, v19")
    if int(tchunk): g.flag_wait(F_V0, int(tchunk), 3, 10)
    else: g.flag_wait(F_K2, 4, 3, 10)
    g.stamp(5)
    tokcheck(19, 6, 8)
    A("v_cmp_ne_u32 vcc, 0, v23")
    A("s_cmp_lg_u64 vcc, 0")
    A("s_cselect_b32 s8, 2, 1")
    A("v_mov_b32 v20, s8")
    A(f"ds_write_b32 v3, v20 offset:{F_TOK}")
    g.stamp(6)
    A("s_waitcnt lgkmcnt(0)")
    A("s_branch L_fin")
    lab("L_G1post")
    if cut:
        A("s_waitcnt lgkmcnt(0)"); A("s_branch L_fin")
    A("s_mov_b32 s60, s22"); A("s_mov_b32 s61, s23")
    A("s_lshl_b32 s68, s72, 10"); A("s_lshl_b32 s69, s70, 7"); A("s_add_u32 s68, s68, s69"); A("s_lshl_b32 s69, s73, 5")
    A("s_add_u32 s76, s68, s69")
    A("v_lshrrev_b32 v17, 1, v2"); A("v_and_b32 v16, 1, v2")
    A("v_lshlrev_b32 v19, 4, v16"); A("v_mov_b32 v20, 0x3f80"); A("v_lshlrev_b32 v20, v19, v20")
    A("v_bfe_u32 v19, v2, 1, 2")
    for e in range(4):
        A(f"v_cmp_eq_u32 vcc, {e}, v19")
        nop(2)
        A(f"v_cndmask_b32 v{40+e}, 0, v20, vcc")
    A("v_lshlrev_b32 v21, 4, v16"); A("v_lshl_add_u32 v21, v6, 3, v21")
    A("v_min_u32 v18, 27, v17")
    A("v_lshlrev_b32 v18, 13, v18"); A("v_lshl_add_u32 v18, v16, 4, v18")
    A("v_lshlrev_b32 v17, 13, v17"); A("v_lshl_add_u32 v17, v16, 4, v17")
    A(f"s_add_u32 s77, s76, {FP_OFF}"); A(f"s_add_u32 s78, s76, {SP_OFF}")
    A("buffer_load_dwordx2 v[44:45], v21, s[56:59], s76 offen")
    fm = int(fmode)
    if fm == 0:
        g.flag_wait(F_TOK, 1, 3, 10)
        g.flag_wait(F_V0, int(fchunk), 3, 10)
    elif fm == 1:
        g.flag_wait(F_TOK, 1, 3, 10)
        g.flag_wait(F_WO, 1, 3, 10)
    else:
        A("v_bfe_u32 v26, v2, 2, 3"); A("v_lshlrev_b32 v26, 8, v26"); A("v_and_b32 v27, 3, v2"); A("v_lshl_add_u32 v26, v27, 6, v26")
        A("s_lshl_b32 s6, s70, 3"); A(f"s_add_u32 s6, s6, {FL_OFF}")
        A("v_mov_b32 v28, v21")
        g.flag_wait(F_V0, int(t2chunk), 3, 10)
        tokcheck(26, 6, 5)
        A("v_mov_b32 v21, v28")
        A("s_waitcnt lgkmcnt(0)")
        A("s_barrier")
    g.stamp(5)
    g.poll(["buffer_load_dwordx4 v[32:35], v18, s[52:55], s77 offen sc1"], [32, 33, 34, 35], 10, sleep=int(fsl) if fm == 0 else int(fsl2))
    if fm == 2:
        A("buffer_load_dwordx4 v[56:59], v17, s[52:55], s78 offen sc1")
    g.stamp(6)
    def red_final(src=32):
        A(f"v_mfma_f32_16x16x32_bf16 v[36:39], v[40:43], v[{src}:{src+3}], 0")
        nop(8)
        for mod in ("row_ror:2", "row_ror:4", "row_ror:8"):
            for r in range(4):
                A(f"v_add_f32_dpp v{36+r}, v{36+r}, v{36+r} {mod} row_mask:0xf bank_mask:0xf")
    A("v_cmp_gt_u32 vcc, 56, v2")
    nop(2)
    for r in range(4):
        A(f"v_cndmask_b32 v{32+r}, 0, v{32+r}, vcc")
    nop(2)
    red_final()
    rbf([36, 37, 38, 39])
    silu([36, 37, 38, 39], 48)
    rbf([36, 37, 38, 39])
    for r in range(4): A(f"v_mov_b32 v{48+r}, v{36+r}")
    unpack(52, [44, 45])
    g.stamp(7)
    if fm != 2:
        A("s_waitcnt lgkmcnt(0)")
        A("s_barrier")
    g.poll(["buffer_load_dwordx4 v[56:59], v17, s[52:55], s78 offen sc1"], [56, 57, 58, 59], 10, preissued=(fm == 2), sleep=int(ssl))
    g.stamp(8)
    red_final(56)
    A("v_cvt_pk_bf16_f32 v32, v36, v37"); A("v_cvt_pk_bf16_f32 v33, v38, v39")
    unpack(36, [32, 33])
    A("v_pk_mul_f32 v[36:37], v[36:37], v[48:49]"); A("v_pk_mul_f32 v[38:39], v[38:39], v[50:51]")
    A("v_cvt_pk_bf16_f32 v32, v36, v37"); A("v_cvt_pk_bf16_f32 v33, v38, v39")
    unpack(36, [32, 33])
    A("v_pk_add_f32 v[36:37], v[36:37], v[52:53]"); A("v_pk_add_f32 v[38:39], v[38:39], v[54:55]")
    A("v_cvt_pk_bf16_f32 v32, v36, v37"); A("v_cvt_pk_bf16_f32 v33, v38, v39")
    A("s_mov_b64 exec, 0x30003")
    A("buffer_store_dwordx2 v[32:33], v21, s[60:63], s76 offen")
    A("s_mov_b64 exec, -1")
    g.stamp(9)
    A("s_cmp_lg_u32 s2, 0"); A("s_cbranch_scc1 L_fin")
    A("v_mov_b32 v32, s4")
    A(f"s_mov_b32 s68, {EP_OFF}")
    A("s_mov_b64 exec, 1")
    A("buffer_store_dword v32, v3, s[52:55], s68 offen sc1")
    A("s_mov_b64 exec, -1")
    A("s_branch L_fin")
    lab("L_load")
    A("s_setprio 2")
    A("v_lshrrev_b32 v8, 3, v2"); A("v_and_b32 v9, 7, v2"); A("v_lshlrev_b32 v9, 4, v9")
    A("v_lshlrev_b32 v16, 1, v6"); A("v_xor_b32 v16, v16, v5"); A("v_xor_b32 v17, 8, v16")
    A("v_lshlrev_b32 v16, 4, v16"); A("v_lshl_add_u32 v16, v6, 8, v16")
    A("v_lshlrev_b32 v17, 4, v17"); A("v_lshl_add_u32 v17, v6, 8, v17")
    A("s_mov_b32 s100, s64")
    A(f"s_mov_b32 s101, {VT}")
    A("v_lshl_add_u32 v18, v8, 10, v9")
    A("v_lshlrev_b32 v21, 5, v6"); A("v_xor_b32 v21, v21, v18")
    A("s_lshl_b32 s76, s74, 17"); A("s_lshl_b32 s68, s75, 7"); A("s_add_u32 s76, s76, s68")
    A(f"s_mov_b32 s77, {WOT}")
    A("s_lshl_b32 s78, s74, 16"); A("s_add_u32 s78, s78, s68")
    A(f"s_mov_b32 s79, {WDT}")
    A("s_waitcnt lgkmcnt(0)")
    for d, b_ in ((32, 8), (44, 12), (48, 20), (52, 26)):
        A(f"s_mov_b32 s{d}, s{b_}"); A(f"s_mov_b32 s{d+1}, s{b_+1}")
    A("s_barrier")
    if cut == 2:
        A("s_branch L_fin")
    if int(touch):
        A("s_mov_b64 exec, 1")
        A(f"buffer_load_dword v30, v3, s[44:47], s76 offen {g.ntw}")
        A(f"buffer_load_dword v31, v3, s[48:51], s78 offen {g.ntw}")
        if not int(vpre): A(f"buffer_load_dword v32, v3, s[32:35], s100 offen {g.ntkv}")
        A("s_mov_b64 exec, -1")
        A("s_waitcnt vmcnt(0)")
    if vdelay and not int(vpre):
        g.flag_wait(F_K2, 4, 3, 10)
    g.stamp(5)
    NV = 64
    dl = int(dlate)
    assert dl == 0
    seq = [("v", i) for i in range(wp)] + [("w", i) for i in range(16)] + [("v", i) for i in range(wp, NV)]
    NT = len(seq)
    marks = {}
    for k in range(8, NV + 1, 8): marks[k if k <= wp else k + 16] = ("V", k // 8)
    marks[wp + 16] = ("F", F_WO)
    def publish(k):
        if k in marks:
            kind, val = marks.pop(k)
            if kind == "V":
                A(f"v_mov_b32 v20, {val}")
                A(f"ds_write_b32 v3, v20 offset:{F_V0}")
            else:
                A(f"ds_write_b32 v3, v4 offset:{val}")
    for i, (kind, j) in enumerate(seq):
        if int(vpre) and i == int(vpre) and vdelay:
            g.flag_wait(F_K2, 4, 3, 10)
        if i >= vthr:
            A(f"s_waitcnt vmcnt({vthr-1})")
            publish(i - vthr + 1)
        if kind == "v":
            A("s_mov_b32 m0, s101")
            A("s_add_u32 s101, s101, 1024")
            A(f"buffer_load_dwordx4 v{16 + ((j >> 1) & 1)}, s[32:35], s100 offen {g.ntkv} lds")
            A("s_add_u32 s100, s100, 1024")
        elif kind == "w":
            A("s_mov_b32 m0, s77")
            A("s_add_u32 s77, s77, 1024")
            A(f"buffer_load_dwordx4 v21, s[44:47], s76 offen {g.ntw} lds")
            A("s_add_u32 s76, s76, 8192")
        else:
            A("s_mov_b32 m0, s79")
            A("s_add_u32 s79, s79, 1024")
            A(f"buffer_load_dwordx4 v18, s[48:51], s78 offen {g.ntw} lds")
            A("s_add_u32 s78, s78, 8192")
    g.stamp(6)
    for k in sorted(marks):
        A(f"s_waitcnt vmcnt({NT - k})")
        publish(k)
    g.stamp(7)
    A("s_waitcnt lgkmcnt(0)")
    A("s_branch L_fin")
    lab("L_SX1")
    A("s_cmp_eq_u32 s3, 7"); A("s_cbranch_scc1 L_X")
    if int(clrlate):
        A("v_lshrrev_b32 v8, 3, v2"); A("v_and_b32 v9, 7, v2"); A("v_lshlrev_b32 v9, 4, v9")
        s_clears()
    A("s_getreg_b32 s6, hwreg(HW_REG_XCC_ID, 0, 4)")
    A("s_andn2_b32 s7, s5, 15"); A("s_or_b32 s7, s7, s6")
    A("v_mov_b32 v16, s4"); A("v_mov_b32 v17, s7")
    A("s_lshl_b32 s7, s70, 5"); A("s_add_u32 s7, s7, s71"); A("s_lshl_b32 s7, s7, 3"); A(f"s_add_u32 s7, s7, {FL_OFF}")
    A("s_waitcnt vmcnt(0)")
    A("s_mov_b64 exec, 1")
    A("buffer_store_dwordx2 v[16:17], v3, s[52:55], s7 offen sc1")
    A(f"ds_write_b32 v3, v16 offset:{F_EP}")
    A("s_mov_b64 exec, -1")
    g.stamp(1)
    if cut in (2, 3):
        A("s_branch L_fin")
    A("v_lshlrev_b32 v9, 11, v6"); A("v_lshl_add_u32 v9, v5, 4, v9")
    A("s_lshl_b32 s16, s70, 14"); A("s_lshl_b32 s69, s72, 8"); A("s_add_u32 s16, s16, s69"); A(f"s_add_u32 s16, s16, {QP_OFF}")
    for k in range(1, 8):
        A(f"s_add_u32 s{16+k}, s16, {(k>>1)*131072 + (k&1)*8192}")
    A("v_lshlrev_b32 v8, 3, v2")
    A("v_bfe_u32 v12, v2, 3, 2"); A("v_lshlrev_b32 v12, 17, v12"); A("v_lshl_add_u32 v12, v14, 11, v12")
    g.flag_wait(F_K, 4, 3, 10)
    if int(pubw): g.flag_wait(F_PUB, 2, 3, 10)
    g.stamp(7)
    if int(sample):
        tagpoll([f"buffer_load_dwordx4 v[16:19], v12, s[52:55], s16 offen offset:{3*512+48} sc1"], [16], 10, qsleep)
    g.stamp(8)
    tagpoll([f"buffer_load_dwordx4 v[{16+4*k}:{19+4*k}], v9, s[52:55], s{16+k} offen sc1" for k in range(8)],
            [16+4*k for k in range(8)], 10, qsleep, vaddr=9)
    g.stamp(3)
    if stamps and not only:
        A("s_waitcnt lgkmcnt(0)")
        A("s_sub_u32 s88, 0x3ffff, s15"); A("s_mul_i32 s88, s88, 10"); A("s_add_u32 s88, s88, s80"); A("s_mov_b32 s89, s81")
    for k in range(8):
        unpack(48 + 4*k, [16+4*k, 18+4*k])
    for i in range(2):
        for e in range(4):
            A(f"v_add_f32 v{48+4*i+e}, v{48+4*i+e}, v{56+4*i+e}"); A(f"v_add_f32 v{64+4*i+e}, v{64+4*i+e}, v{72+4*i+e}")
    for e in range(8):
        A(f"v_add_f32 v{48+e}, v{48+e}, v{64+e}")
    for e in range(4):
        A(f"v_cvt_pk_bf16_f32 v{16+e}, v{48+2*e}, v{49+2*e}")
    A(f"ds_write_b64 v8, v[16:17] offset:{QL}")
    A(f"ds_write_b64 v8, v[18:19] offset:{QL+512}")
    g.flag_add(F_Q, 3, 4)
    g.stamp(5)
    if cut == 4:
        A("s_branch L_fin")
    A("v_lshlrev_b32 v8, 3, v2"); A("v_lshlrev_b32 v9, 4, v13")
    A("s_lshl_b32 s6, s70, 12"); A(f"s_add_u32 s6, s6, {ML_OFF}")
    A("s_lshl_b32 s68, s71, 7"); A("s_add_u32 s68, s68, s6")
    A(f"s_mov_b32 s78, 0x{f32bits(LOG2E * (128 ** -0.5)):08x}")
    A("v_and_b32 v12, 31, v2"); A("v_lshlrev_b32 v11, 2, v12"); A("v_lshlrev_b32 v12, 7, v12")
    A("s_lshr_b32 s69, s71, 3"); A("s_lshl_b32 s69, s69, 3"); A("s_add_u32 s6, s6, s69")
    g.flag_wait(F_ML, 4, 3, 10)
    A(f"ds_read_b128 v[16:19], v9 offset:{MX}")
    A(f"ds_read_b128 v[20:23], v9 offset:{LL}")
    A("s_waitcnt lgkmcnt(0)")
    A("v_max3_f32 v24, v16, v17, v18"); A("v_max_f32 v24, v24, v19"); A("v_mul_f32 v24, s78, v24")
    A("v_add_f32 v25, v20, v21"); A("v_add_f32 v26, v22, v23"); A("v_add_f32 v25, v25, v26")
    A("v_min_u32 v24, -2, v24"); A("v_min_u32 v25, -2, v25")
    A("s_lshl_b32 s69, s70, 10"); A("s_lshl_b32 s7, s71, 3"); A("s_add_u32 s69, s69, s7"); A(f"s_add_u32 s69, s69, {MLD_OFF}")
    if int(mlfull):
        g.flag_wait(F_TOK, 1, 3, 10)
        A("v_lshlrev_b32 v10, 8, v2")
        A("s_cmp_eq_u32 s14, 1"); A("s_cbranch_scc0 L_mlglob")
        A("s_mov_b64 exec, 15")
        A("buffer_store_dwordx2 v[24:25], v10, s[52:55], s69 offen")
        A("s_branch L_mldone")
        lab("L_mlglob")
        A("s_mov_b64 exec, 0xffff")
        A("buffer_store_dwordx2 v[24:25], v8, s[52:55], s68 offen sc1")
        lab("L_mldone")
        A("s_mov_b64 exec, -1")
    else:
        A("v_lshlrev_b32 v10, 8, v2")
        A("s_mov_b64 exec, 15")
        A("buffer_store_dwordx2 v[24:25], v10, s[52:55], s69 offen")
        A("buffer_store_dwordx2 v[24:25], v8, s[52:55], s68 offen sc1")
        A("s_mov_b64 exec, -1")
    g.stamp(6)
    if stamps:
        A("s_waitcnt vmcnt(0)")
        g.stamp(9)
    A("s_branch L_fin")
    lab("L_X")
    if cut in (2, 3, 4):
        A("s_branch L_fin")
    down_ids(6, 7, "L_fin")
    NSUB = 2 if dshift else 1
    assert not (dshift and int(fpfull))
    A(f"v_lshl_add_u32 v12, v13, {4 if int(fpfull) else 5}, v12")
    A("v_lshl_add_u32 v10, v8, 10, v9")
    A("s_lshl_b32 s100, s6, 16"); A("s_lshl_b32 s69, s7, 7"); A("s_add_u32 s100, s100, s69")
    A("v_mov_b32 v11, v7")
    A("s_lshl_b32 s76, s6, 11"); A(f"s_add_u32 s76, s76, {GP_OFF}")
    if int(fpfull):
        A("v_lshlrev_b32 v15, 10, v14"); A("v_lshl_add_u32 v15, v6, 4, v15"); A("v_bfe_u32 v9, v2, 3, 1"); A("v_lshl_add_u32 v15, v9, 6, v15")
    else:
        A("v_lshlrev_b32 v15, 10, v14"); A("v_lshl_add_u32 v15, v6, 5, v15")
    A("s_lshl_b32 s78, s6, 13"); A("s_add_u32 s78, s78, s69"); A(f"s_add_u32 s78, s78, {FP_OFF}")
    for p in range(8):
        A(f"s_add_u32 s{16+p}, s76, {p*28*2048}")
    if int(xtrig) == 0: g.flag_wait(F_K, 4, 3, 9)
    elif int(xtrig) == 1: g.flag_wait(F_Q, 1, 3, 9)
    else: g.flag_wait(F_K2, 4, 3, 9)
    g.flag_wait(F_PUB if int(pubw) else F_GD, 2, 3, 9)
    A(f"s_mov_b32 s68, {WDT}"); A(f"s_mov_b32 s69, {WDT2}"); A("s_add_u32 s101, s100, 128")
    for i in range(8):
        A("s_mov_b32 m0, s68")
        A("s_add_u32 s68, s68, 1024")
        A(f"buffer_load_dwordx4 v10, s[48:51], s100 offen {g.ntw} lds")
        A("s_add_u32 s100, s100, 8192")
        if dshift:
            A("s_mov_b32 m0, s69")
            A("s_add_u32 s69, s69, 1024")
            A(f"buffer_load_dwordx4 v10, s[48:51], s101 offen {g.ntw} lds")
            A("s_add_u32 s101, s101, 8192")
    lds_ = []
    for p in range(8):
        lds_.append(f"buffer_load_dwordx4 v[{16+8*p}:{19+8*p}], v11, s[52:55], s{16+p} offen sc1")
        lds_.append(f"buffer_load_dwordx4 v[{20+8*p}:{23+8*p}], v11, s[52:55], s{16+p} offen offset:1024 sc1")
    tagpoll(lds_, [16+4*k for k in range(16)], 8, qsleep, vaddr=11)
    g.stamp(5)
    if stamps and not only:
        A("s_waitcnt lgkmcnt(0)")
        A("s_sub_u32 s88, 0x3ffff, s15"); A("s_mul_i32 s88, s88, 10"); A("s_add_u32 s88, s88, s80"); A("s_mov_b32 s89, s81")
    WD = 128
    for p in range(8):
        unpack(80 + 8*p, [16+8*p, 18+8*p, 20+8*p, 22+8*p])
    for mat in range(2):
        b0 = 80 + mat*32
        for e in range(8):
            A(f"v_add_f32 v{b0+e}, v{b0+e}, v{b0+8+e}"); A(f"v_add_f32 v{b0+16+e}, v{b0+16+e}, v{b0+24+e}")
        for e in range(8):
            A(f"v_add_f32 v{b0+e}, v{b0+e}, v{b0+16+e}")
    rbf(list(range(80, 88)) + list(range(112, 120)))
    silu(list(range(80, 88)), 88)
    rbf(list(range(80, 88)))
    for e in range(8):
        A(f"v_mul_f32 v{80+e}, v{80+e}, v{112+e}")
    for e in range(4):
        A(f"v_cvt_pk_bf16_f32 v{16+e}, v{80+2*e}, v{81+2*e}")
    g.flag_wait(F_Q, 1, 3, 9)
    for sub in range(NSUB):
        base = (WDT, WDT2)[sub]
        WD = (128, 80)[sub]
        for t in range(2):
            for nt in range(4):
                r = WD + (t*4 + nt)*4
                off = base + t*4096 + (((nt & 1)*8 + (nt >> 1)*64) if int(fpfull) else nt*8)
                A(f"ds_read_b64_tr_b16 v[{r}:{r+1}], v12 offset:{off}")
                A(f"ds_read_b64_tr_b16 v[{r+2}:{r+3}], v12 offset:{off+512}")
    A("s_waitcnt lgkmcnt(0)")
    for sub in range(NSUB):
        WD = (128, 80)[sub]
        for t in range(2):
            for nt in range(4):
                r = WD + (t*4 + nt)*4
                d = 32 + t*16 + nt*4
                A(f"v_mfma_f32_16x16x32_bf16 v[{d}:{d+3}], v[{r}:{r+3}], v[16:19], 0")
        nop(8)
        if int(fpfull):
            for e in range(8):
                A(f"v_add_f32_dpp v{64+e}, v{48+e}, v{32+e} row_ror:8 row_mask:0xf bank_mask:0x3")
                A(f"v_add_f32_dpp v{64+e}, v{40+e}, v{56+e} row_ror:8 row_mask:0xf bank_mask:0xc")
            for e in range(4):
                A(f"v_cvt_pk_bf16_f32 v{72+e}, v{64+2*e}, v{65+2*e}")
            for e in range(4):
                A(f"v_min_u32 v{72+e}, -2, v{72+e}")
            A("buffer_store_dwordx4 v[72:75], v15, s[52:55], s78 offen sc1")
            continue
        for e in range(16):
            A(f"v_add_f32_dpp v{32+e}, v{48+e}, v{32+e} row_ror:8 row_mask:0xf bank_mask:0xf")
        o = 64 + 8*sub
        for e in range(8):
            A(f"v_cvt_pk_bf16_f32 v{o+e}, v{32+2*e}, v{33+2*e}")
        for e in range(8):
            A(f"v_min_u32 v{o+e}, -2, v{o+e}")
        exec_mask(0x00ff00ff)
        A(f"buffer_store_dwordx4 v[{o}:{o+3}], v15, s[52:55], s78 offen offset:{128*sub} sc1")
        A(f"buffer_store_dwordx4 v[{o+4}:{o+7}], v15, s[52:55], s78 offen offset:{128*sub+16} sc1")
        A("s_mov_b64 exec, -1")
    g.stamp(6)
    lab("L_fin")
    g.stamp_flush()
    lab("L_end")
    A("s_endpgm")
    tail = ['.section .rodata,"a"', ".p2align 6", f".amdhsa_kernel {KN}",
            "  .amdhsa_next_free_vgpr 168", "  .amdhsa_next_free_sgpr 102", "  .amdhsa_accum_offset 168",
            "  .amdhsa_group_segment_fixed_size 0", "  .amdhsa_kernarg_size 96", "  .amdhsa_user_sgpr_count 2",
            "  .amdhsa_user_sgpr_kernarg_segment_ptr 1", "  .amdhsa_system_sgpr_workgroup_id_x 1",
            "  .amdhsa_float_denorm_mode_32 3",
            ".end_amdhsa_kernel"]
    return "\n".join(hdr + g.L + tail) + "\n"

if __name__ == "__main__":
    out = sys.argv[1] if len(sys.argv) > 1 else "recurrent_scan__sliding_block_cached__swiglu_ffn__decode.s"
    stamps = "--stamps" in sys.argv
    kw = {}
    for a in sys.argv[2:]:
        if "=" in a:
            k, v = a.split("=", 1); kw[k] = v
    open(out, "w").write(build(stamps=stamps, **kw))
```
